```python
import torch

def _softmax(x, axis=-1):
    return torch.softmax(x, dim=axis)

def _gelu(x):
    return torch.nn.functional.gelu(x, approximate='tanh')

def _silu(x):
    return torch.nn.functional.silu(x)

def _sigmoid(x):
    return torch.sigmoid(x)

def _layernorm(x, axis=-1, eps=1e-05):
    m = x.mean(dim=axis, keepdim=True)
    v = x.var(dim=axis, keepdim=True, unbiased=False)
    return (x - m) / torch.sqrt(v + eps)

def _scatter_add(tgt, idx, src, axis=0):
    return tgt.clone().index_add_(axis, idx, src)

def _segment_sum(src, seg, n):
    out = torch.zeros((n,) + src.shape[1:], dtype=src.dtype)
    return out.index_add_(0, seg, src)

def _pad(x, pw):
    flat = tuple((v for pair in reversed(pw) for v in pair))
    return torch.nn.functional.pad(x, flat)
kernel_name = 'parallel_sum__mha_block__mixer_gmlp__prompt'

def setup_inputs():

    _w = lambda a: (lambda t: t.to(torch.bfloat16) if t.is_floating_point() else t)(torch.as_tensor(a))

    def _A_setup():
        B, S, D, H = (1, 2048, 448, 16)
        return {'x': _w((lambda *s: torch.randn(*s, dtype=torch.bfloat16) * 0.05)(B, S, D)), 'wqkv': _w((lambda *s: torch.randn(*s, dtype=torch.bfloat16) * 0.2)(D, 3 * D)), 'wo': _w((lambda *s: torch.randn(*s, dtype=torch.bfloat16) * 0.1)(D, D))}
    _A_in = _A_setup()

    def _B_setup():
        B, S, D, F = (1, 2048, 448, 1792)
        Fh = F // 2
        return {'x': _w((lambda *s: torch.randn(*s, dtype=torch.bfloat16) * 0.05)(B, S, D)), 'w_in': _w((lambda *s: torch.randn(*s, dtype=torch.bfloat16) * 0.4)(D, 2 * Fh)), 'w_sp': _w(0.01 * (lambda *s: torch.randn(*s, dtype=torch.bfloat16) * 0.4)(S, S)), 'b_sp': _w(1.0 + 0.01 * (lambda *s: torch.randn(*s, dtype=torch.bfloat16) * 0.2)(S)), 'w_out': _w((lambda *s: torch.randn(*s, dtype=torch.bfloat16) * 0.2)(Fh, D))}
    _B_in = _B_setup()
    return {'A_x': _A_in['x'], 'A_wqkv': _A_in['wqkv'], 'A_wo': _A_in['wo'], 'B_x': _B_in['x'], 'B_w_in': _B_in['w_in'], 'B_w_sp': _B_in['w_sp'], 'B_b_sp': _B_in['b_sp'], 'B_w_out': _B_in['w_out']}

def reference(A_x, A_wqkv, A_wo, B_x, B_w_in, B_w_sp, B_b_sp, B_w_out):

    def _A_ref(x, wqkv, wo):
        B, S, D = x.shape
        H = 16
        Dh = D // H
        qkv = (lambda x, *d: x.permute(*d))((x @ wqkv).reshape(B, S, 3, H, Dh), 2, 0, 3, 1, 4)
        q, k, v = (qkv[0], qkv[1], qkv[2])
        scores = torch.einsum('bhqd,bhkd->bhqk', q, k) * Dh ** (-0.5)
        p = _softmax(scores, axis=-1)
        o = torch.einsum('bhqk,bhkd->bhqd', p, v)
        return (lambda x, *d: x.permute(*d))(o, 0, 2, 1, 3).reshape(B, S, D) @ wo

    def _B_ref(x, w_in, w_sp, b_sp, w_out):
        B, S, D = x.shape
        F = w_in.shape[-1]
        Fh = F // 2
        z = _gelu(torch.einsum('bsd,df->bsf', x, w_in))
        z1 = z[..., :Fh].clone()
        z2 = _layernorm(z[..., Fh:], axis=-1)
        g = torch.einsum('ts,bsf->btf', w_sp, z2) + b_sp[None, :, None]
        return torch.einsum('bsf,fd->bsd', z1 * g, w_out)
    x = A_x
    xn = _layernorm(x, axis=-1)
    return x + _A_ref(xn, A_wqkv, A_wo) + _B_ref(xn, B_w_in, B_w_sp, B_b_sp, B_w_out)
```

```python
import re

REG_RE = re.compile(r'^(-?)(abs\()?([vas])(\d+|\[(\d+):(\d+)\])\)?$')

def v(i, n=1): return f"v{i}" if n == 1 else f"v[{i}:{i+n-1}]"
def a(i, n=1): return f"a{i}" if n == 1 else f"a[{i}:{i+n-1}]"
def s(i, n=1): return f"s{i}" if n == 1 else f"s[{i}:{i+n-1}]"

def regs_of(tok):
    tok = tok.strip()
    if tok == 'vcc': return {('s', 'vcc')}
    if tok in ('vcc_lo','vcc_hi'): return {('s','vcc')}
    if tok == 'exec': return {('s', 'exec')}
    if tok in ('exec_lo','exec_hi'): return {('s','exec')}
    if tok == 'm0': return {('s', 'm0')}
    m = REG_RE.match(tok)
    if not m: return set()
    k = m.group(3)
    if m.group(5) is not None:
        lo, hi = int(m.group(5)), int(m.group(6))
    else:
        lo = hi = int(m.group(4))
    return {(k, i) for i in range(lo, hi + 1)}

TRANS = ('v_exp_f32', 'v_log_f32', 'v_rcp_f32', 'v_rsq_f32', 'v_sqrt_f32', 'v_sin_f32', 'v_cos_f32')
RMW_DST = ('v_fmac_f32', 'v_dot2c_f32_bf16', 'v_pk_fmac', 'v_writelane_b32')

class Instr:
    __slots__ = ('text', 'mn', 'ops', 'mods', 'defs', 'uses', 'cls', 'tag', 'wait_pre', 'nop_pre', 'passes', 'srcc', 'ab', 'data', 'cmt', 'wide_store','cnt')
    def __init__(self, text, tag=None, cmt=None):
        self.text = text.strip(); self.tag = tag; self.cmt = cmt
        self.wait_pre = None; self.nop_pre = 0
        self.defs = set(); self.uses = set(); self.passes = 0; self.srcc = set(); self.ab = set(); self.data = set()
        self.wide_store = False; self.cnt = None
        parts = self.text.split(None, 1)
        self.mn = parts[0]
        rest = parts[1] if len(parts) > 1 else ''
        toks = [t.strip() for t in rest.split(',')] if rest else []
        self.mods = []
        if toks:
            last = toks[-1].split()
            toks[-1] = last[0] if last else ''
            self.mods = last[1:]
        self.ops = toks
        self.classify()
    def R(self, i): return regs_of(self.ops[i]) if i < len(self.ops) else set()
    def classify(self):
        mn = self.mn; ops = self.ops
        base = re.sub(r'_(e32|e64|dpp|sdwa)$', '', mn)
        allsrc = lambda k: set().union(*[self.R(i) for i in range(k, len(ops))]) if len(ops) > k else set()
        if mn.startswith('v_mfma'):
            self.cls = 'mfma'
            self.defs = self.R(0); self.ab = self.R(1) | self.R(2); self.srcc = self.R(3)
            self.uses = self.ab | self.srcc
            self.passes = 8 if '32x32' in mn else (4 if '16x16' in mn else 2)
        elif mn.startswith('v_'):
            self.cls = 'trans' if base in TRANS else 'valu'
            if base.startswith('v_cmp'):
                self.defs = self.R(0); self.uses = allsrc(1) | {('s', 'exec')}
                if base.startswith('v_cmpx'): self.defs |= {('s', 'exec')}
            elif base in ('v_readfirstlane_b32', 'v_readlane_b32'):
                self.defs = self.R(0); self.uses = allsrc(1)
            elif base.startswith('v_permlane') and 'swap' in base:
                self.defs = self.R(0) | self.R(1); self.uses = set(self.defs)
            elif base in ('v_add_co_u32', 'v_sub_co_u32', 'v_subrev_co_u32'):
                self.defs = self.R(0) | self.R(1); self.uses = allsrc(2)
            elif base in ('v_addc_co_u32', 'v_subb_co_u32'):
                self.defs = self.R(0) | self.R(1); self.uses = allsrc(2)
            else:
                self.defs = self.R(0); self.uses = allsrc(1)
                if base in RMW_DST: self.uses |= self.defs
            if 'dpp' in mn or any(m.startswith(('quad_perm','row_','wave_')) for m in self.mods): self.cls = 'dpp'
        elif mn.startswith(('buffer_', 'global_')):
            self.cls = 'vmem'; self.cnt = 'vm'
            lds = 'lds' in self.mods or mn.startswith('global_load_lds')
            if mn.startswith('buffer_load'):
                if lds:
                    self.uses = allsrc(0) | {('s', 'm0')}
                else:
                    self.defs = self.R(0); self.uses = allsrc(1)
            elif mn.startswith('buffer_store'):
                self.data = self.R(0); self.uses = allsrc(0)
                self.wide_store = 'x4' in mn or 'x3' in mn
            elif mn.startswith('buffer_atomic'):
                self.data = self.R(0); self.uses = allsrc(0)
                if 'sc0' in self.mods: self.defs = self.R(0)
            elif mn.startswith(('buffer_inv', 'buffer_wbl2')):
                pass
            elif mn.startswith('global_load'):
                if lds: self.uses = allsrc(0) | {('s', 'm0')}
                else: self.defs = self.R(0); self.uses = allsrc(1)
            elif mn.startswith('global_store'):
                self.data = self.R(1); self.uses = allsrc(0); self.wide_store = 'x4' in mn or 'x3' in mn
            else: raise ValueError(mn)
        elif mn.startswith('ds_'):
            self.cls = 'ds'; self.cnt = 'lgkm'
            if mn.startswith(('ds_read', 'ds_bpermute', 'ds_permute', 'ds_swizzle')):
                self.defs = self.R(0); self.uses = allsrc(1)
            elif '_rtn' in mn:
                self.defs = self.R(0); self.uses = allsrc(1)
            else:
                self.uses = allsrc(0); self.data = allsrc(1)
        elif mn.startswith('s_'):
            self.cls = 'salu'
            if mn.startswith(('s_load', 's_buffer_load', 's_memtime', 's_memrealtime')):
                self.cls = 'smem'; self.cnt = 'smem'
                self.defs = self.R(0); self.uses = allsrc(1)
            elif mn.startswith(('s_cmp', 's_bitcmp')):
                self.uses = allsrc(0); self.defs = {('s', 'scc')}
            elif mn.startswith(('s_waitcnt', 's_barrier', 's_nop', 's_setprio', 's_endpgm', 's_sleep')):
                self.cls = 'ctl'
            elif mn.startswith(('s_branch', 's_cbranch')):
                self.cls = 'branch'
            elif 'saveexec' in mn:
                self.defs = self.R(0) | {('s', 'exec'), ('s', 'scc')}; self.uses = allsrc(1) | {('s', 'exec')}
            else:
                self.defs = self.R(0); self.uses = allsrc(1)
                if mn in ('s_addk_i32','s_mulk_i32'): self.uses |= self.defs
        else:
            raise ValueError("unknown instr " + text)
    def is_valu(self): return self.cls in ('valu', 'trans', 'dpp')

class Label:
    def __init__(self, name): self.name = name
class Raw:
    def __init__(self, text): self.text = text
class WaitTag:
    def __init__(self, *tags): self.tags = set(tags); self.vm = None; self.lgkm = None
class Loop:
    def __init__(self, body, visits=3): self.body = body; self.visits = visits
class Opt:
    def __init__(self, body): self.body = body
class Drain:
    pass

class Prog:
    def __init__(self):
        self.items = []; self.stack = [self.items]
    def I(self, text, tag=None, cmt=None):
        ins = Instr(text, tag, cmt); self.stack[-1].append(ins); return ins
    def __call__(self, text, tag=None, cmt=None):
        r = None
        for line in text.strip().split('\n'):
            line = line.split(';')[0].strip()
            if line: r = self.I(line, tag, cmt)
        return r
    def label(self, name): self.stack[-1].append(Label(name))
    def raw(self, text): self.stack[-1].append(Raw(text))
    def wait(self, *tags): self.stack[-1].append(WaitTag(*tags))
    def waitall(self): self.I("s_waitcnt vmcnt(0) lgkmcnt(0)")
    def begin_loop(self, visits=3):
        l = Loop([], visits); self.stack[-1].append(l); self.stack.append(l.body); return l
    def end_loop(self): self.stack.pop()
    def begin_opt(self):
        o = Opt([]); self.stack[-1].append(o); self.stack.append(o.body); return o
    def end_opt(self): self.stack.pop()
    def extend(self, items): self.stack[-1].extend(items)

    def paths(self, items, maxopt=10):
        opts = []
        def collect(its):
            for it in its:
                if isinstance(it, Opt): opts.append(it); collect(it.body)
                elif isinstance(it, Loop): collect(it.body)
        collect(items)
        assert len(opts) <= maxopt, "too many optional blocks"
        combos = [set(), set(range(len(opts)))]
        for i in range(len(opts)):
            combos.append({i}); combos.append(set(range(len(opts))) - {i})
        seen = []
        for c in combos:
            if c in seen: continue
            seen.append(c)
            off = {id(opts[i]) for i in c}
            tr = []
            def lin(its):
                for it in its:
                    if isinstance(it, Opt):
                        if id(it) not in off: lin(it.body)
                    elif isinstance(it, Loop):
                        for _ in range(it.visits): lin(it.body)
                    elif isinstance(it, (Instr, WaitTag)): tr.append(it)
            lin(items)
            yield tr

    def insert_waits(self):
        changed = True; rounds = 0
        while changed:
            changed = False; rounds += 1
            assert rounds < 10
            for tr in self.paths(self.items):
                changed |= self._sim_waits(tr)
    def _sim_waits(self, tr):
        changed = False
        q = {'vm': [], 'lgkm': []}
        smem_pending = set()
        def apply(vm, lg):
            if vm is not None and len(q['vm']) > vm: del q['vm'][:len(q['vm']) - vm]
            if lg is not None and len(q['lgkm']) > lg: del q['lgkm'][:len(q['lgkm']) - lg]
        for it in tr:
            if isinstance(it, WaitTag):
                need = {}
                for c in ('vm', 'lgkm'):
                    idx = [i for i, (d, t) in enumerate(q[c]) if t in it.tags]
                    if idx: need[c] = len(q[c]) - 1 - idx[-1]
                if 'vm' in need and (it.vm is None or need['vm'] < it.vm): it.vm = need['vm']; changed = True
                if 'lgkm' in need and (it.lgkm is None or need['lgkm'] < it.lgkm): it.lgkm = need['lgkm']; changed = True
                apply(it.vm, it.lgkm); continue
            ins = it
            if ins.mn == 's_waitcnt':
                m = re.search(r'vmcnt\((\d+)\)', ins.text); vm = int(m.group(1)) if m else None
                m = re.search(r'lgkmcnt\((\d+)\)', ins.text); lg = int(m.group(1)) if m else None
                apply(vm, lg)
                if lg == 0: smem_pending = set()
                continue
            touched = ins.uses | ins.defs
            need = {}
            for c in ('vm', 'lgkm'):
                idx = [i for i, (d, t) in enumerate(q[c]) if d & touched]
                if idx: need[c] = len(q[c]) - 1 - idx[-1]
            if smem_pending & touched: need['lgkm'] = 0
            if need:
                w = ins.wait_pre or {}
                nw = dict(w)
                for c, n in need.items():
                    if c not in nw or n < nw[c]: nw[c] = n
                if nw != w: ins.wait_pre = nw; changed = True
            if ins.wait_pre:
                apply(ins.wait_pre.get('vm'), ins.wait_pre.get('lgkm'))
                if ins.wait_pre.get('lgkm') == 0: smem_pending = set()
            if ins.cnt == 'vm':
                q['vm'].append((set(ins.defs), ins.tag))
                assert len(q['vm']) <= 63 or True
            elif ins.cnt == 'lgkm': q['lgkm'].append((set(ins.defs), ins.tag))
            elif ins.cnt == 'smem': smem_pending |= ins.defs
        return changed

    def insert_nops(self):
        changed = True; rounds = 0
        while changed:
            changed = False; rounds += 1
            assert rounds < 20
            for tr in self.paths(self.items):
                changed |= self._sim_nops(tr)
    def _sim_nops(self, tr):
        changed = False
        pos = 0
        last = {}
        def slots(ins):
            n = 1
            if ins.mn == 's_nop': n = int(ins.ops[0]) + 1
            return n
        for it in tr:
            if isinstance(it, WaitTag):
                if it.vm is not None or it.lgkm is not None: pos += 1
                continue
            ins = it
            if ins.wait_pre: pos += 1
            pos += ins.nop_pre
            need = 0
            def req(kind, regs, dist):
                nonlocal need
                for r in regs:
                    p = last.get((kind, r))
                    if p is not None:
                        gap = pos - p - 1
                        if dist - gap > need: need = dist - gap
            vregs = lambda S: {r for r in S if r[0] in 'va'}
            sregs = lambda S: {r for r in S if r[0] == 's'}
            if ins.cls == 'mfma':
                req('valu_w', vregs(ins.uses), 2)
                for p, dsame, dab in ((8, 10, 12), (4, 6, 8), (2, 4, 5)):
                    req(f'mfma{p}_w', ins.ab, dab)
                    key = ('mfma_exact', p, frozenset(ins.srcc))
                    for r in ins.srcc:
                        pz = last.get((f'mfma{p}_w', r))
                        if pz is not None:
                            exact = last.get(('mfma_d', r)) == (p, frozenset(ins.srcc)) and p == ins.passes
                            d = (2 if p == 2 else 0) if exact else dsame
                            gap = pos - pz - 1
                            if d - gap > need: need = d - gap
                    for r in ins.defs - ins.srcc:
                        pz = last.get((f'mfma{p}_w', r))
                        if pz is not None:
                            gap = pos - pz - 1
                            if dsame - gap > need: need = dsame - gap
                req('exec_valu', {('s','exec')}, 4)
            elif ins.is_valu():
                for p, d in ((8, 12), (4, 8), (2, 5)):
                    req(f'mfma{p}_w', vregs(ins.uses | ins.defs), d)
                for p, d in ((8, 7), (4, 3), (2, 1)):
                    req(f'mfma{p}_c', vregs(ins.defs), d)
                if ins.cls != 'trans': req('trans_w', vregs(ins.uses), 1)
                base = ins.mn
                if base.startswith(('v_readfirstlane', 'v_readlane')):
                    req('valu_w', vregs(ins.uses), 1)
                    req('valu_sw', sregs(ins.uses), 4)
                elif 'permlane' in base or ins.cls == 'dpp':
                    req('valu_w', vregs(ins.uses), 2)
                req('valu_sw', sregs(ins.uses), 2)
                req('wstore', vregs(ins.defs), 2)
            elif ins.cls in ('vmem', 'ds'):
                for p, d in ((8, 12), (4, 8), (2, 5)):
                    req(f'mfma{p}_w', vregs(ins.uses | ins.defs), d)
                req('valu_sw', sregs(ins.uses), 5)
                if ('s', 'm0') in ins.uses: req('salu_m0', {('s', 'm0')}, 1)
                req('wstore', vregs(ins.defs), 1)
            elif ins.cls in ('salu','smem','branch'):
                req('valu_sw', sregs(ins.uses), 1)
                if ins.cls == 'branch' and ('vcc' in ins.mn): req('valu_sw', {('s','vcc')}, 5)
                if ins.cls == 'branch' and ('exec' in ins.mn): req('valu_sw', {('s','exec')}, 5)
            if need > 0:
                ins.nop_pre += need; changed = True
                pos += need
            mypos = pos
            if ins.cls == 'mfma':
                for r in ins.defs:
                    for p in (8, 4, 2): last.pop((f'mfma{p}_w', r), None)
                    last[(f'mfma{ins.passes}_w', r)] = mypos
                    last[('mfma_d', r)] = (ins.passes, frozenset(ins.defs))
                    last.pop(('valu_w', r), None); last.pop(('trans_w', r), None)
                for r in ins.srcc: last[(f'mfma{ins.passes}_c', r)] = mypos
            elif ins.is_valu():
                for r in ins.defs:
                    if r[0] in 'va':
                        last[('valu_w', r)] = mypos
                        if ins.cls == 'trans': last[('trans_w', r)] = mypos
                        else: last.pop(('trans_w', r), None)
                        for p in (8, 4, 2): last.pop((f'mfma{p}_w', r), None)
                    else:
                        last[('valu_sw', r)] = mypos
                        if r == ('s','exec'): last[('exec_valu', r)] = mypos
            else:
                for r in ins.defs:
                    if r[0] in 'va':
                        last.pop(('valu_w', r), None); last.pop(('trans_w', r), None)
                        for p in (8, 4, 2): last.pop((f'mfma{p}_w', r), None)
                    else:
                        last.pop(('valu_sw', r), None)
                        if r == ('s', 'm0'): last[('salu_m0', r)] = mypos
                if ins.wide_store:
                    for r in ins.data: last[('wstore', r)] = mypos
            pos += slots(ins)
        return changed

    def emit(self):
        out = []
        def nops(n):
            while n > 0:
                k = min(n, 16); out.append(f"    s_nop {k-1}"); n -= k
        def em(items):
            for it in items:
                if isinstance(it, Label): out.append(f"{it.name}:")
                elif isinstance(it, Raw): out.append(it.text)
                elif isinstance(it, WaitTag):
                    p = []
                    if it.vm is not None: p.append(f"vmcnt({min(it.vm,63)})")
                    if it.lgkm is not None: p.append(f"lgkmcnt({min(it.lgkm,15)})")
                    if p: out.append("    s_waitcnt " + " ".join(p))
                elif isinstance(it, (Loop, Opt)): em(it.body)
                else:
                    if it.wait_pre:
                        p = []
                        if 'vm' in it.wait_pre: p.append(f"vmcnt({min(it.wait_pre['vm'],63)})")
                        if 'lgkm' in it.wait_pre: p.append(f"lgkmcnt({min(it.wait_pre['lgkm'],15)})")
                        out.append("    s_waitcnt " + " ".join(p))
                    nops(it.nop_pre)
                    out.append("    " + it.text + (f"   ; {it.cmt}" if it.cmt else ""))
        em(self.items)
        return "\n".join(out) + "\n"
    def finalize(self):
        self.insert_waits()
        self.insert_nops()
        return self.emit()
```

```python
import sys
from layout import *
import importlib

HEADER = open("cdna_kernels/%s.s.ref" % NAME).read().split("; Override launch geometry")[0]

def desc(name, vgpr, sgpr, accum):
    return f""".amdhsa_kernel {name}
  .amdhsa_next_free_vgpr {vgpr}
  .amdhsa_next_free_sgpr {sgpr}
  .amdhsa_accum_offset {accum}
  .amdhsa_group_segment_fixed_size 0
  .amdhsa_kernarg_size 88
  .amdhsa_user_sgpr_count 2
  .amdhsa_user_sgpr_kernarg_segment_ptr 1
  .amdhsa_system_sgpr_workgroup_id_x 1
  .amdhsa_float_denorm_mode_32 3
.end_amdhsa_kernel
"""

def build(kernels):
    out = HEADER
    for k in kernels:
        out += f"; @launch kernel={k['name']} grid=({k['grid']},1,1) block=({k['block']},1,1) lds={k['lds']}\n"
    out += '.amdgcn_target "amdgcn-amd-amdhsa--gfx950"\n.text\n'
    for k in kernels:
        out += f".globl {k['name']}\n.p2align 8\n.type {k['name']},@function\n{k['name']}:\n"
        out += k['text']
    out += '.section .rodata,"a"\n'
    for k in kernels:
        out += ".p2align 6\n" + desc(k['name'], k['vgpr'], k['sgpr'], k['accum'])
    return out

def all_kernels(which="123", **opt):
    ks = []
    if "1" in which:
        import k1; importlib.reload(k1)
        ks.append(k1.kernel(**opt))
    if "2" in which:
        import k2; importlib.reload(k2)
        ks.append(k2.kernel(**opt))
    if "3" in which:
        import k3; importlib.reload(k3)
        ks.append(dict(name="k3_kernel", text=k3.gen_k3().finalize(), grid=224, block=256, lds=4*64*272, vgpr=256, sgpr=48, accum=256))
    return ks

if __name__ == "__main__":
    which = sys.argv[1] if len(sys.argv) > 1 else "123"
    path = sys.argv[2] if len(sys.argv) > 2 else "cdna_kernels/%s.s" % NAME
    opt = dict(a.split("=") for a in sys.argv[3:])
    text = build(all_kernels(which, **opt))
    open(path, "w").write(text)
    print("wrote", path, len(text), "bytes")
```

```python
from asmlib import *
from layout import *

def srd(p, dst, src, nbytes):
    p(f"s_mov_b32 s{dst}, s{src}")
    p(f"s_mov_b32 s{dst+1}, s{src+1}")
    p(f"s_mov_b32 s{dst+2}, {nbytes}")
    p(f"s_mov_b32 s{dst+3}, 0x00020000")

def gen_k3():
    p = Prog()
    DEPTH = 11
    NK = 22
    SW=16; STB=17; SNB=18; SH0=20; SH1=21; SW0=22; SW1=23
    p("s_cmp_ge_u32 s2, 224")
    p("s_cbranch_scc1 K3_END")
    p(f"s_load_dwordx2 s[4:5], s[0:1], {KA_X}")
    p(f"s_load_dwordx2 s[6:7], s[0:1], {KA_OUT}")
    p(f"s_load_dwordx2 s[8:9], s[0:1], {KA_WS}")
    p("v_lshrrev_b32 v1, 6, v0")
    p("v_and_b32 v0, 63, v0")
    p(f"v_readfirstlane_b32 s{SW}, v1")
    p("s_and_b32 s12, s2, 7")
    p("s_lshr_b32 s13, s2, 3")
    p("s_mul_i32 s14, s13, 37")
    p("s_lshr_b32 s14, s14, 8")
    p("s_mul_i32 s15, s14, 7")
    p(f"s_sub_u32 s{SNB}, s13, s15")
    p("s_lshl_b32 s12, s12, 2")
    p(f"s_add_u32 s{STB}, s12, s14")
    p("s_waitcnt lgkmcnt(0)")
    srd(p, 24, 8, WS_SIZE)
    srd(p, 28, 4, S*D*2)
    srd(p, 32, 6, S*D*2)
    p(f"s_mul_i32 s12, s{STB}, {2*88*1024}")
    p(f"s_mul_i32 s13, s{SW}, {NK*1024}")
    p(f"s_add_u32 s12, s12, s13")
    p(f"s_add_u32 s{SH0}, s12, {WS_H}")
    p(f"s_add_u32 s{SH1}, s{SH0}, {88*1024}")
    p(f"s_mul_i32 s12, s{SNB}, {2*88*1024}")
    p(f"s_add_u32 s12, s12, s13")
    p(f"s_add_u32 s{SW0}, s12, {WS_WC}")
    p(f"s_add_u32 s{SW1}, s{SW0}, {88*1024}")
    VOFF=1
    p(f"v_lshlrev_b32 v{VOFF}, 4, v0")
    VX=2; XR=4
    p("v_lshrrev_b32 v3, 3, v0")
    p(f"s_lshl_b32 s12, s{STB}, 6")
    p(f"s_lshl_b32 s13, s{SW}, 4")
    p("s_add_u32 s12, s12, s13")
    p("v_add_u32 v3, s12, v3")
    p(f"v_mul_u32_u24 v3, {D*2}, v3")
    p("v_and_b32 v2, 7, v0")
    p("v_lshlrev_b32 v2, 4, v2")
    p(f"s_lshl_b32 s13, s{SNB}, 7")
    p(f"v_add3_u32 v{VX}, v3, v2, s13")
    FR=80
    ACC=12
    def fr(slot, i): return FR + (slot*4+i)*4
    def issue(k):
        slot = k % DEPTH
        bases=[SH0,SH1,SW0,SW1]
        for i in range(4):
            p(f"buffer_load_dwordx4 {v(fr(slot,i),4)}, v{VOFF}, s[24:27], s{bases[i]} offen offset:{(k%4)*1024}")
        if k%4==3:
            for b in bases: p(f"s_add_u32 s{b}, s{b}, 4096")
    for k in range(DEPTH): issue(k)
    p(f"buffer_load_dwordx4 {v(XR,4)}, v{VX}, s[28:31], 0 offen")
    p(f"v_add_u32 v3, {8*D*2}, v{VX}")
    p(f"buffer_load_dwordx4 {v(XR+4,4)}, v3, s[28:31], 0 offen")
    for k in range(NK):
        slot = k % DEPTH
        for ti in range(2):
            for ni in range(2):
                acc = ACC + (ti*2+ni)*16
                c = "0" if k==0 else v(acc,16)
                p(f"v_mfma_f32_32x32x16_bf16 {v(acc,16)}, {v(fr(slot,2+ni),4)}, {v(fr(slot,ti),4)}, {c}")
        if k+DEPTH < NK: issue(k+DEPTH)
    RS=272
    p("v_and_b32 v76, 31, v0")
    p(f"v_mul_u32_u24 v76, {RS}, v76")
    p("v_lshrrev_b32 v77, 5, v0")
    p("v_lshlrev_b32 v77, 4, v77")
    p(f"s_mul_i32 s12, s{SW}, {64*RS}")
    p("v_add3_u32 v76, v76, v77, s12")
    for ti in range(2):
        for ni in range(2):
            acc = ACC + (ti*2+ni)*16
            for q in range(4):
                p(f"ds_write_b128 v76, {v(acc+4*q,4)} offset:{ti*32*RS+ni*128+q*32}", tag='pw')
    p.wait('pw')
    p("s_barrier")
    p("v_lshrrev_b32 v76, 3, v0")
    p(f"s_lshl_b32 s12, s{SW}, 4")
    p("v_add_u32 v76, s12, v76")
    p(f"v_mul_u32_u24 v76, {RS}, v76")
    p("v_and_b32 v77, 7, v0")
    p("v_lshlrev_b32 v77, 5, v77")
    p("v_add_u32 v76, v76, v77")
    R=FR
    for i in range(2):
        for w in range(4):
            for hh in range(2):
                p(f"ds_read_b128 {v(R+((i*4+w)*2+hh)*4,4)}, v76 offset:{w*64*RS+i*8*RS+hh*16}")
    for i in range(2):
        b=R+i*32
        for e in range(8):
            p(f"v_add_f32 v{b+e}, v{b+e}, v{b+8+e}")
            p(f"v_add_f32 v{b+16+e}, v{b+16+e}, v{b+24+e}")
        for e in range(8):
            p(f"v_add_f32 v{b+e}, v{b+e}, v{b+16+e}")
        for d in range(4):
            p(f"v_lshlrev_b32 v78, 16, v{XR+4*i+d}")
            p(f"v_and_b32 v79, 0xffff0000, v{XR+4*i+d}")
            p(f"v_add_f32 v{b+2*d}, v{b+2*d}, v78")
            p(f"v_add_f32 v{b+2*d+1}, v{b+2*d+1}, v79")
        for d in range(4):
            p(f"v_cvt_pk_bf16_f32 v{b+8+d}, v{b+2*d}, v{b+2*d+1}")
        if i==0: p(f"buffer_store_dwordx4 {v(b+8,4)}, v{VX}, s[32:35], 0 offen")
        else: p(f"buffer_store_dwordx4 {v(b+8,4)}, v3, s[32:35], 0 offen")
    p.label("K3_END")
    p("s_endpgm")
    return p

if __name__=="__main__":
    print(gen_k3().finalize())
```

```python
S=2048; D=448; NH=16; DH=28; F=1792; FH=896
MB=1<<20
WS_Q   = 0
WS_KV  = 2*MB
WS_Z1  = 6*MB
WS_Z2  = 10*MB
WS_H   = 14*MB
WS_WC  = 20*MB
WS_ST  = 22*MB
WS_EP  = 23*MB
WS_FL  = 23*MB+65536
WS_F1  = 23*MB+393216
WS_SIZE= 24*MB
NAME="parallel_sum__mha_block__mixer_gmlp__prompt"
KA_X=0; KA_WQKV=8; KA_WO=16; KA_BX=24; KA_WIN=32; KA_WSP=40; KA_BSP=48; KA_WOUT=56; KA_OUT=64; KA_DBG=72; KA_WS=80
def slotmap(u,h,j): return 16*u+8*(j>>2)+4*h+(j&3)
STMOD=''
FUSE=False
```

```python
import re

REG_RE = re.compile(r'^(-?)(abs\()?([vas])(\d+|\[(\d+):(\d+)\])\)?$')

def v(i, n=1): return f"v{i}" if n == 1 else f"v[{i}:{i+n-1}]"
def a(i, n=1): return f"a{i}" if n == 1 else f"a[{i}:{i+n-1}]"
def s(i, n=1): return f"s{i}" if n == 1 else f"s[{i}:{i+n-1}]"

def regs_of(tok):
    tok = tok.strip()
    if tok == 'vcc': return {('s', 'vcc')}
    if tok in ('vcc_lo','vcc_hi'): return {('s','vcc')}
    if tok == 'exec': return {('s', 'exec')}
    if tok in ('exec_lo','exec_hi'): return {('s','exec')}
    if tok == 'm0': return {('s', 'm0')}
    m = REG_RE.match(tok)
    if not m: return set()
    k = m.group(3)
    if m.group(5) is not None:
        lo, hi = int(m.group(5)), int(m.group(6))
    else:
        lo = hi = int(m.group(4))
    return {(k, i) for i in range(lo, hi + 1)}

TRANS = ('v_exp_f32', 'v_log_f32', 'v_rcp_f32', 'v_rsq_f32', 'v_sqrt_f32', 'v_sin_f32', 'v_cos_f32')
RMW_DST = ('v_fmac_f32', 'v_dot2c_f32_bf16', 'v_pk_fmac', 'v_writelane_b32')

class Instr:
    __slots__ = ('text', 'mn', 'ops', 'mods', 'defs', 'uses', 'cls', 'tag', 'wait_pre', 'nop_pre', 'passes', 'srcc', 'ab', 'data', 'cmt', 'wide_store','cnt')
    def __init__(self, text, tag=None, cmt=None):
        self.text = text.strip(); self.tag = tag; self.cmt = cmt
        self.wait_pre = None; self.nop_pre = 0
        self.defs = set(); self.uses = set(); self.passes = 0; self.srcc = set(); self.ab = set(); self.data = set()
        self.wide_store = False; self.cnt = None
        parts = self.text.split(None, 1)
        self.mn = parts[0]
        rest = parts[1] if len(parts) > 1 else ''
        toks = [t.strip() for t in rest.split(',')] if rest else []
        self.mods = []
        if toks:
            last = toks[-1].split()
            toks[-1] = last[0] if last else ''
            self.mods = last[1:]
        self.ops = toks
        self.classify()
    def R(self, i): return regs_of(self.ops[i]) if i < len(self.ops) else set()
    def classify(self):
        mn = self.mn; ops = self.ops
        base = re.sub(r'_(e32|e64|dpp|sdwa)$', '', mn)
        allsrc = lambda k: set().union(*[self.R(i) for i in range(k, len(ops))]) if len(ops) > k else set()
        if mn.startswith('v_mfma'):
            self.cls = 'mfma'
            self.defs = self.R(0); self.ab = self.R(1) | self.R(2); self.srcc = self.R(3)
            self.uses = self.ab | self.srcc
            self.passes = 8 if '32x32' in mn else (4 if '16x16' in mn else 2)
        elif mn.startswith('v_'):
            self.cls = 'trans' if base in TRANS else 'valu'
            if base.startswith('v_cmp'):
                self.defs = self.R(0); self.uses = allsrc(1) | {('s', 'exec')}
                if base.startswith('v_cmpx'): self.defs |= {('s', 'exec')}
            elif base in ('v_readfirstlane_b32', 'v_readlane_b32'):
                self.defs = self.R(0); self.uses = allsrc(1)
            elif base.startswith('v_permlane') and 'swap' in base:
                self.defs = self.R(0) | self.R(1); self.uses = set(self.defs)
            elif base in ('v_add_co_u32', 'v_sub_co_u32', 'v_subrev_co_u32'):
                self.defs = self.R(0) | self.R(1); self.uses = allsrc(2)
            elif base in ('v_addc_co_u32', 'v_subb_co_u32'):
                self.defs = self.R(0) | self.R(1); self.uses = allsrc(2)
            else:
                self.defs = self.R(0); self.uses = allsrc(1)
                if base in RMW_DST: self.uses |= self.defs
            if 'dpp' in mn or any(m.startswith(('quad_perm','row_','wave_')) for m in self.mods): self.cls = 'dpp'
        elif mn.startswith(('buffer_', 'global_')):
            self.cls = 'vmem'; self.cnt = 'vm'
            lds = 'lds' in self.mods or mn.startswith('global_load_lds')
            if mn.startswith('buffer_load'):
                if lds:
                    self.uses = allsrc(0) | {('s', 'm0')}
                else:
                    self.defs = self.R(0); self.uses = allsrc(1)
            elif mn.startswith('buffer_store'):
                self.data = self.R(0); self.uses = allsrc(0)
                self.wide_store = 'x4' in mn or 'x3' in mn
            elif mn.startswith('buffer_atomic'):
                self.data = self.R(0); self.uses = allsrc(0)
                if 'sc0' in self.mods: self.defs = self.R(0)
            elif mn.startswith(('buffer_inv', 'buffer_wbl2')):
                pass
            elif mn.startswith('global_load'):
                if lds: self.uses = allsrc(0) | {('s', 'm0')}
                else: self.defs = self.R(0); self.uses = allsrc(1)
            elif mn.startswith('global_store'):
                self.data = self.R(1); self.uses = allsrc(0); self.wide_store = 'x4' in mn or 'x3' in mn
            else: raise ValueError(mn)
        elif mn.startswith('ds_'):
            self.cls = 'ds'; self.cnt = 'lgkm'
            if mn.startswith(('ds_read', 'ds_bpermute', 'ds_permute', 'ds_swizzle')):
                self.defs = self.R(0); self.uses = allsrc(1)
            elif '_rtn' in mn:
                self.defs = self.R(0); self.uses = allsrc(1)
            else:
                self.uses = allsrc(0); self.data = allsrc(1)
        elif mn.startswith('s_'):
            self.cls = 'salu'
            if mn.startswith(('s_load', 's_buffer_load', 's_memtime', 's_memrealtime')):
                self.cls = 'smem'; self.cnt = 'smem'
                self.defs = self.R(0); self.uses = allsrc(1)
            elif mn.startswith(('s_cmp', 's_bitcmp')):
                self.uses = allsrc(0); self.defs = {('s', 'scc')}
            elif mn.startswith(('s_waitcnt', 's_barrier', 's_nop', 's_setprio', 's_endpgm', 's_sleep')):
                self.cls = 'ctl'
            elif mn.startswith(('s_branch', 's_cbranch')):
                self.cls = 'branch'
            elif 'saveexec' in mn:
                self.defs = self.R(0) | {('s', 'exec'), ('s', 'scc')}; self.uses = allsrc(1) | {('s', 'exec')}
            else:
                self.defs = self.R(0); self.uses = allsrc(1)
                if mn in ('s_addk_i32','s_mulk_i32'): self.uses |= self.defs
        else:
            raise ValueError("unknown instr " + text)
    def is_valu(self): return self.cls in ('valu', 'trans', 'dpp')

class Label:
    def __init__(self, name): self.name = name
class Raw:
    def __init__(self, text): self.text = text
class WaitTag:
    def __init__(self, *tags): self.tags = set(tags); self.vm = None; self.lgkm = None
class Loop:
    def __init__(self, body, visits=3): self.body = body; self.visits = visits
class Opt:
    def __init__(self, body): self.body = body
class Alt:
    def __init__(self): self.bodies=[]
class Drain:
    pass

class Prog:
    def __init__(self):
        self.items = []; self.stack = [self.items]
    def I(self, text, tag=None, cmt=None):
        ins = Instr(text, tag, cmt); self.stack[-1].append(ins); return ins
    def __call__(self, text, tag=None, cmt=None):
        r = None
        for line in text.strip().split('\n'):
            line = line.split(';')[0].strip()
            if line: r = self.I(line, tag, cmt)
        return r
    def label(self, name): self.stack[-1].append(Label(name))
    def raw(self, text): self.stack[-1].append(Raw(text))
    def wait(self, *tags): self.stack[-1].append(WaitTag(*tags))
    def waitall(self): self.I("s_waitcnt vmcnt(0) lgkmcnt(0)")
    def begin_loop(self, visits=3):
        l = Loop([], visits); self.stack[-1].append(l); self.stack.append(l.body); return l
    def end_loop(self): self.stack.pop()
    def begin_opt(self):
        o = Opt([]); self.stack[-1].append(o); self.stack.append(o.body); return o
    def end_opt(self): self.stack.pop()
    def extend(self, items): self.stack[-1].extend(items)
    def begin_alt(self):
        al = Alt(); self.stack[-1].append(al); self._alts = getattr(self,'_alts',[]) + [al]; return al
    def alt_branch(self):
        al = self._alts[-1]
        if al.bodies: self.stack.pop()
        b = []; al.bodies.append(b); self.stack.append(b)
    def end_alt(self):
        self.stack.pop(); self._alts.pop()

    def paths(self, items, maxopt=16):
        import itertools
        alts = []
        def calts(its):
            for it in its:
                if isinstance(it, Alt):
                    alts.append(it)
                    for b in it.bodies: calts(b)
                elif isinstance(it, (Opt, Loop)): calts(it.body)
        calts(items)
        seen_tr = set()
        for choice in itertools.product(*[range(len(al.bodies)) for al in alts]):
            ch = {id(al): c for al, c in zip(alts, choice)}
            opts = []
            def collect(its):
                for it in its:
                    if isinstance(it, Opt): opts.append(it); collect(it.body)
                    elif isinstance(it, Loop): collect(it.body)
                    elif isinstance(it, Alt): collect(it.bodies[ch[id(it)]])
            collect(items)
            assert len(opts) <= maxopt, "too many optional blocks"
            n = len(opts); allo = set(range(n))
            combos = [set(), set(allo)]
            for i in range(n):
                combos.append({i}); combos.append(allo - {i})
                for j in range(i): combos.append(allo - {i, j})
            seen = []
            for c in combos:
                if c in seen: continue
                seen.append(c)
                off = {id(opts[i]) for i in c}
                tr = []
                def lin(its):
                    for it in its:
                        if isinstance(it, Opt):
                            if id(it) not in off: lin(it.body)
                        elif isinstance(it, Loop):
                            for _ in range(it.visits): lin(it.body)
                        elif isinstance(it, Alt): lin(it.bodies[ch[id(it)]])
                        elif isinstance(it, (Instr, WaitTag)): tr.append(it)
                lin(items)
                key = tuple(id(x) for x in tr)
                if key in seen_tr: continue
                seen_tr.add(key)
                yield tr

    def insert_waits(self):
        changed = True; rounds = 0
        while changed:
            changed = False; rounds += 1
            assert rounds < 10
            for tr in self.paths(self.items):
                changed |= self._sim_waits(tr)
    def _sim_waits(self, tr):
        changed = False
        q = {'vm': [], 'lgkm': []}
        smem_pending = set()
        def apply(vm, lg):
            if vm is not None and len(q['vm']) > vm: del q['vm'][:len(q['vm']) - vm]
            if lg is not None and len(q['lgkm']) > lg: del q['lgkm'][:len(q['lgkm']) - lg]
        for it in tr:
            if isinstance(it, WaitTag):
                need = {}
                for c in ('vm', 'lgkm'):
                    idx = [i for i, (d, t) in enumerate(q[c]) if t in it.tags]
                    if idx: need[c] = len(q[c]) - 1 - idx[-1]
                if 'vm' in need and (it.vm is None or need['vm'] < it.vm): it.vm = need['vm']; changed = True
                if 'lgkm' in need and (it.lgkm is None or need['lgkm'] < it.lgkm): it.lgkm = need['lgkm']; changed = True
                apply(it.vm, it.lgkm); continue
            ins = it
            if ins.mn == 's_waitcnt':
                m = re.search(r'vmcnt\((\d+)\)', ins.text); vm = int(m.group(1)) if m else None
                m = re.search(r'lgkmcnt\((\d+)\)', ins.text); lg = int(m.group(1)) if m else None
                apply(vm, lg)
                if lg == 0: smem_pending = set()
                continue
            touched = ins.uses | ins.defs
            need = {}
            for c in ('vm', 'lgkm'):
                idx = [i for i, (d, t) in enumerate(q[c]) if d & touched]
                if idx: need[c] = len(q[c]) - 1 - idx[-1]
            if smem_pending & touched: need['lgkm'] = 0
            if need:
                w = ins.wait_pre or {}
                nw = dict(w)
                for c, n in need.items():
                    if c not in nw or n < nw[c]: nw[c] = n
                if nw != w: ins.wait_pre = nw; changed = True
            if ins.wait_pre:
                apply(ins.wait_pre.get('vm'), ins.wait_pre.get('lgkm'))
                if ins.wait_pre.get('lgkm') == 0: smem_pending = set()
            if ins.cnt == 'vm':
                q['vm'].append((set(ins.defs), ins.tag))
                assert len(q['vm']) <= 63 or True
            elif ins.cnt == 'lgkm': q['lgkm'].append((set(ins.defs), ins.tag))
            elif ins.cnt == 'smem': smem_pending |= ins.defs
        return changed

    def insert_nops(self):
        changed = True; rounds = 0
        while changed:
            changed = False; rounds += 1
            assert rounds < 20
            for tr in self.paths(self.items):
                changed |= self._sim_nops(tr)
    def _sim_nops(self, tr):
        changed = False
        pos = 0
        last = {}
        def slots(ins):
            n = 1
            if ins.mn == 's_nop': n = int(ins.ops[0]) + 1
            return n
        for it in tr:
            if isinstance(it, WaitTag):
                if it.vm is not None or it.lgkm is not None: pos += 1
                continue
            ins = it
            if ins.wait_pre: pos += 1
            pos += ins.nop_pre
            need = 0
            def req(kind, regs, dist):
                nonlocal need
                for r in regs:
                    p = last.get((kind, r))
                    if p is not None:
                        gap = pos - p - 1
                        if dist - gap > need: need = dist - gap
            vregs = lambda S: {r for r in S if r[0] in 'va'}
            sregs = lambda S: {r for r in S if r[0] == 's'}
            if ins.cls == 'mfma':
                req('valu_w', vregs(ins.uses), 2)
                for p, dsame, dab in ((8, 10, 12), (4, 6, 8), (2, 4, 5)):
                    req(f'mfma{p}_w', ins.ab, dab)
                    key = ('mfma_exact', p, frozenset(ins.srcc))
                    for r in ins.srcc:
                        pz = last.get((f'mfma{p}_w', r))
                        if pz is not None:
                            exact = last.get(('mfma_d', r)) == (p, frozenset(ins.srcc)) and p == ins.passes
                            d = (2 if p == 2 else 0) if exact else dsame
                            gap = pos - pz - 1
                            if d - gap > need: need = d - gap
                    for r in ins.defs - ins.srcc:
                        pz = last.get((f'mfma{p}_w', r))
                        if pz is not None:
                            gap = pos - pz - 1
                            if dsame - gap > need: need = dsame - gap
                req('exec_valu', {('s','exec')}, 4)
            elif ins.is_valu():
                for p, d in ((8, 12), (4, 8), (2, 5)):
                    req(f'mfma{p}_w', vregs(ins.uses | ins.defs), d)
                for p, d in ((8, 7), (4, 3), (2, 1)):
                    req(f'mfma{p}_c', vregs(ins.defs), d)
                if ins.cls != 'trans': req('trans_w', vregs(ins.uses), 1)
                base = ins.mn
                if base.startswith(('v_readfirstlane', 'v_readlane')):
                    req('valu_w', vregs(ins.uses), 1)
                    req('valu_sw', sregs(ins.uses), 4)
                elif 'permlane' in base or ins.cls == 'dpp':
                    req('valu_w', vregs(ins.uses), 2)
                req('valu_sw', sregs(ins.uses), 2)
                req('wstore', vregs(ins.defs), 2)
            elif ins.cls in ('vmem', 'ds'):
                for p, d in ((8, 12), (4, 8), (2, 5)):
                    req(f'mfma{p}_w', vregs(ins.uses | ins.defs), d)
                req('valu_sw', sregs(ins.uses), 5)
                if ('s', 'm0') in ins.uses: req('salu_m0', {('s', 'm0')}, 1)
                req('wstore', vregs(ins.defs), 1)
            elif ins.cls in ('salu','smem','branch'):
                req('valu_sw', sregs(ins.uses), 1)
                if ins.cls == 'branch' and ('vcc' in ins.mn): req('valu_sw', {('s','vcc')}, 5)
                if ins.cls == 'branch' and ('exec' in ins.mn): req('valu_sw', {('s','exec')}, 5)
            if need > 0:
                ins.nop_pre += need; changed = True
                pos += need
            mypos = pos
            if ins.cls == 'mfma':
                for r in ins.defs:
                    for p in (8, 4, 2): last.pop((f'mfma{p}_w', r), None)
                    last[(f'mfma{ins.passes}_w', r)] = mypos
                    last[('mfma_d', r)] = (ins.passes, frozenset(ins.defs))
                    last.pop(('valu_w', r), None); last.pop(('trans_w', r), None)
                for r in ins.srcc: last[(f'mfma{ins.passes}_c', r)] = mypos
            elif ins.is_valu():
                for r in ins.defs:
                    if r[0] in 'va':
                        last[('valu_w', r)] = mypos
                        if ins.cls == 'trans': last[('trans_w', r)] = mypos
                        else: last.pop(('trans_w', r), None)
                        for p in (8, 4, 2): last.pop((f'mfma{p}_w', r), None)
                    else:
                        last[('valu_sw', r)] = mypos
                        if r == ('s','exec'): last[('exec_valu', r)] = mypos
            else:
                for r in ins.defs:
                    if r[0] in 'va':
                        last.pop(('valu_w', r), None); last.pop(('trans_w', r), None)
                        for p in (8, 4, 2): last.pop((f'mfma{p}_w', r), None)
                    else:
                        last.pop(('valu_sw', r), None)
                        if r == ('s', 'm0'): last[('salu_m0', r)] = mypos
                if ins.wide_store:
                    for r in ins.data: last[('wstore', r)] = mypos
            pos += slots(ins)
        return changed

    def emit(self):
        out = []
        def nops(n):
            while n > 0:
                k = min(n, 16); out.append(f"    s_nop {k-1}"); n -= k
        def em(items):
            for it in items:
                if isinstance(it, Label): out.append(f"{it.name}:")
                elif isinstance(it, Raw): out.append(it.text)
                elif isinstance(it, WaitTag):
                    p = []
                    if it.vm is not None: p.append(f"vmcnt({min(it.vm,63)})")
                    if it.lgkm is not None: p.append(f"lgkmcnt({min(it.lgkm,15)})")
                    if p: out.append("    s_waitcnt " + " ".join(p))
                elif isinstance(it, (Loop, Opt)): em(it.body)
                elif isinstance(it, Alt):
                    for b in it.bodies: em(b)
                else:
                    if it.wait_pre:
                        p = []
                        if 'vm' in it.wait_pre: p.append(f"vmcnt({min(it.wait_pre['vm'],63)})")
                        if 'lgkm' in it.wait_pre: p.append(f"lgkmcnt({min(it.wait_pre['lgkm'],15)})")
                        out.append("    s_waitcnt " + " ".join(p))
                    nops(it.nop_pre)
                    out.append("    " + it.text + (f"   ; {it.cmt}" if it.cmt else ""))
        em(self.items)
        return "\n".join(out) + "\n"
    def finalize(self):
        self.insert_waits()
        self.insert_nops()
        return self.emit()


def capture(fn):
    q = Prog(); fn(q); return q.items

def interleave(main, sides, start=0, end=None):
    idx = [i for i, it in enumerate(main) if isinstance(it, Instr)]
    if end is None: end = len(idx)
    n = len(sides); out = list(main)
    if n == 0: return out
    span = end - start
    pos = [idx[min(len(idx)-1, start + (k * span) // n)] for k in range(n)]
    for k in reversed(range(n)):
        out[pos[k]:pos[k]] = sides[k]
    return out
```

```python
from asmlib import *
from layout import *
from k3 import srd

L_X   = 0
L_P1  = 112*1024
L_P2  = 16*1024
L_P3  = 72*1024
L_SM  = 156*1024
L_CS  = L_SM
L_XS  = L_SM + 1024
L_ZS  = L_SM + 3072
L_T   = 0
LDS_K1 = 160*1024
def p1_addr(kc): return L_P1 + kc*8192 if kc < 5 else (kc-5)*8192

SW8=16; SW=17; SG=18; SRB=19; SCB=20; STAG=21; SSB=22
WS=24; XS=28; WIN=32; WQ=36; DBG=40
SP1=44; SP2=45; SP3=46; SXB=47; ST=48; ST2=49; SEP=50
VL16=1; VXD=(2,3); VWD=4; VXR=(5,6,7,8); VWR=9; VCSR=10; VSR=11; VP3D=(12,13,14); VP3R=15
MU=16; RS_=17; VT=18
CS=48; WF=64; ZH=80; ACC=(96,112); XF=128
VH=240
ONES=244; CSW=249; CSR=247; CSD=124; NMF=42; EPV=39

from profutil import Prof
PR=Prof(False,WS,SW8,0)
def stamp(p,name): PR.stamp(p,str(name))

def prologue(p):
    p("s_cmp_ge_u32 s2, 256")
    p("s_cbranch_scc1 K1_END")
    p(f"s_load_dwordx2 s[4:5], s[0:1], {KA_WS}")
    p(f"s_load_dwordx2 s[6:7], s[0:1], {KA_X}")
    p(f"s_load_dwordx2 s[8:9], s[0:1], {KA_WIN}")
    p(f"s_load_dwordx2 s[10:11], s[0:1], {KA_WQKV}")
    p(f"s_load_dwordx2 s[12:13], s[0:1], {KA_DBG}")
    p("v_lshrrev_b32 v1, 6, v0")
    p("v_and_b32 v0, 63, v0")
    p(f"v_readfirstlane_b32 s{SW8}, v1")
    p("s_and_b32 s14, s2, 7")
    p("s_lshr_b32 s15, s2, 3")
    p("s_and_b32 s51, s14, 1")
    p("s_lshl_b32 s51, s51, 3")
    p("s_and_b32 s52, s15, 7")
    p(f"s_add_u32 s{SRB}, s51, s52")
    p("s_lshr_b32 s51, s14, 1")
    p("s_lshl_b32 s51, s51, 2")
    p("s_lshr_b32 s52, s15, 3")
    p(f"s_add_u32 s{SCB}, s51, s52")
    p(f"s_and_b32 s{SW}, s{SW8}, 3")
    p(f"s_lshr_b32 s{SG}, s{SW8}, 2")
    p(f"s_lshl_b32 s{SSB}, s{SRB}, 2")
    p(f"s_add_u32 s{SSB}, s{SSB}, s{SW}")
    p(f"v_lshlrev_b32 v{VL16}, 4, v0")
    p("s_waitcnt lgkmcnt(0)")
    srd(p, WS, 4, WS_SIZE); srd(p, XS, 6, S*D*2); srd(p, WIN, 8, D*F*2); srd(p, WQ, 10, D*3*D*2); srd(p, DBG, 12, 256)
    PR.real(p,62)
    stamp(p,'start')
    p("v_lshrrev_b32 v18, 3, v0")
    p(f"v_mul_u32_u24 v19, {D*2}, v18")
    p("v_lshrrev_b32 v20, 4, v0")
    p("v_and_b32 v21, 7, v0")
    p("v_xor_b32 v22, v21, v20")
    p(f"v_lshl_add_u32 v{VXD[0]}, v22, 4, v19")
    p("v_xor_b32 v22, 4, v22")
    p(f"v_lshl_add_u32 v{VXD[1]}, v22, 4, v19")
    p(f"v_mul_u32_u24 v19, {F*2}, v18")
    p("v_and_b32 v20, 1, v20")
    p("v_lshlrev_b32 v20, 2, v20")
    p("v_xor_b32 v22, v21, v20")
    p(f"v_lshl_add_u32 v{VWD}, v22, 4, v19")
    p(f"s_lshl_b32 s51, s{SRB}, 7")
    p(f"s_lshl_b32 s52, s{SW8}, 4")
    p("s_add_u32 s51, s51, s52")
    p(f"s_mul_i32 s{SXB}, s51, {D*2}")
    p(f"s_lshl_b32 s51, s{SCB}, 7")
    p(f"s_add_u32 s52, s51, {FH*2}")
    p(f"s_sub_u32 s53, s51, 256")
    p(f"s_cmp_lt_u32 s{SCB}, 14")
    p(f"s_cselect_b32 s{SP1}, s52, s53")
    p(f"s_sub_u32 s54, s{SCB}, 2")
    p(f"s_cmp_lt_u32 s54, 12")
    p(f"s_cselect_b32 s{SP2}, s53, 0")
    p(f"s_lshl_b32 s51, s{SW8}, 3")
    p(f"s_mul_i32 s51, s51, {F*2}")
    p(f"s_add_u32 s{SP1}, s{SP1}, s51")
    p(f"s_add_u32 s{SP2}, s{SP2}, s51")

def dma_x(p, kc, which=(0,1)):
    for i in which:
        p(f"s_lshl_b32 m0, s{SW8}, 11")
        p(f"s_add_u32 m0, m0, {L_X+kc*16384+i*1024}")
        p(f"s_add_u32 s{ST}, s{SXB}, {i*8*D*2+kc*128}")
        p(f"buffer_load_dwordx4 v{VXD[i]}, s[{XS}:{XS+3}], s{ST} offen lds", tag=f'x{kc}')
def dma_pair(p, sbase, kc, ldsaddr, tag):
    p(f"s_lshl_b32 m0, s{SW8}, 10")
    p(f"s_add_u32 m0, m0, {ldsaddr}")
    p(f"s_add_u32 s{ST}, s{sbase}, {kc*64*F*2}")
    p(f"buffer_load_dwordx4 v{VWD}, s[{WIN}:{WIN+3}], s{ST} offen lds", tag=tag)

def setup_reads(p):
    p("v_and_b32 v18, 31, v0")
    p("v_lshrrev_b32 v19, 5, v0")
    p("v_lshrrev_b32 v20, 1, v18")
    p("v_and_b32 v20, 7, v20")
    p("v_xor_b32 v20, v20, v19")
    p("v_lshlrev_b32 v18, 7, v18")
    p(f"s_lshl_b32 s51, s{SW}, 12")
    p(f"v_add_u32 v18, s51, v18")
    for u in range(4):
        p(f"v_xor_b32 v21, {2*u}, v20")
        p(f"v_lshl_add_u32 v{VXR[u]}, v21, 4, v18")
    p("v_lshrrev_b32 v18, 4, v0")
    p("v_and_b32 v19, 1, v18")
    p("v_lshrrev_b32 v18, 1, v18")
    p("v_lshrrev_b32 v20, 2, v0")
    p("v_and_b32 v20, 3, v20")
    p("v_and_b32 v21, 3, v0")
    p("v_lshl_add_u32 v22, v18, 3, v20")
    p("v_lshlrev_b32 v23, 7, v22")
    p("v_lshrrev_b32 v24, 1, v21")
    p("v_lshl_add_u32 v24, v19, 1, v24")
    p(f"s_lshl_b32 s51, s{SG}, 2")
    p("v_add_u32 v24, s51, v24")
    p("v_lshrrev_b32 v25, 1, v20")
    p("v_lshlrev_b32 v25, 2, v25")
    p("v_xor_b32 v24, v24, v25")
    p("v_lshl_add_u32 v23, v24, 4, v23")
    p("v_and_b32 v24, 1, v21")
    p(f"v_lshl_add_u32 v{VWR}, v24, 3, v23")
    p(f"s_lshl_b32 s51, s{SW}, 11")
    p(f"v_add_u32 v{VCSR}, s51, v{VWR}")
    p(f"v_add_u32 v{VH+12}, {L_P1}, v{VWR}")
    p(f"v_add_u32 v{VH+13}, {L_P1}, v{VCSR}")
    for r in range(3):
        p(f"v_add_u32 v23, {64*r}, v0")
        p(f"v_mul_u32_u24 v24, 43691, v23")
        p(f"v_lshrrev_b32 v24, 19, v24")
        p(f"v_mul_u32_u24 v25, 12, v24")
        p(f"v_sub_u32 v25, v23, v25")
        p(f"v_mul_u32_u24 v24, {3*D*2}, v24")
        p(f"v_lshl_add_u32 v{VP3D[r]}, v25, 4, v24")
    p("v_mul_u32_u24 v23, 192, v22")
    p("v_lshl_add_u32 v23, v19, 5, v23")
    p(f"v_lshl_add_u32 v{VP3R}, v21, 3, v23")
    p(f"v_add_u32 v{VP3R}, {L_P3}, v{VP3R}")
    p("v_and_b32 v23, 31, v0")
    p("v_mul_u32_u24 v23, 72, v23")
    p("v_lshrrev_b32 v24, 5, v0")
    p("v_lshl_add_u32 v23, v24, 3, v23")
    p(f"s_mul_i32 s51, s{SW8}, 2304")
    p(f"s_add_u32 s51, s51, {L_T}")
    p(f"v_add_u32 v{VH+1}, s51, v23")
    p("v_lshl_add_u32 v23, v18, 2, v20")
    p("v_mul_u32_u24 v23, 72, v23")
    p("v_lshl_add_u32 v23, v19, 5, v23")
    p("v_lshl_add_u32 v23, v21, 3, v23")
    p(f"v_add_u32 v{VH+2}, s51, v23")
    p("v_mul_u32_u24 v23, 72, v22")
    p("v_lshl_add_u32 v23, v19, 5, v23")
    p("v_lshl_add_u32 v23, v21, 3, v23")
    p(f"v_add_u32 v{VH+3}, s51, v23")
    p("v_and_b32 v23, 31, v0")
    p("v_lshlrev_b32 v23, 2, v23")
    p(f"s_lshl_b32 s51, s{SG}, 9")
    p(f"s_add_u32 s51, s51, {L_CS}")
    p(f"v_add_u32 v23, s51, v23")
    p(f"s_lshl_b32 s52, s{SW}, 7")
    p(f"v_add_u32 v{CSW}, s52, v23")
    p("v_lshrrev_b32 v24, 5, v0")
    p(f"v_lshl_add_u32 v{CSR}, v24, 8, v23")
    p(f"v_mov_b32 v{ONES}, 0x3f803f80")
    p(f"v_mov_b32 v{ONES+1}, 0x3f803f80")
    p("v_and_b32 v23, 31, v0")
    p(f"s_lshl_b32 s51, s{SW}, 5")
    p("v_add_u32 v23, s51, v23")
    p(f"v_lshlrev_b32 v{VH+6}, 3, v23")

def cs_zero(p):
    for r in range(4): p(f"v_mov_b32 v{CSD+r}, 0")
def cs_step(p, fr):
    p(f"v_mfma_f32_4x4x4_16b_bf16 {v(CSD,4)}, {v(ONES,2)}, {v(fr,2)}, {v(CSD,4)}")
    p(f"v_mfma_f32_4x4x4_16b_bf16 {v(CSD,4)}, {v(ONES,2)}, {v(fr+2,2)}, {v(CSD,4)}")
def cs_flush(p):
    p(f"v_mov_b32 v46, v{CSD}")
    p(f"v_mov_b32 v33, v{CSD}")
    p(f"v_permlane32_swap_b32 v46, v33")
    p(f"v_add_f32 v46, v46, v33")
    p(f"ds_write_b32 v{CSW}, v46", tag='cs')
def meanfix(p, acc):
    F=28
    p(f"ds_read_b32 v26, v{CSR}")
    p(f"ds_read_b32 v27, v{CSR} offset:128")
    for k in range(2):
        a=26+k; d=F+2*k
        p(f"v_and_b32 v32, 0xffff0000, v{a}")
        p(f"v_sub_f32 v33, v{a}, v32")
        p(f"v_lshrrev_b32 v{d+1}, 16, v32")
        p(f"v_and_or_b32 v{d}, v33, s60, v{d+1}")
    p(f"v_mfma_f32_32x32x16_bf16 {v(acc,16)}, {v(F,4)}, {v(NMF,4)}, {v(acc,16)}")

def p0(p, g):
    for r in range(40,44): p(f"v_mov_b32 v{r}, 0")
    cs_zero(p)
    CF=(28,120)
    def reads(kc):
        L=[]
        if kc==4:
            L.append([f"v_add_u32 v{r}, 0x10000, v{r}" for r in list(VXR)])
        else: L.append([])
        xo=(kc*16384)&0xffff
        if kc<5: wa,ca,wb=VH+12,VH+13,kc*8192
        else: wa,ca,wb=VWR,VCSR,(kc-5)*8192
        W=48+16*(kc&1)
        for u in range(4):
            L.append([f"ds_read_b128 {v(XF+4*(4*kc+u),4)}, v{VXR[u]} offset:{xo}",
                      f"ds_read_b64_tr_b16 {v(W+4*u,2)}, v{wa} offset:{wb+u*2048}",
                      f"ds_read_b64_tr_b16 {v(W+4*u+2,2)}, v{wa} offset:{wb+u*2048+512}"])
        cf=CF[kc&1]
        L.append([f"ds_read_b64_tr_b16 {v(cf,2)}, v{ca} offset:{wb}", f"ds_read_b64_tr_b16 {v(cf+2,2)}, v{ca} offset:{wb+512}"])
        return L
    def valu(kc):
        sf=XF+4*(4*kc+2*g); L=[]
        for d in range(8):
            t=34+2*(d&1)
            L+= [f"v_and_b32 v{t}, 0xffff0000, v{sf+d}", f"v_lshlrev_b32 v{t+1}, 16, v{sf+d}",
                 f"v_add_f32 v40, v40, v{t}", f"v_add_f32 v41, v41, v{t+1}", f"v_fmac_f32 v42, v{t}, v{t}", f"v_fmac_f32 v43, v{t+1}, v{t+1}"]
        return L
    def dmas(kc):
        G=[]
        n=kc+3
        if n<7:
            G.append(lambda q,n=n: dma_x(q,n,(0,)))
            G.append(lambda q,n=n: dma_x(q,n,(1,)))
            G.append(lambda q,n=n: dma_pair(q, SP1, n, p1_addr(n), f'w{n}'))
        if kc==4: G+= [lambda q,i=i: dma_pair(q, SP2, i, L_P2+i*8192, 'p2') for i in (0,1,2)]
        if kc==5: G+= [lambda q,i=i: dma_pair(q, SP2, i, L_P2+i*8192, 'p2') for i in (3,4,5)]
        if kc==6: G+= [lambda q: dma_pair(q, SP2, 6, L_P2+6*8192, 'p2')]
        return G
    for kc in range(8):
        if kc<7:
            p.wait(f'x{kc}', f'w{kc}')
            p("s_barrier")
            stamp(p,f'c{kc}bar')
        rd = reads(kc) if kc<7 else []
        dg = dmas(kc) if kc<7 else []
        if kc==0:
            for gr in rd:
                for x in gr: p(x)
            for f in dg: f(p)
        else:
            c=kc-1; W=48+16*(c&1); va=valu(c); per=len(va)//4
            if g==0:
                for f in dg: f(p)
            for u in range(4):
                cc = "0" if (c==0 and u==0) else v(ACC[0],16)
                p(f"v_mfma_f32_32x32x16_bf16 {v(ACC[0],16)}, {v(W+4*u,4)}, {v(XF+4*(4*c+u),4)}, {cc}")
                k0 = [0,3,5,6][u]; k1=[3,5,6,99][u]
                for gr in rd[k0:k1]:
                    for x in gr: p(x)
                if u==1: cs_step(p, CF[c&1])
                for x in va[u*per:(u+1)*per]: p(x)
            if g==1:
                for f in dg: f(p)
        if kc<7: p("s_waitcnt lgkmcnt(0)")
    p("v_add_f32 v40, v40, v41")
    p("v_add_f32 v41, v42, v43")
    p("v_mov_b32 v42, v40"); p("v_mov_b32 v43, v41")
    p("v_permlane32_swap_b32 v42, v40")
    p("v_permlane32_swap_b32 v43, v41")
    p("v_add_f32 v40, v40, v42")
    p("v_add_f32 v41, v41, v43")
    p(f"v_add_u32 v18, {L_XS+g*1024}, v{VH+6}")
    p(f"ds_write_b64 v18, v[40:41]", tag='xs')
    cs_flush(p)
    p.wait('xs','cs')
    p("s_barrier")

def dma_p3_groups(items):
    G=[]
    for (wo,i) in items:
        def setup(q,i=i,wo=wo):
            q(f"s_add_u32 s88, s{SW8}, {8*i+wo}") if 8*i+wo>=0 else q(f"s_sub_u32 s88, s{SW8}, {-(8*i+wo)}")
            q(f"s_mul_i32 s87, s88, {16*3*D*2}")
            q(f"s_add_u32 s87, s87, s63")
            q(f"s_mul_i32 s89, s88, 3072")
        for r in range(3):
            def one(q,r=r,setup=setup):
                if r==0: setup(q)
                q(f"s_add_u32 m0, s89, {L_P3+r*1024}")
                q("s_nop 0")
                q(f"buffer_load_dwordx4 v{VP3D[r]}, s[{WQ}:{WQ+3}], s87 offen lds", tag='p3')
            G.append(one)
    return G

def xstats(p):
    p(f"v_add_u32 v18, {L_XS}, v{VH+6}")
    p("ds_read_b64 v[20:21], v18")
    p("ds_read_b64 v[22:23], v18 offset:1024")
    p("v_add_f32 v20, v20, v22")
    p("v_add_f32 v21, v21, v23")
    p(f"v_mul_f32 v{MU}, {1.0/448:.10e}, v20".replace("+","") if False else f"v_mul_f32 v{MU}, 0x3b124925, v20")
    p(f"v_mul_f32 v21, 0x3b124925, v21")
    p(f"v_fma_f32 v21, -v{MU}, v{MU}, v21")
    p(f"v_add_f32 v21, 0x3727c5ac, v21")
    p(f"v_rsq_f32 v{RS_}, v21")
    p(f"v_sub_f32 v20, 0, v{MU}")
    p(f"v_and_b32 v21, 0xffff0000, v20")
    p(f"v_sub_f32 v22, v20, v21")
    p(f"v_lshrrev_b32 v23, 16, v21")
    p(f"v_or_b32 v{NMF}, v21, v23")
    p(f"v_lshrrev_b32 v{NMF+1}, 16, v22")
    p(f"v_mov_b32 v{NMF+2}, v{NMF}")
    p(f"v_mov_b32 v{NMF+3}, v{NMF+1}")

def center(p, acc, scale_v):
    meanfix(p, acc)
    for r in range(16):
        p(f"v_mul_f32 v{acc+r}, v{acc+r}, v{scale_v}")

def gelu(p, acc, dst):
    T=18
    for b in (0,8):
        R=range(b,b+8)
        for r in R: p(f"v_mul_f32 v{T+r-b}, v{acc+r}, v{acc+r}")
        for r in R: p(f"v_fma_f32 v{T+r-b}, v{T+r-b}, s56, v47")
        for r in R: p(f"v_mul_f32 v{T+r-b}, v{T+r-b}, v{acc+r}")
        for r in R: p(f"v_exp_f32 v{T+r-b}, v{T+r-b}")
        for r in R: p(f"v_add_f32 v{T+r-b}, 1.0, v{T+r-b}")
        for r in R: p(f"v_rcp_f32 v{T+r-b}, v{T+r-b}")
        for r in R: p(f"v_mul_f32 v{dst+r}, v{acc+r}, v{T+r-b}")

def pack(p, src, dst):
    for i in range(8): p(f"v_cvt_pk_bf16_f32 v{dst+i}, v{src+2*i}, v{src+2*i+1}")
def store2(p, src, sreg, off=0):
    p(f"buffer_store_dwordx4 {v(src,4)}, v{VL16}, s[{WS}:{WS+3}], s{sreg} offen offset:{off}")
    p(f"buffer_store_dwordx4 {v(src+4,4)}, v{VL16}, s[{WS}:{WS+3}], s{sreg} offen offset:{off+1024}")
def transpose(p, src, dst, traddr, order):
    for q in range(4):
        p(f"ds_write_b64 v{VH+1}, {v(src+2*q,2)} offset:{q*16}", tag='tw')
    p.wait('tw')
    for u in range(2):
        for ii in range(2):
            row = (16*u+8*ii) if order=='v' else (16*u+4*ii)
            p(f"ds_read_b64_tr_b16 {v(dst+4*u+2*ii,2)}, v{traddr} offset:{row*72}")

def epi_z1(p, acc, pairreg, g):
    center(p, acc, RS_)
    gelu(p, acc, acc)
    pack(p, acc, 34)
    p(f"s_mul_i32 s51, s{SSB}, {28*2048}")
    p(f"s_lshl_b32 s52, s{pairreg}, 12")
    p("s_add_u32 s51, s51, s52")
    p(f"s_add_u32 s51, s51, {WS_Z1+g*2048}")
    store2(p, 34, 51)

def epi_z2(p, acc):
    center(p, acc, RS_)
    gelu(p, acc, ZH)
    p(f"v_mov_b32 v34, v{ZH}")
    p(f"v_mul_f32 v35, v{ZH}, v{ZH}")
    for r in range(1,16):
        p(f"v_add_f32 v34, v34, v{ZH+r}")
        p(f"v_fmac_f32 v35, v{ZH+r}, v{ZH+r}")
    p("v_mov_b32 v36, v34"); p("v_mov_b32 v37, v35")
    p("v_permlane32_swap_b32 v36, v34")
    p("v_permlane32_swap_b32 v37, v35")
    p("v_add_f32 v34, v34, v36")
    p("v_add_f32 v35, v35, v37")

def mtile(p, acc, addr, off_fn, cs_addr, cs_off_fn, addr2=None, cs_addr2=None):
    NB=8; LA=5; WB=48
    cs_zero(p)
    def rd(ks):
        b=WB+4*(ks%NB)
        for ii in range(2):
            o=off_fn(ks,ii); r=addr
            if o>=43008 and addr2 is not None: r=addr2; o-=43008
            p(f"ds_read_b64_tr_b16 {v(b+2*ii,2)}, v{r} offset:{o}")
    def csrd(kc):
        for ii in range(2):
            o=cs_off_fn(kc,ii); r=cs_addr
            if o>=43008 and cs_addr2 is not None: r=cs_addr2; o-=43008
            p(f"ds_read_b64_tr_b16 {v(26+4*(kc&1)+2*ii,2)}, v{r} offset:{o}")
    for ks in range(LA): rd(ks)
    csrd(0)
    for ks in range(28):
        c = "0" if ks==0 else v(acc,16)
        p(f"v_mfma_f32_32x32x16_bf16 {v(acc,16)}, {v(WB+4*(ks%NB),4)}, {v(XF+4*ks,4)}, {c}")
        if ks+LA<28: rd(ks+LA)
        kc=ks//4; u=ks%4
        if u==0 and kc+1<7: csrd(kc+1)
        if u==2: cs_step(p, 26+4*(kc&1))
    cs_flush(p)

def epi_head(p, acc, treg, lab):
    p(f"s_lshr_b32 s52, s{treg}, 4")
    p(f"s_and_b32 s53, s{treg}, 15")
    p(f"v_mov_b32 v46, v{RS_}")
    p("s_cmp_lg_u32 s52, 0")
    p(f"s_cbranch_scc1 {lab}_NQ")
    p(f"v_mul_f32 v46, 0x3e8b97f6, v46")
    p.label(f"{lab}_NQ")
    center(p, acc, 46)
    p("s_cmp_eq_u32 s52, 0"); p("s_cselect_b32 s54, 0, 1.0")
    p("s_cmp_eq_u32 s52, 1"); p("s_cselect_b32 s55, 1.0, 0")
    p("s_mov_b64 exec, s[58:59]")
    p(f"v_mov_b32 v{acc+12}, s54"); p(f"v_mov_b32 v{acc+13}, s55"); p(f"v_mov_b32 v{acc+14}, 0"); p(f"v_mov_b32 v{acc+15}, 0")
    p("s_mov_b64 exec, -1")
    pack(p, acc, 34)
    p(f"s_lshl_b32 s54, s53, 6")
    p(f"s_add_u32 s54, s54, s{SSB}")
    p("s_cmp_eq_u32 s52, 2")
    p(f"s_cbranch_scc1 {lab}_V")
    p("s_lshl_b32 s55, s54, 11")
    p(f"s_add_u32 s55, s55, {WS_Q}")
    p("s_lshl_b32 s54, s54, 12")
    p(f"s_add_u32 s54, s54, {WS_KV}")
    p("s_cmp_eq_u32 s52, 0")
    p("s_cselect_b32 s54, s55, s54")
    p.begin_opt()
    store2(p, 34, 54)
    p(f"s_branch {lab}_D")
    p.end_opt()
    p.label(f"{lab}_V")
    p.begin_opt()
    transpose(p, 34, 20, VH+2, 'v')
    p("s_lshl_b32 s54, s54, 12")
    p(f"s_add_u32 s54, s54, {WS_KV+2048}")
    store2(p, 20, 54)
    p.end_opt()
    p.label(f"{lab}_D")

def publish_z2(p):
    p(f"v_add_u32 v18, {L_ZS}, v{VH+6}")
    p("ds_read_b64 v[36:37], v18")
    p("v_add_f32 v36, v36, v34")
    p("v_add_f32 v38, v37, v35")
    p(f"v_mov_b32 v37, s{STAG}")
    p(f"v_mov_b32 v39, s{STAG}")
    p(f"s_mul_i32 s51, s{SSB}, {14*512}")
    p(f"s_lshl_b32 s52, s{SCB}, 9")
    p("s_add_u32 s51, s51, s52")
    p(f"s_add_u32 s51, s51, {WS_ST}")
    p("s_mov_b32 exec_hi, 0")
    p(f"buffer_store_dwordx4 v[36:39], v{VL16}, s[{WS}:{WS+3}], s51 offen sc1")
    p("s_mov_b64 exec, -1")

GR=48
def granule_loads(p):
    p(f"s_mul_i32 s90, s{SSB}, {14*512}")
    p(f"s_add_u32 s90, s90, {WS_ST}")
    for i in range(7):
        p(f"s_add_u32 s53, s90, {i*1024}")
        p(f"buffer_load_dwordx4 {v(GR+4*i,4)}, v{VL16}, s[{WS}:{WS+3}], s53 offen sc1", tag='gr')

def fin_z2(p, lab, bump):
    p(f"s_mov_b32 s52, 0")
    p.label(f"{lab}_CHECK")
    p("s_waitcnt vmcnt(0)")
    p("s_mov_b64 s[54:55], 0")
    for i in range(7):
        p(f"v_cmp_ne_u32 vcc, s{STAG}, v{GR+4*i+1}")
        p("s_or_b64 s[54:55], s[54:55], vcc")
        p(f"v_cmp_ne_u32 vcc, s{STAG}, v{GR+4*i+3}")
        p("s_or_b64 s[54:55], s[54:55], vcc")
    p("s_cmp_eq_u64 s[54:55], 0")
    p(f"s_cbranch_scc1 {lab}_POLLDONE")
    p("s_add_u32 s52, s52, 1")
    p("s_cmp_gt_u32 s52, 0x40000")
    p(f"s_cbranch_scc1 {lab}_POLLDONE")
    granule_loads(p)
    p(f"s_branch {lab}_CHECK")
    p.label(f"{lab}_POLLDONE")
    stamp(p,'polled')
    if bump:
        p(f"s_or_b32 s53, s{SCB}, s{SW8}")
        p("s_cmp_lg_u32 s53, 0")
        p(f"s_cbranch_scc1 {lab}_NOBUMP")
        p.begin_opt()
        p(f"v_mov_b32 v18, s{STAG}")
        p("s_mov_b64 exec, 1")
        p(f"buffer_store_dword v18, v{VH+8}, s[{WS}:{WS+3}], s{SEP} offen sc1")
        p("s_mov_b64 exec, -1")
        p.end_opt()
        p.label(f"{lab}_NOBUMP")
    a=GR
    p(f"v_add_f32 v34, v{a}, v{a+4}")
    p(f"v_add_f32 v35, v{a+2}, v{a+6}")
    for i in range(2,7):
        p(f"v_add_f32 v34, v34, v{a+4*i}")
        p(f"v_add_f32 v35, v35, v{a+4*i+2}")
    p("v_mov_b32 v36, v34"); p("v_mov_b32 v37, v35")
    p("v_permlane32_swap_b32 v36, v34")
    p("v_permlane32_swap_b32 v37, v35")
    p("v_add_f32 v34, v34, v36")
    p("v_add_f32 v35, v35, v37")
    p("v_mul_f32 v34, 0x3a924925, v34")
    p("v_mul_f32 v35, 0x3a924925, v35")
    p("v_fma_f32 v35, -v34, v34, v35")
    p("v_add_f32 v35, 0x3727c5ac, v35")
    p("v_rsq_f32 v35, v35")
    p("v_mul_f32 v34, v34, v35")
    for r in range(16):
        p(f"v_fma_f32 v{ZH+r}, v{ZH+r}, v35, -v34")
    pack(p, ZH, 36)
    transpose(p, 36, 20, VH+3, 'z')
    p(f"s_lshl_b32 s51, s{SCB}, 7")
    p(f"s_lshl_b32 s52, s{SSB}, 1")
    p("s_add_u32 s51, s51, s52")
    p("s_lshl_b32 s51, s51, 11")
    p(f"s_lshl_b32 s52, s{SG}, 10")
    p("s_add_u32 s51, s51, s52")
    p(f"s_add_u32 s51, s51, {WS_Z2}")
    p(f"buffer_store_dwordx4 {v(20,4)}, v{VL16}, s[{WS}:{WS+3}], s51 offen")
    p(f"buffer_store_dwordx4 {v(24,4)}, v{VL16}, s[{WS}:{WS+3}], s51 offen offset:2048")

def first_epi(p, g, lab):
    G=dma_p3_groups([(0,0)])
    sides=[capture(f) for f in G]
    p(f"s_mul_i32 s63, s{SCB}, 168")
    xstats(p)
    p(f"s_cmp_ge_u32 s{SCB}, 14")
    p(f"s_cbranch_scc1 {lab}_Z1")
    p.begin_alt(); p.alt_branch()
    main=capture(lambda q: epi_z2(q, ACC[0]))
    p.extend(interleave(main, sides, 30, 150))
    if g==0:
        p(f"v_add_u32 v18, {L_ZS}, v{VH+6}")
        p("ds_write_b64 v18, v[34:35]", tag='zs')
    p(f"s_branch {lab}_D")
    p.alt_branch()
    p.label(f"{lab}_Z1")
    p(f"s_sub_u32 s57, s{SCB}, 2")
    sides=[capture(f) for f in G]
    main=capture(lambda q: epi_z1(q, ACC[0], 57, g))
    p.extend(interleave(main, sides, 30, 130))
    p.end_alt()
    p.label(f"{lab}_D")

def pair_mtile(p, g):
    p(f"v_add_u32 v{VH+10}, {L_P2}, v{VWR}")
    p(f"v_add_u32 v{VH+11}, {L_P2}, v{VCSR}")
    mtile(p, ACC[0], VH+10, lambda ks,ii: ks*2048+ii*512, VH+11, lambda kc,ii: kc*8192+ii*512)
def head_mtile(p, t):
    p(f"v_add_u32 v{VH+10}, {56*t}, v{VP3R}")
    p(f"s_mul_i32 s51, s{SW}, {16*192}")
    p(f"v_add_u32 v{VH+11}, s51, v{VH+10}")
    p(f"v_add_u32 v{VH+12}, 43008, v{VH+10}")
    p(f"v_add_u32 v{VH+13}, 43008, v{VH+11}")
    mtile(p, ACC[0], VH+10, lambda ks,ii: ks*16*192+ii*4*192, VH+11, lambda kc,ii: kc*64*192+ii*4*192, VH+12, VH+13)
def head_epi(p, t, lab):
    p(f"s_mul_i32 s62, s{SCB}, 3")
    if t: p(f"s_add_u32 s62, s62, {t}")
    epi_head(p, ACC[0], 62, lab)
def bar(p, name, *tags):
    if tags: p.wait(*tags)
    p("s_barrier")
    stamp(p,name)

def group_code(p, g):
    A = (g==0); L = "KA" if A else "KB"
    p0(p, g)
    stamp(p,'p0end')
    first_epi(p, g, L+"F")
    bar(p,'s1end','p2','zs')
    def maybe_publish():
        p(f"s_cmp_ge_u32 s{SCB}, 14")
        p(f"s_cbranch_scc1 {L}_NOPUB")
        p.begin_opt(); publish_z2(p); p.end_opt()
        p.label(f"{L}_NOPUB")
    if not A:
        maybe_publish()
        for f in dma_p3_groups([(0,1),(0,2),(-4,3)]): f(p)
    p(f"s_sub_u32 s57, s{SCB}, 2")
    p("s_cmp_ge_u32 s57, 12")
    p(f"s_cbranch_scc1 {L}_NOSECOND")
    p.begin_alt(); p.alt_branch()
    if A:
        pair_mtile(p, 0); bar(p,'s2end','cs')
        sides=[capture(f) for f in dma_p3_groups([(0,1),(0,2)])]
        main=capture(lambda q: epi_z1(q, ACC[0], 57, 0))
        p.extend(interleave(main, sides, 14, 110))
        bar(p,'s3end','p3')
        head_mtile(p, 0); bar(p,'s4end','cs')
    else:
        bar(p,'s2end')
        pair_mtile(p, 1); bar(p,'s3end','cs','p3')
        epi_z1(p, ACC[0], 57, 1); bar(p,'s4end')
    p(f"s_branch {L}_JOIN")
    p.alt_branch()
    p.label(f"{L}_NOSECOND")
    if A:
        for f in dma_p3_groups([(0,1),(0,2)]): f(p)
    bar(p,'s3endx','p3')
    if A: head_mtile(p, 0)
    bar(p,'s4endx','cs')
    p.end_alt()
    p.label(f"{L}_JOIN")
    def gl():
        p(f"s_cmp_ge_u32 s{SCB}, 14")
        p(f"s_cbranch_scc1 {L}_NOGL")
        p.begin_opt(); granule_loads(p); p.end_opt()
        p.label(f"{L}_NOGL")
    if A:
        head_epi(p, 0, L+"H0"); bar(p,'s5end')
        head_mtile(p, 2); bar(p,'s6end','cs')
        gl()
        head_epi(p, 2, L+"H2")
    else:
        head_mtile(p, 1); bar(p,'s5end','cs')
        gl()
        head_epi(p, 1, L+"H1")
        bar(p,'s6end')
    stamp(p,'headsE')
    p(f"s_cmp_ge_u32 s{SCB}, 14")
    p(f"s_cbranch_scc1 {L}_NOFIN")
    p.begin_opt(); fin_z2(p, L, A); p.end_opt()
    p.label(f"{L}_NOFIN")
    stamp(p,'end')
    PR.dump(p)

def l2_prefetch(p):
    T=38
    p("s_and_b32 s51, s15, 7")
    p("s_lshr_b32 s52, s15, 3")
    p.begin_alt()
    p(f"s_cmp_ge_u32 s{SW8}, 2")
    p("s_cbranch_scc1 K1_PF2")
    p.alt_branch()
    p("s_lshl_b32 s53, s52, 7")
    p(f"s_lshl_b32 s54, s{SW8}, 6")
    p("s_add_u32 s53, s53, s54")
    p("v_add_u32 v18, s53, v0")
    p("v_lshrrev_b32 v19, 2, v18")
    p(f"v_mul_u32_u24 v19, {D*2}, v19")
    p("v_and_b32 v18, 3, v18")
    p("v_lshl_add_u32 v19, v18, 7, v19")
    p(f"s_mul_i32 s53, s{SRB}, {128*D*2}")
    p(f"s_add_u32 s53, s53, {3*128}")
    p(f"buffer_load_dword v{T}, v19, s[{XS}:{XS+3}], s53 offen")
    p("s_branch K1_PFD")
    p.alt_branch()
    p.label("K1_PF2")
    p(f"s_cmp_ge_u32 s{SW8}, 4")
    p("s_cbranch_scc1 K1_PF4")
    p(f"s_lshl_b32 s53, s{SW8}, 3")
    p(f"s_mul_i32 s53, s53, {F*2}")
    p(f"s_cmp_eq_u32 s{SW8}, 2")
    p(f"s_cselect_b32 s54, s{SP1}, s{SP2}")
    p("s_sub_u32 s54, s54, s53")
    p(f"s_cmp_eq_u32 s{SW8}, 2")
    p("s_cselect_b32 s55, 32, 56")
    p("s_cselect_b32 s53, 192, 0")
    p("s_mul_i32 s61, s51, s55")
    p("s_add_u32 s53, s53, s61")
    p("s_sub_u32 s55, s55, 1")
    p("v_min_u32 v18, s55, v0")
    p("v_add_u32 v18, s53, v18")
    p(f"v_mul_u32_u24 v19, {F*2}, v18")
    p(f"buffer_load_dword v{T}, v19, s[{WIN}:{WIN+3}], s54 offen")
    p("s_branch K1_PFD")
    p.alt_branch()
    p.label("K1_PF4")
    p(f"s_sub_u32 s53, s{SW8}, 4")
    p("s_min_u32 s53, s53, 2")
    p("s_mul_i32 s53, s53, 94")
    p(f"s_mul_i32 s54, s{SCB}, 168")
    p("s_add_u32 s54, s54, s53")
    p("s_mul_i32 s53, s51, 56")
    p("v_min_u32 v18, 55, v0")
    p("v_add_u32 v18, s53, v18")
    p(f"v_mul_u32_u24 v19, {3*D*2}, v18")
    p(f"buffer_load_dword v{T}, v19, s[{WQ}:{WQ+3}], s54 offen")
    p.end_alt()
    p.label("K1_PFD")

def gen():
    p=Prog(); prologue(p)
    p(f"v_mov_b32 v{VH+8}, 0")
    p(f"s_lshl_b32 s{SEP}, s{SRB}, 7")
    p(f"s_add_u32 s{SEP}, s{SEP}, {WS_EP}")
    p(f"buffer_load_dword v{EPV}, v{VH+8}, s[{WS}:{WS+3}], s{SEP} offen sc1")
    for kc in range(3):
        dma_x(p,kc); dma_pair(p, SP1, kc, p1_addr(kc), f'w{kc}')
    if PREFETCH: l2_prefetch(p)
    setup_reads(p)
    p("s_mov_b32 s56, 0xbdd2d3e8")
    p("v_mov_b32 v47, 0xc0135761")
    p("s_mov_b32 s58, 0"); p("s_mov_b32 s59, -1")
    p("s_mov_b32 s60, 0xffff0000")
    p(f"v_add_u32 v{EPV}, 1, v{EPV}")
    p(f"v_readfirstlane_b32 s{STAG}, v{EPV}")
    stamp(p,'setup')
    p(f"s_cmp_ge_u32 s{SW8}, 4")
    p("s_cbranch_scc1 K1_GROUPB")
    p.begin_alt(); p.alt_branch()
    n0=PR.n; names0=list(PR.names)
    group_code(p, 0)
    namesA=list(PR.names); PR.n=n0; PR.names=list(names0)
    p("s_branch K1_END")
    p.alt_branch()
    p.label("K1_GROUPB")
    group_code(p, 1)
    PR.namesA=namesA
    p.end_alt()
    p.label("K1_END")
    p("s_endpgm")
    return p

PREFETCH=False
def kernel(**opt):
    global PR, PREFETCH
    PREFETCH=bool(int(opt.get('pf',0)))
    PR=Prof(bool(int(opt.get('prof',0))),WS,SW8,WS_EP+(1<<19))
    text=gen().finalize()
    if PR.on: open('k1_stamps.txt','w').write(" ".join(PR.namesA)+"\n"+" ".join(PR.names))
    return dict(name="k1_kernel", text=text, grid=256, block=512, lds=LDS_K1, vgpr=256, sgpr=96, accum=256)
```

```python
from asmlib import *
from layout import *
from k3 import srd

LDS_RING = 0
LDS_AC   = 98304
LDS_AM   = 147456
LDS_K2   = 147456 + 4096

SW=16; SHEAD=17; SQB=18; STB=19; SFB=20; SJ=21; SX=22
WS=24; WSP=28; AUX=32; AUX2=36

from profutil import Prof
PR=Prof(False,WS,23,0)
PROF=False
def stamp(p,name): PR.stamp(p,str(name))
def dump_stamps(p,n): PR.dump(p)

def prologue(p):
    p("s_cmp_ge_u32 s2, 256")
    p("s_cbranch_scc1 K2_END")
    p(f"s_load_dwordx2 s[4:5], s[0:1], {KA_WS}")
    p(f"s_load_dwordx2 s[6:7], s[0:1], {KA_WSP}")
    p(f"s_load_dwordx2 s[8:9], s[0:1], {KA_BSP}")
    p(f"s_load_dwordx2 s[10:11], s[0:1], {KA_WO}")
    p(f"s_load_dwordx2 s[12:13], s[0:1], {KA_WOUT}")
    p("v_lshrrev_b32 v1, 6, v0")
    p("v_and_b32 v0, 63, v0")
    p("v_readfirstlane_b32 s23, v1")
    p(f"s_and_b32 s{SX}, s2, 7")
    p(f"s_lshr_b32 s{SJ}, s2, 3")
    p(f"s_and_b32 s{SW}, s23, 3")
    p("v_lshlrev_b32 v1, 4, v0")
    p("s_waitcnt lgkmcnt(0)")
    srd(p, WS, 4, WS_SIZE)
    PR.real(p,62)
    stamp(p,'start')
    p("s_cmp_ge_u32 s23, 4")
    p("s_cbranch_scc1 K2_ROLEB")

Q0=16; O0=48; S_=[112,128]; P_=[144,152]; KV0=160; ME=224; T0=228
def kvb(b): return KV0+16*b

def attention(p, force_fallback=False):
    SKV=40; SQ=41; SNT=42; SOFF=43; SK=44; SCNT=45; SIT=46
    p(f"s_lshr_b32 s40, s{SJ}, 4")
    p(f"s_lshl_b32 s41, s{SX}, 1")
    p(f"s_add_u32 s{SHEAD}, s40, s41")
    p(f"s_and_b32 s{SQB}, s{SJ}, 15")
    p(f"s_lshl_b32 s40, s{SHEAD}, 17")
    p(f"s_lshl_b32 s41, s{SQB}, 13")
    p(f"s_add_u32 s47, s40, s41")
    if WS_Q: p(f"s_add_u32 s47, s47, {WS_Q}")
    for rho in range(4):
        p(f"s_add_u32 s40, s{SW}, {rho}")
        p("s_and_b32 s40, s40, 3")
        p("s_lshl_b32 s40, s40, 11")
        p("s_add_u32 s40, s40, s47")
        p(f"buffer_load_dwordx4 {v(Q0+8*rho,4)}, v1, s[{WS}:{WS+3}], s40 offen")
        p(f"buffer_load_dwordx4 {v(Q0+8*rho+4,4)}, v1, s[{WS}:{WS+3}], s40 offen offset:1024")
    p(f"s_lshl_b32 s40, s{SHEAD}, 18")
    p(f"s_lshl_b32 s41, s{SW}, 16")
    p(f"s_add_u32 s40, s40, s41")
    p(f"s_add_u32 s{SKV}, s40, {WS_KV}")
    p(f"s_mov_b32 s{SNT}, {16 if force_fallback else 1}")
    p(f"s_mov_b32 s{SOFF}, {'0' if force_fallback else '0x42800000'}")
    p.label("A_RETRY")
    for j in range(4): p(f"v_mov_b32 v{ME+j}, 0xff7fffff")
    p(f"s_mov_b32 s{SK}, s{SKV}")
    p(f"s_mov_b32 s{SCNT}, s{SNT}")
    def ld_tile(t_imm_base_sreg, b, part):
        for i in range(2):
            p(f"buffer_load_dwordx4 {v(kvb(b)+8*part+4*i,4)}, v1, s[{WS}:{WS+3}], s{t_imm_base_sreg} offen offset:{(2*part+i)*1024}")
    l = p.begin_loop(visits=2)
    p.label("A_MAXLOOP")
    ld_tile(SK, 3, 0)
    p(f"s_add_u32 s{SK}, s{SK}, 4096")
    for j in range(4):
        Sx = S_[j&1]
        p(f"v_mfma_f32_32x32x16_bf16 {v(Sx,16)}, {v(kvb(3),4)}, {v(Q0+8*j,4)}, 0")
        p(f"v_mfma_f32_32x32x16_bf16 {v(Sx,16)}, {v(kvb(3)+4,4)}, {v(Q0+8*j+4,4)}, {v(Sx,16)}")
        if j>0:
            Sy=S_[(j-1)&1]
            maxtree(p,Sy,ME+j-1)
    maxtree(p,S_[1],ME+3)
    p(f"s_sub_u32 s{SCNT}, s{SCNT}, 1")
    p(f"s_cmp_lg_u32 s{SCNT}, 0")
    p("s_cbranch_scc1 A_MAXLOOP")
    p.end_loop()
    stamp(p,'maxdone')
    p(f"s_mov_b32 s{SK}, s{SKV}")
    for t in range(3):
        ld_tile(SK, t, 0); ld_tile(SK, t, 1)
        p(f"s_add_u32 s{SK}, s{SK}, 4096")
    for j in range(4):
        m=ME+j; t=T0
        p(f"v_mov_b32 v{t}, v{m}")
        p(f"v_permlane32_swap_b32 v{t}, v{m}")
        p(f"v_max_f32 v{m}, v{t}, v{m}")
        p(f"v_add_f32 v{m}, s{SOFF}, v{m}")
        p(f"v_sub_f32 v{t}, 0, v{m}")
        p(f"v_and_b32 v{t+1}, 0xffff0000, v{t}")
        p(f"v_sub_f32 v{t+2}, v{t}, v{t+1}")
        p(f"v_and_b32 v{t+2}, 0xffff0000, v{t+2}")
        p(f"v_add_f32 v{t+3}, v{t+1}, v{t+2}")
        p(f"v_sub_f32 v{m}, 0, v{t+3}")
        p(f"v_lshrrev_b32 v{t+1}, 16, v{t+1}")
        p(f"v_or_b32 v{t+1}, v{t+1}, v{t+2}")
        p(f"s_mov_b64 exec, s[48:49]")
        p(f"v_mov_b32 v{Q0+8*j+6}, v{t+1}")
        p(f"s_mov_b64 exec, -1")
    def QK(u):
        j=u&3; b=(u>>2)&3; Sx=S_[u&1]
        return [f"v_mfma_f32_32x32x16_bf16 {v(Sx,16)}, {v(kvb(b),4)}, {v(Q0+8*j,4)}, 0",
                f"v_mfma_f32_32x32x16_bf16 {v(Sx,16)}, {v(kvb(b)+4,4)}, {v(Q0+8*j+4,4)}, {v(Sx,16)}"]
    def PV(u):
        j=u&3; b=(u>>2)&3; Px=P_[u&1]; O=O0+16*j
        return [f"v_mfma_f32_32x32x16_bf16 {v(O,16)}, {v(kvb(b)+8,4)}, {v(Px,4)}, {v(O,16)}",
                f"v_mfma_f32_32x32x16_bf16 {v(O,16)}, {v(kvb(b)+12,4)}, {v(Px+4,4)}, {v(O,16)}"]
    for r in range(8): p(f"v_mov_b32 v{kvb(3)+8+r}, 0")
    for m_ in QK(0): p(m_)
    for r in range(64): p(f"v_mov_b32 v{O0+r}, 0")
    for r in range(8): p(f"v_mov_b32 v{P_[1]+r}, 0")
    def period(u, loads):
        Sx=S_[u&1]; Px=P_[u&1]
        qk=QK(u+1); pv=PV(u-1)
        ms=[qk[0],pv[0],qk[1],pv[1]]
        ex=[f"v_exp_f32 v{Sx+i}, v{Sx+i}" for i in range(16)]
        cv=[f"v_cvt_pk_bf16_f32 v{Px+i}, v{Sx+2*i}, v{Sx+2*i+1}" for i in range(8)]
        for g in range(4):
            p(ms[g])
            if g < len(loads) and loads[g]:
                for x in loads[g]: p(x)
            for k in range(2):
                i=2*g+k
                p(ex[2*i]); p(ex[2*i+1])
                if i>0: p(cv[i-1])
        p(cv[7])
    def iteration(last):
        for tl in range(4):
            for j in range(4):
                u=4*tl+j
                loads=[None]*4
                nb=(tl+3)&3
                doload = (not last) or tl==0
                if doload and j==0:
                    loads[2]=[f"buffer_load_dwordx4 {v(kvb(nb),4)}, v1, s[{WS}:{WS+3}], s{SK} offen offset:0"]
                    loads[3]=[f"buffer_load_dwordx4 {v(kvb(nb)+4,4)}, v1, s[{WS}:{WS+3}], s{SK} offen offset:1024"]
                if doload and j==1:
                    loads[0]=[f"buffer_load_dwordx4 {v(kvb(nb)+8,4)}, v1, s[{WS}:{WS+3}], s{SK} offen offset:2048"]
                    loads[1]=[f"buffer_load_dwordx4 {v(kvb(nb)+12,4)}, v1, s[{WS}:{WS+3}], s{SK} offen offset:3072",
                              f"s_add_u32 s{SK}, s{SK}, 4096"]
                period(u,loads)
    stamp(p,'loopstart')
    p(f"s_mov_b32 s{SIT}, 3")
    p.begin_loop(visits=3)
    p.label("A_LOOP")
    iteration(False)
    p(f"s_sub_u32 s{SIT}, s{SIT}, 1")
    p(f"s_cmp_lg_u32 s{SIT}, 0")
    p("s_cbranch_scc1 A_LOOP")
    p.end_loop()
    iteration(True)
    for m_ in PV(63): p(m_)
    stamp(p,'loopend')
    p("s_mov_b32 s50, 0x71800000")
    p("s_mov_b64 s[52:53], 0")
    for j in range(4):
        p(f"v_cmp_ngt_f32 vcc, s50, v{O0+16*j+12}")
        p("s_or_b64 s[52:53], s[52:53], vcc")
    p(f"s_cmp_eq_u32 s53, 0")
    p("s_cbranch_scc1 A_OK")
    p(f"s_cmp_eq_u32 s{SNT}, 16")
    p("s_cbranch_scc1 A_OK")
    p(f"s_mov_b32 s{SNT}, 16")
    p(f"s_mov_b32 s{SOFF}, 0")
    p(f"s_mov_b64 exec, s[48:49]")
    for j in range(4): p(f"v_mov_b32 v{Q0+8*j+6}, 0")
    p(f"s_mov_b64 exec, -1")
    p("s_branch A_RETRY")
    p.label("A_OK")

def maxtree(p, Sy, dst):
    t=T0
    for i in range(4):
        p(f"v_max3_f32 v{t+i}, v{Sy+4*i}, v{Sy+4*i+1}, v{Sy+4*i+2}")
    p(f"v_max3_f32 v{t}, v{t}, v{Sy+3}, v{Sy+7}")
    p(f"v_max3_f32 v{t+1}, v{t+1}, v{Sy+11}, v{Sy+15}")
    p(f"v_max3_f32 v{t}, v{t}, v{t+2}, v{t+3}")
    p(f"v_max3_f32 v{dst}, v{dst}, v{t}, v{t+1}")

def attention_publish(p):
    p(f"s_mul_i32 s40, s{SW}, 12288")
    p(f"s_add_u32 s40, s40, {LDS_AC}")
    p(f"v_add_u32 v2, s40, v1")
    for rho in range(1,4):
        for q in range(4):
            p(f"ds_write_b128 v2, {v(O0+16*rho+4*q,4)} offset:{(rho-1)*4096+q*1024}", tag='apub')
    p(f"v_and_b32 v3, 31, v0")
    p(f"v_lshlrev_b32 v3, 2, v3")
    p(f"s_lshl_b32 s40, s{SW}, 10")
    p(f"s_add_u32 s40, s40, {LDS_AM}")
    p(f"v_add_u32 v4, s40, v3")
    for rho in range(4):
        p(f"v_log_f32 v{T0+rho}, v{O0+16*rho+12}")
    for rho in range(4):
        p(f"v_add_f32 v{T0+rho}, v{T0+rho}, v{ME+rho}")
    p(f"s_mov_b64 exec, s[48:49]")
    for rho in range(4):
        p(f"ds_write_b32 v4, v{ME+rho} offset:{rho*256}", tag='apub')
        p(f"ds_write_b32 v4, v{T0+rho} offset:{rho*256+128}", tag='apub')
    p(f"s_mov_b64 exec, -1")
    p.wait('apub')

def attention_finish(p):
    R=112
    MM=160; LG=164
    for rho in range(4):
        p(f"s_sub_u32 s40, s{SW}, {rho}")
        p("s_and_b32 s40, s40, 3")
        p("s_lshl_b32 s41, s40, 10")
        p(f"s_add_u32 s41, s41, {LDS_AM+rho*256}")
        p(f"v_add_u32 v4, s41, v3")
        p(f"ds_read_b32 v{MM+rho}, v4")
        p(f"ds_read_b32 v{LG+rho}, v4 offset:128")
        if rho>0:
            p("s_mul_i32 s41, s40, 12288")
            p(f"s_add_u32 s41, s41, {LDS_AC+(rho-1)*4096}")
            p(f"v_add_u32 v2, s41, v1")
            for q in range(4):
                p(f"ds_read_b128 {v(R+16*(rho-1)+4*q,4)}, v2 offset:{q*1024}")
    t=T0
    p(f"v_max3_f32 v{t}, v{LG}, v{LG+1}, v{LG+2}")
    p(f"v_max_f32 v{t}, v{t}, v{LG+3}")
    for rho in range(4):
        p(f"v_sub_f32 v{LG+rho}, v{LG+rho}, v{t}")
        p(f"v_sub_f32 v{MM+rho}, v{MM+rho}, v{t}")
    for rho in range(4):
        p(f"v_exp_f32 v{LG+rho}, v{LG+rho}")
        p(f"v_exp_f32 v{MM+rho}, v{MM+rho}")
    p(f"v_add_f32 v{LG}, v{LG}, v{LG+1}")
    p(f"v_add_f32 v{LG+2}, v{LG+2}, v{LG+3}")
    p(f"v_add_f32 v{LG}, v{LG}, v{LG+2}")
    p(f"v_rcp_f32 v{LG}, v{LG}")
    for rho in range(4):
        p(f"v_mul_f32 v{MM+rho}, v{MM+rho}, v{LG}")
    for r in range(16):
        p(f"v_mul_f32 v{O0+r}, v{O0+r}, v{MM}")
    for rho in range(1,4):
        for r in range(16):
            p(f"v_fmac_f32 v{O0+r}, v{R+16*(rho-1)+r}, v{MM+rho}")
    p(f"s_mov_b64 exec, s[48:49]")
    for r in range(12,16): p(f"v_mov_b32 v{O0+r}, 0")
    p(f"s_mov_b64 exec, -1")
    for i in range(8):
        p(f"v_cvt_pk_bf16_f32 v{R+i}, v{O0+2*i}, v{O0+2*i+1}")
    p(f"s_lshl_b32 s40, s{SQB}, 2")
    p(f"s_add_u32 s40, s40, s{SW}")
    p(f"s_mul_i32 s40, s40, {88*1024}")
    p(f"s_lshl_b32 s41, s{SHEAD}, 11")
    p(f"s_add_u32 s40, s40, s41")
    p(f"s_add_u32 s40, s40, {WS_H}")
    p(f"buffer_store_dwordx4 {v(R,4)}, v1, s[{WS}:{WS+3}], s40 offen")
    p(f"buffer_store_dwordx4 {v(R+4,4)}, v1, s[{WS}:{WS+3}], s40 offen offset:1024")

GACC=128; GA=64; GB=48
def gemm(p):
    SROW=[40,41,42,43]; SRING=44; SZ=45; ST=46
    VD=[2,3]; VR=[4,5,6,7]
    p(f"s_mul_i32 s46, s{SJ}, 37")
    p("s_lshr_b32 s46, s46, 8")
    p("s_mul_i32 s47, s46, 7")
    p(f"s_sub_u32 s47, s{SJ}, s47")
    p(f"s_lshr_b32 s48, s{SX}, 1")
    p("s_lshl_b32 s48, s48, 2")
    p(f"s_add_u32 s{STB}, s48, s46")
    p(f"s_and_b32 s48, s{SX}, 1")
    p("s_mul_i32 s48, s48, 7")
    p(f"s_add_u32 s{SFB}, s48, s47")
    srd(p, WSP, 6, S*S*2)
    srd(p, AUX, 8, S*2)
    for rho in range(4):
        p(f"s_add_u32 s46, s{SW}, {rho}")
        p("s_and_b32 s46, s46, 3")
        p("s_lshl_b32 s46, s46, 5")
        p(f"s_lshl_b32 s47, s{STB}, 7")
        p("s_add_u32 s46, s46, s47")
        p("s_lshl_b32 s46, s46, 12")
        p(f"s_lshl_b32 s47, s{SW}, 10")
        p(f"s_add_u32 s{SROW[rho]}, s46, s47")
    p(f"s_mul_i32 s{SRING}, s{SW}, 24576")
    p(f"s_lshl_b32 s46, s{SFB}, 7")
    p(f"s_lshl_b32 s47, s{SW}, 5")
    p("s_add_u32 s46, s46, s47")
    p("s_lshl_b32 s46, s46, 11")
    p(f"s_add_u32 s{SZ}, s46, {WS_Z2}")
    p("v_lshrrev_b32 v8, 3, v0")
    p("v_lshlrev_b32 v8, 12, v8")
    p("v_lshrrev_b32 v9, 4, v0")
    p("v_and_b32 v10, 7, v0")
    p("v_xor_b32 v11, v10, v9")
    p("v_lshl_add_u32 v2, v11, 4, v8")
    p("v_xor_b32 v11, 4, v11")
    p("v_lshl_add_u32 v3, v11, 4, v8")
    p("v_and_b32 v8, 31, v0")
    p("v_lshrrev_b32 v9, 5, v0")
    p("v_lshrrev_b32 v10, 1, v8")
    p("v_and_b32 v10, 7, v10")
    p("v_xor_b32 v10, v10, v9")
    p("v_lshlrev_b32 v8, 7, v8")
    p(f"v_add_u32 v8, s{SRING}, v8")
    for u in range(4):
        p(f"v_xor_b32 v11, {2*u}, v10")
        p(f"v_lshl_add_u32 v{VR[u]}, v11, 4, v8")
    def dma(c):
        sc=c>>1; th=c&1; slot=c%3
        for i in range(8):
            rho=2*th+(i>>2)
            p(f"s_add_u32 m0, s{SRING}, {slot*8192+i*1024}")
            p(f"s_add_u32 s{ST}, s{SROW[rho]}, {(8*(i&3))*4096+sc*128}")
            p(f"buffer_load_dwordx4 v{VD[i&1]}, s[{WSP}:{WSP+3}], s{ST} offen lds", tag=f'dma{slot}')
    def aload(sc, lo, hi):
        e=sc&1
        for k in range(lo,hi):
            if k%4==0: p(f"s_add_u32 s{ST+1}, s{SZ}, {sc*8192+k*1024}")
            p(f"buffer_load_dwordx4 {v(GA+e*32+4*k,4)}, v1, s[{WS}:{WS+3}], s{ST+1} offen offset:{(k%4)*1024}")
    def bread(c,u):
        slot=c%3; st=(c*4+u)&1
        for tl in range(2):
            p(f"ds_read_b128 {v(GB+st*8+4*tl,4)}, v{VR[u]} offset:{slot*8192+tl*4096}")
    dma(0); aload(0,0,8); dma(1)
    stamp(p,'issued')
    p.wait('dma0')
    bread(0,0)
    stamp(p,'loopstart')
    for c in range(16):
        if c in (2,4,8,12): stamp(p,f'c{c}')
        sc=c>>1; th=c&1; e=sc&1
        for u in range(4):
            if u<3: nxt=(c,u+1)
            else: nxt=(c+1,0) if c<15 else None
            st=(c*4+u)&1
            first=True
            for tl in range(2):
                for fi in range(2):
                    acc=GACC+((2*th+tl)*2+fi)*16
                    cc = "0" if (sc==0 and u==0) else v(acc,16)
                    p(f"v_mfma_f32_32x32x16_bf16 {v(acc,16)}, {v(GA+e*32+4*(u*2+fi),4)}, {v(GB+st*8+4*tl,4)}, {cc}")
                    if first:
                        first=False
                        if nxt:
                            if nxt[0]!=c: p.wait(f'dma{nxt[0]%3}')
                            bread(*nxt)
            if u==0 and c+2<16: dma(c+2)
            if u==1 and sc+1<8: aload(sc+1, 4*th, 4*th+4)

def gemm_publish(p):
    p(f"v_add_u32 v2, s44, v1")
    for rho in range(1,4):
        for fi in range(2):
            for q in range(4):
                p(f"ds_write_b128 v2, {v(GACC+(rho*2+fi)*16+4*q,4)} offset:{(rho-1)*8192+fi*4096+q*1024}", tag='gpub')
    p(f"s_lshl_b32 s46, s{STB}, 2")
    p(f"s_add_u32 s46, s46, s{SW}")
    p(f"s_mul_i32 s47, s46, {28*2048}")
    p(f"s_lshl_b32 s48, s{SFB}, 12")
    p("s_add_u32 s47, s47, s48")
    p(f"s_add_u32 s47, s47, {WS_Z1}")
    for k in range(4):
        p(f"buffer_load_dwordx4 {v(16+4*k,4)}, v1, s[{WS}:{WS+3}], s47 offen offset:{k*1024}")
    p("v_and_b32 v8, 31, v0")
    p("v_lshlrev_b32 v8, 1, v8")
    p("s_lshl_b32 s48, s46, 6")
    p(f"buffer_load_ushort v9, v8, s[{AUX}:{AUX+3}], s48 offen")
    p.wait('gpub')

def gemm_finish(p):
    R=32
    for rho in range(1,4):
        p(f"s_sub_u32 s47, s{SW}, {rho}")
        p("s_and_b32 s47, s47, 3")
        p("s_mul_i32 s47, s47, 24576")
        p(f"s_add_u32 s47, s47, {(rho-1)*8192}")
        p("v_add_u32 v2, s47, v1")
        for k in range(8):
            p(f"ds_read_b128 {v(R+32*(rho-1)+4*k,4)}, v2 offset:{k*1024}")
    p("v_lshlrev_b32 v9, 16, v9")
    for r in range(32):
        p(f"v_add_f32 v{GACC+r}, v{GACC+r}, v{R+r}")
        p(f"v_add_f32 v{R+32+r}, v{R+32+r}, v{R+64+r}")
        p(f"v_add_f32 v{GACC+r}, v{GACC+r}, v9")
        p(f"v_add_f32 v{GACC+r}, v{GACC+r}, v{R+32+r}")
    for d in range(16):
        p(f"v_lshlrev_b32 v10, 16, v{16+d}")
        p(f"v_and_b32 v11, 0xffff0000, v{16+d}")
        p(f"v_mul_f32 v{GACC+2*d}, v{GACC+2*d}, v10")
        p(f"v_mul_f32 v{GACC+2*d+1}, v{GACC+2*d+1}, v11")
        p(f"v_cvt_pk_bf16_f32 v{R+d}, v{GACC+2*d}, v{GACC+2*d+1}")
    p(f"s_mul_i32 s47, s46, {88*1024}")
    p(f"s_lshl_b32 s48, s{SFB}, 12")
    p("s_add_u32 s47, s47, s48")
    p(f"s_add_u32 s47, s47, {WS_H+32*1024}")
    for k in range(4):
        p(f"buffer_store_dwordx4 {v(R+4*k,4)}, v1, s[{WS}:{WS+3}], s47 offen offset:{k*1024}")

def prep(p):
    srd(p, AUX, 10, D*D*2)
    srd(p, AUX2, 12, FH*D*2)
    p(f"s_lshl_b32 s40, s{SX}, 2")
    p(f"s_add_u32 s40, s40, s{SJ}")
    p("s_sub_u32 s40, s40, 28")
    p("s_lshl_b32 s40, s40, 2")
    p(f"s_add_u32 s40, s40, s{SW}")
    p(f"s_mul_i32 s44, s{SW}, 24576")
    p("v_lshrrev_b32 v2, 2, v0")
    p(f"v_mul_u32_u24 v3, {D*2}, v2")
    p("v_and_b32 v4, 3, v0")
    p("v_lshl_add_u32 v3, v4, 4, v3")
    p("v_cmp_gt_u32 vcc, 12, v2")
    p("v_mov_b32 v5, 0x7ff00000")
    p("v_cndmask_b32 v4, v5, v3, vcc")
    p("v_lshrrev_b32 v5, 4, v0")
    p("v_and_b32 v6, 1, v5")
    p("v_lshrrev_b32 v5, 1, v5")
    p("v_lshrrev_b32 v7, 2, v0")
    p("v_and_b32 v7, 3, v7")
    p("v_lshl_add_u32 v5, v5, 2, v7")
    p("v_lshlrev_b32 v5, 6, v5")
    p("v_lshl_add_u32 v5, v6, 5, v5")
    p("v_and_b32 v6, 3, v0")
    p("v_lshl_add_u32 v5, v6, 3, v5")
    p("v_add_u32 v5, s44, v5")
    NI=10
    for i in range(NI):
        f=50+i
        p(f"s_add_u32 s{f}, s40, {128*i}")
        p(f"s_add_u32 m0, s44, {i*1024}")
        p(f"s_cmp_ge_u32 s{f}, 1232")
        p(f"s_cbranch_scc1 P_SKIP{i}")
        p(f"s_mul_i32 s41, s{f}, 745")
        p("s_lshr_b32 s41, s41, 16")
        p("s_mul_i32 s42, s41, 88")
        p(f"s_sub_u32 s42, s{f}, s42")
        p("s_lshl_b32 s41, s41, 6")
        p("s_cmp_ge_u32 s42, 32")
        p(f"s_cbranch_scc1 P_OUT{i}")
        p("s_lshr_b32 s43, s42, 1")
        p("s_mul_i32 s43, s43, 28")
        p("s_and_b32 s45, s42, 1")
        p("s_lshl_b32 s46, s45, 4")
        p("s_add_u32 s43, s43, s46")
        p(f"s_mul_i32 s43, s43, {D*2}")
        p("s_add_u32 s43, s43, s41")
        p("s_cmp_eq_u32 s45, 1")
        p(f"s_cbranch_scc1 P_PAD{i}")
        p(f"buffer_load_dwordx4 v3, s[{AUX}:{AUX+3}], s43 offen lds", tag='pd')
        p(f"s_branch P_SKIP{i}")
        p.label(f"P_PAD{i}")
        p(f"buffer_load_dwordx4 v4, s[{AUX}:{AUX+3}], s43 offen lds", tag='pd')
        p(f"s_branch P_SKIP{i}")
        p.label(f"P_OUT{i}")
        p("s_sub_u32 s43, s42, 32")
        p("s_lshl_b32 s43, s43, 4")
        p(f"s_mul_i32 s43, s43, {D*2}")
        p("s_add_u32 s43, s43, s41")
        p(f"buffer_load_dwordx4 v3, s[{AUX2}:{AUX2+3}], s43 offen lds", tag='pd')
        p.label(f"P_SKIP{i}")
    p("s_waitcnt vmcnt(0)")
    for i in range(NI):
        p(f"ds_read_b64_tr_b16 {v(16+4*i,2)}, v5 offset:{i*1024}")
        p(f"ds_read_b64_tr_b16 {v(16+4*i+2,2)}, v5 offset:{i*1024+512}")
    p("s_waitcnt lgkmcnt(0)")
    for i in range(NI):
        f=50+i
        p(f"s_cmp_ge_u32 s{f}, 1232")
        p(f"s_cbranch_scc1 P_SK2{i}")
        p(f"s_lshl_b32 s41, s{f}, 10")
        p(f"s_add_u32 s41, s41, {WS_WC}")
        p(f"buffer_store_dwordx4 {v(16+4*i,4)}, v1, s[{WS}:{WS+3}], s41 offen")
        p.label(f"P_SK2{i}")

def gen(force_fallback=False):
    texts=[]
    p=Prog(); prologue(p)
    n0=PR.n
    p("s_mov_b32 s48, 0"); p("s_mov_b32 s49, -1")
    attention(p, force_fallback); attention_publish(p)
    stamp(p,'published')
    p("s_barrier")
    stamp(p,'barrier')
    attention_finish(p)
    stamp(p,'finished')
    if PROF: p("s_waitcnt vmcnt(0)")
    stamp(p,'end')
    dump_stamps(p,8)
    p("s_branch K2_END")
    texts.append(p.finalize())
    namesA=list(PR.names); PR.n=n0; PR.names=PR.names[:n0]
    p=Prog(); p.label("K2_ROLEB")
    p(f"s_cmp_ge_u32 s{SJ}, 28")
    p("s_cbranch_scc1 K2_PREP")
    gemm(p); stamp(p,'loopend'); gemm_publish(p)
    stamp(p,'published')
    p("s_barrier")
    stamp(p,'barrier')
    gemm_finish(p)
    stamp(p,'finished')
    if PROF: p("s_waitcnt vmcnt(0)")
    stamp(p,'end')
    dump_stamps(p,8)
    p("s_branch K2_END")
    texts.append(p.finalize())
    if PR.on: open('k2_stamps.txt','w').write(" ".join(namesA)+"\n"+" ".join(PR.names))
    p=Prog(); p.label("K2_PREP")
    prep(p)
    p("s_barrier")
    p.label("K2_END")
    p("s_endpgm")
    texts.append(p.finalize())
    return "".join(texts)

def kernel(**opt):
    global PROF, PR
    PROF=bool(int(opt.get('prof',0)))
    PR=Prof(PROF,WS,23,WS_ST+(1<<19),vr=15)
    return dict(name="k2_kernel", text=gen(force_fallback=bool(int(opt.get('ff',0)))), grid=256, block=512, lds=LDS_K2, vgpr=256, sgpr=96, accum=256)
```

```python
from layout import *
class Prof:
    def __init__(self, on, wsreg, wavereg, base, vr=255):
        self.on=on; self.ws=wsreg; self.wave=wavereg; self.base=base; self.n=0; self.names=[]; self.vr=vr
    def stamp(self, p, name):
        if not self.on: return
        i=self.n; self.n+=1; self.names.append(name)
        p("s_memtime s[84:85]")
        p("s_waitcnt lgkmcnt(0)")
        p(f"v_writelane_b32 v{self.vr}, s84, {i}")
    def real(self, p, lane):
        if not self.on: return
        if lane==62: p(f"v_mov_b32 v{self.vr}, 0")
        p("s_memrealtime s[84:85]")
        p("s_waitcnt lgkmcnt(0)")
        p(f"v_writelane_b32 v{self.vr}, s84, {lane}")
    def dump(self, p):
        if not self.on: return
        self.real(p, 63)
        p(f"s_lshl_b32 s86, s2, 3")
        p(f"s_add_u32 s86, s86, s{self.wave}")
        p(f"s_lshl_b32 s86, s86, 8")
        p(f"s_add_u32 s86, s86, {self.base}")
        t=self.vr-1
        p(f"v_mbcnt_lo_u32_b32 v{t}, -1, 0")
        p(f"v_mbcnt_hi_u32_b32 v{t}, -1, v{t}")
        p(f"v_lshlrev_b32 v{t}, 2, v{t}")
        p(f"buffer_store_dword v{self.vr}, v{t}, s[{self.ws}:{self.ws+3}], s86 offen")
```

```python
import re

REG_RE = re.compile(r'^(-?)(abs\()?([vas])(\d+|\[(\d+):(\d+)\])\)?$')

def v(i, n=1): return f"v{i}" if n == 1 else f"v[{i}:{i+n-1}]"
def a(i, n=1): return f"a{i}" if n == 1 else f"a[{i}:{i+n-1}]"
def s(i, n=1): return f"s{i}" if n == 1 else f"s[{i}:{i+n-1}]"

def regs_of(tok):
    tok = tok.strip()
    if tok == 'vcc': return {('s', 'vcc')}
    if tok in ('vcc_lo','vcc_hi'): return {('s','vcc')}
    if tok == 'exec': return {('s', 'exec')}
    if tok in ('exec_lo','exec_hi'): return {('s','exec')}
    if tok == 'm0': return {('s', 'm0')}
    m = REG_RE.match(tok)
    if not m: return set()
    k = m.group(3)
    if m.group(5) is not None:
        lo, hi = int(m.group(5)), int(m.group(6))
    else:
        lo = hi = int(m.group(4))
    return {(k, i) for i in range(lo, hi + 1)}

TRANS = ('v_exp_f32', 'v_log_f32', 'v_rcp_f32', 'v_rsq_f32', 'v_sqrt_f32', 'v_sin_f32', 'v_cos_f32')
RMW_DST = ('v_fmac_f32', 'v_dot2c_f32_bf16', 'v_pk_fmac', 'v_writelane_b32')

class Instr:
    __slots__ = ('text', 'mn', 'ops', 'mods', 'defs', 'uses', 'cls', 'tag', 'wait_pre', 'nop_pre', 'passes', 'srcc', 'ab', 'data', 'cmt', 'wide_store','cnt')
    def __init__(self, text, tag=None, cmt=None):
        self.text = text.strip(); self.tag = tag; self.cmt = cmt
        self.wait_pre = None; self.nop_pre = 0
        self.defs = set(); self.uses = set(); self.passes = 0; self.srcc = set(); self.ab = set(); self.data = set()
        self.wide_store = False; self.cnt = None
        parts = self.text.split(None, 1)
        self.mn = parts[0]
        rest = parts[1] if len(parts) > 1 else ''
        toks = [t.strip() for t in rest.split(',')] if rest else []
        self.mods = []
        if toks:
            last = toks[-1].split()
            toks[-1] = last[0] if last else ''
            self.mods = last[1:]
        self.ops = toks
        self.classify()
    def R(self, i): return regs_of(self.ops[i]) if i < len(self.ops) else set()
    def classify(self):
        mn = self.mn; ops = self.ops
        base = re.sub(r'_(e32|e64|dpp|sdwa)$', '', mn)
        allsrc = lambda k: set().union(*[self.R(i) for i in range(k, len(ops))]) if len(ops) > k else set()
        if mn.startswith('v_mfma'):
            self.cls = 'mfma'
            self.defs = self.R(0); self.ab = self.R(1) | self.R(2); self.srcc = self.R(3)
            self.uses = self.ab | self.srcc
            self.passes = 8 if '32x32' in mn else (4 if '16x16' in mn else 2)
        elif mn.startswith('v_'):
            self.cls = 'trans' if base in TRANS else 'valu'
            if base.startswith('v_cmp'):
                self.defs = self.R(0); self.uses = allsrc(1) | {('s', 'exec')}
                if base.startswith('v_cmpx'): self.defs |= {('s', 'exec')}
            elif base in ('v_readfirstlane_b32', 'v_readlane_b32'):
                self.defs = self.R(0); self.uses = allsrc(1)
            elif base.startswith('v_permlane') and 'swap' in base:
                self.defs = self.R(0) | self.R(1); self.uses = set(self.defs)
            elif base in ('v_add_co_u32', 'v_sub_co_u32', 'v_subrev_co_u32'):
                self.defs = self.R(0) | self.R(1); self.uses = allsrc(2)
            elif base in ('v_addc_co_u32', 'v_subb_co_u32'):
                self.defs = self.R(0) | self.R(1); self.uses = allsrc(2)
            else:
                self.defs = self.R(0); self.uses = allsrc(1)
                if base in RMW_DST: self.uses |= self.defs
            if 'dpp' in mn or any(m.startswith(('quad_perm','row_','wave_')) for m in self.mods): self.cls = 'dpp'
        elif mn.startswith(('buffer_', 'global_')):
            self.cls = 'vmem'; self.cnt = 'vm'
            lds = 'lds' in self.mods or mn.startswith('global_load_lds')
            if mn.startswith('buffer_load'):
                if lds:
                    self.uses = allsrc(0) | {('s', 'm0')}
                else:
                    self.defs = self.R(0); self.uses = allsrc(1)
            elif mn.startswith('buffer_store'):
                self.data = self.R(0); self.uses = allsrc(0)
                self.wide_store = 'x4' in mn or 'x3' in mn
            elif mn.startswith('buffer_atomic'):
                self.data = self.R(0); self.uses = allsrc(0)
                if 'sc0' in self.mods: self.defs = self.R(0)
            elif mn.startswith(('buffer_inv', 'buffer_wbl2')):
                pass
            elif mn.startswith('global_load'):
                if lds: self.uses = allsrc(0) | {('s', 'm0')}
                else: self.defs = self.R(0); self.uses = allsrc(1)
            elif mn.startswith('global_store'):
                self.data = self.R(1); self.uses = allsrc(0); self.wide_store = 'x4' in mn or 'x3' in mn
            else: raise ValueError(mn)
        elif mn.startswith('ds_'):
            self.cls = 'ds'; self.cnt = 'lgkm'
            if mn.startswith(('ds_read', 'ds_bpermute', 'ds_permute', 'ds_swizzle')):
                self.defs = self.R(0); self.uses = allsrc(1)
            elif '_rtn' in mn:
                self.defs = self.R(0); self.uses = allsrc(1)
            else:
                self.uses = allsrc(0); self.data = allsrc(1)
        elif mn.startswith('s_'):
            self.cls = 'salu'
            if mn.startswith('s_getpc'):
                self.defs = self.R(0)
            elif mn.startswith(('s_load', 's_buffer_load', 's_memtime', 's_memrealtime')):
                self.cls = 'smem'; self.cnt = 'smem'
                self.defs = self.R(0); self.uses = allsrc(1)
            elif mn.startswith(('s_cmp', 's_bitcmp')):
                self.uses = allsrc(0); self.defs = {('s', 'scc')}
            elif mn.startswith(('s_waitcnt', 's_barrier', 's_nop', 's_setprio', 's_endpgm', 's_sleep')):
                self.cls = 'ctl'
            elif mn.startswith(('s_branch', 's_cbranch')):
                self.cls = 'branch'
            elif 'saveexec' in mn:
                self.defs = self.R(0) | {('s', 'exec'), ('s', 'scc')}; self.uses = allsrc(1) | {('s', 'exec')}
            else:
                self.defs = self.R(0); self.uses = allsrc(1)
                if mn in ('s_addk_i32','s_mulk_i32'): self.uses |= self.defs
        else:
            raise ValueError("unknown instr " + text)
    def is_valu(self): return self.cls in ('valu', 'trans', 'dpp')

class Label:
    def __init__(self, name): self.name = name
class Raw:
    def __init__(self, text): self.text = text
class WaitTag:
    def __init__(self, *tags): self.tags = set(tags); self.vm = None; self.lgkm = None
class Loop:
    def __init__(self, body, visits=3): self.body = body; self.visits = visits
class Opt:
    def __init__(self, body): self.body = body
class Alt:
    def __init__(self): self.bodies=[]
class Drain:
    pass

class Prog:
    def __init__(self):
        self.items = []; self.stack = [self.items]
    def I(self, text, tag=None, cmt=None):
        ins = Instr(text, tag, cmt); self.stack[-1].append(ins); return ins
    def __call__(self, text, tag=None, cmt=None):
        r = None
        for line in text.strip().split('\n'):
            line = line.split(';')[0].strip()
            if line: r = self.I(line, tag, cmt)
        return r
    def label(self, name): self.stack[-1].append(Label(name))
    def raw(self, text): self.stack[-1].append(Raw(text))
    def wait(self, *tags): self.stack[-1].append(WaitTag(*tags))
    def waitall(self): self.I("s_waitcnt vmcnt(0) lgkmcnt(0)")
    def begin_loop(self, visits=3):
        l = Loop([], visits); self.stack[-1].append(l); self.stack.append(l.body); return l
    def end_loop(self): self.stack.pop()
    def begin_opt(self):
        o = Opt([]); self.stack[-1].append(o); self.stack.append(o.body); return o
    def end_opt(self): self.stack.pop()
    def extend(self, items): self.stack[-1].extend(items)
    def begin_alt(self):
        al = Alt(); self.stack[-1].append(al); self._alts = getattr(self,'_alts',[]) + [al]; return al
    def alt_branch(self):
        al = self._alts[-1]
        if al.bodies: self.stack.pop()
        b = []; al.bodies.append(b); self.stack.append(b)
    def end_alt(self):
        self.stack.pop(); self._alts.pop()

    def paths(self, items, maxopt=16):
        import itertools
        alts = []
        def calts(its):
            for it in its:
                if isinstance(it, Alt):
                    alts.append(it)
                    for b in it.bodies: calts(b)
                elif isinstance(it, (Opt, Loop)): calts(it.body)
        calts(items)
        seen_tr = set()
        for choice in itertools.product(*[range(len(al.bodies)) for al in alts]):
            ch = {id(al): c for al, c in zip(alts, choice)}
            opts = []
            def collect(its):
                for it in its:
                    if isinstance(it, Opt): opts.append(it); collect(it.body)
                    elif isinstance(it, Loop): collect(it.body)
                    elif isinstance(it, Alt): collect(it.bodies[ch[id(it)]])
            collect(items)
            assert len(opts) <= maxopt, "too many optional blocks"
            n = len(opts); allo = set(range(n))
            combos = [set(), set(allo)]
            for i in range(n):
                combos.append({i}); combos.append(allo - {i})
                for j in range(i): combos.append(allo - {i, j})
            seen = []
            for c in combos:
                if c in seen: continue
                seen.append(c)
                off = {id(opts[i]) for i in c}
                tr = []
                def lin(its):
                    for it in its:
                        if isinstance(it, Opt):
                            if id(it) not in off: lin(it.body)
                        elif isinstance(it, Loop):
                            for _ in range(it.visits): lin(it.body)
                        elif isinstance(it, Alt): lin(it.bodies[ch[id(it)]])
                        elif isinstance(it, (Instr, WaitTag)): tr.append(it)
                lin(items)
                key = tuple(id(x) for x in tr)
                if key in seen_tr: continue
                seen_tr.add(key)
                yield tr

    def insert_waits(self):
        changed = True; rounds = 0
        while changed:
            changed = False; rounds += 1
            assert rounds < 10
            for tr in self.paths(self.items):
                changed |= self._sim_waits(tr)
    def _sim_waits(self, tr):
        changed = False
        q = {'vm': [], 'lgkm': []}
        smem_pending = set()
        def apply(vm, lg):
            if vm is not None and len(q['vm']) > vm: del q['vm'][:len(q['vm']) - vm]
            if lg is not None and len(q['lgkm']) > lg: del q['lgkm'][:len(q['lgkm']) - lg]
        for it in tr:
            if isinstance(it, WaitTag):
                need = {}
                for c in ('vm', 'lgkm'):
                    idx = [i for i, (d, t) in enumerate(q[c]) if t in it.tags]
                    if idx: need[c] = len(q[c]) - 1 - idx[-1]
                if 'vm' in need and (it.vm is None or need['vm'] < it.vm): it.vm = need['vm']; changed = True
                if 'lgkm' in need and (it.lgkm is None or need['lgkm'] < it.lgkm): it.lgkm = need['lgkm']; changed = True
                apply(it.vm, it.lgkm); continue
            ins = it
            if ins.mn == 's_waitcnt':
                m = re.search(r'vmcnt\((\d+)\)', ins.text); vm = int(m.group(1)) if m else None
                m = re.search(r'lgkmcnt\((\d+)\)', ins.text); lg = int(m.group(1)) if m else None
                apply(vm, lg)
                if lg == 0: smem_pending = set()
                continue
            touched = ins.uses | ins.defs
            need = {}
            for c in ('vm', 'lgkm'):
                idx = [i for i, (d, t) in enumerate(q[c]) if d & touched]
                if idx: need[c] = len(q[c]) - 1 - idx[-1]
            if smem_pending & touched: need['lgkm'] = 0
            if need:
                w = ins.wait_pre or {}
                nw = dict(w)
                for c, n in need.items():
                    if c not in nw or n < nw[c]: nw[c] = n
                if nw != w: ins.wait_pre = nw; changed = True
            if ins.wait_pre:
                apply(ins.wait_pre.get('vm'), ins.wait_pre.get('lgkm'))
                if ins.wait_pre.get('lgkm') == 0: smem_pending = set()
            if ins.cnt == 'vm':
                q['vm'].append((set(ins.defs), ins.tag))
                assert len(q['vm']) <= 63 or True
            elif ins.cnt == 'lgkm': q['lgkm'].append((set(ins.defs), ins.tag))
            elif ins.cnt == 'smem': smem_pending |= ins.defs
        return changed

    def insert_nops(self):
        changed = True; rounds = 0
        while changed:
            changed = False; rounds += 1
            assert rounds < 20
            for tr in self.paths(self.items):
                changed |= self._sim_nops(tr)
    def _sim_nops(self, tr):
        changed = False
        pos = 0
        last = {}
        def slots(ins):
            n = 1
            if ins.mn == 's_nop': n = int(ins.ops[0]) + 1
            return n
        for it in tr:
            if isinstance(it, WaitTag):
                if it.vm is not None or it.lgkm is not None: pos += 1
                continue
            ins = it
            if ins.wait_pre: pos += 1
            pos += ins.nop_pre
            need = 0
            def req(kind, regs, dist):
                nonlocal need
                for r in regs:
                    p = last.get((kind, r))
                    if p is not None:
                        gap = pos - p - 1
                        if dist - gap > need: need = dist - gap
            vregs = lambda S: {r for r in S if r[0] in 'va'}
            sregs = lambda S: {r for r in S if r[0] == 's'}
            if ins.cls == 'mfma':
                req('valu_w', vregs(ins.uses), 2)
                req('dl_w', vregs(ins.uses | ins.defs), 3)
                for p, dsame, dab in ((8, 10, 12), (4, 6, 8), (2, 4, 5)):
                    req(f'mfma{p}_w', ins.ab, dab)
                    key = ('mfma_exact', p, frozenset(ins.srcc))
                    for r in ins.srcc:
                        pz = last.get((f'mfma{p}_w', r))
                        if pz is not None:
                            exact = last.get(('mfma_d', r)) == (p, frozenset(ins.srcc)) and p == ins.passes
                            d = (2 if p == 2 else 0) if exact else dsame
                            gap = pos - pz - 1
                            if d - gap > need: need = d - gap
                    for r in ins.defs - ins.srcc:
                        pz = last.get((f'mfma{p}_w', r))
                        if pz is not None:
                            gap = pos - pz - 1
                            if dsame - gap > need: need = dsame - gap
                req('exec_valu', {('s','exec')}, 4)
            elif ins.is_valu():
                for p, d in ((8, 12), (4, 8), (2, 5)):
                    req(f'mfma{p}_w', vregs(ins.uses | ins.defs), d)
                for p, d in ((8, 7), (4, 3), (2, 1)):
                    req(f'mfma{p}_c', vregs(ins.defs), d)
                if ins.cls != 'trans': req('trans_w', vregs(ins.uses), 1)
                if ins.mn.startswith('v_dot'):
                    req('dl_w', vregs(ins.uses) - vregs(ins.defs), 3)
                else:
                    req('dl_w', vregs(ins.uses | ins.defs), 3)
                base = ins.mn
                if base.startswith(('v_readfirstlane', 'v_readlane')):
                    req('valu_w', vregs(ins.uses), 1)
                    req('valu_sw', sregs(ins.uses), 4)
                elif 'permlane' in base or ins.cls == 'dpp':
                    req('valu_w', vregs(ins.uses), 2)
                req('valu_sw', sregs(ins.uses), 2)
                req('wstore', vregs(ins.defs), 2)
            elif ins.cls in ('vmem', 'ds'):
                req('dl_w', vregs(ins.uses | ins.defs), 3)
                for p, d in ((8, 12), (4, 8), (2, 5)):
                    req(f'mfma{p}_w', vregs(ins.uses | ins.defs), d)
                req('valu_sw', sregs(ins.uses), 5)
                if ('s', 'm0') in ins.uses: req('salu_m0', {('s', 'm0')}, 1)
                req('wstore', vregs(ins.defs), 1)
            elif ins.cls in ('salu','smem','branch'):
                req('valu_sw', sregs(ins.uses), 1)
                if ins.cls == 'branch' and ('vcc' in ins.mn): req('valu_sw', {('s','vcc')}, 5)
                if ins.cls == 'branch' and ('exec' in ins.mn): req('valu_sw', {('s','exec')}, 5)
            if need > 0:
                ins.nop_pre += need; changed = True
                pos += need
            mypos = pos
            if ins.cls == 'mfma':
                for r in ins.defs:
                    for p in (8, 4, 2): last.pop((f'mfma{p}_w', r), None)
                    last[(f'mfma{ins.passes}_w', r)] = mypos
                    last[('mfma_d', r)] = (ins.passes, frozenset(ins.defs))
                    last.pop(('valu_w', r), None); last.pop(('trans_w', r), None)
                for r in ins.srcc: last[(f'mfma{ins.passes}_c', r)] = mypos
            elif ins.is_valu():
                for r in ins.defs:
                    if r[0] in 'va':
                        last[('valu_w', r)] = mypos
                        if ins.mn.startswith('v_dot'): last[('dl_w', r)] = mypos
                        else: last.pop(('dl_w', r), None)
                        if ins.cls == 'trans': last[('trans_w', r)] = mypos
                        else: last.pop(('trans_w', r), None)
                        for p in (8, 4, 2): last.pop((f'mfma{p}_w', r), None)
                    else:
                        last[('valu_sw', r)] = mypos
                        if r == ('s','exec'): last[('exec_valu', r)] = mypos
            else:
                for r in ins.defs:
                    if r[0] in 'va':
                        last.pop(('valu_w', r), None); last.pop(('trans_w', r), None)
                        for p in (8, 4, 2): last.pop((f'mfma{p}_w', r), None)
                    else:
                        last.pop(('valu_sw', r), None)
                        if r == ('s', 'm0'): last[('salu_m0', r)] = mypos
                if ins.wide_store:
                    for r in ins.data: last[('wstore', r)] = mypos
            pos += slots(ins)
        return changed

    def emit(self):
        out = []
        def nops(n):
            while n > 0:
                k = min(n, 16); out.append(f"    s_nop {k-1}"); n -= k
        def em(items):
            for it in items:
                if isinstance(it, Label): out.append(f"{it.name}:")
                elif isinstance(it, Raw): out.append(it.text)
                elif isinstance(it, WaitTag):
                    p = []
                    if it.vm is not None: p.append(f"vmcnt({min(it.vm,63)})")
                    if it.lgkm is not None: p.append(f"lgkmcnt({min(it.lgkm,15)})")
                    if p: out.append("    s_waitcnt " + " ".join(p))
                elif isinstance(it, (Loop, Opt)): em(it.body)
                elif isinstance(it, Alt):
                    for b in it.bodies: em(b)
                else:
                    if it.wait_pre:
                        p = []
                        if 'vm' in it.wait_pre: p.append(f"vmcnt({min(it.wait_pre['vm'],63)})")
                        if 'lgkm' in it.wait_pre: p.append(f"lgkmcnt({min(it.wait_pre['lgkm'],15)})")
                        out.append("    s_waitcnt " + " ".join(p))
                    nops(it.nop_pre)
                    out.append("    " + it.text + (f"   ; {it.cmt}" if it.cmt else ""))
        em(self.items)
        return "\n".join(out) + "\n"
    def finalize(self):
        self.insert_waits()
        self.insert_nops()
        return self.emit()


def capture(fn):
    q = Prog(); fn(q); return q.items

def interleave(main, sides, start=0, end=None):
    idx = [i for i, it in enumerate(main) if isinstance(it, Instr)]
    if end is None: end = len(idx)
    n = len(sides); out = list(main)
    if n == 0: return out
    span = end - start
    pos = [idx[min(len(idx)-1, start + (k * span) // n)] for k in range(n)]
    for k in reversed(range(n)):
        out[pos[k]:pos[k]] = sides[k]
    return out
```

```python
from asmlib import *
from layout import *
import layout
def SM(): return layout.STMOD
from k3 import srd

L_X   = 0
L_P1  = 112*1024
L_P2  = 16*1024
L_P3  = 72*1024
L_SM  = 156*1024
L_CS  = L_SM
L_XS  = L_SM + 1024
L_ZS  = L_SM + 3072
L_T   = 0
LDS_K1 = 160*1024
def p1_addr(kc): return L_P1 + kc*8192 if kc < 5 else (kc-5)*8192

SW8=16; SW=17; SG=18; SRB=19; SCB=20; STAG=21; SSB=22
WS=24; XS=28; WIN=32; WQ=36; DBG=40
SP1=44; SP2=45; SP3=46; SXB=47; ST=48; ST2=49; SEP=50
VL16=1; VXD=(2,3); VWD=4; VXR=(5,6,7,8); VWR=9; VCSR=10; VSR=11; VP3D=(12,13,14); VP3R=15
MU=16; RS_=17; VT=18
CS=48; WF=64; ZH=80; ACC=(96,112); XF=128
VH=240
ONES=244; CSW=249; CSR=247; CSD=124; NMF=42; EPV=39

from profutil import Prof
PR=Prof(False,WS,SW8,0)
def stamp(p,name): PR.stamp(p,str(name))

def prologue(p):
    p("s_cmp_ge_u32 s2, 256")
    p("s_cbranch_scc1 K1_END")
    p(f"s_load_dwordx2 s[4:5], s[0:1], {KA_WS}")
    p(f"s_load_dwordx2 s[6:7], s[0:1], {KA_X}")
    p(f"s_load_dwordx2 s[8:9], s[0:1], {KA_WIN}")
    p(f"s_load_dwordx2 s[10:11], s[0:1], {KA_WQKV}")
    p(f"s_load_dwordx2 s[12:13], s[0:1], {KA_DBG}")
    p("v_lshrrev_b32 v1, 6, v0")
    p("v_and_b32 v0, 63, v0")
    p(f"v_readfirstlane_b32 s{SW8}, v1")
    p("s_and_b32 s14, s2, 7")
    p("s_lshr_b32 s15, s2, 3")
    p("s_and_b32 s51, s14, 1")
    p("s_lshl_b32 s51, s51, 3")
    p("s_and_b32 s52, s15, 7")
    p(f"s_add_u32 s{SRB}, s51, s52")
    p("s_lshr_b32 s51, s14, 1")
    p("s_lshl_b32 s51, s51, 2")
    p("s_lshr_b32 s52, s15, 3")
    p(f"s_add_u32 s{SCB}, s51, s52")
    p(f"s_and_b32 s{SW}, s{SW8}, 3")
    p(f"s_lshr_b32 s{SG}, s{SW8}, 2")
    p(f"s_lshl_b32 s{SSB}, s{SRB}, 2")
    p(f"s_add_u32 s{SSB}, s{SSB}, s{SW}")
    p(f"v_lshlrev_b32 v{VL16}, 4, v0")
    p("s_waitcnt lgkmcnt(0)")
    srd(p, WS, 4, WS_SIZE); srd(p, XS, 6, S*D*2); srd(p, WIN, 8, D*F*2); srd(p, WQ, 10, D*3*D*2); srd(p, DBG, 12, 256)
    PR.real(p,62)
    stamp(p,'start')
    p("v_lshrrev_b32 v18, 3, v0")
    p(f"v_mul_u32_u24 v19, {D*2}, v18")
    p("v_lshrrev_b32 v20, 4, v0")
    p("v_and_b32 v21, 7, v0")
    p("v_xor_b32 v22, v21, v20")
    p(f"v_lshl_add_u32 v{VXD[0]}, v22, 4, v19")
    p("v_xor_b32 v22, 4, v22")
    p(f"v_lshl_add_u32 v{VXD[1]}, v22, 4, v19")
    p(f"v_mul_u32_u24 v19, {F*2}, v18")
    p("v_and_b32 v20, 1, v20")
    p("v_lshlrev_b32 v20, 2, v20")
    p("v_xor_b32 v22, v21, v20")
    p(f"v_lshl_add_u32 v{VWD}, v22, 4, v19")
    p(f"s_lshl_b32 s51, s{SRB}, 7")
    p(f"s_lshl_b32 s52, s{SW8}, 4")
    p("s_add_u32 s51, s51, s52")
    p(f"s_mul_i32 s{SXB}, s51, {D*2}")
    p(f"s_lshl_b32 s51, s{SCB}, 7")
    p(f"s_add_u32 s52, s51, {FH*2}")
    p(f"s_sub_u32 s53, s51, 256")
    p(f"s_cmp_lt_u32 s{SCB}, 14")
    p(f"s_cselect_b32 s{SP1}, s52, s53")
    p(f"s_sub_u32 s54, s{SCB}, 2")
    p(f"s_cmp_lt_u32 s54, 12")
    p(f"s_cselect_b32 s{SP2}, s53, 0")
    p(f"s_lshl_b32 s51, s{SW8}, 3")
    p(f"s_mul_i32 s51, s51, {F*2}")
    p(f"s_add_u32 s{SP1}, s{SP1}, s51")
    p(f"s_add_u32 s{SP2}, s{SP2}, s51")

def dma_x(p, kc, which=(0,1)):
    for i in which:
        p(f"s_lshl_b32 m0, s{SW8}, 11")
        p(f"s_add_u32 m0, m0, {L_X+kc*16384+i*1024}")
        p(f"s_add_u32 s{ST}, s{SXB}, {i*8*D*2+kc*128}")
        p(f"buffer_load_dwordx4 v{VXD[i]}, s[{XS}:{XS+3}], s{ST} offen lds", tag=f'x{kc}')
def dma_pair(p, sbase, kc, ldsaddr, tag):
    p(f"s_lshl_b32 m0, s{SW8}, 10")
    p(f"s_add_u32 m0, m0, {ldsaddr}")
    p(f"s_add_u32 s{ST}, s{sbase}, {kc*64*F*2}")
    p(f"buffer_load_dwordx4 v{VWD}, s[{WIN}:{WIN+3}], s{ST} offen lds", tag=tag)

def setup_reads(p):
    p("v_and_b32 v18, 31, v0")
    p("v_lshrrev_b32 v19, 5, v0")
    p("v_lshrrev_b32 v20, 1, v18")
    p("v_and_b32 v20, 7, v20")
    p("v_xor_b32 v20, v20, v19")
    p("v_lshlrev_b32 v18, 7, v18")
    p(f"s_lshl_b32 s51, s{SW}, 12")
    p(f"v_add_u32 v18, s51, v18")
    for u in range(4):
        p(f"v_xor_b32 v21, {2*u}, v20")
        p(f"v_lshl_add_u32 v{VXR[u]}, v21, 4, v18")
    p("v_lshrrev_b32 v18, 4, v0")
    p("v_and_b32 v19, 1, v18")
    p("v_lshrrev_b32 v18, 1, v18")
    p("v_lshrrev_b32 v20, 2, v0")
    p("v_and_b32 v20, 3, v20")
    p("v_and_b32 v21, 3, v0")
    p("v_lshl_add_u32 v22, v18, 3, v20")
    p("v_lshlrev_b32 v23, 7, v22")
    p("v_lshrrev_b32 v24, 1, v21")
    p("v_lshl_add_u32 v24, v19, 1, v24")
    p(f"s_lshl_b32 s51, s{SG}, 2")
    p("v_add_u32 v24, s51, v24")
    p("v_lshrrev_b32 v25, 1, v20")
    p("v_lshlrev_b32 v25, 2, v25")
    p("v_xor_b32 v24, v24, v25")
    p("v_lshl_add_u32 v23, v24, 4, v23")
    p("v_and_b32 v24, 1, v21")
    p(f"v_lshl_add_u32 v{VWR}, v24, 3, v23")
    p(f"s_lshl_b32 s51, s{SW}, 11")
    p(f"v_add_u32 v{VCSR}, s51, v{VWR}")
    p(f"v_add_u32 v{VH+12}, {L_P1}, v{VWR}")
    p(f"v_add_u32 v{VH+13}, {L_P1}, v{VCSR}")
    for r in range(3):
        p(f"v_add_u32 v23, {64*r}, v0")
        p(f"v_mul_u32_u24 v24, 43691, v23")
        p(f"v_lshrrev_b32 v24, 19, v24")
        p(f"v_mul_u32_u24 v25, 12, v24")
        p(f"v_sub_u32 v25, v23, v25")
        p(f"v_mul_u32_u24 v24, {3*D*2}, v24")
        p(f"v_lshl_add_u32 v{VP3D[r]}, v25, 4, v24")
    p("v_mul_u32_u24 v23, 192, v22")
    p("v_lshl_add_u32 v23, v19, 5, v23")
    p(f"v_lshl_add_u32 v{VP3R}, v21, 3, v23")
    p(f"v_add_u32 v{VP3R}, {L_P3}, v{VP3R}")
    p("v_and_b32 v23, 31, v0")
    p("v_mul_u32_u24 v23, 72, v23")
    p("v_lshrrev_b32 v24, 5, v0")
    p("v_lshl_add_u32 v23, v24, 3, v23")
    p(f"s_mul_i32 s51, s{SW8}, 2304")
    p(f"s_add_u32 s51, s51, {L_T}")
    p(f"v_add_u32 v{VH+1}, s51, v23")
    p("v_lshl_add_u32 v23, v18, 2, v20")
    p("v_mul_u32_u24 v23, 72, v23")
    p("v_lshl_add_u32 v23, v19, 5, v23")
    p("v_lshl_add_u32 v23, v21, 3, v23")
    p(f"v_add_u32 v{VH+2}, s51, v23")
    p("v_mul_u32_u24 v23, 72, v22")
    p("v_lshl_add_u32 v23, v19, 5, v23")
    p("v_lshl_add_u32 v23, v21, 3, v23")
    p(f"v_add_u32 v{VH+3}, s51, v23")
    p("v_and_b32 v23, 31, v0")
    p("v_lshlrev_b32 v23, 2, v23")
    p(f"s_lshl_b32 s51, s{SG}, 9")
    p(f"s_add_u32 s51, s51, {L_CS}")
    p(f"v_add_u32 v23, s51, v23")
    p(f"s_lshl_b32 s52, s{SW}, 7")
    p(f"v_add_u32 v{CSW}, s52, v23")
    p("v_lshrrev_b32 v24, 5, v0")
    p(f"v_lshl_add_u32 v{CSR}, v24, 8, v23")
    p(f"v_mov_b32 v{ONES}, 0x3f803f80")
    p(f"v_mov_b32 v{ONES+1}, 0x3f803f80")
    p("v_and_b32 v23, 31, v0")
    p(f"s_lshl_b32 s51, s{SW}, 5")
    p("v_add_u32 v23, s51, v23")
    p(f"v_lshlrev_b32 v{VH+6}, 3, v23")

def cs_zero(p):
    for r in range(4): p(f"v_mov_b32 v{CSD+r}, 0")
def cs_step(p, fr):
    p(f"v_mfma_f32_4x4x4_16b_bf16 {v(CSD,4)}, {v(ONES,2)}, {v(fr,2)}, {v(CSD,4)}")
    p(f"v_mfma_f32_4x4x4_16b_bf16 {v(CSD,4)}, {v(ONES,2)}, {v(fr+2,2)}, {v(CSD,4)}")
def cs_flush(p):
    p(f"v_mov_b32 v46, v{CSD}")
    p(f"v_mov_b32 v33, v{CSD}")
    p(f"v_permlane32_swap_b32 v46, v33")
    p(f"v_add_f32 v46, v46, v33")
    p(f"ds_write_b32 v{CSW}, v46", tag='cs')
def meanfix(p, acc):
    F=28
    p(f"ds_read_b32 v26, v{CSR}")
    p(f"ds_read_b32 v27, v{CSR} offset:128")
    for k in range(2):
        a=26+k; d=F+2*k
        p(f"v_and_b32 v32, 0xffff0000, v{a}")
        p(f"v_sub_f32 v33, v{a}, v32")
        p(f"v_lshrrev_b32 v{d+1}, 16, v32")
        p(f"v_and_or_b32 v{d}, v33, s60, v{d+1}")
    p(f"v_mfma_f32_32x32x16_bf16 {v(acc,16)}, {v(F,4)}, {v(NMF,4)}, {v(acc,16)}")

def p0(p, g):
    for r in range(40,44): p(f"v_mov_b32 v{r}, 0")
    cs_zero(p)
    CF=(28,120)
    def reads(kc):
        L=[]
        if kc==4:
            L.append([f"v_add_u32 v{r}, 0x10000, v{r}" for r in list(VXR)])
        else: L.append([])
        xo=(kc*16384)&0xffff
        if kc<5: wa,ca,wb=VH+12,VH+13,kc*8192
        else: wa,ca,wb=VWR,VCSR,(kc-5)*8192
        W=48+16*(kc&1)
        for u in range(4):
            L.append([f"ds_read_b128 {v(XF+4*(4*kc+u),4)}, v{VXR[u]} offset:{xo}",
                      f"ds_read_b64_tr_b16 {v(W+4*u,2)}, v{wa} offset:{wb+u*2048}",
                      f"ds_read_b64_tr_b16 {v(W+4*u+2,2)}, v{wa} offset:{wb+u*2048+512}"])
        cf=CF[kc&1]
        L.append([f"ds_read_b64_tr_b16 {v(cf,2)}, v{ca} offset:{wb}", f"ds_read_b64_tr_b16 {v(cf+2,2)}, v{ca} offset:{wb+512}"])
        return L
    def valu(kc):
        sf=XF+4*(4*kc+2*g); L=[]
        for d in range(8):
            L+= [f"v_dot2c_f32_bf16 v{40+(d&1)}, v{sf+d}, v{ONES}", f"v_dot2c_f32_bf16 v{42+(d&1)}, v{sf+d}, v{sf+d}"]
        return L
    def dmas(kc):
        G=[]
        n=kc+3
        if n<7:
            G.append(lambda q,n=n: dma_x(q,n,(0,)))
            G.append(lambda q,n=n: dma_x(q,n,(1,)))
            G.append(lambda q,n=n: dma_pair(q, SP1, n, p1_addr(n), f'w{n}'))
        if kc==4: G+= [lambda q,i=i: dma_pair(q, SP2, i, L_P2+i*8192, 'p2') for i in (0,1,2)]
        if kc==5: G+= [lambda q,i=i: dma_pair(q, SP2, i, L_P2+i*8192, 'p2') for i in (3,4,5)]
        if kc==6: G+= [lambda q: dma_pair(q, SP2, 6, L_P2+6*8192, 'p2')]
        return G
    for kc in range(8):
        if kc<7:
            p.wait(f'x{kc}', f'w{kc}')
            p("s_barrier")
            if kc in (0,6): stamp(p,f'c{kc}bar')
        rd = reads(kc) if kc<7 else []
        dg = dmas(kc) if kc<7 else []
        if kc==0:
            for gr in rd:
                for x in gr: p(x)
            for f in dg: f(p)
        else:
            c=kc-1; W=48+16*(c&1); va=valu(c); per=len(va)//4
            if g==0:
                for f in dg: f(p)
            for u in range(4):
                cc = "0" if (c==0 and u==0) else v(ACC[0],16)
                p(f"v_mfma_f32_32x32x16_bf16 {v(ACC[0],16)}, {v(W+4*u,4)}, {v(XF+4*(4*c+u),4)}, {cc}")
                k0 = [0,2,4,5][u]; k1=[2,4,5,99][u]
                for gr in rd[k0:k1]:
                    for x in gr: p(x)
            cs_step(p, CF[c&1])
            for x in va: p(x)
            if g==1:
                for f in dg: f(p)
        if kc<7: p("s_waitcnt lgkmcnt(0)")
    p("v_add_f32 v40, v40, v41")
    p("v_add_f32 v41, v42, v43")
    p("v_mov_b32 v42, v40"); p("v_mov_b32 v43, v41")
    p("v_permlane32_swap_b32 v42, v40")
    p("v_permlane32_swap_b32 v43, v41")
    p("v_add_f32 v40, v40, v42")
    p("v_add_f32 v41, v41, v43")
    p(f"v_add_u32 v18, {L_XS+g*1024}, v{VH+6}")
    p(f"ds_write_b64 v18, v[40:41]", tag='xs')
    cs_flush(p)
    p.wait('xs','cs')
    p("s_barrier")

def dma_p3_groups(items):
    G=[]
    for (wo,i) in items:
        def setup(q,i=i,wo=wo):
            q(f"s_add_u32 s88, s{SW8}, {8*i+wo}") if 8*i+wo>=0 else q(f"s_sub_u32 s88, s{SW8}, {-(8*i+wo)}")
            q(f"s_mul_i32 s87, s88, {16*3*D*2}")
            q(f"s_add_u32 s87, s87, s63")
            q(f"s_mul_i32 s89, s88, 3072")
        for r in range(3):
            def one(q,r=r,setup=setup):
                if r==0: setup(q)
                q(f"s_add_u32 m0, s89, {L_P3+r*1024}")
                q("s_nop 0")
                q(f"buffer_load_dwordx4 v{VP3D[r]}, s[{WQ}:{WQ+3}], s87 offen lds", tag='p3')
            G.append(one)
    return G

def xstats(p):
    p(f"v_add_u32 v18, {L_XS}, v{VH+6}")
    p("ds_read_b64 v[20:21], v18")
    p("ds_read_b64 v[22:23], v18 offset:1024")
    p("v_add_f32 v20, v20, v22")
    p("v_add_f32 v21, v21, v23")
    p(f"v_mul_f32 v{MU}, {1.0/448:.10e}, v20".replace("+","") if False else f"v_mul_f32 v{MU}, 0x3b124925, v20")
    p(f"v_mul_f32 v21, 0x3b124925, v21")
    p(f"v_fma_f32 v21, -v{MU}, v{MU}, v21")
    p(f"v_add_f32 v21, 0x3727c5ac, v21")
    p(f"v_rsq_f32 v{RS_}, v21")
    p(f"v_sub_f32 v20, 0, v{MU}")
    p(f"v_and_b32 v21, 0xffff0000, v20")
    p(f"v_sub_f32 v22, v20, v21")
    p(f"v_lshrrev_b32 v23, 16, v21")
    p(f"v_or_b32 v{NMF}, v21, v23")
    p(f"v_lshrrev_b32 v{NMF+1}, 16, v22")
    p(f"v_mov_b32 v{NMF+2}, v{NMF}")
    p(f"v_mov_b32 v{NMF+3}, v{NMF+1}")

def center(p, acc, scale_v):
    meanfix(p, acc)
    for r in range(16):
        p(f"v_mul_f32 v{acc+r}, v{acc+r}, v{scale_v}")

def gelu(p, acc, dst):
    T=18
    for b in (0,8):
        R=range(b,b+8)
        for r in R: p(f"v_mul_f32 v{T+r-b}, v{acc+r}, v{acc+r}")
        for r in R: p(f"v_fma_f32 v{T+r-b}, v{T+r-b}, s56, v47")
        for r in R: p(f"v_mul_f32 v{T+r-b}, v{T+r-b}, v{acc+r}")
        for r in R: p(f"v_exp_f32 v{T+r-b}, v{T+r-b}")
        for r in R: p(f"v_add_f32 v{T+r-b}, 1.0, v{T+r-b}")
        for r in R: p(f"v_rcp_f32 v{T+r-b}, v{T+r-b}")
        for r in R: p(f"v_mul_f32 v{dst+r}, v{acc+r}, v{T+r-b}")

def pack(p, src, dst):
    for i in range(8): p(f"v_cvt_pk_bf16_f32 v{dst+i}, v{src+2*i}, v{src+2*i+1}")
def store2(p, src, sreg, off=0):
    p(f"buffer_store_dwordx4 {v(src,4)}, v{VL16}, s[{WS}:{WS+3}], s{sreg} offen offset:{off}{SM()}")
    p(f"buffer_store_dwordx4 {v(src+4,4)}, v{VL16}, s[{WS}:{WS+3}], s{sreg} offen offset:{off+1024}{SM()}")
def transpose(p, src, dst, traddr, order):
    for q in range(4):
        p(f"ds_write_b64 v{VH+1}, {v(src+2*q,2)} offset:{q*16}", tag='tw')
    p.wait('tw')
    for u in range(2):
        for ii in range(2):
            row = (16*u+8*ii) if order=='v' else (16*u+4*ii)
            p(f"ds_read_b64_tr_b16 {v(dst+4*u+2*ii,2)}, v{traddr} offset:{row*72}")

def epi_z1(p, acc, pairreg, g):
    center(p, acc, RS_)
    gelu(p, acc, acc)
    pack(p, acc, 34)
    p(f"s_mul_i32 s51, s{SSB}, {28*2048}")
    p(f"s_lshl_b32 s52, s{pairreg}, 12")
    p("s_add_u32 s51, s51, s52")
    p(f"s_add_u32 s51, s51, {WS_Z1+g*2048}")
    store2(p, 34, 51)

def epi_z2(p, acc):
    center(p, acc, RS_)
    gelu(p, acc, ZH)
    p(f"v_mov_b32 v34, v{ZH}")
    p(f"v_mul_f32 v35, v{ZH}, v{ZH}")
    for r in range(1,16):
        p(f"v_add_f32 v34, v34, v{ZH+r}")
        p(f"v_fmac_f32 v35, v{ZH+r}, v{ZH+r}")
    p("v_mov_b32 v36, v34"); p("v_mov_b32 v37, v35")
    p("v_permlane32_swap_b32 v36, v34")
    p("v_permlane32_swap_b32 v37, v35")
    p("v_add_f32 v34, v34, v36")
    p("v_add_f32 v35, v35, v37")

LA=5
def mtile(p, acc, addr, off_fn, cs_addr, cs_off_fn, addr2=None, cs_addr2=None, part='all'):
    NB=8; WB=48
    def rd(ks):
        b=WB+4*(ks%NB)
        for ii in range(2):
            o=off_fn(ks,ii); r=addr
            if o>=43008 and addr2 is not None: r=addr2; o-=43008
            p(f"ds_read_b64_tr_b16 {v(b+2*ii,2)}, v{r} offset:{o}")
    def csrd(kc):
        for ii in range(2):
            o=cs_off_fn(kc,ii); r=cs_addr
            if o>=43008 and cs_addr2 is not None: r=cs_addr2; o-=43008
            p(f"ds_read_b64_tr_b16 {v(26+4*(kc&1)+2*ii,2)}, v{r} offset:{o}")
    if part in ('all','pre'):
        for ks in range(LA): rd(ks)
        csrd(0)
    if part=='pre': return
    cs_zero(p)
    sched_rd={3*kc-2:kc for kc in range(1,7)}
    sched_st={3*kc+1:kc for kc in range(7)}
    for ks in range(28):
        c = "0" if ks==0 else v(acc,16)
        p(f"v_mfma_f32_32x32x16_bf16 {v(acc,16)}, {v(WB+4*(ks%NB),4)}, {v(XF+4*ks,4)}, {c}")
        if ks+LA<28: rd(ks+LA)
        if ks in sched_st: cs_step(p, 26+4*(sched_st[ks]&1))
        if ks in sched_rd: csrd(sched_rd[ks])
        if ks==23: cs_flush(p)

def epi_head(p, acc, treg, lab):
    p(f"s_lshr_b32 s52, s{treg}, 4")
    p(f"s_and_b32 s53, s{treg}, 15")
    p(f"v_mov_b32 v46, v{RS_}")
    p("s_cmp_lg_u32 s52, 0")
    p(f"s_cbranch_scc1 {lab}_NQ")
    p(f"v_mul_f32 v46, 0x3e8b97f6, v46")
    p.label(f"{lab}_NQ")
    center(p, acc, 46)
    p("s_cmp_eq_u32 s52, 0"); p("s_cselect_b32 s54, 0, 1.0")
    p("s_cmp_eq_u32 s52, 1"); p("s_cselect_b32 s55, 1.0, 0")
    p("s_mov_b64 exec, s[58:59]")
    p(f"v_mov_b32 v{acc+12}, s54"); p(f"v_mov_b32 v{acc+13}, s55"); p(f"v_mov_b32 v{acc+14}, 0"); p(f"v_mov_b32 v{acc+15}, 0")
    p("s_mov_b64 exec, -1")
    pack(p, acc, 34)
    p(f"s_lshl_b32 s54, s53, 6")
    p(f"s_add_u32 s54, s54, s{SSB}")
    p("s_cmp_eq_u32 s52, 2")
    p(f"s_cbranch_scc1 {lab}_V")
    p("s_lshl_b32 s55, s54, 11")
    p(f"s_add_u32 s55, s55, {WS_Q}")
    p("s_lshl_b32 s54, s54, 12")
    p(f"s_add_u32 s54, s54, {WS_KV}")
    p("s_cmp_eq_u32 s52, 0")
    p("s_cselect_b32 s54, s55, s54")
    p.begin_opt()
    store2(p, 34, 54)
    p(f"s_branch {lab}_D")
    p.end_opt()
    p.label(f"{lab}_V")
    p.begin_opt()
    transpose(p, 34, 20, VH+2, 'v')
    p("s_lshl_b32 s54, s54, 12")
    p(f"s_add_u32 s54, s54, {WS_KV+2048}")
    store2(p, 20, 54)
    p.end_opt()
    p.label(f"{lab}_D")

def publish_z2(p):
    p(f"v_add_u32 v18, {L_ZS}, v{VH+6}")
    p("ds_read_b64 v[36:37], v18")
    p("v_add_f32 v36, v36, v34")
    p("v_add_f32 v38, v37, v35")
    p(f"v_mov_b32 v37, s{STAG}")
    p(f"v_mov_b32 v39, s{STAG}")
    p(f"s_mul_i32 s51, s{SSB}, {14*512}")
    p(f"s_lshl_b32 s52, s{SCB}, 9")
    p("s_add_u32 s51, s51, s52")
    p(f"s_add_u32 s51, s51, {WS_ST}")
    p("s_mov_b32 exec_hi, 0")
    p(f"buffer_store_dwordx4 v[36:39], v{VL16}, s[{WS}:{WS+3}], s51 offen sc1")
    p("s_mov_b64 exec, -1")

GR=48
def granule_loads(p):
    p(f"s_mul_i32 s90, s{SSB}, {14*512}")
    p(f"s_add_u32 s90, s90, {WS_ST}")
    for i in range(7):
        p(f"s_add_u32 s53, s90, {i*1024}")
        p(f"buffer_load_dwordx4 {v(GR+4*i,4)}, v{VL16}, s[{WS}:{WS+3}], s53 offen sc1", tag='gr')

def fin_z2(p, lab, bump):
    p(f"s_mov_b32 s52, 0")
    p.wait('gr')
    p.label(f"{lab}_CHECK")
    p("s_mov_b64 s[54:55], 0")
    for i in range(7):
        p(f"v_cmp_ne_u32 vcc, s{STAG}, v{GR+4*i+1}")
        p("s_or_b64 s[54:55], s[54:55], vcc")
        p(f"v_cmp_ne_u32 vcc, s{STAG}, v{GR+4*i+3}")
        p("s_or_b64 s[54:55], s[54:55], vcc")
    p("s_cmp_eq_u64 s[54:55], 0")
    p(f"s_cbranch_scc1 {lab}_POLLDONE")
    p("s_add_u32 s52, s52, 1")
    p("s_cmp_gt_u32 s52, 0x40000")
    p(f"s_cbranch_scc1 {lab}_POLLDONE")
    granule_loads(p)
    p("s_waitcnt vmcnt(0)")
    p(f"s_branch {lab}_CHECK")
    p.label(f"{lab}_POLLDONE")
    stamp(p,'polled')
    if bump:
        p(f"s_or_b32 s53, s{SCB}, s{SW8}")
        p("s_cmp_lg_u32 s53, 0")
        p(f"s_cbranch_scc1 {lab}_NOBUMP")
        p.begin_opt()
        p(f"v_mov_b32 v18, s{STAG}")
        p("s_mov_b64 exec, 1")
        p(f"buffer_store_dword v18, v{VH+8}, s[{WS}:{WS+3}], s{SEP} offen sc1")
        p("s_mov_b64 exec, -1")
        p.end_opt()
        p.label(f"{lab}_NOBUMP")
    a=GR
    p(f"v_add_f32 v34, v{a}, v{a+4}")
    p(f"v_add_f32 v35, v{a+2}, v{a+6}")
    for i in range(2,7):
        p(f"v_add_f32 v34, v34, v{a+4*i}")
        p(f"v_add_f32 v35, v35, v{a+4*i+2}")
    p("v_mov_b32 v36, v34"); p("v_mov_b32 v37, v35")
    p("v_permlane32_swap_b32 v36, v34")
    p("v_permlane32_swap_b32 v37, v35")
    p("v_add_f32 v34, v34, v36")
    p("v_add_f32 v35, v35, v37")
    p("v_mul_f32 v34, 0x3a924925, v34")
    p("v_mul_f32 v35, 0x3a924925, v35")
    p("v_fma_f32 v35, -v34, v34, v35")
    p("v_add_f32 v35, 0x3727c5ac, v35")
    p("v_rsq_f32 v35, v35")
    p("v_mul_f32 v34, v34, v35")
    for r in range(16):
        p(f"v_fma_f32 v{ZH+r}, v{ZH+r}, v35, -v34")
    pack(p, ZH, 36)
    transpose(p, 36, 20, VH+3, 'z')
    p(f"s_lshl_b32 s51, s{SCB}, 7")
    p(f"s_lshl_b32 s52, s{SSB}, 1")
    p("s_add_u32 s51, s51, s52")
    p("s_lshl_b32 s51, s51, 11")
    p(f"s_lshl_b32 s52, s{SG}, 10")
    p("s_add_u32 s51, s51, s52")
    p(f"s_add_u32 s51, s51, {WS_Z2}")
    p(f"buffer_store_dwordx4 {v(20,4)}, v{VL16}, s[{WS}:{WS+3}], s51 offen{SM()}")
    p(f"buffer_store_dwordx4 {v(24,4)}, v{VL16}, s[{WS}:{WS+3}], s51 offen offset:2048{SM()}")

def first_epi(p, g, lab):
    G=dma_p3_groups([(0,0)])
    sides=[capture(f) for f in G]
    p(f"s_mul_i32 s63, s{SCB}, 168")
    xstats(p)
    p(f"s_cmp_ge_u32 s{SCB}, 14")
    p(f"s_cbranch_scc1 {lab}_Z1")
    p.begin_alt(); p.alt_branch()
    main=capture(lambda q: epi_z2(q, ACC[0]))
    p.extend(interleave(main, sides, 30, 150))
    if g==0:
        p(f"v_add_u32 v18, {L_ZS}, v{VH+6}")
        p("ds_write_b64 v18, v[34:35]", tag='zs')
    p(f"s_branch {lab}_D")
    p.alt_branch()
    p.label(f"{lab}_Z1")
    p(f"s_sub_u32 s57, s{SCB}, 2")
    sides=[capture(f) for f in G]
    main=capture(lambda q: epi_z1(q, ACC[0], 57, g))
    p.extend(interleave(main, sides, 30, 130))
    p.end_alt()
    p.label(f"{lab}_D")

def pair_mtile(p, g, part='all'):
    if part!='post':
        p(f"v_add_u32 v{VH+10}, {L_P2}, v{VWR}")
        p(f"v_add_u32 v{VH+11}, {L_P2}, v{VCSR}")
    mtile(p, ACC[0], VH+10, lambda ks,ii: ks*2048+ii*512, VH+11, lambda kc,ii: kc*8192+ii*512, part=part)
def head_mtile(p, t, part='all'):
    if part!='post':
        p(f"v_add_u32 v{VH+10}, {56*t}, v{VP3R}")
        p(f"s_mul_i32 s51, s{SW}, {16*192}")
        p(f"v_add_u32 v{VH+11}, s51, v{VH+10}")
        p(f"v_add_u32 v{VH+12}, 43008, v{VH+10}")
        p(f"v_add_u32 v{VH+13}, 43008, v{VH+11}")
    mtile(p, ACC[0], VH+10, lambda ks,ii: ks*16*192+ii*4*192, VH+11, lambda kc,ii: kc*64*192+ii*4*192, VH+12, VH+13, part=part)
def head_epi(p, t, lab):
    p(f"s_mul_i32 s62, s{SCB}, 3")
    if t: p(f"s_add_u32 s62, s62, {t}")
    epi_head(p, ACC[0], 62, lab)
def bar(p, name, *tags):
    stamp(p,name+'w')
    if tags: p.wait(*tags)
    stamp(p,name+'a')
    p("s_barrier")
    stamp(p,name)

def group_code(p, g):
    A = (g==0); L = "KA" if A else "KB"
    p0(p, g)
    stamp(p,'p0end')
    first_epi(p, g, L+"F")
    bar(p,'s1end','p2','zs')
    def maybe_publish():
        p(f"s_cmp_ge_u32 s{SCB}, 14")
        p(f"s_cbranch_scc1 {L}_NOPUB")
        p.begin_opt(); publish_z2(p); p.end_opt()
        p.label(f"{L}_NOPUB")
    if not A:
        maybe_publish()
        for f in dma_p3_groups([(0,1),(0,2),(-4,3)]): f(p)
    p(f"s_sub_u32 s57, s{SCB}, 2")
    p("s_cmp_ge_u32 s57, 12")
    p(f"s_cbranch_scc1 {L}_NOSECOND")
    p.begin_alt(); p.alt_branch()
    if A:
        pair_mtile(p, 0); bar(p,'s2end','cs')
        sides=[capture(f) for f in dma_p3_groups([(0,1),(0,2)])]
        main=capture(lambda q: epi_z1(q, ACC[0], 57, 0))
        p.extend(interleave(main, sides, 14, 110))
        bar(p,'s3end','p3')
        head_mtile(p, 0); bar(p,'s4end','cs')
    else:
        pair_mtile(p, 1, 'pre')
        bar(p,'s2end')
        pair_mtile(p, 1, 'post'); bar(p,'s3end','cs','p3')
        epi_z1(p, ACC[0], 57, 1)
        head_mtile(p, 1, 'pre')
        bar(p,'s4end')
    p(f"s_branch {L}_JOIN")
    p.alt_branch()
    p.label(f"{L}_NOSECOND")
    if A:
        for f in dma_p3_groups([(0,1),(0,2)]): f(p)
    if A: bar(p,'s3endx','p3')
    else:
        p.wait('p3')
        prep_issue(p)
        bar(p,'s3endx')
    if MALLPF: mall_prefetch(p, g)
    if A: head_mtile(p, 0)
    else:
        prep_finish(p)
        head_mtile(p, 1, 'pre')
    bar(p,'s4endx','cs')
    p.end_alt()
    p.label(f"{L}_JOIN")
    def gl():
        p(f"s_cmp_ge_u32 s{SCB}, 14")
        p(f"s_cbranch_scc1 {L}_NOGL")
        p.begin_opt(); granule_loads(p); p.end_opt()
        p.label(f"{L}_NOGL")
    if A:
        head_epi(p, 0, L+"H0")
        head_mtile(p, 2, 'pre')
        bar(p,'s5end')
        head_mtile(p, 2, 'post'); bar(p,'s6end','cs')
        gl()
        head_epi(p, 2, L+"H2")
    else:
        head_mtile(p, 1, 'post'); bar(p,'s5end','cs')
        gl()
        head_epi(p, 1, L+"H1")
        bar(p,'s6end')
    stamp(p,'headsE')
    p(f"s_cmp_ge_u32 s{SCB}, 14")
    p(f"s_cbranch_scc1 {L}_NOFIN")
    p.begin_opt(); fin_z2(p, L, A); p.end_opt()
    p.label(f"{L}_NOFIN")
    stamp(p,'end')
    PR.dump(p)

def mall_prefetch(p, g):
    p(f"s_load_dwordx2 s[66:67], s[0:1], {KA_WSP if g else KA_WO}")
    if not g: p(f"s_load_dwordx2 s[70:71], s[0:1], {KA_WOUT}")
    p(f"s_sub_u32 s51, s{SCB}, 12")
    p(f"s_cmp_lt_u32 s{SCB}, 2")
    p(f"s_cselect_b32 s51, s{SCB}, s51")
    p(f"s_lshl_b32 s52, s{SRB}, 2")
    p("s_add_u32 s51, s51, s52")
    p("v_lshlrev_b32 v26, 7, v0")
    p("s_waitcnt lgkmcnt(0)")
    if g:
        srd(p, 72, 66, S*S*2)
        p("s_lshl_b32 s51, s51, 2")
        p(f"s_add_u32 s51, s51, s{SW}")
        p("s_lshl_b32 s51, s51, 15")
        for i in range(4):
            p(f"buffer_load_dword v27, v26, s[72:75], s51 offen")
            if i<3: p("s_add_u32 s51, s51, 8192")
    else:
        srd(p, 72, 66, D*D*2); srd(p, 76, 70, FH*D*2)
        p(f"s_mul_i32 s52, s51, {49*128}")
        p(f"s_mul_i32 s53, s51, {98*128}")
        p(f"s_sub_u32 s54, s{SW}, 1")
        p("s_min_u32 s54, s54, 1")
        p(f"s_mul_i32 s54, s54, {49*128}")
        p("s_add_u32 s53, s53, s54")
        p("v_min_u32 v28, 48, v0")
        p("v_lshlrev_b32 v28, 7, v28")
        p(f"s_cmp_lg_u32 s{SW}, 0")
        p.begin_alt()
        p("s_cbranch_scc1 K1_MPA")
        p.alt_branch()
        p(f"buffer_load_dword v27, v28, s[72:75], s52 offen")
        p("s_branch K1_MPB")
        p.alt_branch()
        p.label("K1_MPA")
        p(f"buffer_load_dword v27, v28, s[76:79], s53 offen")
        p.end_alt()
        p.label("K1_MPB")

NPREP=5
L_PREP=L_P2+4096
def prep_issue(p):
    p(f"s_load_dwordx2 s[66:67], s[0:1], {KA_WO}")
    p(f"s_load_dwordx2 s[68:69], s[0:1], {KA_WOUT}")
    p(f"s_sub_u32 s51, s{SCB}, 12")
    p(f"s_cmp_lt_u32 s{SCB}, 2")
    p(f"s_cselect_b32 s51, s{SCB}, s51")
    p(f"s_lshl_b32 s52, s{SRB}, 2")
    p("s_add_u32 s51, s51, s52")
    p("s_lshl_b32 s51, s51, 2")
    p(f"s_add_u32 s70, s51, s{SW}")
    p(f"s_mul_i32 s71, s{SW}, {NPREP*1024}")
    p(f"s_add_u32 s71, s71, {L_PREP}")
    p(f"s_mov_b32 s81, {D*D*2}")
    p(f"s_mov_b32 s82, {FH*D*2}")
    p("v_lshrrev_b32 v26, 2, v0")
    p(f"v_mul_u32_u24 v27, {D*2}, v26")
    p("v_and_b32 v28, 3, v0")
    p("v_lshl_add_u32 v27, v28, 4, v27")
    p("v_cmp_le_u32 vcc, 12, v26")
    p("v_mov_b32 v28, 0")
    p("v_mov_b32 v29, 0x7ff00000")
    p("v_cndmask_b32 v28, v28, v29, vcc")
    p("s_waitcnt lgkmcnt(0)")
    for i in range(NPREP):
        p(f"s_add_u32 s80, s70, {256*i}")
        p(f"s_mul_i32 s51, s80, 745")
        p("s_lshr_b32 s51, s51, 16")
        p("s_mul_i32 s52, s51, 88")
        p(f"s_sub_u32 s52, s80, s52")
        p("s_lshl_b32 s51, s51, 6")
        p("s_lshr_b32 s53, s52, 1")
        p("s_mul_i32 s53, s53, 28")
        p("s_and_b32 s54, s52, 1")
        p("s_lshl_b32 s55, s54, 4")
        p("s_add_u32 s53, s53, s55")
        p("s_sub_u32 s55, s52, 32")
        p("s_lshl_b32 s55, s55, 4")
        p("s_cmp_lt_u32 s52, 32")
        p("s_cselect_b32 s53, s53, s55")
        p("s_cselect_b32 s72, s66, s68")
        p("s_cselect_b32 s73, s67, s69")
        p("s_cselect_b32 s74, s81, s82")
        p("s_mov_b32 s75, 0x00020000")
        p("s_cselect_b32 s54, s54, 0")
        p(f"s_mul_i32 s53, s53, {D*2}")
        p("s_add_u32 s53, s53, s51")
        p("s_cmp_lt_u32 s80, 1232")
        p("s_cselect_b32 s53, s53, 0x7ff00000")
        p("s_sub_u32 s54, 0, s54")
        p("v_and_b32 v29, s54, v28")
        p("v_add_u32 v29, v29, v27")
        p(f"s_add_u32 m0, s71, {i*1024}")
        p("s_nop 0")
        p("buffer_load_dwordx4 v29, s[72:75], s53 offen lds", tag='pd')

def prep_finish(p):
    p("v_lshrrev_b32 v26, 4, v0")
    p("v_and_b32 v27, 1, v26")
    p("v_lshrrev_b32 v26, 1, v26")
    p("v_lshrrev_b32 v28, 2, v0")
    p("v_and_b32 v28, 3, v28")
    p("v_lshl_add_u32 v26, v26, 2, v28")
    p("v_lshlrev_b32 v26, 6, v26")
    p("v_lshl_add_u32 v26, v27, 5, v26")
    p("v_and_b32 v27, 3, v0")
    p("v_lshl_add_u32 v26, v27, 3, v26")
    p("v_add_u32 v26, s71, v26")
    p("s_waitcnt vmcnt(0)")
    for i in range(NPREP):
        p(f"ds_read_b64_tr_b16 {v(96+4*i,2)}, v26 offset:{i*1024}")
        p(f"ds_read_b64_tr_b16 {v(96+4*i+2,2)}, v26 offset:{i*1024+512}")
    for i in range(NPREP):
        p(f"s_add_u32 s80, s70, {256*i}")
        p(f"s_lshl_b32 s51, s80, 10")
        p(f"s_add_u32 s51, s51, {WS_WC}")
        p("s_cmp_lt_u32 s80, 1232")
        p("s_cselect_b32 s51, s51, 0x7ff00000")
        p(f"buffer_store_dwordx4 {v(96+4*i,4)}, v1, s[{WS}:{WS+3}], s51 offen{SM()}")

def code_prefetch(p):
    p(f"s_cmp_lg_u32 s{SW8}, 7")
    p("s_cbranch_scc1 K1_CP1")
    p.begin_opt()
    p("s_getpc_b64 s[66:67]")
    p.label("K1_PC")
    p("s_sub_u32 s66, s66, K1_PC-k1_kernel")
    p("s_subb_u32 s67, s67, 0")
    p("s_mul_i32 s51, s15, 10")
    p("v_add_u32 v26, s51, v0")
    p("s_lshl_b32 s52, s2, 1")
    p("s_add_u32 s52, s52, (k2_kernel-k1_kernel)/128-10")
    p("v_add_u32 v27, s52, v0")
    p("v_cmp_gt_u32 vcc, 10, v0")
    p("v_cndmask_b32 v26, v27, v26, vcc")
    p("v_lshlrev_b32 v26, 7, v26")
    p("v_min_u32 v26, CODE_END-k1_kernel-4, v26")
    p("v_cmp_gt_u32 vcc, 12, v0")
    p("s_and_saveexec_b64 s[68:69], vcc")
    p("global_load_dword v27, v26, s[66:67]")
    p("s_mov_b64 exec, s[68:69]")
    p.end_opt()
    p.label("K1_CP1")

def l2_prefetch(p):
    T=38
    p("s_and_b32 s51, s15, 7")
    p("s_lshr_b32 s52, s15, 3")
    p.begin_alt()
    p(f"s_cmp_ge_u32 s{SW8}, 2")
    p("s_cbranch_scc1 K1_PF2")
    p.alt_branch()
    p("s_lshl_b32 s53, s52, 7")
    p(f"s_lshl_b32 s54, s{SW8}, 6")
    p("s_add_u32 s53, s53, s54")
    p("v_add_u32 v18, s53, v0")
    p("v_lshrrev_b32 v19, 2, v18")
    p(f"v_mul_u32_u24 v19, {D*2}, v19")
    p("v_and_b32 v18, 3, v18")
    p("v_lshl_add_u32 v19, v18, 7, v19")
    p(f"s_mul_i32 s53, s{SRB}, {128*D*2}")
    p(f"s_add_u32 s53, s53, {3*128}")
    p(f"buffer_load_dword v{T}, v19, s[{XS}:{XS+3}], s53 offen")
    p("s_branch K1_PFD")
    p.alt_branch()
    p.label("K1_PF2")
    p(f"s_cmp_ge_u32 s{SW8}, 4")
    p("s_cbranch_scc1 K1_PF4")
    p(f"s_lshl_b32 s53, s{SW8}, 3")
    p(f"s_mul_i32 s53, s53, {F*2}")
    p(f"s_cmp_eq_u32 s{SW8}, 2")
    p(f"s_cselect_b32 s54, s{SP1}, s{SP2}")
    p("s_sub_u32 s54, s54, s53")
    p(f"s_cmp_eq_u32 s{SW8}, 2")
    p("s_cselect_b32 s55, 32, 56")
    p("s_cselect_b32 s53, 192, 0")
    p("s_mul_i32 s61, s51, s55")
    p("s_add_u32 s53, s53, s61")
    p("s_sub_u32 s55, s55, 1")
    p("v_min_u32 v18, s55, v0")
    p("v_add_u32 v18, s53, v18")
    p(f"v_mul_u32_u24 v19, {F*2}, v18")
    p(f"buffer_load_dword v{T}, v19, s[{WIN}:{WIN+3}], s54 offen")
    p("s_branch K1_PFD")
    p.alt_branch()
    p.label("K1_PF4")
    p(f"s_sub_u32 s53, s{SW8}, 4")
    p("s_min_u32 s53, s53, 2")
    p("s_mul_i32 s53, s53, 94")
    p(f"s_mul_i32 s54, s{SCB}, 168")
    p("s_add_u32 s54, s54, s53")
    p("s_mul_i32 s53, s51, 56")
    p("v_min_u32 v18, 55, v0")
    p("v_add_u32 v18, s53, v18")
    p(f"v_mul_u32_u24 v19, {3*D*2}, v18")
    p(f"buffer_load_dword v{T}, v19, s[{WQ}:{WQ+3}], s54 offen")
    p.end_alt()
    p.label("K1_PFD")

def gen():
    p=Prog(); prologue(p)
    p(f"v_mov_b32 v{VH+8}, 0")
    p(f"s_lshl_b32 s{SEP}, s{SRB}, 7")
    p(f"s_add_u32 s{SEP}, s{SEP}, {WS_EP}")
    p(f"buffer_load_dword v{EPV}, v{VH+8}, s[{WS}:{WS+3}], s{SEP} offen sc1")
    for kc in range(3):
        dma_x(p,kc); dma_pair(p, SP1, kc, p1_addr(kc), f'w{kc}')
    if PREFETCH: l2_prefetch(p)
    if CODEPF: code_prefetch(p)
    setup_reads(p)
    p("s_mov_b32 s56, 0xbdd2d3e8")
    p("v_mov_b32 v47, 0xc0135761")
    p("s_mov_b32 s58, 0"); p("s_mov_b32 s59, -1")
    p("s_mov_b32 s60, 0xffff0000")
    p(f"v_add_u32 v{EPV}, 1, v{EPV}")
    p(f"v_readfirstlane_b32 s{STAG}, v{EPV}")
    stamp(p,'setup')
    p(f"s_cmp_ge_u32 s{SW8}, 4")
    p("s_cbranch_scc1 K1_GROUPB")
    p.begin_alt(); p.alt_branch()
    n0=PR.n; names0=list(PR.names)
    group_code(p, 0)
    namesA=list(PR.names); PR.n=n0; PR.names=list(names0)
    p("s_branch K1_END")
    p.alt_branch()
    p.label("K1_GROUPB")
    group_code(p, 1)
    PR.namesA=namesA
    p.end_alt()
    p.label("K1_END")
    p("s_endpgm")
    return p

PREFETCH=False; MALLPF=False; CODEPF=True
def kernel(**opt):
    global PR, PREFETCH, MALLPF, CODEPF
    MALLPF=bool(int(opt.get('mpf',0))); CODEPF=bool(int(opt.get('cpf',1)))
    PREFETCH=bool(int(opt.get('pf',0)))
    PR=Prof(bool(int(opt.get('prof',0))),WS,SW8,WS_EP+(1<<19))
    text=gen().finalize()
    if PR.on: open('k1_stamps.txt','w').write(" ".join(PR.namesA)+"\n"+" ".join(PR.names))
    return dict(name="k1_kernel", text=text, grid=256, block=512, lds=LDS_K1, vgpr=256, sgpr=96, accum=256)
```

```python
from asmlib import *
from layout import *
import layout
def SM(): return layout.STMOD
from k3 import srd

LDS_RING = 0
LDS_AC   = 98304
LDS_AM   = 147456
LDS_CNT  = 147456 + 4096
LDS_K2   = 147456 + 4096 + 64

SW=16; SHEAD=17; SQB=18; STB=19; SFB=20; SJ=21; SX=22
WS=24; WSP=28; AUX=32; AUX2=36; STAG=15; XS3=88; OUT3=92

from profutil import Prof
PR=Prof(False,WS,23,0)
PROF=False
PRION=0
SKIPDMA=0
PRIOPAT=''
STARTPRIO=0
ONLY=''
WPF=1
DELAYW=1
ROT=2
KINT=1
def stamp(p,name): PR.stamp(p,str(name))
def dump_stamps(p,n): PR.dump(p)

def role_sync(p, idx, lab):
    p(f"v_mov_b32 v12, {LDS_CNT+4*idx}")
    p("v_mov_b32 v13, 1")
    p("s_mov_b64 exec, 1")
    p("ds_add_u32 v12, v13")
    p("s_mov_b64 exec, -1")
    p.label(lab)
    p("ds_read_b32 v13, v12")
    p("s_waitcnt lgkmcnt(0)")
    p("v_readfirstlane_b32 s61, v13")
    p("s_cmp_lt_u32 s61, 4")
    p(f"s_cbranch_scc1 {lab}")

def prologue(p):
    p("s_cmp_ge_u32 s2, 256")
    p("s_cbranch_scc1 K2_END")
    p(f"s_load_dwordx2 s[4:5], s[0:1], {KA_WS}")
    p(f"s_load_dwordx2 s[6:7], s[0:1], {KA_WSP}")
    p(f"s_load_dwordx2 s[8:9], s[0:1], {KA_BSP}")
    p(f"s_load_dwordx2 s[10:11], s[0:1], {KA_X}")
    p(f"s_load_dwordx2 s[12:13], s[0:1], {KA_OUT}")
    p("v_lshrrev_b32 v1, 6, v0")
    p("v_and_b32 v0, 63, v0")
    p("v_readfirstlane_b32 s23, v1")
    p(f"s_and_b32 s{SX}, s2, 7")
    p(f"s_lshr_b32 s{SJ}, s2, 3")
    p(f"s_and_b32 s{SW}, s23, 3")
    p("v_lshlrev_b32 v1, 4, v0")
    p("s_waitcnt lgkmcnt(0)")
    srd(p, WS, 4, WS_SIZE)
    p(f"s_mov_b32 s63, {WS_EP}")
    p("v_mov_b32 v14, 0")
    p(f"buffer_load_dword v14, v14, s[{WS}:{WS+3}], s63 offen sc1")
    p(f"v_mov_b32 v2, {LDS_CNT}")
    p("v_mov_b32 v3, 0")
    p("ds_write_b32 v2, v3")
    p("ds_write_b32 v2, v3 offset:4")
    p("ds_write_b32 v2, v3 offset:8")
    p("s_waitcnt lgkmcnt(0)")
    p("s_barrier")
    PR.real(p,62)
    stamp(p,'start')
    p("s_cmp_ge_u32 s23, 4")
    p("s_cbranch_scc1 K2_ROLEB")

Q0=16; O0=48; S_=[112,128]; P_=[144,152]; KV0=160; ME=224; T0=228
def kvb(b): return KV0+16*b

def attention(p, force_fallback=False):
    SKV=40; SQ=41; SNT=42; SOFF=43; SK=44; SCNT=45; SIT=46
    p(f"s_lshr_b32 s40, s{SJ}, 4")
    p(f"s_lshl_b32 s41, s{SX}, 1")
    p(f"s_add_u32 s{SHEAD}, s40, s41")
    p(f"s_and_b32 s{SQB}, s{SJ}, 15")
    p(f"s_lshl_b32 s40, s{SHEAD}, 17")
    p(f"s_lshl_b32 s41, s{SQB}, 13")
    p(f"s_add_u32 s47, s40, s41")
    if WS_Q: p(f"s_add_u32 s47, s47, {WS_Q}")
    for rho in range(4):
        p(f"s_add_u32 s40, s{SW}, {rho}")
        p("s_and_b32 s40, s40, 3")
        p("s_lshl_b32 s40, s40, 11")
        p("s_add_u32 s40, s40, s47")
        p(f"buffer_load_dwordx4 {v(Q0+8*rho,4)}, v1, s[{WS}:{WS+3}], s40 offen")
        p(f"buffer_load_dwordx4 {v(Q0+8*rho+4,4)}, v1, s[{WS}:{WS+3}], s40 offen offset:1024")
    p(f"s_lshl_b32 s40, s{SHEAD}, 18")
    p(f"s_lshl_b32 s41, s{SW}, 16")
    p(f"s_add_u32 s40, s40, s41")
    p(f"s_add_u32 s{SKV}, s40, {WS_KV}")
    p(f"s_mov_b32 s{SNT}, {16 if force_fallback else 1}")
    p(f"s_mov_b32 s{SOFF}, {'0' if force_fallback else '0x42800000'}")
    p.label("A_RETRY")
    for j in range(4): p(f"v_mov_b32 v{ME+j}, 0xff7fffff")
    p(f"s_mov_b32 s{SCNT}, s{SNT}")
    def ld_tile(t_imm_base_sreg, b, part):
        for i in range(2):
            p(f"buffer_load_dwordx4 {v(kvb(b)+8*part+4*i,4)}, v1, s[{WS}:{WS+3}], s{t_imm_base_sreg} offen offset:{(2*part+i)*1024}")
    ld_tile(SKV, 0, 0)
    p(f"s_mov_b32 s62, s{SKV}")
    p.label("A_MAXLOOP")
    for j in range(4):
        Sx = S_[j&1]
        p(f"v_mfma_f32_32x32x16_bf16 {v(Sx,16)}, {v(kvb(0),4)}, {v(Q0+8*j,4)}, 0")
        p(f"v_mfma_f32_32x32x16_bf16 {v(Sx,16)}, {v(kvb(0)+4,4)}, {v(Q0+8*j+4,4)}, {v(Sx,16)}")
        if j>0:
            Sy=S_[(j-1)&1]
            maxtree(p,Sy,ME+j-1)
    maxtree(p,S_[1],ME+3)
    p(f"s_sub_u32 s{SCNT}, s{SCNT}, 1")
    p(f"s_cmp_eq_u32 s{SCNT}, 0")
    p("s_cbranch_scc1 A_MAXDONE")
    p.begin_opt()
    p("s_add_u32 s62, s62, 4096")
    ld_tile(62, 0, 0)
    p("s_waitcnt vmcnt(0)")
    p("s_branch A_MAXLOOP")
    p.end_opt()
    p.label("A_MAXDONE")
    stamp(p,'maxdone')
    p(f"s_cmp_eq_u32 s{SNT}, 1")
    p("s_cbranch_scc1 A_KEEPK")
    p.begin_opt()
    ld_tile(SKV, 0, 0)
    p.end_opt()
    p.label("A_KEEPK")
    for j in range(4):
        m=ME+j; t=T0
        p(f"v_mov_b32 v{t}, v{m}")
        p(f"v_permlane32_swap_b32 v{t}, v{m}")
        p(f"v_max_f32 v{m}, v{t}, v{m}")
        p(f"v_add_f32 v{m}, s{SOFF}, v{m}")
        p(f"v_sub_f32 v{t}, 0, v{m}")
        p(f"v_and_b32 v{t+1}, 0xffff0000, v{t}")
        p(f"v_sub_f32 v{t+2}, v{t}, v{t+1}")
        p(f"v_and_b32 v{t+2}, 0xffff0000, v{t+2}")
        p(f"v_add_f32 v{t+3}, v{t+1}, v{t+2}")
        p(f"v_sub_f32 v{m}, 0, v{t+3}")
        p(f"v_lshrrev_b32 v{t+1}, 16, v{t+1}")
        p(f"v_or_b32 v{t+1}, v{t+1}, v{t+2}")
        p(f"s_mov_b64 exec, s[48:49]")
        p(f"v_mov_b32 v{Q0+8*j+6}, v{t+1}")
        p(f"s_mov_b64 exec, -1")
    def QK(u):
        j=u&3; b=(u>>2)&3; Sx=S_[u&1]
        return [f"v_mfma_f32_32x32x16_bf16 {v(Sx,16)}, {v(kvb(b),4)}, {v(Q0+8*j,4)}, 0",
                f"v_mfma_f32_32x32x16_bf16 {v(Sx,16)}, {v(kvb(b)+4,4)}, {v(Q0+8*j+4,4)}, {v(Sx,16)}"]
    def PV(u):
        j=u&3; b=(u>>2)&3; Px=P_[u&1]; O=O0+16*j
        return [f"v_mfma_f32_32x32x16_bf16 {v(O,16)}, {v(kvb(b)+8,4)}, {v(Px,4)}, {v(O,16)}",
                f"v_mfma_f32_32x32x16_bf16 {v(O,16)}, {v(kvb(b)+12,4)}, {v(Px+4,4)}, {v(O,16)}"]
    for r in range(8): p(f"v_mov_b32 v{kvb(3)+8+r}, 0")
    for m_ in QK(0): p(m_)
    def ringload(q, t, b, k):
        q(f"buffer_load_dwordx4 {v(kvb(b)+4*k,4)}, v1, s[{WS}:{WS+3}], s{SK} offen offset:{k*1024}")
    sides=[]
    p(f"s_mov_b32 s{SK}, s{SKV}")
    sides.append(capture(lambda q: ringload(q,0,0,2))); sides.append(capture(lambda q: (ringload(q,0,0,3), q(f"s_add_u32 s{SK}, s{SK}, 4096"))))
    for t in (1,2):
        for k in range(4):
            sides.append(capture(lambda q,t=t,k=k: (ringload(q,t,t,k), q(f"s_add_u32 s{SK}, s{SK}, 4096") if k==3 else None)))
    main=capture(lambda q: ([q(f"v_mov_b32 v{O0+r}, 0") for r in range(64)], [q(f"v_mov_b32 v{P_[1]+r}, 0") for r in range(8)]))
    p.extend(interleave(main, sides, 0, 70))
    def period(u, loads):
        Sx=S_[u&1]; Px=P_[u&1]
        qk=QK(u+1); pv=PV(u-1)
        ms=[qk[0],pv[0],qk[1],pv[1]]
        ex=[f"v_exp_f32 v{Sx+i}, v{Sx+i}" for i in range(16)]
        cv=[f"v_cvt_pk_bf16_f32 v{Px+i}, v{Sx+2*i}, v{Sx+2*i+1}" for i in range(8)]
        for g in range(4):
            p(ms[g])
            if g < len(loads) and loads[g]:
                for x in loads[g]: p(x)
            for k in range(2):
                i=2*g+k
                p(ex[2*i]); p(ex[2*i+1])
                if i>0: p(cv[i-1])
        p(cv[7])
    def iteration(last):
        for tl in range(4):
            for j in range(4):
                u=4*tl+j
                loads=[None]*4
                nb=(tl+3)&3
                doload = (not last) or tl==0
                if doload and j==0:
                    loads[2]=[f"buffer_load_dwordx4 {v(kvb(nb),4)}, v1, s[{WS}:{WS+3}], s{SK} offen offset:0"]
                    loads[3]=[f"buffer_load_dwordx4 {v(kvb(nb)+4,4)}, v1, s[{WS}:{WS+3}], s{SK} offen offset:1024"]
                if doload and j==1:
                    loads[0]=[f"buffer_load_dwordx4 {v(kvb(nb)+8,4)}, v1, s[{WS}:{WS+3}], s{SK} offen offset:2048"]
                    loads[1]=[f"buffer_load_dwordx4 {v(kvb(nb)+12,4)}, v1, s[{WS}:{WS+3}], s{SK} offen offset:3072",
                              f"s_add_u32 s{SK}, s{SK}, 4096"]
                period(u,loads)
    stamp(p,'loopstart')
    p(f"s_mov_b32 s{SIT}, 3")
    p.begin_loop(visits=3)
    p.label("A_LOOP")
    iteration(False)
    p(f"s_sub_u32 s{SIT}, s{SIT}, 1")
    p(f"s_cmp_lg_u32 s{SIT}, 0")
    p("s_cbranch_scc1 A_LOOP")
    p.end_loop()
    iteration(True)
    for m_ in PV(63): p(m_)
    stamp(p,'loopend')
    p("s_mov_b32 s50, 0x71800000")
    p("s_mov_b64 s[52:53], 0")
    for j in range(4):
        p(f"v_cmp_ngt_f32 vcc, s50, v{O0+16*j+12}")
        p("s_or_b64 s[52:53], s[52:53], vcc")
    p(f"s_cmp_eq_u32 s53, 0")
    p("s_cbranch_scc1 A_OK")
    p(f"s_cmp_eq_u32 s{SNT}, 16")
    p("s_cbranch_scc1 A_OK")
    p(f"s_mov_b32 s{SNT}, 16")
    p(f"s_mov_b32 s{SOFF}, 0")
    p(f"s_mov_b64 exec, s[48:49]")
    for j in range(4): p(f"v_mov_b32 v{Q0+8*j+6}, 0")
    p(f"s_mov_b64 exec, -1")
    p("s_branch A_RETRY")
    p.label("A_OK")

def maxtree(p, Sy, dst):
    t=T0
    for i in range(4):
        p(f"v_max3_f32 v{t+i}, v{Sy+4*i}, v{Sy+4*i+1}, v{Sy+4*i+2}")
    p(f"v_max3_f32 v{t}, v{t}, v{Sy+3}, v{Sy+7}")
    p(f"v_max3_f32 v{t+1}, v{t+1}, v{Sy+11}, v{Sy+15}")
    p(f"v_max3_f32 v{t}, v{t}, v{t+2}, v{t+3}")
    p(f"v_max3_f32 v{dst}, v{dst}, v{t}, v{t+1}")

def attention_publish(p):
    p(f"s_mul_i32 s40, s{SW}, 12288")
    p(f"s_add_u32 s40, s40, {LDS_AC}")
    p(f"v_add_u32 v2, s40, v1")
    for rho in range(1,4):
        for q in range(4):
            p(f"ds_write_b128 v2, {v(O0+16*rho+4*q,4)} offset:{(rho-1)*4096+q*1024}", tag='apub')
    p(f"v_and_b32 v3, 31, v0")
    p(f"v_lshlrev_b32 v3, 2, v3")
    p(f"s_lshl_b32 s40, s{SW}, 10")
    p(f"s_add_u32 s40, s40, {LDS_AM}")
    p(f"v_add_u32 v4, s40, v3")
    for rho in range(4):
        p(f"v_log_f32 v{T0+rho}, v{O0+16*rho+12}")
    for rho in range(4):
        p(f"v_add_f32 v{T0+rho}, v{T0+rho}, v{ME+rho}")
    p(f"s_mov_b64 exec, s[48:49]")
    for rho in range(4):
        p(f"ds_write_b32 v4, v{ME+rho} offset:{rho*256}", tag='apub')
        p(f"ds_write_b32 v4, v{T0+rho} offset:{rho*256+128}", tag='apub')
    p(f"s_mov_b64 exec, -1")
    p.wait('apub')

def attention_finish(p):
    R=112
    MM=160; LG=164
    for rho in range(4):
        p(f"s_sub_u32 s40, s{SW}, {rho}")
        p("s_and_b32 s40, s40, 3")
        p("s_lshl_b32 s41, s40, 10")
        p(f"s_add_u32 s41, s41, {LDS_AM+rho*256}")
        p(f"v_add_u32 v4, s41, v3")
        p(f"ds_read_b32 v{MM+rho}, v4")
        p(f"ds_read_b32 v{LG+rho}, v4 offset:128")
        if rho>0:
            p("s_mul_i32 s41, s40, 12288")
            p(f"s_add_u32 s41, s41, {LDS_AC+(rho-1)*4096}")
            p(f"v_add_u32 v2, s41, v1")
            for q in range(4):
                p(f"ds_read_b128 {v(R+16*(rho-1)+4*q,4)}, v2 offset:{q*1024}")
    t=T0
    p(f"v_max3_f32 v{t}, v{LG}, v{LG+1}, v{LG+2}")
    p(f"v_max_f32 v{t}, v{t}, v{LG+3}")
    for rho in range(4):
        p(f"v_sub_f32 v{LG+rho}, v{LG+rho}, v{t}")
        p(f"v_sub_f32 v{MM+rho}, v{MM+rho}, v{t}")
    for rho in range(4):
        p(f"v_exp_f32 v{LG+rho}, v{LG+rho}")
        p(f"v_exp_f32 v{MM+rho}, v{MM+rho}")
    p(f"v_add_f32 v{LG}, v{LG}, v{LG+1}")
    p(f"v_add_f32 v{LG+2}, v{LG+2}, v{LG+3}")
    p(f"v_add_f32 v{LG}, v{LG}, v{LG+2}")
    p(f"v_rcp_f32 v{LG}, v{LG}")
    for rho in range(4):
        p(f"v_mul_f32 v{MM+rho}, v{MM+rho}, v{LG}")
    for r in range(16):
        p(f"v_mul_f32 v{O0+r}, v{O0+r}, v{MM}")
    for rho in range(1,4):
        for r in range(16):
            p(f"v_fmac_f32 v{O0+r}, v{R+16*(rho-1)+r}, v{MM+rho}")
    p(f"s_mov_b64 exec, s[48:49]")
    for r in range(12,16): p(f"v_mov_b32 v{O0+r}, 0")
    p(f"s_mov_b64 exec, -1")
    for i in range(8):
        p(f"v_cvt_pk_bf16_f32 v{R+i}, v{O0+2*i}, v{O0+2*i+1}")
    p(f"s_lshl_b32 s40, s{SQB}, 2")
    p(f"s_add_u32 s40, s40, s{SW}")
    p(f"s_mul_i32 s40, s40, {88*1024}")
    p(f"s_lshl_b32 s41, s{SHEAD}, 11")
    p(f"s_add_u32 s40, s40, s41")
    p(f"s_add_u32 s40, s40, {WS_H}")
    p(f"buffer_store_dwordx4 {v(R,4)}, v1, s[{WS}:{WS+3}], s40 offen{SM()}")
    p(f"buffer_store_dwordx4 {v(R+4,4)}, v1, s[{WS}:{WS+3}], s40 offen offset:1024{SM()}")

GACC=128; GA=64; GB=48
def gemm(p):
    SROW=[40,41,42,43]; SRING=44; SZ=45; ST=46
    VD=[2,3]; VR=[4,5,6,7]
    p(f"s_mul_i32 s46, s{SJ}, 37")
    p("s_lshr_b32 s46, s46, 8")
    p("s_mul_i32 s47, s46, 7")
    p(f"s_sub_u32 s47, s{SJ}, s47")
    p(f"s_lshr_b32 s48, s{SX}, 1")
    p("s_lshl_b32 s48, s48, 2")
    p(f"s_add_u32 s{STB}, s48, s46")
    p(f"s_and_b32 s48, s{SX}, 1")
    p("s_mul_i32 s48, s48, 7")
    p(f"s_add_u32 s{SFB}, s48, s47")
    srd(p, WSP, 6, S*S*2)
    srd(p, AUX, 8, S*2)
    for rho in range(4):
        p(f"s_add_u32 s46, s{SW}, {rho}")
        p("s_and_b32 s46, s46, 3")
        p("s_lshl_b32 s46, s46, 5")
        p(f"s_lshl_b32 s47, s{STB}, 7")
        p("s_add_u32 s46, s46, s47")
        p("s_lshl_b32 s46, s46, 12")
        p(f"s_lshl_b32 s47, s{SW}, {7 if KINT else 10}")
        p(f"s_add_u32 s{SROW[rho]}, s46, s47")
    p(f"s_mul_i32 s{SRING}, s{SW}, 24576")
    p(f"s_lshl_b32 s46, s{SFB}, 7")
    p(f"s_lshl_b32 s47, s{SW}, {2 if KINT else 5}")
    p("s_add_u32 s46, s46, s47")
    p("s_lshl_b32 s46, s46, 11")
    p(f"s_add_u32 s{SZ}, s46, {WS_Z2}")
    p("v_lshrrev_b32 v8, 3, v0")
    p("v_lshlrev_b32 v8, 12, v8")
    p("v_lshrrev_b32 v9, 4, v0")
    p("v_and_b32 v10, 7, v0")
    p("v_xor_b32 v11, v10, v9")
    p("v_lshl_add_u32 v2, v11, 4, v8")
    p("v_xor_b32 v11, 4, v11")
    p("v_lshl_add_u32 v3, v11, 4, v8")
    p("v_and_b32 v8, 31, v0")
    p("v_lshrrev_b32 v9, 5, v0")
    p("v_lshrrev_b32 v10, 1, v8")
    p("v_and_b32 v10, 7, v10")
    p("v_xor_b32 v10, v10, v9")
    p("v_lshlrev_b32 v8, 7, v8")
    p(f"v_add_u32 v8, s{SRING}, v8")
    for u in range(4):
        p(f"v_xor_b32 v11, {2*u}, v10")
        p(f"v_lshl_add_u32 v{VR[u]}, v11, 4, v8")
    SROT=52; SWO=[53,54]; SZO=[55,56]
    p(f"s_and_b32 s{SROT}, s{STB if ROT==1 else SFB}, {7 if ROT!=3 else 1}")
    if ROT==3: p(f"s_lshl_b32 s{SROT}, s{SROT}, 2")
    def chunk_offsets(sc):
        e=sc&1
        if ROT:
            p(f"s_add_u32 s57, s{SROT}, {sc}")
            p("s_and_b32 s57, s57, 7")
            p(f"s_lshl_b32 s{SWO[e]}, s57, {9 if KINT else 7}")
            p(f"s_lshl_b32 s57, s57, {15 if KINT else 13}")
            p(f"s_add_u32 s{SZO[e]}, s57, s{SZ}")
        else:
            p(f"s_mov_b32 s{SWO[e]}, {sc*(512 if KINT else 128)}")
            p(f"s_add_u32 s{SZO[e]}, s{SZ}, {sc*(32768 if KINT else 8192)}")
    done=set()
    def need(sc):
        if sc not in done: done.add(sc); chunk_offsets(sc)
    def dma(c, which=range(8)):
        sc=c>>1; th=c&1; slot=c%3
        need(sc)
        for i in which:
            if SKIPDMA and (i&1) and c>1: continue
            rho=2*th+(i>>2)
            p(f"s_add_u32 m0, s{SRING}, {slot*8192+i*1024}")
            p(f"s_add_u32 s{ST}, s{SROW[rho]}, s{SWO[sc&1]}")
            if i&3: p(f"s_add_u32 s{ST}, s{ST}, {(8*(i&3))*4096}")
            p(f"buffer_load_dwordx4 v{VD[i&1]}, s[{WSP}:{WSP+3}], s{ST} offen lds", tag=f'dma{slot}')
    def aload(sc, lo, hi):
        e=sc&1
        need(sc)
        for k in range(lo,hi):
            if k%4==0 or k==lo: p(f"s_add_u32 s{ST+1}, s{SZO[e]}, {(k&~3)*1024}")
            p(f"buffer_load_dwordx4 {v(GA+e*32+4*k,4)}, v1, s[{WS}:{WS+3}], s{ST+1} offen offset:{(k%4)*1024}")
    def bread(c,u):
        slot=c%3; st=(c*4+u)&1
        for tl in range(2):
            p(f"ds_read_b128 {v(GB+st*8+4*tl,4)}, v{VR[u]} offset:{slot*8192+tl*4096}")
    if STARTPRIO: p("s_setprio 1")
    dma(0); aload(0,0,4); dma(1); aload(0,4,8)
    stamp(p,'issued')
    p.wait('dma0')
    bread(0,0)
    stamp(p,'loopstart')
    for c in range(16):
        if c in (2,4,8,12): stamp(p,f'c{c}')
        sc=c>>1; th=c&1; e=sc&1
        for u in range(4):
            if PRIOPAT:
                on = PRIOPAT[(c*4+u) % len(PRIOPAT)]=='1'
                prev = PRIOPAT[(c*4+u-1) % len(PRIOPAT)]=='1' if (c or u) else False
                if on!=prev: p(f"s_setprio {1 if on else 0}")
            if u<3: nxt=(c,u+1)
            else: nxt=(c+1,0) if c<15 else None
            st=(c*4+u)&1
            k=0
            for tl in range(2):
                for fi in range(2):
                    acc=GACC+((2*th+tl)*2+fi)*16
                    cc = "0" if (sc==0 and u==0) else v(acc,16)
                    p(f"v_mfma_f32_32x32x16_bf16 {v(acc,16)}, {v(GA+e*32+4*(u*2+fi),4)}, {v(GB+st*8+4*tl,4)}, {cc}")
                    if k==0 and nxt:
                        if nxt[0]!=c: p.wait(f'dma{nxt[0]%3}')
                        bread(*nxt)
                    slot=u*4+k
                    if c==0:
                        if slot<8: dma(2,[slot])
                        if slot==8 and STARTPRIO: p("s_setprio 0")
                    else:
                        if c+2<16 and slot<8: dma(c+2,[slot])
                    if sc+1<8 and slot in (9,11,13,15) and c>=0:
                        kk=4*th+(slot-9)//2
                        aload(sc+1, kk, kk+1)
                    k+=1
    if PRIOPAT: p("s_setprio 0")

def gemm_publish(p):
    p(f"v_add_u32 v2, s44, v1")
    for rho in range(1,4):
        for fi in range(2):
            for q in range(4):
                p(f"ds_write_b128 v2, {v(GACC+(rho*2+fi)*16+4*q,4)} offset:{(rho-1)*8192+fi*4096+q*1024}", tag='gpub')
    p(f"s_lshl_b32 s46, s{STB}, 2")
    p(f"s_add_u32 s46, s46, s{SW}")
    p(f"s_mul_i32 s47, s46, {28*2048}")
    p(f"s_lshl_b32 s48, s{SFB}, 12")
    p("s_add_u32 s47, s47, s48")
    p(f"s_add_u32 s47, s47, {WS_Z1}")
    for k in range(4):
        p(f"buffer_load_dwordx4 {v(16+4*k,4)}, v1, s[{WS}:{WS+3}], s47 offen offset:{k*1024}")
    p("v_and_b32 v8, 31, v0")
    p("v_lshlrev_b32 v8, 1, v8")
    p("s_lshl_b32 s48, s46, 6")
    p(f"buffer_load_ushort v9, v8, s[{AUX}:{AUX+3}], s48 offen")
    p.wait('gpub')

def gemm_finish(p):
    R=32
    for rho in range(1,4):
        p(f"s_sub_u32 s47, s{SW}, {rho}")
        p("s_and_b32 s47, s47, 3")
        p("s_mul_i32 s47, s47, 24576")
        p(f"s_add_u32 s47, s47, {(rho-1)*8192}")
        p("v_add_u32 v2, s47, v1")
        for k in range(8):
            p(f"ds_read_b128 {v(R+32*(rho-1)+4*k,4)}, v2 offset:{k*1024}")
    p("v_lshlrev_b32 v9, 16, v9")
    for r in range(32):
        p(f"v_add_f32 v{GACC+r}, v{GACC+r}, v{R+r}")
        p(f"v_add_f32 v{R+32+r}, v{R+32+r}, v{R+64+r}")
        p(f"v_add_f32 v{GACC+r}, v{GACC+r}, v9")
        p(f"v_add_f32 v{GACC+r}, v{GACC+r}, v{R+32+r}")
    for d in range(16):
        p(f"v_lshlrev_b32 v10, 16, v{16+d}")
        p(f"v_and_b32 v11, 0xffff0000, v{16+d}")
        p(f"v_mul_f32 v{GACC+2*d}, v{GACC+2*d}, v10")
        p(f"v_mul_f32 v{GACC+2*d+1}, v{GACC+2*d+1}, v11")
        p(f"v_cvt_pk_bf16_f32 v{R+d}, v{GACC+2*d}, v{GACC+2*d+1}")
    p(f"s_mul_i32 s47, s46, {88*1024}")
    p(f"s_lshl_b32 s48, s{SFB}, 12")
    p("s_add_u32 s47, s47, s48")
    p(f"s_add_u32 s47, s47, {WS_H+32*1024}")
    for k in range(4):
        p(f"buffer_store_dwordx4 {v(R+4*k,4)}, v1, s[{WS}:{WS+3}], s47 offen offset:{k*1024}{SM()}")

def signal(p, tblk_sreg, slot_expr_sreg):
    p("s_waitcnt vmcnt(0)")
    p(f"v_readfirstlane_b32 s{STAG}, v14")
    p(f"s_lshl_b32 s64, s{tblk_sreg}, 7")
    p(f"s_lshl_b32 s65, s{slot_expr_sreg}, 2")
    p("s_add_u32 s64, s64, s65")
    p(f"s_add_u32 s64, s64, {WS_FL}")
    p(f"v_mov_b32 v12, s{STAG}")
    p("v_mov_b32 v13, 0")
    p("s_mov_b64 exec, 1")
    p(f"buffer_store_dword v12, v13, s[{WS}:{WS+3}], s64 offen sc1")
    p("s_mov_b64 exec, -1")

def final_phase(p):
    W0=16; H0=104; ACC=192; NK=11; RS=272
    STB3=66; SNB3=67; SH=[68,69]; SWc=[70,71]
    p.label("K2_FINAL")
    srd(p, XS3, 10, S*D*2); srd(p, OUT3, 12, S*D*2)
    p(f"s_mul_i32 s72, s{SJ}, 37")
    p("s_lshr_b32 s72, s72, 8")
    p("s_mul_i32 s73, s72, 7")
    p(f"s_sub_u32 s{SNB3}, s{SJ}, s73")
    p(f"s_lshl_b32 s73, s{SX}, 2")
    p(f"s_add_u32 s{STB3}, s73, s72")
    p(f"s_mul_i32 s73, s23, {NK*1024}")
    p(f"s_mul_i32 s72, s{SNB3}, {2*88*1024}")
    p("s_add_u32 s72, s72, s73")
    p(f"s_add_u32 s{SWc[0]}, s72, {WS_WC}")
    p(f"s_add_u32 s{SWc[1]}, s{SWc[0]}, {88*1024}")
    p(f"s_mul_i32 s72, s{STB3}, {2*88*1024}")
    p("s_add_u32 s72, s72, s73")
    p(f"s_add_u32 s{SH[0]}, s72, {WS_H}")
    p(f"s_add_u32 s{SH[1]}, s{SH[0]}, {88*1024}")
    def loads(base_regs, dst0, mod):
        for k in range(NK):
            for i in range(2):
                p(f"buffer_load_dwordx4 {v(dst0+(2*k+i)*4,4)}, v1, s[{WS}:{WS+3}], s{base_regs[i]} offen offset:{(k%4)*1024}{mod}")
            if k%4==3:
                for b in base_regs: p(f"s_add_u32 s{b}, s{b}, 4096")
    loads(SWc, W0, "")
    p("v_lshrrev_b32 v3, 3, v0")
    p(f"s_lshl_b32 s72, s{STB3}, 6")
    p(f"s_lshl_b32 s73, s23, 3")
    p("s_add_u32 s72, s72, s73")
    p("v_add_u32 v3, s72, v3")
    p(f"v_mul_u32_u24 v3, {D*2}, v3")
    p("v_and_b32 v2, 7, v0")
    p("v_lshlrev_b32 v2, 4, v2")
    p(f"s_lshl_b32 s73, s{SNB3}, 7")
    p("v_add3_u32 v2, v3, v2, s73")
    p(f"buffer_load_dwordx4 v[4:7], v2, s[{XS3}:{XS3+3}], 0 offen")
    stamp(p,'wissued')
    p("s_cmp_lg_u32 s23, 7")
    p("s_cbranch_scc1 K2_FGO")
    p(f"s_lshl_b32 s72, s{STB3}, 8")
    p(f"s_add_u32 s72, s72, {WS_FL}")
    p("v_lshlrev_b32 v3, 2, v0")
    p("s_mov_b32 s74, 0x3fffffff"); p("s_mov_b32 s75, 0x3fffffff")
    p("s_mov_b32 s76, 0")
    p.label("K2_FPOLL")
    p(f"buffer_load_dword v8, v3, s[{WS}:{WS+3}], s72 offen sc1")
    p("s_waitcnt vmcnt(0)")
    p(f"v_cmp_ne_u32 vcc, s{STAG}, v8")
    p("s_and_b64 s[78:79], vcc, s[74:75]")
    p("s_cmp_eq_u64 s[78:79], 0")
    p("s_cbranch_scc1 K2_FGO")
    p("s_add_u32 s76, s76, 1")
    p("s_cmp_lt_u32 s76, 0x40000")
    p("s_cbranch_scc1 K2_FPOLL")
    p.label("K2_FGO")
    p("s_barrier")
    stamp(p,'flags')
    loads(SH, H0, " sc1")
    for k in range(NK):
        for ti in range(2):
            for ni in range(2):
                acc = ACC + (ti*2+ni)*16
                c = "0" if k==0 else v(acc,16)
                p(f"v_mfma_f32_32x32x16_bf16 {v(acc,16)}, {v(W0+(2*k+ni)*4,4)}, {v(H0+(2*k+ti)*4,4)}, {c}")
    stamp(p,'fmfma')
    p("v_and_b32 v8, 31, v0")
    p(f"v_mul_u32_u24 v8, {RS}, v8")
    p("v_lshrrev_b32 v9, 5, v0")
    p("v_lshlrev_b32 v9, 4, v9")
    p(f"s_mul_i32 s72, s23, {64*RS}")
    p("v_add3_u32 v8, v8, v9, s72")
    for ti in range(2):
        for ni in range(2):
            acc = ACC + (ti*2+ni)*16
            for q in range(4):
                p(f"ds_write_b128 v8, {v(acc+4*q,4)} offset:{ti*32*RS+ni*128+q*32}", tag='pw')
    p.wait('pw')
    p("s_barrier")
    stamp(p,'fbar')
    p("v_lshrrev_b32 v8, 3, v0")
    p(f"s_lshl_b32 s72, s23, 3")
    p("v_add_u32 v8, s72, v8")
    p(f"v_mul_u32_u24 v8, {RS}, v8")
    p("v_and_b32 v9, 7, v0")
    p("v_lshlrev_b32 v9, 5, v9")
    p("v_add_u32 v8, v8, v9")
    p(f"v_add_u32 v9, {4*64*RS}, v8")
    R=16
    for w in range(8):
        for hh in range(2):
            a=8 if w<4 else 9
            p(f"ds_read_b128 {v(R+(w*2+hh)*4,4)}, v{a} offset:{(w%4)*64*RS+hh*16}")
    for st_ in (1,2,4):
        for w in range(0,8,2*st_):
            for e in range(8):
                p(f"v_add_f32 v{R+8*w+e}, v{R+8*w+e}, v{R+8*(w+st_)+e}")
    for d in range(4):
        p(f"v_lshlrev_b32 v10, 16, v{4+d}")
        p(f"v_and_b32 v11, 0xffff0000, v{4+d}")
        p(f"v_add_f32 v{R+2*d}, v{R+2*d}, v10")
        p(f"v_add_f32 v{R+2*d+1}, v{R+2*d+1}, v11")
    for d in range(4):
        p(f"v_cvt_pk_bf16_f32 v{R+8+d}, v{R+2*d}, v{R+2*d+1}")
    p(f"buffer_store_dwordx4 {v(R+8,4)}, v2, s[{OUT3}:{OUT3+3}], 0 offen")
    stamp(p,'fend')

def prep(p):
    srd(p, AUX, 10, D*D*2)
    srd(p, AUX2, 12, FH*D*2)
    p(f"s_lshl_b32 s40, s{SX}, 2")
    p(f"s_add_u32 s40, s40, s{SJ}")
    p("s_sub_u32 s40, s40, 28")
    p("s_lshl_b32 s40, s40, 2")
    p(f"s_add_u32 s40, s40, s{SW}")
    p(f"s_mul_i32 s44, s{SW}, 24576")
    p("v_lshrrev_b32 v2, 2, v0")
    p(f"v_mul_u32_u24 v3, {D*2}, v2")
    p("v_and_b32 v4, 3, v0")
    p("v_lshl_add_u32 v3, v4, 4, v3")
    p("v_cmp_gt_u32 vcc, 12, v2")
    p("v_mov_b32 v5, 0x7ff00000")
    p("v_cndmask_b32 v4, v5, v3, vcc")
    p("v_lshrrev_b32 v5, 4, v0")
    p("v_and_b32 v6, 1, v5")
    p("v_lshrrev_b32 v5, 1, v5")
    p("v_lshrrev_b32 v7, 2, v0")
    p("v_and_b32 v7, 3, v7")
    p("v_lshl_add_u32 v5, v5, 2, v7")
    p("v_lshlrev_b32 v5, 6, v5")
    p("v_lshl_add_u32 v5, v6, 5, v5")
    p("v_and_b32 v6, 3, v0")
    p("v_lshl_add_u32 v5, v6, 3, v5")
    p("v_add_u32 v5, s44, v5")
    NI=10
    for i in range(NI):
        f=50+i
        p(f"s_add_u32 s{f}, s40, {128*i}")
        p(f"s_add_u32 m0, s44, {i*1024}")
        p(f"s_cmp_ge_u32 s{f}, 1232")
        p(f"s_cbranch_scc1 P_SKIP{i}")
        p(f"s_mul_i32 s41, s{f}, 745")
        p("s_lshr_b32 s41, s41, 16")
        p("s_mul_i32 s42, s41, 88")
        p(f"s_sub_u32 s42, s{f}, s42")
        p("s_lshl_b32 s41, s41, 6")
        p("s_cmp_ge_u32 s42, 32")
        p(f"s_cbranch_scc1 P_OUT{i}")
        p("s_lshr_b32 s43, s42, 1")
        p("s_mul_i32 s43, s43, 28")
        p("s_and_b32 s45, s42, 1")
        p("s_lshl_b32 s46, s45, 4")
        p("s_add_u32 s43, s43, s46")
        p(f"s_mul_i32 s43, s43, {D*2}")
        p("s_add_u32 s43, s43, s41")
        p("s_cmp_eq_u32 s45, 1")
        p(f"s_cbranch_scc1 P_PAD{i}")
        p(f"buffer_load_dwordx4 v3, s[{AUX}:{AUX+3}], s43 offen lds", tag='pd')
        p(f"s_branch P_SKIP{i}")
        p.label(f"P_PAD{i}")
        p(f"buffer_load_dwordx4 v4, s[{AUX}:{AUX+3}], s43 offen lds", tag='pd')
        p(f"s_branch P_SKIP{i}")
        p.label(f"P_OUT{i}")
        p("s_sub_u32 s43, s42, 32")
        p("s_lshl_b32 s43, s43, 4")
        p(f"s_mul_i32 s43, s43, {D*2}")
        p("s_add_u32 s43, s43, s41")
        p(f"buffer_load_dwordx4 v3, s[{AUX2}:{AUX2+3}], s43 offen lds", tag='pd')
        p.label(f"P_SKIP{i}")
    p("s_waitcnt vmcnt(0)")
    for i in range(NI):
        p(f"ds_read_b64_tr_b16 {v(16+4*i,2)}, v5 offset:{i*1024}")
        p(f"ds_read_b64_tr_b16 {v(16+4*i+2,2)}, v5 offset:{i*1024+512}")
    p("s_waitcnt lgkmcnt(0)")
    for i in range(NI):
        f=50+i
        p(f"s_cmp_ge_u32 s{f}, 1232")
        p(f"s_cbranch_scc1 P_SK2{i}")
        p(f"s_lshl_b32 s41, s{f}, 10")
        p(f"s_add_u32 s41, s41, {WS_WC}")
        p(f"buffer_store_dwordx4 {v(16+4*i,4)}, v1, s[{WS}:{WS+3}], s41 offen{SM()}")
        p.label(f"P_SK2{i}")

def gen(force_fallback=False):
    texts=[]
    p=Prog(); prologue(p)
    n0=PR.n
    p("s_mov_b32 s48, 0"); p("s_mov_b32 s49, -1")
    if ONLY=='g': p("s_branch K2_END")
    attention(p, force_fallback); attention_publish(p)
    stamp(p,'published')
    role_sync(p,0,"A_SYNC")
    stamp(p,'barrier')
    attention_finish(p)
    stamp(p,'finished')
    p(f"s_lshl_b32 s62, s{SQB}, 2")
    p(f"s_add_u32 s62, s62, s{SW}")
    signal(p, 62, SHEAD)
    stamp(p,'end')
    p(f"s_cmp_lt_u32 s{SJ}, 28")
    p("s_cbranch_scc1 K2_AWAIT" if DELAYW else "s_cbranch_scc1 K2_FINAL")
    dump_stamps(p,8)
    p("s_branch K2_END")
    if DELAYW:
        p.label("K2_AWAIT")
        p(f"v_mov_b32 v12, {LDS_CNT+8}")
        p.label("K2_AWAITL")
        p("ds_read_b32 v13, v12")
        p("s_waitcnt lgkmcnt(0)")
        p("v_readfirstlane_b32 s61, v13")
        p("s_cmp_lt_u32 s61, 4")
        p("s_cbranch_scc1 K2_AWAITL")
        p("s_branch K2_FINAL")
    nA=PR.n
    texts.append(p.finalize())
    namesA=list(PR.names); PR.n=n0; PR.names=PR.names[:n0]
    p=Prog(); p.label("K2_ROLEB")
    p(f"s_cmp_ge_u32 s{SJ}, 28")
    p("s_cbranch_scc1 K2_WPF" if WPF else "s_cbranch_scc1 K2_END")
    if ONLY=='a': p("s_branch K2_END")
    gemm(p); stamp(p,'loopend'); gemm_publish(p)
    stamp(p,'published')
    role_sync(p,1,"B_SYNC")
    stamp(p,'barrier')
    gemm_finish(p)
    if DELAYW:
        p(f"v_mov_b32 v12, {LDS_CNT+8}")
        p("v_mov_b32 v13, 1")
        p("s_mov_b64 exec, 1")
        p("ds_add_u32 v12, v13")
        p("s_mov_b64 exec, -1")
    stamp(p,'finished')
    p(f"s_add_u32 s62, s{SFB}, 16")
    signal(p, 46, 62)
    stamp(p,'end')
    p("s_branch K2_FINAL")
    namesB=list(PR.names)
    texts.append(p.finalize())
    if WPF:
        p=Prog(); p.label("K2_WPF")
        p(f"v_mov_b32 v12, {LDS_CNT}")
        p("s_mov_b32 s62, 0")
        p.label("K2_WPFW")
        p("ds_read_b32 v13, v12")
        p("s_waitcnt lgkmcnt(0)")
        p("v_readfirstlane_b32 s61, v13")
        p("s_add_u32 s62, s62, 1")
        p("s_cmp_gt_u32 s62, 0x100000")
        p("s_cbranch_scc1 K2_END")
        p("s_cmp_lt_u32 s61, 1")
        p("s_cbranch_scc1 K2_WPFW")
        p(f"s_sub_u32 s61, s{SJ}, 28")
        p("s_lshl_b32 s61, s61, 2")
        p(f"s_add_u32 s61, s61, s{SW}")
        p(f"s_mul_i32 s61, s61, {616*128}")
        p(f"s_add_u32 s61, s61, {WS_WC}")
        p("v_lshlrev_b32 v12, 7, v0")
        for i in range(10):
            p(f"buffer_load_dword v13, v12, s[{WS}:{WS+3}], s61 offen")
            if i<9: p("s_add_u32 s61, s61, 8192")
        p("s_branch K2_END")
        texts.append(p.finalize())
    p=Prog()
    PR.n=24; PR.names=[]
    final_phase(p)
    dump_stamps(p,8)
    p.label("K2_END")
    p("s_endpgm")
    if PR.on:
        pad=lambda L: L+['-']*(24-len(L))
        open('k2_stamps.txt','w').write(" ".join(pad(namesA)+PR.names)+"\n"+" ".join(pad(namesB)+PR.names))
    texts.append(p.finalize())
    return "".join(texts)

def kernel(**opt):
    global PROF, PR, PRION, SKIPDMA, PRIOPAT, STARTPRIO, ONLY, WPF
    WPF=int(opt.get('wpf',1))
    global DELAYW
    DELAYW=int(opt.get('dw',1))
    global ROT, KINT
    ROT=int(opt.get('rot',2)); KINT=int(opt.get('kint',1))
    ONLY=opt.get('only','')
    STARTPRIO=int(opt.get('sp',0))
    PRIOPAT=opt.get('pp','')
    SKIPDMA=int(opt.get('skipdma',0))
    PRION=int(opt.get('prion',0))
    PROF=bool(int(opt.get('prof',0)))
    PR=Prof(PROF,WS,23,WS_ST+(1<<19),vr=15)
    return dict(name="k2_kernel", text=gen(force_fallback=bool(int(opt.get('ff',0)))), grid=256, block=512, lds=LDS_K2, vgpr=256, sgpr=102, accum=256)
```

```python
from asmlib import *
from layout import *
import layout
def SM(): return layout.STMOD

def srd(p, dst, src, nbytes):
    p(f"s_mov_b32 s{dst}, s{src}")
    p(f"s_mov_b32 s{dst+1}, s{src+1}")
    p(f"s_mov_b32 s{dst+2}, {nbytes}")
    p(f"s_mov_b32 s{dst+3}, 0x00020000")

from profutil import Prof
PR=Prof(False,24,16,0)
def gen_k3(prof=False, stmod=None):
    global PR
    PR=Prof(prof,24,16,WS_ST+(3<<18),vr=77)
    p = Prog()
    DEPTH = 11
    NK = 22
    SW=16; STB=17; SNB=18; SH0=20; SH1=21; SW0=22; SW1=23
    p("s_cmp_ge_u32 s2, 224")
    p("s_cbranch_scc1 K3_END")
    p(f"s_load_dwordx2 s[4:5], s[0:1], {KA_X}")
    p(f"s_load_dwordx2 s[6:7], s[0:1], {KA_OUT}")
    p(f"s_load_dwordx2 s[8:9], s[0:1], {KA_WS}")
    p("v_lshrrev_b32 v1, 6, v0")
    p("v_and_b32 v0, 63, v0")
    p(f"v_readfirstlane_b32 s{SW}, v1")
    p("s_and_b32 s12, s2, 7")
    p("s_lshr_b32 s13, s2, 3")
    p("s_mul_i32 s14, s13, 37")
    p("s_lshr_b32 s14, s14, 8")
    p("s_mul_i32 s15, s14, 7")
    p(f"s_sub_u32 s{SNB}, s13, s15")
    p("s_lshl_b32 s12, s12, 2")
    p(f"s_add_u32 s{STB}, s12, s14")
    p("s_waitcnt lgkmcnt(0)")
    srd(p, 24, 8, WS_SIZE)
    srd(p, 28, 4, S*D*2)
    srd(p, 32, 6, S*D*2)
    PR.real(p,62); PR.stamp(p,'start')
    p(f"s_mul_i32 s12, s{STB}, {2*88*1024}")
    p(f"s_mul_i32 s13, s{SW}, {NK*1024}")
    p(f"s_add_u32 s12, s12, s13")
    p(f"s_add_u32 s{SH0}, s12, {WS_H}")
    p(f"s_add_u32 s{SH1}, s{SH0}, {88*1024}")
    p(f"s_mul_i32 s12, s{SNB}, {2*88*1024}")
    p(f"s_add_u32 s12, s12, s13")
    p(f"s_add_u32 s{SW0}, s12, {WS_WC}")
    p(f"s_add_u32 s{SW1}, s{SW0}, {88*1024}")
    VOFF=1
    p(f"v_lshlrev_b32 v{VOFF}, 4, v0")
    VX=2; XR=4
    p("v_lshrrev_b32 v3, 3, v0")
    p(f"s_lshl_b32 s12, s{STB}, 6")
    p(f"s_lshl_b32 s13, s{SW}, 4")
    p("s_add_u32 s12, s12, s13")
    p("v_add_u32 v3, s12, v3")
    p(f"v_mul_u32_u24 v3, {D*2}, v3")
    p("v_and_b32 v2, 7, v0")
    p("v_lshlrev_b32 v2, 4, v2")
    p(f"s_lshl_b32 s13, s{SNB}, 7")
    p(f"v_add3_u32 v{VX}, v3, v2, s13")
    FR=80
    ACC=12
    def fr(slot, i): return FR + (slot*4+i)*4
    def issue(k):
        slot = k % DEPTH
        bases=[SH0,SH1,SW0,SW1]
        for i in range(4):
            p(f"buffer_load_dwordx4 {v(fr(slot,i),4)}, v{VOFF}, s[24:27], s{bases[i]} offen offset:{(k%4)*1024}")
        if k%4==3:
            for b in bases: p(f"s_add_u32 s{b}, s{b}, 4096")
    for k in range(DEPTH): issue(k)
    p(f"buffer_load_dwordx4 {v(XR,4)}, v{VX}, s[28:31], 0 offen")
    p(f"v_add_u32 v3, {8*D*2}, v{VX}")
    p(f"buffer_load_dwordx4 {v(XR+4,4)}, v3, s[28:31], 0 offen")
    PR.stamp(p,'issued')
    for k in range(NK):
        if k in (1,11): PR.stamp(p,f'k{k}')
        slot = k % DEPTH
        for ti in range(2):
            for ni in range(2):
                acc = ACC + (ti*2+ni)*16
                c = "0" if k==0 else v(acc,16)
                p(f"v_mfma_f32_32x32x16_bf16 {v(acc,16)}, {v(fr(slot,2+ni),4)}, {v(fr(slot,ti),4)}, {c}")
        if k+DEPTH < NK: issue(k+DEPTH)
    PR.stamp(p,'mfmadone')
    RS=272
    p("v_and_b32 v78, 31, v0")
    p(f"v_mul_u32_u24 v78, {RS}, v78")
    p("v_lshrrev_b32 v79, 5, v0")
    p("v_lshlrev_b32 v79, 4, v79")
    p(f"s_mul_i32 s12, s{SW}, {64*RS}")
    p("v_add3_u32 v1, v78, v79, s12")
    for ti in range(2):
        for ni in range(2):
            acc = ACC + (ti*2+ni)*16
            for q in range(4):
                p(f"ds_write_b128 v1, {v(acc+4*q,4)} offset:{ti*32*RS+ni*128+q*32}", tag='pw')
    p.wait('pw')
    PR.stamp(p,'written')
    p("s_barrier")
    PR.stamp(p,'barrier')
    p("v_lshrrev_b32 v78, 3, v0")
    p(f"s_lshl_b32 s12, s{SW}, 4")
    p("v_add_u32 v78, s12, v78")
    p(f"v_mul_u32_u24 v78, {RS}, v78")
    p("v_and_b32 v79, 7, v0")
    p("v_lshlrev_b32 v79, 5, v79")
    p("v_add_u32 v1, v78, v79")
    R=FR
    for i in range(2):
        for w in range(4):
            for hh in range(2):
                p(f"ds_read_b128 {v(R+((i*4+w)*2+hh)*4,4)}, v1 offset:{w*64*RS+i*8*RS+hh*16}")
    for i in range(2):
        b=R+i*32
        for e in range(8):
            p(f"v_add_f32 v{b+e}, v{b+e}, v{b+8+e}")
            p(f"v_add_f32 v{b+16+e}, v{b+16+e}, v{b+24+e}")
        for e in range(8):
            p(f"v_add_f32 v{b+e}, v{b+e}, v{b+16+e}")
        for d in range(4):
            p(f"v_lshlrev_b32 v78, 16, v{XR+4*i+d}")
            p(f"v_and_b32 v79, 0xffff0000, v{XR+4*i+d}")
            p(f"v_add_f32 v{b+2*d}, v{b+2*d}, v78")
            p(f"v_add_f32 v{b+2*d+1}, v{b+2*d+1}, v79")
        for d in range(4):
            p(f"v_cvt_pk_bf16_f32 v{b+8+d}, v{b+2*d}, v{b+2*d+1}")
        if i==0: p(f"buffer_store_dwordx4 {v(b+8,4)}, v{VX}, s[32:35], 0 offen{SM()}")
        else: p(f"buffer_store_dwordx4 {v(b+8,4)}, v3, s[32:35], 0 offen{SM()}")
    PR.stamp(p,'stored')
    if prof: p("s_waitcnt vmcnt(0)")
    PR.stamp(p,'end')
    PR.dump(p)
    if prof: open('k3_stamps.txt','w').write(" ".join(PR.names))
    p.label("K3_END")
    p("s_endpgm")
    return p

if __name__=="__main__":
    print(gen_k3().finalize())
```

```python
import sys
from layout import *
import importlib

HEADER = open("cdna_kernels/%s.s.ref" % NAME).read().split("; Override launch geometry")[0]

def desc(name, vgpr, sgpr, accum):
    return f""".amdhsa_kernel {name}
  .amdhsa_next_free_vgpr {vgpr}
  .amdhsa_next_free_sgpr {sgpr}
  .amdhsa_accum_offset {accum}
  .amdhsa_group_segment_fixed_size 0
  .amdhsa_kernarg_size 88
  .amdhsa_user_sgpr_count 2
  .amdhsa_user_sgpr_kernarg_segment_ptr 1
  .amdhsa_system_sgpr_workgroup_id_x 1
  .amdhsa_float_denorm_mode_32 3
.end_amdhsa_kernel
"""

def build(kernels):
    out = HEADER
    for k in kernels:
        out += f"; @launch kernel={k['name']} grid=({k['grid']},1,1) block=({k['block']},1,1) lds={k['lds']}\n"
    out += '.amdgcn_target "amdgcn-amd-amdhsa--gfx950"\n.text\n'
    for k in kernels:
        out += f".globl {k['name']}\n.p2align 8\n.type {k['name']},@function\n{k['name']}:\n"
        out += k['text']
    out += 'CODE_END:\n    s_endpgm\n'
    out += '.section .rodata,"a"\n'
    for k in kernels:
        out += ".p2align 6\n" + desc(k['name'], k['vgpr'], k['sgpr'], k['accum'])
    return out

def all_kernels(which="123", **opt):
    import layout
    layout.STMOD={'0':'','1':' sc1','2':' sc0 sc1','3':' nt'}[opt.get('st','1')]
    ks = []
    if "1" in which:
        import k1; importlib.reload(k1)
        ks.append(k1.kernel(**opt))
    if "2" in which:
        import k2; importlib.reload(k2)
        ks.append(k2.kernel(**opt))
    if "3" in which:
        import k3; importlib.reload(k3)
        ks.append(dict(name="k3_kernel", text=k3.gen_k3(prof=bool(int(opt.get('prof',0)))).finalize(), grid=224, block=256, lds=4*64*272, vgpr=256, sgpr=96, accum=256))
    return ks

if __name__ == "__main__":
    which = sys.argv[1] if len(sys.argv) > 1 else "123"
    path = sys.argv[2] if len(sys.argv) > 2 else "cdna_kernels/%s.s" % NAME
    opt = dict(a.split("=") for a in sys.argv[3:])
    text = build(all_kernels(which, **opt))
    open(path, "w").write(text)
    print("wrote", path, len(text), "bytes")
```

```python
from asmlib import *
from layout import *
import layout
def SM(): return layout.STMOD
from k3 import srd

L_X   = 0
L_P1  = 112*1024
L_P2  = 16*1024
L_P3  = 72*1024
L_SM  = 156*1024
L_CS  = L_SM
L_XS  = L_SM + 1024
L_ZS  = L_SM + 3072
L_T   = 0
LDS_K1 = 160*1024
def p1_addr(kc): return L_P1 + kc*8192 if kc < 5 else (kc-5)*8192

SW8=16; SW=17; SG=18; SRB=19; SCB=20; STAG=21; SSB=22
WS=24; XS=28; WIN=32; WQ=36; DBG=40
SP1=44; SP2=45; SP3=46; SXB=47; ST=48; ST2=49; SEP=50
VL16=1; VXD=(2,3); VWD=4; VXR=(5,6,7,8); VWR=9; VCSR=10; VSR=11; VP3D=(12,13,14); VP3R=15
MU=16; RS_=17; VT=18
CS=48; WF=64; ZH=80; ACC=(96,112); XF=128
VH=240
ONES=244; CSW=249; CSR=247; CSD=124; NMF=42; EPV=39

from profutil import Prof
PR=Prof(False,WS,SW8,0)
def stamp(p,name): PR.stamp(p,str(name))

def prologue(p):
    p("s_cmp_ge_u32 s2, 256")
    p("s_cbranch_scc1 K1_END")
    p(f"s_load_dwordx2 s[4:5], s[0:1], {KA_WS}")
    p(f"s_load_dwordx2 s[6:7], s[0:1], {KA_X}")
    p(f"s_load_dwordx2 s[8:9], s[0:1], {KA_WIN}")
    p(f"s_load_dwordx2 s[10:11], s[0:1], {KA_WQKV}")
    p(f"s_load_dwordx2 s[12:13], s[0:1], {KA_DBG}")
    p(f"s_load_dwordx2 s[92:93], s[0:1], {KA_WSP}")
    p("v_lshrrev_b32 v1, 6, v0")
    p("v_and_b32 v0, 63, v0")
    p(f"v_readfirstlane_b32 s{SW8}, v1")
    p("s_and_b32 s14, s2, 7")
    p("s_lshr_b32 s15, s2, 3")
    p("s_and_b32 s51, s14, 1")
    p("s_lshl_b32 s51, s51, 3")
    p("s_and_b32 s52, s15, 7")
    p(f"s_add_u32 s{SRB}, s51, s52")
    p("s_lshr_b32 s51, s14, 1")
    p("s_lshl_b32 s51, s51, 2")
    p("s_lshr_b32 s52, s15, 3")
    p(f"s_add_u32 s{SCB}, s51, s52")
    p(f"s_and_b32 s{SW}, s{SW8}, 3")
    p(f"s_lshr_b32 s{SG}, s{SW8}, 2")
    p(f"s_lshl_b32 s{SSB}, s{SRB}, 2")
    p(f"s_add_u32 s{SSB}, s{SSB}, s{SW}")
    p(f"v_lshlrev_b32 v{VL16}, 4, v0")
    p("s_waitcnt lgkmcnt(0)")
    srd(p, WS, 4, WS_SIZE); srd(p, XS, 6, S*D*2); srd(p, WIN, 8, D*F*2); srd(p, WQ, 10, D*3*D*2); srd(p, DBG, 12, 256)
    PR.real(p,62)
    stamp(p,'start')
    p("v_lshrrev_b32 v18, 3, v0")
    p(f"v_mul_u32_u24 v19, {D*2}, v18")
    p("v_lshrrev_b32 v20, 4, v0")
    p("v_and_b32 v21, 7, v0")
    p("v_xor_b32 v22, v21, v20")
    p(f"v_lshl_add_u32 v{VXD[0]}, v22, 4, v19")
    p("v_xor_b32 v22, 4, v22")
    p(f"v_lshl_add_u32 v{VXD[1]}, v22, 4, v19")
    p(f"v_mul_u32_u24 v19, {F*2}, v18")
    p("v_and_b32 v20, 1, v20")
    p("v_lshlrev_b32 v20, 2, v20")
    p("v_xor_b32 v22, v21, v20")
    p(f"v_lshl_add_u32 v{VWD}, v22, 4, v19")
    p(f"s_lshl_b32 s51, s{SRB}, 7")
    p(f"s_lshl_b32 s52, s{SW}, 5")
    p("s_add_u32 s51, s51, s52")
    p(f"s_mul_i32 s{SXB}, s51, {D*2}")
    p(f"s_lshl_b32 s51, s{SRB}, 7")
    p(f"s_lshl_b32 s52, s{SW8}, 4")
    p("s_add_u32 s51, s51, s52")
    p(f"s_mul_i32 s94, s51, {D*2}")
    p(f"s_lshl_b32 s51, s{SCB}, 7")
    p(f"s_add_u32 s52, s51, {FH*2}")
    p(f"s_sub_u32 s53, s51, 256")
    p(f"s_cmp_lt_u32 s{SCB}, 14")
    p(f"s_cselect_b32 s{SP1}, s52, s53")
    p(f"s_lshl_b32 s95, s{SW8}, 3")
    p(f"s_mul_i32 s95, s95, {F*2}")
    p(f"s_add_u32 s95, s95, s{SP1}")
    p(f"s_sub_u32 s54, s{SCB}, 2")
    p(f"s_cmp_lt_u32 s54, 12")
    p(f"s_cselect_b32 s{SP2}, s53, 0")
    p(f"s_lshl_b32 s51, s{SW}, 4")
    p(f"s_mul_i32 s51, s51, {F*2}")
    p(f"s_add_u32 s{SP1}, s{SP1}, s51")
    p(f"s_add_u32 s{SP2}, s{SP2}, s51")

def dma_x(p, kc, which=range(4)):
    for i in which:
        p(f"s_lshl_b32 m0, s{SW}, 12")
        p(f"s_add_u32 m0, m0, {L_X+kc*16384+i*1024}")
        p(f"s_add_u32 s{ST}, s{SXB}, {i*8*D*2+kc*128}")
        p(f"buffer_load_dwordx4 v{VXD[i&1]}, s[{XS}:{XS+3}], s{ST} offen lds", tag=f'x{kc}')
def dma_pair(p, sbase, kc, ldsaddr, tag, which=range(2)):
    for i in which:
        p(f"s_lshl_b32 m0, s{SW}, 11")
        p(f"s_add_u32 m0, m0, {ldsaddr+i*1024}")
        p(f"s_add_u32 s{ST}, s{sbase}, {kc*64*F*2+i*8*F*2}")
        p(f"buffer_load_dwordx4 v{VWD}, s[{WIN}:{WIN+3}], s{ST} offen lds", tag=tag)

def dma_init(p, kc):
    for i in range(2):
        p(f"s_lshl_b32 m0, s{SW8}, 11")
        p(f"s_add_u32 m0, m0, {L_X+kc*16384+i*1024}")
        p(f"s_add_u32 s{ST}, s94, {i*8*D*2+kc*128}")
        p(f"buffer_load_dwordx4 v{VXD[i]}, s[{XS}:{XS+3}], s{ST} offen lds", tag=f'x{kc}')
    p(f"s_lshl_b32 m0, s{SW8}, 10")
    p(f"s_add_u32 m0, m0, {p1_addr(kc)}")
    p(f"s_add_u32 s{ST}, s95, {kc*64*F*2}")
    p(f"buffer_load_dwordx4 v{VWD}, s[{WIN}:{WIN+3}], s{ST} offen lds", tag=f'w{kc}')

def setup_reads(p):
    p("v_and_b32 v18, 31, v0")
    p("v_lshrrev_b32 v19, 5, v0")
    p("v_lshrrev_b32 v20, 1, v18")
    p("v_and_b32 v20, 7, v20")
    p("v_xor_b32 v20, v20, v19")
    p("v_lshlrev_b32 v18, 7, v18")
    p(f"s_lshl_b32 s51, s{SW}, 12")
    p(f"v_add_u32 v18, s51, v18")
    for u in range(4):
        p(f"v_xor_b32 v21, {2*u}, v20")
        p(f"v_lshl_add_u32 v{VXR[u]}, v21, 4, v18")
    p("v_lshrrev_b32 v18, 4, v0")
    p("v_and_b32 v19, 1, v18")
    p("v_lshrrev_b32 v18, 1, v18")
    p("v_lshrrev_b32 v20, 2, v0")
    p("v_and_b32 v20, 3, v20")
    p("v_and_b32 v21, 3, v0")
    p("v_lshl_add_u32 v22, v18, 3, v20")
    p("v_lshlrev_b32 v23, 7, v22")
    p("v_lshrrev_b32 v24, 1, v21")
    p("v_lshl_add_u32 v24, v19, 1, v24")
    p(f"s_lshl_b32 s51, s{SG}, 2")
    p("v_add_u32 v24, s51, v24")
    p("v_lshrrev_b32 v25, 1, v20")
    p("v_lshlrev_b32 v25, 2, v25")
    p("v_xor_b32 v24, v24, v25")
    p("v_lshl_add_u32 v23, v24, 4, v23")
    p("v_and_b32 v24, 1, v21")
    p(f"v_lshl_add_u32 v{VWR}, v24, 3, v23")
    p(f"s_lshl_b32 s51, s{SW}, 11")
    p(f"v_add_u32 v{VCSR}, s51, v{VWR}")
    p(f"v_add_u32 v{VH+12}, {L_P1}, v{VWR}")
    p(f"v_add_u32 v{VH+13}, {L_P1}, v{VCSR}")
    for r in range(3):
        p(f"v_add_u32 v23, {64*r}, v0")
        p(f"v_mul_u32_u24 v24, 43691, v23")
        p(f"v_lshrrev_b32 v24, 19, v24")
        p(f"v_mul_u32_u24 v25, 12, v24")
        p(f"v_sub_u32 v25, v23, v25")
        p(f"v_mul_u32_u24 v24, {3*D*2}, v24")
        p(f"v_lshl_add_u32 v{VP3D[r]}, v25, 4, v24")
    p("v_mul_u32_u24 v23, 192, v22")
    p("v_lshl_add_u32 v23, v19, 5, v23")
    p(f"v_lshl_add_u32 v{VP3R}, v21, 3, v23")
    p(f"v_add_u32 v{VP3R}, {L_P3}, v{VP3R}")
    p("v_and_b32 v23, 31, v0")
    p("v_mul_u32_u24 v23, 72, v23")
    p("v_lshrrev_b32 v24, 5, v0")
    p("v_lshl_add_u32 v23, v24, 3, v23")
    p(f"s_mul_i32 s51, s{SW8}, 2304")
    p(f"s_add_u32 s51, s51, {L_T}")
    p(f"v_add_u32 v{VH+1}, s51, v23")
    p("v_lshl_add_u32 v23, v18, 2, v20")
    p("v_mul_u32_u24 v23, 72, v23")
    p("v_lshl_add_u32 v23, v19, 5, v23")
    p("v_lshl_add_u32 v23, v21, 3, v23")
    p(f"v_add_u32 v{VH+2}, s51, v23")
    p("v_mul_u32_u24 v23, 72, v22")
    p("v_lshl_add_u32 v23, v19, 5, v23")
    p("v_lshl_add_u32 v23, v21, 3, v23")
    p(f"v_add_u32 v{VH+3}, s51, v23")
    p("v_and_b32 v23, 31, v0")
    p("v_lshlrev_b32 v23, 2, v23")
    p(f"s_lshl_b32 s51, s{SG}, 9")
    p(f"s_add_u32 s51, s51, {L_CS}")
    p(f"v_add_u32 v23, s51, v23")
    p(f"s_lshl_b32 s52, s{SW}, 7")
    p(f"v_add_u32 v{CSW}, s52, v23")
    p("v_lshrrev_b32 v24, 5, v0")
    p(f"v_lshl_add_u32 v{CSR}, v24, 8, v23")
    p(f"v_mov_b32 v{ONES}, 0x3f803f80")
    p(f"v_mov_b32 v{ONES+1}, 0x3f803f80")
    p("v_and_b32 v23, 31, v0")
    p(f"s_lshl_b32 s51, s{SW}, 5")
    p("v_add_u32 v23, s51, v23")
    p(f"v_lshlrev_b32 v{VH+6}, 3, v23")

def cs_zero(p):
    for r in range(4): p(f"v_mov_b32 v{CSD+r}, 0")
def cs_step(p, fr):
    p(f"v_mfma_f32_4x4x4_16b_bf16 {v(CSD,4)}, {v(ONES,2)}, {v(fr,2)}, {v(CSD,4)}")
    p(f"v_mfma_f32_4x4x4_16b_bf16 {v(CSD,4)}, {v(ONES,2)}, {v(fr+2,2)}, {v(CSD,4)}")
def cs_flush(p):
    p(f"v_mov_b32 v46, v{CSD}")
    p(f"v_mov_b32 v33, v{CSD}")
    p(f"v_permlane32_swap_b32 v46, v33")
    p(f"v_add_f32 v46, v46, v33")
    p(f"ds_write_b32 v{CSW}, v46", tag='cs')
def meanfix(p, acc):
    F=28
    p(f"ds_read_b32 v26, v{CSR}")
    p(f"ds_read_b32 v27, v{CSR} offset:128")
    for k in range(2):
        a=26+k; d=F+2*k
        p(f"v_and_b32 v32, 0xffff0000, v{a}")
        p(f"v_sub_f32 v33, v{a}, v32")
        p(f"v_lshrrev_b32 v{d+1}, 16, v32")
        p(f"v_and_or_b32 v{d}, v33, s60, v{d+1}")
    p(f"v_mfma_f32_32x32x16_bf16 {v(acc,16)}, {v(F,4)}, {v(NMF,4)}, {v(acc,16)}")

def x_reads(kc):
    L=[]
    if kc==4: L+=[f"v_add_u32 v{r}, 0x10000, v{r}" for r in list(VXR)]
    xo=(kc*16384)&0xffff
    for u in range(4): L.append(f"ds_read_b128 {v(XF+4*(4*kc+u),4)}, v{VXR[u]} offset:{xo}")
    return L

def p0_compute(p):
    for r in range(40,44): p(f"v_mov_b32 v{r}, 0")
    cs_zero(p)
    CF=(28,120)
    def wreads(kc):
        if kc<5: wa,ca,wb=VH+12,VH+13,kc*8192
        else: wa,ca,wb=VWR,VCSR,(kc-5)*8192
        W=48+16*(kc&1); L=[]
        for u in range(4):
            L.append([f"ds_read_b64_tr_b16 {v(W+4*u,2)}, v{wa} offset:{wb+u*2048}",
                      f"ds_read_b64_tr_b16 {v(W+4*u+2,2)}, v{wa} offset:{wb+u*2048+512}"])
        cf=CF[kc&1]
        L.append([f"ds_read_b64_tr_b16 {v(cf,2)}, v{ca} offset:{wb}", f"ds_read_b64_tr_b16 {v(cf+2,2)}, v{ca} offset:{wb+512}"])
        return L
    for kc in range(8):
        if kc<7:
            if kc<3: p.wait(f'x{kc}', f'w{kc}')
            p("s_barrier")
            if kc in (0,6): stamp(p,f'c{kc}bar')
        xr = x_reads(kc) if kc<7 else []
        wr = wreads(kc) if kc<7 else []
        if kc==0:
            for x in xr: p(x)
            for gr in wr:
                for x in gr: p(x)
        else:
            c=kc-1; W=48+16*(c&1)
            sf=XF+16*c
            for u in range(4):
                cc = "0" if (c==0 and u==0) else v(ACC[0],16)
                p(f"v_mfma_f32_32x32x16_bf16 {v(ACC[0],16)}, {v(W+4*u,4)}, {v(XF+4*(4*c+u),4)}, {cc}")
                if u==0:
                    for x in xr: p(x)
                elif kc<7:
                    for gr in wr[[0,0,2,4][u]:[0,2,4,5][u]]:
                        for x in gr: p(x)
            cs_step(p, CF[c&1])
            for d in range(16):
                p(f"v_dot2c_f32_bf16 v{40+(d&1)}, v{sf+d}, v{ONES}")
                p(f"v_dot2c_f32_bf16 v{42+(d&1)}, v{sf+d}, v{sf+d}")
        if kc<7: p("s_waitcnt lgkmcnt(0)")
    cs_flush(p)
    p("v_add_f32 v40, v40, v41")
    p("v_add_f32 v41, v42, v43")
    p("v_mov_b32 v42, v40"); p("v_mov_b32 v43, v41")
    p("v_permlane32_swap_b32 v42, v40")
    p("v_permlane32_swap_b32 v43, v41")
    p("v_add_f32 v40, v40, v42")
    p("v_add_f32 v41, v41, v43")
    p(f"v_mul_f32 v{MU}, 0x3b124925, v40")
    p(f"v_mul_f32 v41, 0x3b124925, v41")
    p(f"v_fma_f32 v41, -v{MU}, v{MU}, v41")
    p(f"v_add_f32 v41, 0x3727c5ac, v41")
    p(f"v_rsq_f32 v{RS_}, v41")
    p(f"v_add_u32 v18, {L_XS}, v{VH+6}")
    p(f"ds_write_b64 v18, {v(MU,2)}", tag='xs')
    nmf(p)
    p.wait('xs','cs')
    p("s_barrier")

def p0_load(p):
    def dmas(kc):
        G=[]
        n=kc+3
        if n<7:
            G.append(lambda q,n=n: dma_x(q,n))
            G.append(lambda q,n=n: dma_pair(q, SP1, n, p1_addr(n), f'w{n}'))
        if kc==4: G+= [lambda q,i=i: dma_pair(q, SP2, i, L_P2+i*8192, 'p2') for i in (0,1,2)]
        if kc==5: G+= [lambda q,i=i: dma_pair(q, SP2, i, L_P2+i*8192, 'p2') for i in (3,4,5)]
        if kc==6: G+= [lambda q: dma_pair(q, SP2, 6, L_P2+6*8192, 'p2')]
        return G
    for kc in range(7):
        p.wait(f'x{kc}', f'w{kc}')
        p("s_barrier")
        if kc in (0,6): stamp(p,f'c{kc}bar')
        for x in x_reads(kc): p(x)
        for f in dmas(kc): f(p)
        p("s_waitcnt lgkmcnt(0)")
    p("s_barrier")
    p(f"v_add_u32 v18, {L_XS}, v{VH+6}")
    p(f"ds_read_b64 {v(MU,2)}, v18")
    nmf(p)

def nmf(p):
    p(f"v_sub_f32 v20, 0, v{MU}")
    p(f"v_and_b32 v21, 0xffff0000, v20")
    p(f"v_sub_f32 v22, v20, v21")
    p(f"v_lshrrev_b32 v23, 16, v21")
    p(f"v_or_b32 v{NMF}, v21, v23")
    p(f"v_lshrrev_b32 v{NMF+1}, 16, v22")
    p(f"v_mov_b32 v{NMF+2}, v{NMF}")
    p(f"v_mov_b32 v{NMF+3}, v{NMF+1}")

def dma_p3_groups(firsts):
    G=[]
    for n0 in firsts:
        def setup(q,n0=n0):
            q(f"s_add_u32 s88, s{SW}, {n0}")
            q(f"s_mul_i32 s87, s88, {16*3*D*2}")
            q(f"s_add_u32 s87, s87, s63")
            q(f"s_mul_i32 s89, s88, 3072")
        for r in range(3):
            def one(q,r=r,setup=setup):
                if r==0: setup(q)
                q(f"s_add_u32 m0, s89, {L_P3+r*1024}")
                q("s_nop 0")
                q(f"buffer_load_dwordx4 v{VP3D[r]}, s[{WQ}:{WQ+3}], s87 offen lds", tag='p3')
            G.append(one)
    return G

def center(p, acc, scale_v):
    meanfix(p, acc)
    for r in range(16):
        p(f"v_mul_f32 v{acc+r}, v{acc+r}, v{scale_v}")

def gelu(p, acc, dst):
    T=18
    for b in (0,8):
        R=range(b,b+8)
        for r in R: p(f"v_mul_f32 v{T+r-b}, v{acc+r}, v{acc+r}")
        for r in R: p(f"v_fma_f32 v{T+r-b}, v{T+r-b}, s56, v47")
        for r in R: p(f"v_mul_f32 v{T+r-b}, v{T+r-b}, v{acc+r}")
        for r in R: p(f"v_exp_f32 v{T+r-b}, v{T+r-b}")
        for r in R: p(f"v_add_f32 v{T+r-b}, 1.0, v{T+r-b}")
        for r in R: p(f"v_rcp_f32 v{T+r-b}, v{T+r-b}")
        for r in R: p(f"v_mul_f32 v{dst+r}, v{acc+r}, v{T+r-b}")

def pack(p, src, dst):
    for i in range(8): p(f"v_cvt_pk_bf16_f32 v{dst+i}, v{src+2*i}, v{src+2*i+1}")
def store2(p, src, sreg, off=0):
    p(f"buffer_store_dwordx4 {v(src,4)}, v{VL16}, s[{WS}:{WS+3}], s{sreg} offen offset:{off}{SM()}")
    p(f"buffer_store_dwordx4 {v(src+4,4)}, v{VL16}, s[{WS}:{WS+3}], s{sreg} offen offset:{off+1024}{SM()}")
def transpose(p, src, dst, traddr, order):
    for q in range(4):
        p(f"ds_write_b64 v{VH+1}, {v(src+2*q,2)} offset:{q*16}", tag='tw')
    p.wait('tw')
    for u in range(2):
        for ii in range(2):
            row = (16*u+8*ii) if order=='v' else (16*u+4*ii)
            p(f"ds_read_b64_tr_b16 {v(dst+4*u+2*ii,2)}, v{traddr} offset:{row*72}")

def epi_z1(p, acc, pairreg, g):
    center(p, acc, RS_)
    gelu(p, acc, acc)
    pack(p, acc, 34)
    p(f"s_mul_i32 s51, s{SSB}, {28*2048}")
    p(f"s_lshl_b32 s52, s{pairreg}, 12")
    p("s_add_u32 s51, s51, s52")
    p(f"s_add_u32 s51, s51, {WS_Z1+g*2048}")
    store2(p, 34, 51)

def epi_z2(p, acc):
    center(p, acc, RS_)
    gelu(p, acc, ZH)
    p(f"v_mov_b32 v34, v{ZH}")
    p(f"v_mul_f32 v35, v{ZH}, v{ZH}")
    for r in range(1,16):
        p(f"v_add_f32 v34, v34, v{ZH+r}")
        p(f"v_fmac_f32 v35, v{ZH+r}, v{ZH+r}")
    p("v_mov_b32 v36, v34"); p("v_mov_b32 v37, v35")
    p("v_permlane32_swap_b32 v36, v34")
    p("v_permlane32_swap_b32 v37, v35")
    p("v_add_f32 v34, v34, v36")
    p("v_add_f32 v35, v35, v37")

LA=5
def mtile(p, acc, addr, off_fn, cs_addr, cs_off_fn, addr2=None, cs_addr2=None, part='all', sides=(), split=43008):
    NB=8; WB=48
    def rd(ks):
        b=WB+4*(ks%NB)
        for ii in range(2):
            o=off_fn(ks,ii); r=addr
            if o>=split and addr2 is not None: r=addr2; o-=split
            p(f"ds_read_b64_tr_b16 {v(b+2*ii,2)}, v{r} offset:{o}")
    def csrd(kc):
        for ii in range(2):
            o=cs_off_fn(kc,ii); r=cs_addr
            if o>=split and cs_addr2 is not None: r=cs_addr2; o-=split
            p(f"ds_read_b64_tr_b16 {v(26+4*(kc&1)+2*ii,2)}, v{r} offset:{o}")
    if part in ('all','pre'):
        for ks in range(LA): rd(ks)
        csrd(0)
    if part=='pre': return
    cs_zero(p)
    sched_rd={3*kc-2:kc for kc in range(1,7)}
    sched_st={3*kc+1:kc for kc in range(7)}
    for ks in range(28):
        c = "0" if ks==0 else v(acc,16)
        p(f"v_mfma_f32_32x32x16_bf16 {v(acc,16)}, {v(WB+4*(ks%NB),4)}, {v(XF+4*ks,4)}, {c}")
        if ks+LA<28: rd(ks+LA)
        if ks in sched_st: cs_step(p, 26+4*(sched_st[ks]&1))
        if ks in sched_rd: csrd(sched_rd[ks])
        if ks==23: cs_flush(p)
        if ks%3==2 and ks//3<len(sides): sides[ks//3](p)

def epi_head(p, acc, treg, lab):
    p(f"s_lshr_b32 s52, s{treg}, 4")
    p(f"s_and_b32 s53, s{treg}, 15")
    p(f"v_mov_b32 v46, v{RS_}")
    p("s_cmp_lg_u32 s52, 0")
    p(f"s_cbranch_scc1 {lab}_NQ")
    p(f"v_mul_f32 v46, 0x3e8b97f6, v46")
    p.label(f"{lab}_NQ")
    center(p, acc, 46)
    p("s_cmp_eq_u32 s52, 0"); p("s_cselect_b32 s54, 0, 1.0")
    p("s_cmp_eq_u32 s52, 1"); p("s_cselect_b32 s55, 1.0, 0")
    p("s_mov_b64 exec, s[58:59]")
    p(f"v_mov_b32 v{acc+12}, s54"); p(f"v_mov_b32 v{acc+13}, s55"); p(f"v_mov_b32 v{acc+14}, 0"); p(f"v_mov_b32 v{acc+15}, 0")
    p("s_mov_b64 exec, -1")
    pack(p, acc, 34)
    p(f"s_lshl_b32 s54, s53, 6")
    p(f"s_add_u32 s54, s54, s{SSB}")
    p("s_cmp_eq_u32 s52, 2")
    p(f"s_cbranch_scc1 {lab}_V")
    p("s_lshl_b32 s55, s54, 11")
    p(f"s_add_u32 s55, s55, {WS_Q}")
    p("s_lshl_b32 s54, s54, 12")
    p(f"s_add_u32 s54, s54, {WS_KV}")
    p("s_cmp_eq_u32 s52, 0")
    p("s_cselect_b32 s54, s55, s54")
    p.begin_opt()
    store2(p, 34, 54)
    p(f"s_branch {lab}_D")
    p.end_opt()
    p.label(f"{lab}_V")
    p.begin_opt()
    transpose(p, 34, 20, VH+2, 'v')
    p("s_lshl_b32 s54, s54, 12")
    p(f"s_add_u32 s54, s54, {WS_KV+2048}")
    store2(p, 20, 54)
    p.end_opt()
    p.label(f"{lab}_D")

def publish_z2(p):
    p(f"v_add_u32 v18, {L_ZS}, v{VH+6}")
    p("ds_read_b64 v[36:37], v18")
    p("v_add_f32 v36, v36, v34")
    p("v_add_f32 v38, v37, v35")
    p(f"v_mov_b32 v37, s{STAG}")
    p(f"v_mov_b32 v39, s{STAG}")
    p(f"s_mul_i32 s51, s{SSB}, {14*512}")
    p(f"s_lshl_b32 s52, s{SCB}, 9")
    p("s_add_u32 s51, s51, s52")
    p(f"s_add_u32 s51, s51, {WS_ST}")
    p("s_mov_b32 exec_hi, 0")
    p(f"buffer_store_dwordx4 v[36:39], v{VL16}, s[{WS}:{WS+3}], s51 offen sc1")
    p("s_mov_b64 exec, -1")

GR=48
def granule_loads(p):
    p(f"s_mul_i32 s90, s{SSB}, {14*512}")
    p(f"s_add_u32 s90, s90, {WS_ST}")
    for i in range(7):
        p(f"s_add_u32 s53, s90, {i*1024}")
        p(f"buffer_load_dwordx4 {v(GR+4*i,4)}, v{VL16}, s[{WS}:{WS+3}], s53 offen sc1", tag='gr')

def fin_stats(p, lab):
    p(f"s_mov_b32 s52, 0")
    p.wait('gr')
    p.label(f"{lab}_CHECK")
    p("s_mov_b64 s[54:55], 0")
    for i in range(7):
        p(f"v_cmp_ne_u32 vcc, s{STAG}, v{GR+4*i+1}")
        p("s_or_b64 s[54:55], s[54:55], vcc")
        p(f"v_cmp_ne_u32 vcc, s{STAG}, v{GR+4*i+3}")
        p("s_or_b64 s[54:55], s[54:55], vcc")
    p("s_cmp_eq_u64 s[54:55], 0")
    p(f"s_cbranch_scc1 {lab}_POLLDONE")
    p("s_add_u32 s52, s52, 1")
    p("s_cmp_gt_u32 s52, 0x40000")
    p(f"s_cbranch_scc1 {lab}_POLLDONE")
    granule_loads(p)
    p("s_waitcnt vmcnt(0)")
    p(f"s_branch {lab}_CHECK")
    p.label(f"{lab}_POLLDONE")
    stamp(p,'polled')
    a=GR
    p(f"v_add_f32 v34, v{a}, v{a+4}")
    p(f"v_add_f32 v35, v{a+2}, v{a+6}")
    for i in range(2,7):
        p(f"v_add_f32 v34, v34, v{a+4*i}")
        p(f"v_add_f32 v35, v35, v{a+4*i+2}")
    p("v_mov_b32 v36, v34"); p("v_mov_b32 v37, v35")
    p("v_permlane32_swap_b32 v36, v34")
    p("v_permlane32_swap_b32 v37, v35")
    p("v_add_f32 v34, v34, v36")
    p("v_add_f32 v35, v35, v37")
    p("v_mul_f32 v34, 0x3a924925, v34")
    p("v_mul_f32 v35, 0x3a924925, v35")
    p("v_fma_f32 v35, -v34, v34, v35")
    p("v_add_f32 v35, 0x3727c5ac, v35")
    p("v_rsq_f32 v35, v35")
    p(f"v_add_u32 v18, {L_ZS}, v{VH+6}")
    p("v_mul_f32 v34, v34, v35")
    p("ds_write_b64 v18, v[34:35]", tag='zf')
    p(f"s_sub_u32 s53, s{SW8}, 4")
    p(f"s_or_b32 s53, s53, s{SCB}")
    p("s_cmp_lg_u32 s53, 0")
    p(f"s_cbranch_scc1 {lab}_NOBUMP")
    p.begin_opt()
    p(f"v_mov_b32 v18, s{STAG}")
    p("s_mov_b64 exec, 1")
    p(f"buffer_store_dword v18, v{VH+8}, s[{WS}:{WS+3}], s{SEP} offen sc1")
    p("s_mov_b64 exec, -1")
    p.end_opt()
    p.label(f"{lab}_NOBUMP")

def fin_tile(p):
    for r in range(16):
        p(f"v_fma_f32 v{ZH+r}, v{ZH+r}, v35, -v34")
    pack(p, ZH, 36)
    transpose(p, 36, 20, VH+3, 'z')
    p(f"s_lshl_b32 s51, s{SCB}, 7")
    p(f"s_lshl_b32 s52, s{SSB}, 1")
    p("s_add_u32 s51, s51, s52")
    p("s_lshl_b32 s51, s51, 11")
    p(f"s_lshl_b32 s52, s{SG}, 10")
    p("s_add_u32 s51, s51, s52")
    p(f"s_add_u32 s51, s51, {WS_Z2}")
    p(f"buffer_store_dwordx4 {v(20,4)}, v{VL16}, s[{WS}:{WS+3}], s51 offen{SM()}")
    p(f"buffer_store_dwordx4 {v(24,4)}, v{VL16}, s[{WS}:{WS+3}], s51 offen offset:2048{SM()}")

def touch_wsp(p):
    srd(p, 76, 92, S*S*2)
    p(f"s_lshl_b32 s51, s2, 2")
    p(f"s_add_u32 s51, s51, s{SW}")
    p(f"s_lshl_b32 s51, s51, 13")
    p(f"v_lshlrev_b32 v11, 7, v0")
    p(f"buffer_load_dword v{VH}, v11, s[76:79], s51 offen")

def first_epi(p, g, lab, firsts, after_z2=None):
    G=dma_p3_groups(firsts)
    p(f"s_cmp_ge_u32 s{SCB}, 14")
    p(f"s_cbranch_scc1 {lab}_Z1")
    p.begin_alt(); p.alt_branch()
    main=capture(lambda q: epi_z2(q, ACC[0]))
    p.extend(interleave(main, [capture(f) for f in G], 14, 150))
    if after_z2: after_z2(p)
    p(f"s_branch {lab}_D")
    p.alt_branch()
    p.label(f"{lab}_Z1")
    p(f"s_sub_u32 s57, s{SCB}, 2")
    main=capture(lambda q: epi_z1(q, ACC[0], 57, g))
    p.extend(interleave(main, [capture(f) for f in G], 14, 130))
    p.end_alt()
    p.label(f"{lab}_D")

def first_mtile(p, sides=()):
    mtile(p, ACC[0], VH+12, lambda ks,ii: ks*2048+ii*512, VH+13, lambda kc,ii: kc*8192+ii*512, VWR, VCSR, sides=sides, split=5*8192)
def pair_mtile(p, g, part='all', sides=()):
    if part!='post':
        p(f"v_add_u32 v{VH+10}, {L_P2}, v{VWR}")
        p(f"v_add_u32 v{VH+11}, {L_P2}, v{VCSR}")
    mtile(p, ACC[0], VH+10, lambda ks,ii: ks*2048+ii*512, VH+11, lambda kc,ii: kc*8192+ii*512, part=part, sides=sides)
def head_mtile(p, t, part='all'):
    if part!='post':
        p(f"v_add_u32 v{VH+10}, {56*t}, v{VP3R}")
        p(f"s_mul_i32 s51, s{SW}, {16*192}")
        p(f"v_add_u32 v{VH+11}, s51, v{VH+10}")
        p(f"v_add_u32 v{VH+12}, 43008, v{VH+10}")
        p(f"v_add_u32 v{VH+13}, 43008, v{VH+11}")
    mtile(p, ACC[0], VH+10, lambda ks,ii: ks*16*192+ii*4*192, VH+11, lambda kc,ii: kc*64*192+ii*4*192, VH+12, VH+13, part=part)
def head_epi(p, t, lab):
    p(f"s_mul_i32 s62, s{SCB}, 3")
    if t: p(f"s_add_u32 s62, s62, {t}")
    epi_head(p, ACC[0], 62, lab)
def bar(p, name, *tags):
    stamp(p,name+'w')
    if tags: p.wait(*tags)
    stamp(p,name+'a')
    p("s_barrier")
    stamp(p,name)

def group_code(p, g):
    A = (g==0); L = "KA" if A else "KB"
    p(f"s_mul_i32 s63, s{SCB}, 168")
    if A:
        p0_compute(p)
        stamp(p,'p0end')
        def zs_out(q):
            q(f"v_add_u32 v18, {L_ZS}, v{VH+6}")
            q("ds_write_b64 v18, v[34:35]", tag='zs')
        first_epi(p, 0, L+"F", [0,8], zs_out)
        bar(p,'s1end','zs')
        p(f"s_sub_u32 s57, s{SCB}, 2")
        p("s_cmp_ge_u32 s57, 12")
        p(f"s_cbranch_scc1 {L}_NOSECOND")
        p.begin_alt(); p.alt_branch()
        pair_mtile(p, 0, sides=dma_p3_groups([12])); bar(p,'s2end','cs')
        main=capture(lambda q: epi_z1(q, ACC[0], 57, 0))
        p.extend(interleave(main, [capture(f) for f in dma_p3_groups([24])], 14, 80))
        if MALLPF: touch_wsp(p)
        bar(p,'s3end','p3')
        head_mtile(p, 0); bar(p,'s4end','cs')
        p(f"s_branch {L}_JOIN")
        p.alt_branch()
        p.label(f"{L}_NOSECOND")
        for f in dma_p3_groups([12,24]): f(p)
        bar(p,'sx','p3')
        head_mtile(p, 0); bar(p,'s4x','cs')
        p.end_alt()
        p.label(f"{L}_JOIN")
        head_epi(p, 0, L+"H0")
        head_mtile(p, 2, 'pre')
        bar(p,'s5end')
        head_mtile(p, 2, 'post'); bar(p,'s6end','cs')
        head_epi(p, 2, L+"H2")
        stamp(p,'headsE')
        p(f"s_cmp_ge_u32 s{SCB}, 14")
        p(f"s_cbranch_scc1 {L}_NOFIN")
        p.begin_opt()
        bar(p,'s7end')
        p(f"v_add_u32 v18, {L_ZS}, v{VH+6}")
        p("ds_read_b64 v[34:35], v18")
        fin_tile(p)
        p.end_opt()
        p.label(f"{L}_NOFIN")
    else:
        p0_load(p)
        stamp(p,'p0end')
        first_mtile(p, sides=dma_p3_groups([4]))
        bar(p,'s1end','cs','p2')
        p(f"s_sub_u32 s57, s{SCB}, 2")
        p("s_cmp_ge_u32 s57, 12")
        p(f"s_cbranch_scc1 {L}_NOSECOND")
        p.begin_alt(); p.alt_branch()
        main=capture(lambda q: epi_z2(q, ACC[0]))
        p.extend(interleave(main, [capture(f) for f in dma_p3_groups([16,20])], 14, 150))
        publish_z2(p)
        pair_mtile(p, 1, 'pre')
        bar(p,'s2end')
        pair_mtile(p, 1, 'post'); bar(p,'s3end','cs','p3')
        epi_z1(p, ACC[0], 57, 1)
        head_mtile(p, 1, 'pre')
        bar(p,'s4end')
        p(f"s_branch {L}_JOIN")
        p.alt_branch()
        p.label(f"{L}_NOSECOND")
        for f in dma_p3_groups([16,20]): f(p)
        bar(p,'sx','p3')
        first_epi(p, 1, L+"F", [], publish_z2)
        prep_issue(p)
        head_mtile(p, 1, 'pre')
        bar(p,'s4x')
        p.end_alt()
        p.label(f"{L}_JOIN")
        head_mtile(p, 1, 'post'); bar(p,'s5end','cs')
        p(f"s_cmp_ge_u32 s{SCB}, 14")
        p(f"s_cbranch_scc1 {L}_NOGL")
        p.begin_opt(); granule_loads(p); p.end_opt()
        p.label(f"{L}_NOGL")
        head_epi(p, 1, L+"H1")
        bar(p,'s6end')
        stamp(p,'headsE')
        p(f"s_cmp_ge_u32 s{SCB}, 14")
        p(f"s_cbranch_scc1 {L}_NOFIN")
        p.begin_opt()
        fin_stats(p, L)
        bar(p,'s7end','zf')
        fin_tile(p)
        p.end_opt()
        p.label(f"{L}_NOFIN")
        p(f"s_sub_u32 s57, s{SCB}, 2")
        p("s_cmp_lt_u32 s57, 12")
        p(f"s_cbranch_scc1 {L}_NOPREP")
        p.begin_opt(); prep_finish(p); p.end_opt()
        p.label(f"{L}_NOPREP")
    stamp(p,'end')
    PR.dump(p)

def mall_prefetch(p, g):
    p(f"s_load_dwordx2 s[66:67], s[0:1], {KA_WSP if g else KA_WO}")
    if not g: p(f"s_load_dwordx2 s[70:71], s[0:1], {KA_WOUT}")
    p(f"s_sub_u32 s51, s{SCB}, 12")
    p(f"s_cmp_lt_u32 s{SCB}, 2")
    p(f"s_cselect_b32 s51, s{SCB}, s51")
    p(f"s_lshl_b32 s52, s{SRB}, 2")
    p("s_add_u32 s51, s51, s52")
    p("v_lshlrev_b32 v26, 7, v0")
    p("s_waitcnt lgkmcnt(0)")
    if g:
        srd(p, 72, 66, S*S*2)
        p("s_lshl_b32 s51, s51, 2")
        p(f"s_add_u32 s51, s51, s{SW}")
        p("s_lshl_b32 s51, s51, 15")
        for i in range(4):
            p(f"buffer_load_dword v27, v26, s[72:75], s51 offen")
            if i<3: p("s_add_u32 s51, s51, 8192")
    else:
        srd(p, 72, 66, D*D*2); srd(p, 76, 70, FH*D*2)
        p(f"s_mul_i32 s52, s51, {49*128}")
        p(f"s_mul_i32 s53, s51, {98*128}")
        p(f"s_sub_u32 s54, s{SW}, 1")
        p("s_min_u32 s54, s54, 1")
        p(f"s_mul_i32 s54, s54, {49*128}")
        p("s_add_u32 s53, s53, s54")
        p("v_min_u32 v28, 48, v0")
        p("v_lshlrev_b32 v28, 7, v28")
        p(f"s_cmp_lg_u32 s{SW}, 0")
        p.begin_alt()
        p("s_cbranch_scc1 K1_MPA")
        p.alt_branch()
        p(f"buffer_load_dword v27, v28, s[72:75], s52 offen")
        p("s_branch K1_MPB")
        p.alt_branch()
        p.label("K1_MPA")
        p(f"buffer_load_dword v27, v28, s[76:79], s53 offen")
        p.end_alt()
        p.label("K1_MPB")

NPREP=5
L_PREP=L_P2+4096
def prep_issue(p):
    p(f"s_load_dwordx2 s[66:67], s[0:1], {KA_WO}")
    p(f"s_load_dwordx2 s[68:69], s[0:1], {KA_WOUT}")
    p(f"s_sub_u32 s51, s{SCB}, 12")
    p(f"s_cmp_lt_u32 s{SCB}, 2")
    p(f"s_cselect_b32 s51, s{SCB}, s51")
    p(f"s_lshl_b32 s52, s{SRB}, 2")
    p("s_add_u32 s51, s51, s52")
    p("s_lshl_b32 s51, s51, 2")
    p(f"s_add_u32 s70, s51, s{SW}")
    p(f"s_mul_i32 s71, s{SW}, {NPREP*1024}")
    p(f"s_add_u32 s71, s71, {L_PREP}")
    p(f"s_mov_b32 s81, {D*D*2}")
    p(f"s_mov_b32 s82, {FH*D*2}")
    p("v_lshrrev_b32 v26, 2, v0")
    p(f"v_mul_u32_u24 v27, {D*2}, v26")
    p("v_and_b32 v28, 3, v0")
    p("v_lshl_add_u32 v27, v28, 4, v27")
    p("v_cmp_le_u32 vcc, 12, v26")
    p("v_mov_b32 v28, 0")
    p("v_mov_b32 v29, 0x7ff00000")
    p("v_cndmask_b32 v28, v28, v29, vcc")
    p("s_waitcnt lgkmcnt(0)")
    for i in range(NPREP):
        p(f"s_add_u32 s80, s70, {256*i}")
        p(f"s_mul_i32 s51, s80, 745")
        p("s_lshr_b32 s51, s51, 16")
        p("s_mul_i32 s52, s51, 88")
        p(f"s_sub_u32 s52, s80, s52")
        p("s_lshl_b32 s51, s51, 6")
        p("s_lshr_b32 s53, s52, 1")
        p("s_mul_i32 s53, s53, 28")
        p("s_and_b32 s54, s52, 1")
        p("s_lshl_b32 s55, s54, 4")
        p("s_add_u32 s53, s53, s55")
        p("s_sub_u32 s55, s52, 32")
        p("s_lshl_b32 s55, s55, 4")
        p("s_cmp_lt_u32 s52, 32")
        p("s_cselect_b32 s53, s53, s55")
        p("s_cselect_b32 s72, s66, s68")
        p("s_cselect_b32 s73, s67, s69")
        p("s_cselect_b32 s74, s81, s82")
        p("s_mov_b32 s75, 0x00020000")
        p("s_cselect_b32 s54, s54, 0")
        p(f"s_mul_i32 s53, s53, {D*2}")
        p("s_add_u32 s53, s53, s51")
        p("s_cmp_lt_u32 s80, 1232")
        p("s_cselect_b32 s53, s53, 0x7ff00000")
        p("s_sub_u32 s54, 0, s54")
        p("v_and_b32 v29, s54, v28")
        p("v_add_u32 v29, v29, v27")
        p(f"s_add_u32 m0, s71, {i*1024}")
        p("s_nop 0")
        p("buffer_load_dwordx4 v29, s[72:75], s53 offen lds", tag='pd')

def prep_finish(p):
    p("v_lshrrev_b32 v26, 4, v0")
    p("v_and_b32 v27, 1, v26")
    p("v_lshrrev_b32 v26, 1, v26")
    p("v_lshrrev_b32 v28, 2, v0")
    p("v_and_b32 v28, 3, v28")
    p("v_lshl_add_u32 v26, v26, 2, v28")
    p("v_lshlrev_b32 v26, 6, v26")
    p("v_lshl_add_u32 v26, v27, 5, v26")
    p("v_and_b32 v27, 3, v0")
    p("v_lshl_add_u32 v26, v27, 3, v26")
    p("v_add_u32 v26, s71, v26")
    p("s_waitcnt vmcnt(0)")
    for i in range(NPREP):
        p(f"ds_read_b64_tr_b16 {v(96+4*i,2)}, v26 offset:{i*1024}")
        p(f"ds_read_b64_tr_b16 {v(96+4*i+2,2)}, v26 offset:{i*1024+512}")
    for i in range(NPREP):
        p(f"s_add_u32 s80, s70, {256*i}")
        p(f"s_lshl_b32 s51, s80, 10")
        p(f"s_add_u32 s51, s51, {WS_WC}")
        p("s_cmp_lt_u32 s80, 1232")
        p("s_cselect_b32 s51, s51, 0x7ff00000")
        p(f"buffer_store_dwordx4 {v(96+4*i,4)}, v1, s[{WS}:{WS+3}], s51 offen{SM()}")

def code_prefetch(p):
    p(f"s_cmp_lg_u32 s{SW8}, 7")
    p("s_cbranch_scc1 K1_CP1")
    p.begin_opt()
    p("s_getpc_b64 s[66:67]")
    p.label("K1_PC")
    p("s_sub_u32 s66, s66, K1_PC-k1_kernel")
    p("s_subb_u32 s67, s67, 0")
    p("s_mul_i32 s51, s15, 10")
    p("v_add_u32 v26, s51, v0")
    p("s_lshl_b32 s52, s2, 1")
    p("s_add_u32 s52, s52, (k2_kernel-k1_kernel)/128-10")
    p("v_add_u32 v27, s52, v0")
    p("v_cmp_gt_u32 vcc, 10, v0")
    p("v_cndmask_b32 v26, v27, v26, vcc")
    p("v_lshlrev_b32 v26, 7, v26")
    p("v_min_u32 v26, CODE_END-k1_kernel-4, v26")
    p("v_cmp_gt_u32 vcc, 12, v0")
    p("s_and_saveexec_b64 s[68:69], vcc")
    p("global_load_dword v27, v26, s[66:67]")
    p("s_mov_b64 exec, s[68:69]")
    p.end_opt()
    p.label("K1_CP1")

def l2_prefetch(p):
    T=38
    p("s_and_b32 s51, s15, 7")
    p("s_lshr_b32 s52, s15, 3")
    p.begin_alt()
    p(f"s_cmp_ge_u32 s{SW8}, 2")
    p("s_cbranch_scc1 K1_PF2")
    p.alt_branch()
    p("s_lshl_b32 s53, s52, 7")
    p(f"s_lshl_b32 s54, s{SW8}, 6")
    p("s_add_u32 s53, s53, s54")
    p("v_add_u32 v18, s53, v0")
    p("v_lshrrev_b32 v19, 2, v18")
    p(f"v_mul_u32_u24 v19, {D*2}, v19")
    p("v_and_b32 v18, 3, v18")
    p("v_lshl_add_u32 v19, v18, 7, v19")
    p(f"s_mul_i32 s53, s{SRB}, {128*D*2}")
    p(f"s_add_u32 s53, s53, {3*128}")
    p(f"buffer_load_dword v{T}, v19, s[{XS}:{XS+3}], s53 offen")
    p("s_branch K1_PFD")
    p.alt_branch()
    p.label("K1_PF2")
    p(f"s_cmp_ge_u32 s{SW8}, 4")
    p("s_cbranch_scc1 K1_PF4")
    p(f"s_lshl_b32 s53, s{SW8}, 3")
    p(f"s_mul_i32 s53, s53, {F*2}")
    p(f"s_cmp_eq_u32 s{SW8}, 2")
    p(f"s_cselect_b32 s54, s{SP1}, s{SP2}")
    p("s_sub_u32 s54, s54, s53")
    p(f"s_cmp_eq_u32 s{SW8}, 2")
    p("s_cselect_b32 s55, 32, 56")
    p("s_cselect_b32 s53, 192, 0")
    p("s_mul_i32 s61, s51, s55")
    p("s_add_u32 s53, s53, s61")
    p("s_sub_u32 s55, s55, 1")
    p("v_min_u32 v18, s55, v0")
    p("v_add_u32 v18, s53, v18")
    p(f"v_mul_u32_u24 v19, {F*2}, v18")
    p(f"buffer_load_dword v{T}, v19, s[{WIN}:{WIN+3}], s54 offen")
    p("s_branch K1_PFD")
    p.alt_branch()
    p.label("K1_PF4")
    p(f"s_sub_u32 s53, s{SW8}, 4")
    p("s_min_u32 s53, s53, 2")
    p("s_mul_i32 s53, s53, 94")
    p(f"s_mul_i32 s54, s{SCB}, 168")
    p("s_add_u32 s54, s54, s53")
    p("s_mul_i32 s53, s51, 56")
    p("v_min_u32 v18, 55, v0")
    p("v_add_u32 v18, s53, v18")
    p(f"v_mul_u32_u24 v19, {3*D*2}, v18")
    p(f"buffer_load_dword v{T}, v19, s[{WQ}:{WQ+3}], s54 offen")
    p.end_alt()
    p.label("K1_PFD")

def gen():
    p=Prog(); prologue(p)
    p("s_mov_b32 s56, 0xbdd2d3e8")
    p("s_mov_b32 s58, 0"); p("s_mov_b32 s59, -1")
    p("s_mov_b32 s60, 0xffff0000")
    p(f"v_mov_b32 v{VH+8}, 0")
    p(f"s_cmp_ge_u32 s{SW8}, 4")
    p("s_cbranch_scc1 K1_GROUPB")
    p.begin_alt(); p.alt_branch()
    n0=PR.n; names0=list(PR.names)
    for kc in range(3): dma_init(p,kc)
    setup_reads(p)
    p("v_mov_b32 v47, 0xc0135761")
    stamp(p,'setup')
    group_code(p, 0)
    namesA=list(PR.names); PR.n=n0; PR.names=list(names0)
    p("s_branch K1_END")
    p.alt_branch()
    p.label("K1_GROUPB")
    p(f"s_lshl_b32 s{SEP}, s{SRB}, 7")
    p(f"s_add_u32 s{SEP}, s{SEP}, {WS_EP}")
    p(f"buffer_load_dword v{EPV}, v{VH+8}, s[{WS}:{WS+3}], s{SEP} offen sc1")
    for kc in range(3): dma_init(p,kc)
    if CODEPF: code_prefetch(p)
    setup_reads(p)
    p("v_mov_b32 v47, 0xc0135761")
    p(f"v_add_u32 v{EPV}, 1, v{EPV}")
    p(f"v_readfirstlane_b32 s{STAG}, v{EPV}")
    stamp(p,'setup')
    group_code(p, 1)
    PR.namesA=namesA
    p.end_alt()
    p.label("K1_END")
    p("s_endpgm")
    return p

PREFETCH=False; MALLPF=False; CODEPF=True
def kernel(**opt):
    global PR, PREFETCH, MALLPF, CODEPF
    MALLPF=bool(int(opt.get('mpf',0))); CODEPF=bool(int(opt.get('cpf',1)))
    PREFETCH=bool(int(opt.get('pf',0)))
    PR=Prof(bool(int(opt.get('prof',0))),WS,SW8,WS_EP+(1<<19))
    text=gen().finalize()
    if PR.on: open('k1_stamps.txt','w').write(" ".join(PR.namesA)+"\n"+" ".join(PR.names))
    return dict(name="k1_kernel", text=text, grid=256, block=512, lds=LDS_K1, vgpr=256, sgpr=102, accum=256)
```

```python
from asmlib import *
from layout import *
import layout
def SM(): return layout.STMOD
from k3 import srd

LDS_RING = 0
LDS_AC   = 98304
LDS_AM   = 147456
LDS_CNT  = 147456 + 4096
LDS_K2   = 147456 + 4096 + 64

SW=16; SHEAD=17; SQB=18; STB=19; SFB=20; SJ=21; SX=22
WS=24; WSP=28; AUX=32; AUX2=36; STAG=15; XS3=88; OUT3=92

from profutil import Prof
PR=Prof(False,WS,23,0)
PROF=False
PRION=0
SKIPDMA=0
PRIOPAT=''
STARTPRIO=0
ONLY=''
WPF=1
DELAYW=1
ROT=2
KINT=1
EARLYRING=1
def stamp(p,name): PR.stamp(p,str(name))
def dump_stamps(p,n): PR.dump(p)

def role_sync(p, idx, lab):
    p(f"v_mov_b32 v12, {LDS_CNT+4*idx}")
    p("v_mov_b32 v13, 1")
    p("s_mov_b64 exec, 1")
    p("ds_add_u32 v12, v13")
    p("s_mov_b64 exec, -1")
    p.label(lab)
    p("ds_read_b32 v13, v12")
    p("s_waitcnt lgkmcnt(0)")
    p("v_readfirstlane_b32 s61, v13")
    p("s_cmp_lt_u32 s61, 4")
    p(f"s_cbranch_scc1 {lab}")

def prologue(p):
    p("s_cmp_ge_u32 s2, 256")
    p("s_cbranch_scc1 K2_END")
    p(f"s_load_dwordx2 s[4:5], s[0:1], {KA_WS}")
    p(f"s_load_dwordx2 s[6:7], s[0:1], {KA_WSP}")
    p(f"s_load_dwordx2 s[8:9], s[0:1], {KA_BSP}")
    p(f"s_load_dwordx2 s[10:11], s[0:1], {KA_X}")
    p(f"s_load_dwordx2 s[12:13], s[0:1], {KA_OUT}")
    p("v_lshrrev_b32 v1, 6, v0")
    p("v_and_b32 v0, 63, v0")
    p("v_readfirstlane_b32 s23, v1")
    p(f"s_and_b32 s{SX}, s2, 7")
    p(f"s_lshr_b32 s{SJ}, s2, 3")
    p(f"s_and_b32 s{SW}, s23, 3")
    p("v_lshlrev_b32 v1, 4, v0")
    p("s_waitcnt lgkmcnt(0)")
    srd(p, WS, 4, WS_SIZE)
    p(f"s_mov_b32 s63, {WS_EP}")
    p("v_mov_b32 v14, 0")
    p(f"buffer_load_dword v14, v14, s[{WS}:{WS+3}], s63 offen sc1")
    p(f"v_mov_b32 v2, {LDS_CNT}")
    p("v_mov_b32 v3, 0")
    p("ds_write_b32 v2, v3")
    p("ds_write_b32 v2, v3 offset:4")
    p("ds_write_b32 v2, v3 offset:8")
    p("s_waitcnt lgkmcnt(0)")
    p("s_barrier")
    PR.real(p,62)
    stamp(p,'start')
    p("s_cmp_ge_u32 s23, 4")
    p("s_cbranch_scc1 K2_ROLEB")

Q0=16; O0=48; S_=[112,128]; P_=[144,152]; KV0=160; ME=224; T0=228
def kvb(b): return KV0+16*b

def attention(p, force_fallback=False):
    SKV=40; SQ=41; SNT=42; SOFF=43; SK=44; SCNT=45; SIT=46
    p(f"s_lshr_b32 s40, s{SJ}, 4")
    p(f"s_lshl_b32 s41, s{SX}, 1")
    p(f"s_add_u32 s{SHEAD}, s40, s41")
    p(f"s_and_b32 s{SQB}, s{SJ}, 15")
    p(f"s_lshl_b32 s40, s{SHEAD}, 17")
    p(f"s_lshl_b32 s41, s{SQB}, 13")
    p(f"s_add_u32 s47, s40, s41")
    if WS_Q: p(f"s_add_u32 s47, s47, {WS_Q}")
    for rho in range(4):
        p(f"s_add_u32 s40, s{SW}, {rho}")
        p("s_and_b32 s40, s40, 3")
        p("s_lshl_b32 s40, s40, 11")
        p("s_add_u32 s40, s40, s47")
        p(f"buffer_load_dwordx4 {v(Q0+8*rho,4)}, v1, s[{WS}:{WS+3}], s40 offen")
        p(f"buffer_load_dwordx4 {v(Q0+8*rho+4,4)}, v1, s[{WS}:{WS+3}], s40 offen offset:1024")
    p(f"s_lshl_b32 s40, s{SHEAD}, 18")
    p(f"s_lshl_b32 s41, s{SW}, 16")
    p(f"s_add_u32 s40, s40, s41")
    p(f"s_add_u32 s{SKV}, s40, {WS_KV}")
    p(f"s_mov_b32 s{SNT}, {16 if force_fallback else 1}")
    p(f"s_mov_b32 s{SOFF}, {'0' if force_fallback else '0x42800000'}")
    p.label("A_RETRY")
    for j in range(4): p(f"v_mov_b32 v{ME+j}, 0xff7fffff")
    p(f"s_mov_b32 s{SCNT}, s{SNT}")
    def ld_tile(t_imm_base_sreg, b, part):
        for i in range(2):
            p(f"buffer_load_dwordx4 {v(kvb(b)+8*part+4*i,4)}, v1, s[{WS}:{WS+3}], s{t_imm_base_sreg} offen offset:{(2*part+i)*1024}")
    ld_tile(SKV, 0, 0)
    if EARLYRING:
        ld_tile(SKV, 0, 1)
        p(f"s_add_u32 s{SK}, s{SKV}, 4096")
        for t in range(1,3):
            ld_tile(SK, t, 0); ld_tile(SK, t, 1)
            p(f"s_add_u32 s{SK}, s{SK}, 4096")
    p(f"s_mov_b32 s62, s{SKV}")
    p.label("A_MAXLOOP")
    for j in range(4):
        Sx = S_[j&1]
        p(f"v_mfma_f32_32x32x16_bf16 {v(Sx,16)}, {v(kvb(0),4)}, {v(Q0+8*j,4)}, 0")
        p(f"v_mfma_f32_32x32x16_bf16 {v(Sx,16)}, {v(kvb(0)+4,4)}, {v(Q0+8*j+4,4)}, {v(Sx,16)}")
        if j>0:
            Sy=S_[(j-1)&1]
            maxtree(p,Sy,ME+j-1)
    maxtree(p,S_[1],ME+3)
    p(f"s_sub_u32 s{SCNT}, s{SCNT}, 1")
    p(f"s_cmp_eq_u32 s{SCNT}, 0")
    p("s_cbranch_scc1 A_MAXDONE")
    p.begin_opt()
    p("s_add_u32 s62, s62, 4096")
    ld_tile(62, 0, 0)
    p("s_waitcnt vmcnt(0)")
    p("s_branch A_MAXLOOP")
    p.end_opt()
    p.label("A_MAXDONE")
    stamp(p,'maxdone')
    p(f"s_cmp_eq_u32 s{SNT}, 1")
    p("s_cbranch_scc1 A_KEEPK")
    p.begin_opt()
    ld_tile(SKV, 0, 0)
    p.end_opt()
    p.label("A_KEEPK")
    for j in range(4):
        m=ME+j; t=T0
        p(f"v_mov_b32 v{t}, v{m}")
        p(f"v_permlane32_swap_b32 v{t}, v{m}")
        p(f"v_max_f32 v{m}, v{t}, v{m}")
        p(f"v_add_f32 v{m}, s{SOFF}, v{m}")
        p(f"v_sub_f32 v{t}, 0, v{m}")
        p(f"v_and_b32 v{t+1}, 0xffff0000, v{t}")
        p(f"v_sub_f32 v{t+2}, v{t}, v{t+1}")
        p(f"v_and_b32 v{t+2}, 0xffff0000, v{t+2}")
        p(f"v_add_f32 v{t+3}, v{t+1}, v{t+2}")
        p(f"v_sub_f32 v{m}, 0, v{t+3}")
        p(f"v_lshrrev_b32 v{t+1}, 16, v{t+1}")
        p(f"v_or_b32 v{t+1}, v{t+1}, v{t+2}")
        p(f"s_mov_b64 exec, s[48:49]")
        p(f"v_mov_b32 v{Q0+8*j+6}, v{t+1}")
        p(f"s_mov_b64 exec, -1")
    def QK(u):
        j=u&3; b=(u>>2)&3; Sx=S_[u&1]
        return [f"v_mfma_f32_32x32x16_bf16 {v(Sx,16)}, {v(kvb(b),4)}, {v(Q0+8*j,4)}, 0",
                f"v_mfma_f32_32x32x16_bf16 {v(Sx,16)}, {v(kvb(b)+4,4)}, {v(Q0+8*j+4,4)}, {v(Sx,16)}"]
    def PV(u):
        j=u&3; b=(u>>2)&3; Px=P_[u&1]; O=O0+16*j
        return [f"v_mfma_f32_32x32x16_bf16 {v(O,16)}, {v(kvb(b)+8,4)}, {v(Px,4)}, {v(O,16)}",
                f"v_mfma_f32_32x32x16_bf16 {v(O,16)}, {v(kvb(b)+12,4)}, {v(Px+4,4)}, {v(O,16)}"]
    for r in range(8): p(f"v_mov_b32 v{kvb(3)+8+r}, 0")
    for m_ in QK(0): p(m_)
    main=capture(lambda q: ([q(f"v_mov_b32 v{O0+r}, 0") for r in range(64)], [q(f"v_mov_b32 v{P_[1]+r}, 0") for r in range(8)]))
    if EARLYRING: p.extend(main)
    else:
        def ringload(q, t, b, k):
            q(f"buffer_load_dwordx4 {v(kvb(b)+4*k,4)}, v1, s[{WS}:{WS+3}], s{SK} offen offset:{k*1024}")
        sides=[]
        p(f"s_mov_b32 s{SK}, s{SKV}")
        sides.append(capture(lambda q: ringload(q,0,0,2))); sides.append(capture(lambda q: (ringload(q,0,0,3), q(f"s_add_u32 s{SK}, s{SK}, 4096"))))
        for t in (1,2):
            for k in range(4):
                sides.append(capture(lambda q,t=t,k=k: (ringload(q,t,t,k), q(f"s_add_u32 s{SK}, s{SK}, 4096") if k==3 else None)))
        p.extend(interleave(main, sides, 0, 70))
    def period(u, loads):
        Sx=S_[u&1]; Px=P_[u&1]
        qk=QK(u+1); pv=PV(u-1)
        ms=[qk[0],pv[0],qk[1],pv[1]]
        ex=[f"v_exp_f32 v{Sx+i}, v{Sx+i}" for i in range(16)]
        cv=[f"v_cvt_pk_bf16_f32 v{Px+i}, v{Sx+2*i}, v{Sx+2*i+1}" for i in range(8)]
        for g in range(4):
            p(ms[g])
            if g < len(loads) and loads[g]:
                for x in loads[g]: p(x)
            for k in range(2):
                i=2*g+k
                p(ex[2*i]); p(ex[2*i+1])
                if i>0: p(cv[i-1])
        p(cv[7])
    def iteration(last):
        for tl in range(4):
            for j in range(4):
                u=4*tl+j
                loads=[None]*4
                nb=(tl+3)&3
                doload = (not last) or tl==0
                if doload and j==0:
                    loads[2]=[f"buffer_load_dwordx4 {v(kvb(nb),4)}, v1, s[{WS}:{WS+3}], s{SK} offen offset:0"]
                    loads[3]=[f"buffer_load_dwordx4 {v(kvb(nb)+4,4)}, v1, s[{WS}:{WS+3}], s{SK} offen offset:1024"]
                if doload and j==1:
                    loads[0]=[f"buffer_load_dwordx4 {v(kvb(nb)+8,4)}, v1, s[{WS}:{WS+3}], s{SK} offen offset:2048"]
                    loads[1]=[f"buffer_load_dwordx4 {v(kvb(nb)+12,4)}, v1, s[{WS}:{WS+3}], s{SK} offen offset:3072",
                              f"s_add_u32 s{SK}, s{SK}, 4096"]
                period(u,loads)
    stamp(p,'loopstart')
    p(f"s_mov_b32 s{SIT}, 3")
    p.begin_loop(visits=3)
    p.label("A_LOOP")
    iteration(False)
    p(f"s_sub_u32 s{SIT}, s{SIT}, 1")
    p(f"s_cmp_lg_u32 s{SIT}, 0")
    p("s_cbranch_scc1 A_LOOP")
    p.end_loop()
    iteration(True)
    for m_ in PV(63): p(m_)
    stamp(p,'loopend')
    p("s_mov_b32 s50, 0x71800000")
    p("s_mov_b64 s[52:53], 0")
    for j in range(4):
        p(f"v_cmp_ngt_f32 vcc, s50, v{O0+16*j+12}")
        p("s_or_b64 s[52:53], s[52:53], vcc")
    p(f"s_cmp_eq_u32 s53, 0")
    p("s_cbranch_scc1 A_OK")
    p(f"s_cmp_eq_u32 s{SNT}, 16")
    p("s_cbranch_scc1 A_OK")
    p(f"s_mov_b32 s{SNT}, 16")
    p(f"s_mov_b32 s{SOFF}, 0")
    p(f"s_mov_b64 exec, s[48:49]")
    for j in range(4): p(f"v_mov_b32 v{Q0+8*j+6}, 0")
    p(f"s_mov_b64 exec, -1")
    p("s_branch A_RETRY")
    p.label("A_OK")

def maxtree(p, Sy, dst):
    t=T0
    for i in range(4):
        p(f"v_max3_f32 v{t+i}, v{Sy+4*i}, v{Sy+4*i+1}, v{Sy+4*i+2}")
    p(f"v_max3_f32 v{t}, v{t}, v{Sy+3}, v{Sy+7}")
    p(f"v_max3_f32 v{t+1}, v{t+1}, v{Sy+11}, v{Sy+15}")
    p(f"v_max3_f32 v{t}, v{t}, v{t+2}, v{t+3}")
    p(f"v_max3_f32 v{dst}, v{dst}, v{t}, v{t+1}")

def attention_publish(p):
    p(f"s_mul_i32 s40, s{SW}, 12288")
    p(f"s_add_u32 s40, s40, {LDS_AC}")
    p(f"v_add_u32 v2, s40, v1")
    for rho in range(1,4):
        for q in range(4):
            p(f"ds_write_b128 v2, {v(O0+16*rho+4*q,4)} offset:{(rho-1)*4096+q*1024}", tag='apub')
    p(f"v_and_b32 v3, 31, v0")
    p(f"v_lshlrev_b32 v3, 2, v3")
    p(f"s_lshl_b32 s40, s{SW}, 10")
    p(f"s_add_u32 s40, s40, {LDS_AM}")
    p(f"v_add_u32 v4, s40, v3")
    for rho in range(4):
        p(f"v_log_f32 v{T0+rho}, v{O0+16*rho+12}")
    for rho in range(4):
        p(f"v_add_f32 v{T0+rho}, v{T0+rho}, v{ME+rho}")
    p(f"s_mov_b64 exec, s[48:49]")
    for rho in range(4):
        p(f"ds_write_b32 v4, v{ME+rho} offset:{rho*256}", tag='apub')
        p(f"ds_write_b32 v4, v{T0+rho} offset:{rho*256+128}", tag='apub')
    p(f"s_mov_b64 exec, -1")
    p.wait('apub')

def attention_finish(p):
    R=112
    MM=160; LG=164
    for rho in range(4):
        p(f"s_sub_u32 s40, s{SW}, {rho}")
        p("s_and_b32 s40, s40, 3")
        p("s_lshl_b32 s41, s40, 10")
        p(f"s_add_u32 s41, s41, {LDS_AM+rho*256}")
        p(f"v_add_u32 v4, s41, v3")
        p(f"ds_read_b32 v{MM+rho}, v4")
        p(f"ds_read_b32 v{LG+rho}, v4 offset:128")
        if rho>0:
            p("s_mul_i32 s41, s40, 12288")
            p(f"s_add_u32 s41, s41, {LDS_AC+(rho-1)*4096}")
            p(f"v_add_u32 v2, s41, v1")
            for q in range(4):
                p(f"ds_read_b128 {v(R+16*(rho-1)+4*q,4)}, v2 offset:{q*1024}")
    t=T0
    p(f"v_max3_f32 v{t}, v{LG}, v{LG+1}, v{LG+2}")
    p(f"v_max_f32 v{t}, v{t}, v{LG+3}")
    for rho in range(4):
        p(f"v_sub_f32 v{LG+rho}, v{LG+rho}, v{t}")
        p(f"v_sub_f32 v{MM+rho}, v{MM+rho}, v{t}")
    for rho in range(4):
        p(f"v_exp_f32 v{LG+rho}, v{LG+rho}")
        p(f"v_exp_f32 v{MM+rho}, v{MM+rho}")
    p(f"v_add_f32 v{LG}, v{LG}, v{LG+1}")
    p(f"v_add_f32 v{LG+2}, v{LG+2}, v{LG+3}")
    p(f"v_add_f32 v{LG}, v{LG}, v{LG+2}")
    p(f"v_rcp_f32 v{LG}, v{LG}")
    for rho in range(4):
        p(f"v_mul_f32 v{MM+rho}, v{MM+rho}, v{LG}")
    for r in range(16):
        p(f"v_mul_f32 v{O0+r}, v{O0+r}, v{MM}")
    for rho in range(1,4):
        for r in range(16):
            p(f"v_fmac_f32 v{O0+r}, v{R+16*(rho-1)+r}, v{MM+rho}")
    p(f"s_mov_b64 exec, s[48:49]")
    for r in range(12,16): p(f"v_mov_b32 v{O0+r}, 0")
    p(f"s_mov_b64 exec, -1")
    for i in range(8):
        p(f"v_cvt_pk_bf16_f32 v{R+i}, v{O0+2*i}, v{O0+2*i+1}")
    p(f"s_lshl_b32 s40, s{SQB}, 2")
    p(f"s_add_u32 s40, s40, s{SW}")
    p(f"s_mul_i32 s40, s40, {88*1024}")
    p(f"s_lshl_b32 s41, s{SHEAD}, 11")
    p(f"s_add_u32 s40, s40, s41")
    p(f"s_add_u32 s40, s40, {WS_H}")
    p(f"buffer_store_dwordx4 {v(R,4)}, v1, s[{WS}:{WS+3}], s40 offen{SM()}")
    p(f"buffer_store_dwordx4 {v(R+4,4)}, v1, s[{WS}:{WS+3}], s40 offen offset:1024{SM()}")

GACC=128; GA=64; GB=48
def gemm(p):
    SROW=[40,41,42,43]; SRING=44; SZ=45; ST=46
    VD=[2,3]; VR=[4,5,6,7]
    p(f"s_mul_i32 s46, s{SJ}, 37")
    p("s_lshr_b32 s46, s46, 8")
    p("s_mul_i32 s47, s46, 7")
    p(f"s_sub_u32 s47, s{SJ}, s47")
    p(f"s_lshr_b32 s48, s{SX}, 1")
    p("s_lshl_b32 s48, s48, 2")
    p(f"s_add_u32 s{STB}, s48, s46")
    p(f"s_and_b32 s48, s{SX}, 1")
    p("s_mul_i32 s48, s48, 7")
    p(f"s_add_u32 s{SFB}, s48, s47")
    srd(p, WSP, 6, S*S*2)
    srd(p, AUX, 8, S*2)
    for rho in range(4):
        p(f"s_add_u32 s46, s{SW}, {rho}")
        p("s_and_b32 s46, s46, 3")
        p("s_lshl_b32 s46, s46, 5")
        p(f"s_lshl_b32 s47, s{STB}, 7")
        p("s_add_u32 s46, s46, s47")
        p("s_lshl_b32 s46, s46, 12")
        p(f"s_lshl_b32 s47, s{SW}, {7 if KINT else 10}")
        p(f"s_add_u32 s{SROW[rho]}, s46, s47")
    p(f"s_mul_i32 s{SRING}, s{SW}, 24576")
    p(f"s_lshl_b32 s46, s{SFB}, 7")
    p(f"s_lshl_b32 s47, s{SW}, {2 if KINT else 5}")
    p("s_add_u32 s46, s46, s47")
    p("s_lshl_b32 s46, s46, 11")
    p(f"s_add_u32 s{SZ}, s46, {WS_Z2}")
    p("v_lshrrev_b32 v8, 3, v0")
    p("v_lshlrev_b32 v8, 12, v8")
    p("v_lshrrev_b32 v9, 4, v0")
    p("v_and_b32 v10, 7, v0")
    p("v_xor_b32 v11, v10, v9")
    p("v_lshl_add_u32 v2, v11, 4, v8")
    p("v_xor_b32 v11, 4, v11")
    p("v_lshl_add_u32 v3, v11, 4, v8")
    p("v_and_b32 v8, 31, v0")
    p("v_lshrrev_b32 v9, 5, v0")
    p("v_lshrrev_b32 v10, 1, v8")
    p("v_and_b32 v10, 7, v10")
    p("v_xor_b32 v10, v10, v9")
    p("v_lshlrev_b32 v8, 7, v8")
    p(f"v_add_u32 v8, s{SRING}, v8")
    for u in range(4):
        p(f"v_xor_b32 v11, {2*u}, v10")
        p(f"v_lshl_add_u32 v{VR[u]}, v11, 4, v8")
    SROT=52; SWO=[53,54]; SZO=[55,56]
    p(f"s_and_b32 s{SROT}, s{STB if ROT==1 else SFB}, { {3:1,4:3}.get(ROT,7) }")
    if ROT==3: p(f"s_lshl_b32 s{SROT}, s{SROT}, 2")
    if ROT==4: p(f"s_lshl_b32 s{SROT}, s{SROT}, 1")
    def chunk_offsets(sc):
        e=sc&1
        if ROT:
            p(f"s_add_u32 s57, s{SROT}, {sc}")
            p("s_and_b32 s57, s57, 7")
            p(f"s_lshl_b32 s{SWO[e]}, s57, {9 if KINT else 7}")
            p(f"s_lshl_b32 s57, s57, {15 if KINT else 13}")
            p(f"s_add_u32 s{SZO[e]}, s57, s{SZ}")
        else:
            p(f"s_mov_b32 s{SWO[e]}, {sc*(512 if KINT else 128)}")
            p(f"s_add_u32 s{SZO[e]}, s{SZ}, {sc*(32768 if KINT else 8192)}")
    done=set()
    def need(sc):
        if sc not in done: done.add(sc); chunk_offsets(sc)
    def dma(c, which=range(8)):
        sc=c>>1; th=c&1; slot=c%3
        need(sc)
        for i in which:
            if SKIPDMA and (i&1) and c>1: continue
            rho=2*th+(i>>2)
            p(f"s_add_u32 m0, s{SRING}, {slot*8192+i*1024}")
            p(f"s_add_u32 s{ST}, s{SROW[rho]}, s{SWO[sc&1]}")
            if i&3: p(f"s_add_u32 s{ST}, s{ST}, {(8*(i&3))*4096}")
            p(f"buffer_load_dwordx4 v{VD[i&1]}, s[{WSP}:{WSP+3}], s{ST} offen lds", tag=f'dma{slot}')
    def aload(sc, lo, hi):
        e=sc&1
        need(sc)
        for k in range(lo,hi):
            if k%4==0 or k==lo: p(f"s_add_u32 s{ST+1}, s{SZO[e]}, {(k&~3)*1024}")
            p(f"buffer_load_dwordx4 {v(GA+e*32+4*k,4)}, v1, s[{WS}:{WS+3}], s{ST+1} offen offset:{(k%4)*1024}")
    def bread(c,u):
        slot=c%3; st=(c*4+u)&1
        for tl in range(2):
            p(f"ds_read_b128 {v(GB+st*8+4*tl,4)}, v{VR[u]} offset:{slot*8192+tl*4096}")
    if STARTPRIO: p("s_setprio 1")
    dma(0); aload(0,0,4); dma(1); aload(0,4,8)
    stamp(p,'issued')
    p.wait('dma0')
    bread(0,0)
    stamp(p,'loopstart')
    for c in range(16):
        if c in (2,4,8,12): stamp(p,f'c{c}')
        sc=c>>1; th=c&1; e=sc&1
        for u in range(4):
            if PRIOPAT:
                on = PRIOPAT[(c*4+u) % len(PRIOPAT)]=='1'
                prev = PRIOPAT[(c*4+u-1) % len(PRIOPAT)]=='1' if (c or u) else False
                if on!=prev: p(f"s_setprio {1 if on else 0}")
            if u<3: nxt=(c,u+1)
            else: nxt=(c+1,0) if c<15 else None
            st=(c*4+u)&1
            k=0
            for tl in range(2):
                for fi in range(2):
                    acc=GACC+((2*th+tl)*2+fi)*16
                    cc = "0" if (sc==0 and u==0) else v(acc,16)
                    p(f"v_mfma_f32_32x32x16_bf16 {v(acc,16)}, {v(GA+e*32+4*(u*2+fi),4)}, {v(GB+st*8+4*tl,4)}, {cc}")
                    if k==0 and nxt:
                        if nxt[0]!=c: p.wait(f'dma{nxt[0]%3}')
                        bread(*nxt)
                    slot=u*4+k
                    if c==0:
                        if slot<8: dma(2,[slot])
                        if slot==8 and STARTPRIO: p("s_setprio 0")
                    else:
                        if c+2<16 and slot<8: dma(c+2,[slot])
                    if sc+1<8 and slot in (9,11,13,15) and c>=0:
                        kk=4*th+(slot-9)//2
                        aload(sc+1, kk, kk+1)
                    k+=1
    if PRIOPAT: p("s_setprio 0")

def gemm_publish(p):
    p(f"v_add_u32 v2, s44, v1")
    for rho in range(1,4):
        for fi in range(2):
            for q in range(4):
                p(f"ds_write_b128 v2, {v(GACC+(rho*2+fi)*16+4*q,4)} offset:{(rho-1)*8192+fi*4096+q*1024}", tag='gpub')
    p(f"s_lshl_b32 s46, s{STB}, 2")
    p(f"s_add_u32 s46, s46, s{SW}")
    p(f"s_mul_i32 s47, s46, {28*2048}")
    p(f"s_lshl_b32 s48, s{SFB}, 12")
    p("s_add_u32 s47, s47, s48")
    p(f"s_add_u32 s47, s47, {WS_Z1}")
    for k in range(4):
        p(f"buffer_load_dwordx4 {v(16+4*k,4)}, v1, s[{WS}:{WS+3}], s47 offen offset:{k*1024}")
    p("v_and_b32 v8, 31, v0")
    p("v_lshlrev_b32 v8, 1, v8")
    p("s_lshl_b32 s48, s46, 6")
    p(f"buffer_load_ushort v9, v8, s[{AUX}:{AUX+3}], s48 offen")
    p.wait('gpub')

def gemm_finish(p):
    R=32
    for rho in range(1,4):
        p(f"s_sub_u32 s47, s{SW}, {rho}")
        p("s_and_b32 s47, s47, 3")
        p("s_mul_i32 s47, s47, 24576")
        p(f"s_add_u32 s47, s47, {(rho-1)*8192}")
        p("v_add_u32 v2, s47, v1")
        for k in range(8):
            p(f"ds_read_b128 {v(R+32*(rho-1)+4*k,4)}, v2 offset:{k*1024}")
    p("v_lshlrev_b32 v9, 16, v9")
    for r in range(32):
        p(f"v_add_f32 v{GACC+r}, v{GACC+r}, v{R+r}")
        p(f"v_add_f32 v{R+32+r}, v{R+32+r}, v{R+64+r}")
        p(f"v_add_f32 v{GACC+r}, v{GACC+r}, v9")
        p(f"v_add_f32 v{GACC+r}, v{GACC+r}, v{R+32+r}")
    for d in range(16):
        p(f"v_lshlrev_b32 v10, 16, v{16+d}")
        p(f"v_and_b32 v11, 0xffff0000, v{16+d}")
        p(f"v_mul_f32 v{GACC+2*d}, v{GACC+2*d}, v10")
        p(f"v_mul_f32 v{GACC+2*d+1}, v{GACC+2*d+1}, v11")
        p(f"v_cvt_pk_bf16_f32 v{R+d}, v{GACC+2*d}, v{GACC+2*d+1}")
    p(f"s_mul_i32 s47, s46, {88*1024}")
    p(f"s_lshl_b32 s48, s{SFB}, 12")
    p("s_add_u32 s47, s47, s48")
    p(f"s_add_u32 s47, s47, {WS_H+32*1024}")
    for k in range(4):
        p(f"buffer_store_dwordx4 {v(R+4*k,4)}, v1, s[{WS}:{WS+3}], s47 offen offset:{k*1024}{SM()}")

def signal(p, tblk_sreg, slot_expr_sreg):
    p("s_waitcnt vmcnt(0)")
    p(f"v_readfirstlane_b32 s{STAG}, v14")
    p(f"s_lshl_b32 s64, s{tblk_sreg}, 7")
    p(f"s_lshl_b32 s65, s{slot_expr_sreg}, 2")
    p("s_add_u32 s64, s64, s65")
    p(f"s_add_u32 s64, s64, {WS_FL}")
    p(f"v_mov_b32 v12, s{STAG}")
    p("v_mov_b32 v13, 0")
    p("s_mov_b64 exec, 1")
    p(f"buffer_store_dword v12, v13, s[{WS}:{WS+3}], s64 offen sc1")
    p("s_mov_b64 exec, -1")

WO0=16; WH0=80; H0=136; FACC=192; RS3=272
STB3=66; SNB3=67
def hreg(k): return H0+4*k if k<14 else 4+4*(k-14)
def final_ids(p):
    srd(p, XS3, 10, S*D*2); srd(p, OUT3, 12, S*D*2)
    p(f"s_mul_i32 s72, s{SJ}, 37")
    p("s_lshr_b32 s72, s72, 8")
    p("s_mul_i32 s73, s72, 7")
    p(f"s_sub_u32 s{SNB3}, s{SJ}, s73")
    p(f"s_lshl_b32 s73, s{SX}, 2")
    p(f"s_add_u32 s{STB3}, s73, s72")
    p(f"s_mul_i32 s72, s{SNB3}, {2*88*1024}")
    p(f"s_add_u32 s68, s72, {WS_WC}")
    p(f"s_mul_i32 s72, s{STB3}, {2*88*1024}")
    p(f"s_add_u32 s69, s72, {WS_H}")
def frag_loads(p, base, ks0_sreg, nk, regf, mod):
    p(f"s_lshl_b32 s72, s{ks0_sreg}, 10")
    p(f"s_add_u32 s70, s{base}, s72")
    p(f"s_add_u32 s71, s70, {88*1024}")
    for k in range(nk):
        for i in range(2):
            p(f"buffer_load_dwordx4 {v(regf(2*k+i),4)}, v1, s[{WS}:{WS+3}], s{70+i} offen offset:{(k%4)*1024}{mod}")
        if k%4==3 and k+1<nk:
            p("s_add_u32 s70, s70, 4096"); p("s_add_u32 s71, s71, 4096")
def frag_mfma(p, nk, wf, hf, first_zero):
    for k in range(nk):
        for ti in range(2):
            for ni in range(2):
                acc = FACC + (ti*2+ni)*16
                c = "0" if (k==0 and first_zero) else v(acc,16)
                p(f"v_mfma_f32_32x32x16_bf16 {v(acc,16)}, {v(wf(2*k+ni),4)}, {v(hf(2*k+ti),4)}, {c}")
def lds_wait(p, idx, n, lab):
    p(f"v_mov_b32 v12, {LDS_CNT+4*idx}")
    p.label(lab)
    p("ds_read_b32 v13, v12")
    p("s_waitcnt lgkmcnt(0)")
    p("v_readfirstlane_b32 s61, v13")
    p(f"s_cmp_lt_u32 s61, {n}")
    p(f"s_cbranch_scc1 {lab}")
def poll_flags(p, mask_lo, lab):
    p(f"s_lshl_b32 s72, s{STB3}, 8")
    p(f"s_add_u32 s72, s72, {WS_FL}")
    p("v_lshlrev_b32 v3, 2, v0")
    p(f"s_mov_b32 s74, {mask_lo}"); p(f"s_mov_b32 s75, {mask_lo}")
    p("s_mov_b32 s76, 0")
    p.label(lab)
    p(f"buffer_load_dword v12, v3, s[{WS}:{WS+3}], s72 offen sc1")
    p("s_waitcnt vmcnt(0)")
    p(f"v_cmp_ne_u32 vcc, s{STAG}, v12")
    p("s_and_b64 s[78:79], vcc, s[74:75]")
    p("s_cmp_eq_u64 s[78:79], 0")
    p(f"s_cbranch_scc1 {lab}_OK")
    p("s_add_u32 s76, s76, 1")
    p("s_cmp_lt_u32 s76, 0x40000")
    p(f"s_cbranch_scc1 {lab}")
    p.label(lab+"_OK")

NK3=11; W30=16; H30=104
def final_attention(p):
    final_ids(p)
    lds_wait(p, 2, 4, "K2_AWAIT")
    p(f"s_mul_i32 s77, s23, {NK3}")
    frag_loads(p, 68, 77, NK3, lambda k: W30+4*k, "")
    stamp(p,'wissued')
    p("s_branch K2_FH")

def final_gemm(p):
    final_ids(p)
    p(f"s_mul_i32 s77, s23, {NK3}")
    frag_loads(p, 68, 77, NK3, lambda k: W30+4*k, "")
    stamp(p,'wissued')
    p("s_cmp_lg_u32 s23, 7")
    p("s_cbranch_scc1 K2_FH")
    poll_flags(p, "0x3fffffff", "K2_GPOLL")
    p("s_branch K2_FH")

def final_common(p):
    p.label("K2_FH")
    p("s_barrier")
    stamp(p,'flags')
    p(f"s_mul_i32 s77, s23, {NK3}")
    frag_loads(p, 69, 77, NK3, lambda k: H30+4*k, " sc1")
    p("v_lshrrev_b32 v3, 3, v0")
    p(f"s_lshl_b32 s72, s{STB3}, 6")
    p(f"s_lshl_b32 s73, s23, 3")
    p("s_add_u32 s72, s72, s73")
    p("v_add_u32 v3, s72, v3")
    p(f"v_mul_u32_u24 v3, {D*2}, v3")
    p("v_and_b32 v2, 7, v0")
    p("v_lshlrev_b32 v2, 4, v2")
    p(f"s_lshl_b32 s73, s{SNB3}, 7")
    p("v_add3_u32 v2, v3, v2, s73")
    p(f"buffer_load_dwordx4 v[4:7], v2, s[{XS3}:{XS3+3}], 0 offen")
    frag_mfma(p, NK3, lambda k: W30+4*k, lambda k: H30+4*k, True)
    stamp(p,'fmfma')
    RS=RS3; ACC=FACC
    p("v_and_b32 v8, 31, v0")
    p(f"v_mul_u32_u24 v8, {RS}, v8")
    p("v_lshrrev_b32 v9, 5, v0")
    p("v_lshlrev_b32 v9, 4, v9")
    p(f"s_mul_i32 s72, s23, {64*RS}")
    p("v_add3_u32 v8, v8, v9, s72")
    for ti in range(2):
        for ni in range(2):
            acc = ACC + (ti*2+ni)*16
            for q in range(4):
                p(f"ds_write_b128 v8, {v(acc+4*q,4)} offset:{ti*32*RS+ni*128+q*32}", tag='pw')
    p.wait('pw')
    p("s_barrier")
    stamp(p,'fbar')
    p("v_lshrrev_b32 v8, 3, v0")
    p(f"s_lshl_b32 s72, s23, 3")
    p("v_add_u32 v8, s72, v8")
    p(f"v_mul_u32_u24 v8, {RS}, v8")
    p("v_and_b32 v9, 7, v0")
    p("v_lshlrev_b32 v9, 5, v9")
    p("v_add_u32 v8, v8, v9")
    p(f"v_add_u32 v9, {4*64*RS}, v8")
    R=16
    for w in range(8):
        for hh in range(2):
            a=8 if w<4 else 9
            p(f"ds_read_b128 {v(R+(w*2+hh)*4,4)}, v{a} offset:{(w%4)*64*RS+hh*16}")
    for st_ in (1,2,4):
        for w in range(0,8,2*st_):
            for e in range(8):
                p(f"v_add_f32 v{R+8*w+e}, v{R+8*w+e}, v{R+8*(w+st_)+e}")
    for d in range(4):
        p(f"v_lshlrev_b32 v10, 16, v{4+d}")
        p(f"v_and_b32 v11, 0xffff0000, v{4+d}")
        p(f"v_add_f32 v{R+2*d}, v{R+2*d}, v10")
        p(f"v_add_f32 v{R+2*d+1}, v{R+2*d+1}, v11")
    for d in range(4):
        p(f"v_cvt_pk_bf16_f32 v{R+8+d}, v{R+2*d}, v{R+2*d+1}")
    p(f"buffer_store_dwordx4 {v(R+8,4)}, v2, s[{OUT3}:{OUT3+3}], 0 offen")
    stamp(p,'fend')

def prep(p):
    srd(p, AUX, 10, D*D*2)
    srd(p, AUX2, 12, FH*D*2)
    p(f"s_lshl_b32 s40, s{SX}, 2")
    p(f"s_add_u32 s40, s40, s{SJ}")
    p("s_sub_u32 s40, s40, 28")
    p("s_lshl_b32 s40, s40, 2")
    p(f"s_add_u32 s40, s40, s{SW}")
    p(f"s_mul_i32 s44, s{SW}, 24576")
    p("v_lshrrev_b32 v2, 2, v0")
    p(f"v_mul_u32_u24 v3, {D*2}, v2")
    p("v_and_b32 v4, 3, v0")
    p("v_lshl_add_u32 v3, v4, 4, v3")
    p("v_cmp_gt_u32 vcc, 12, v2")
    p("v_mov_b32 v5, 0x7ff00000")
    p("v_cndmask_b32 v4, v5, v3, vcc")
    p("v_lshrrev_b32 v5, 4, v0")
    p("v_and_b32 v6, 1, v5")
    p("v_lshrrev_b32 v5, 1, v5")
    p("v_lshrrev_b32 v7, 2, v0")
    p("v_and_b32 v7, 3, v7")
    p("v_lshl_add_u32 v5, v5, 2, v7")
    p("v_lshlrev_b32 v5, 6, v5")
    p("v_lshl_add_u32 v5, v6, 5, v5")
    p("v_and_b32 v6, 3, v0")
    p("v_lshl_add_u32 v5, v6, 3, v5")
    p("v_add_u32 v5, s44, v5")
    NI=10
    for i in range(NI):
        f=50+i
        p(f"s_add_u32 s{f}, s40, {128*i}")
        p(f"s_add_u32 m0, s44, {i*1024}")
        p(f"s_cmp_ge_u32 s{f}, 1232")
        p(f"s_cbranch_scc1 P_SKIP{i}")
        p(f"s_mul_i32 s41, s{f}, 745")
        p("s_lshr_b32 s41, s41, 16")
        p("s_mul_i32 s42, s41, 88")
        p(f"s_sub_u32 s42, s{f}, s42")
        p("s_lshl_b32 s41, s41, 6")
        p("s_cmp_ge_u32 s42, 32")
        p(f"s_cbranch_scc1 P_OUT{i}")
        p("s_lshr_b32 s43, s42, 1")
        p("s_mul_i32 s43, s43, 28")
        p("s_and_b32 s45, s42, 1")
        p("s_lshl_b32 s46, s45, 4")
        p("s_add_u32 s43, s43, s46")
        p(f"s_mul_i32 s43, s43, {D*2}")
        p("s_add_u32 s43, s43, s41")
        p("s_cmp_eq_u32 s45, 1")
        p(f"s_cbranch_scc1 P_PAD{i}")
        p(f"buffer_load_dwordx4 v3, s[{AUX}:{AUX+3}], s43 offen lds", tag='pd')
        p(f"s_branch P_SKIP{i}")
        p.label(f"P_PAD{i}")
        p(f"buffer_load_dwordx4 v4, s[{AUX}:{AUX+3}], s43 offen lds", tag='pd')
        p(f"s_branch P_SKIP{i}")
        p.label(f"P_OUT{i}")
        p("s_sub_u32 s43, s42, 32")
        p("s_lshl_b32 s43, s43, 4")
        p(f"s_mul_i32 s43, s43, {D*2}")
        p("s_add_u32 s43, s43, s41")
        p(f"buffer_load_dwordx4 v3, s[{AUX2}:{AUX2+3}], s43 offen lds", tag='pd')
        p.label(f"P_SKIP{i}")
    p("s_waitcnt vmcnt(0)")
    for i in range(NI):
        p(f"ds_read_b64_tr_b16 {v(16+4*i,2)}, v5 offset:{i*1024}")
        p(f"ds_read_b64_tr_b16 {v(16+4*i+2,2)}, v5 offset:{i*1024+512}")
    p("s_waitcnt lgkmcnt(0)")
    for i in range(NI):
        f=50+i
        p(f"s_cmp_ge_u32 s{f}, 1232")
        p(f"s_cbranch_scc1 P_SK2{i}")
        p(f"s_lshl_b32 s41, s{f}, 10")
        p(f"s_add_u32 s41, s41, {WS_WC}")
        p(f"buffer_store_dwordx4 {v(16+4*i,4)}, v1, s[{WS}:{WS+3}], s41 offen{SM()}")
        p.label(f"P_SK2{i}")

def gen(force_fallback=False):
    p=Prog(); prologue(p)
    n0=PR.n
    p.begin_alt()
    p.alt_branch()
    p("s_mov_b32 s48, 0"); p("s_mov_b32 s49, -1")
    if ONLY=='g': p("s_branch K2_END")
    attention(p, force_fallback); attention_publish(p)
    stamp(p,'published')
    role_sync(p,0,"A_SYNC")
    stamp(p,'barrier')
    attention_finish(p)
    stamp(p,'finished')
    p(f"s_lshl_b32 s62, s{SQB}, 2")
    p(f"s_add_u32 s62, s62, s{SW}")
    signal(p, 62, SHEAD)
    stamp(p,'end')
    p(f"s_cmp_ge_u32 s{SJ}, 28")
    p("s_cbranch_scc1 K2_AEXIT")
    final_attention(p)
    namesA=list(PR.names); PR.n=n0; PR.names=PR.names[:n0]
    p.alt_branch()
    p.label("K2_ROLEB")
    p(f"s_cmp_ge_u32 s{SJ}, 28")
    p("s_cbranch_scc1 K2_WPF" if WPF else "s_cbranch_scc1 K2_END")
    if ONLY=='a': p("s_branch K2_END")
    gemm(p); stamp(p,'loopend'); gemm_publish(p)
    stamp(p,'published')
    role_sync(p,1,"B_SYNC")
    stamp(p,'barrier')
    gemm_finish(p)
    p(f"v_mov_b32 v12, {LDS_CNT+8}")
    p("v_mov_b32 v13, 1")
    p("s_mov_b64 exec, 1")
    p("ds_add_u32 v12, v13")
    p("s_mov_b64 exec, -1")
    stamp(p,'finished')
    p(f"s_add_u32 s62, s{SFB}, 16")
    signal(p, 46, 62)
    stamp(p,'end')
    final_gemm(p)
    namesB=list(PR.names)
    p.end_alt()
    PR.n=24; PR.names=[]
    final_common(p)
    dump_stamps(p,8)
    p("s_branch K2_END")
    texts=[p.finalize()]
    p=Prog()
    p.label("K2_AEXIT")
    dump_stamps(p,8)
    p("s_branch K2_END")
    if WPF:
        p.label("K2_WPF")
        lds_wait(p, 0, 1, "K2_WPFW")
        p(f"s_sub_u32 s61, s{SJ}, 28")
        p("s_lshl_b32 s61, s61, 2")
        p(f"s_add_u32 s61, s61, s{SW}")
        p(f"s_mul_i32 s61, s61, {616*128}")
        p(f"s_add_u32 s61, s61, {WS_WC}")
        p("v_lshlrev_b32 v12, 7, v0")
        for i in range(10):
            p(f"buffer_load_dword v13, v12, s[{WS}:{WS+3}], s61 offen")
            if i<9: p("s_add_u32 s61, s61, 8192")
    p.label("K2_END")
    p("s_endpgm")
    if PR.on:
        pad=lambda L: L+['-']*(24-len(L))
        open('k2_stamps.txt','w').write(" ".join(pad(namesA)+PR.names)+"\n"+" ".join(pad(namesB)+PR.names))
    texts.append(p.finalize())
    return "".join(texts)

def kernel(**opt):
    global PROF, PR, PRION, SKIPDMA, PRIOPAT, STARTPRIO, ONLY, WPF
    WPF=int(opt.get('wpf',1))
    global DELAYW
    DELAYW=int(opt.get('dw',1))
    global ROT, KINT, EARLYRING
    EARLYRING=int(opt.get('er',1))
    ROT=int(opt.get('rot',2)); KINT=int(opt.get('kint',1))
    ONLY=opt.get('only','')
    STARTPRIO=int(opt.get('sp',0))
    PRIOPAT=opt.get('pp','')
    SKIPDMA=int(opt.get('skipdma',0))
    PRION=int(opt.get('prion',0))
    PROF=bool(int(opt.get('prof',0)))
    PR=Prof(PROF,WS,23,WS_ST+(1<<19),vr=15)
    return dict(name="k2_kernel", text=gen(force_fallback=bool(int(opt.get('ff',0)))), grid=256, block=512, lds=LDS_K2, vgpr=256, sgpr=102, accum=256)
```

```python
from asmlib import *
from layout import *
import layout
def SM(): return layout.STMOD
from k3 import srd

L_X   = 0
L_P1  = 112*1024
L_P2  = 16*1024
L_P3  = 72*1024
L_SM  = 156*1024
L_CS  = L_SM
L_XS  = L_SM + 1024
L_ZS  = L_SM + 3072
L_T   = 0
LDS_K1 = 160*1024
def p1_addr(kc): return L_P1 + kc*8192 if kc < 5 else (kc-5)*8192

SW8=16; SW=17; SG=18; SRB=19; SCB=20; STAG=21; SSB=22
WS=24; XS=28; WIN=32; WQ=36; DBG=40
SP1=44; SP2=45; SP3=46; SXB=47; ST=48; ST2=49; SEP=50
VL16=1; VXD=(2,3); VWD=4; VXR=(5,6,7,8); VWR=9; VCSR=10; VSR=11; VP3D=(12,13,14); VP3R=15
MU=16; RS_=17; VT=18
CS=48; WF=64; ZH=80; ACC=(96,112); XF=128
VH=240
ONES=244; CSW=249; CSR=247; CSD=124; NMF=42; EPV=39

from profutil import Prof
PR=Prof(False,WS,SW8,0)
def stamp(p,name): PR.stamp(p,str(name))

def prologue(p):
    p("s_cmp_ge_u32 s2, 256")
    p("s_cbranch_scc1 K1_END")
    p(f"s_load_dwordx2 s[4:5], s[0:1], {KA_WS}")
    p(f"s_load_dwordx2 s[6:7], s[0:1], {KA_X}")
    p(f"s_load_dwordx2 s[8:9], s[0:1], {KA_WIN}")
    p(f"s_load_dwordx2 s[10:11], s[0:1], {KA_WQKV}")
    p(f"s_load_dwordx2 s[12:13], s[0:1], {KA_DBG}")
    p(f"s_load_dwordx2 s[92:93], s[0:1], {KA_WSP}")
    p("v_lshrrev_b32 v1, 6, v0")
    p("v_and_b32 v0, 63, v0")
    p(f"v_readfirstlane_b32 s{SW8}, v1")
    p("s_and_b32 s14, s2, 7")
    p("s_lshr_b32 s15, s2, 3")
    p("s_and_b32 s51, s14, 1")
    p("s_lshl_b32 s51, s51, 3")
    p("s_and_b32 s52, s15, 7")
    p(f"s_add_u32 s{SRB}, s51, s52")
    p("s_lshr_b32 s51, s14, 1")
    p("s_lshl_b32 s51, s51, 2")
    p("s_lshr_b32 s52, s15, 3")
    p(f"s_add_u32 s{SCB}, s51, s52")
    p(f"s_and_b32 s{SW}, s{SW8}, 3")
    p(f"s_lshr_b32 s{SG}, s{SW8}, 2")
    p(f"s_lshl_b32 s{SSB}, s{SRB}, 2")
    p(f"s_add_u32 s{SSB}, s{SSB}, s{SW}")
    p(f"v_lshlrev_b32 v{VL16}, 4, v0")
    p("s_waitcnt lgkmcnt(0)")
    srd(p, WS, 4, WS_SIZE); srd(p, XS, 6, S*D*2); srd(p, WIN, 8, D*F*2); srd(p, WQ, 10, D*3*D*2); srd(p, DBG, 12, 256)
    PR.real(p,62)
    stamp(p,'start')
    p("v_lshrrev_b32 v18, 3, v0")
    p(f"v_mul_u32_u24 v19, {D*2}, v18")
    p("v_lshrrev_b32 v20, 4, v0")
    p("v_and_b32 v21, 7, v0")
    p("v_xor_b32 v22, v21, v20")
    p(f"v_lshl_add_u32 v{VXD[0]}, v22, 4, v19")
    p("v_xor_b32 v22, 4, v22")
    p(f"v_lshl_add_u32 v{VXD[1]}, v22, 4, v19")
    p(f"v_mul_u32_u24 v19, {F*2}, v18")
    p("v_and_b32 v20, 1, v20")
    p("v_lshlrev_b32 v20, 2, v20")
    p("v_xor_b32 v22, v21, v20")
    p(f"v_lshl_add_u32 v{VWD}, v22, 4, v19")
    p(f"s_lshl_b32 s51, s{SRB}, 7")
    p(f"s_lshl_b32 s52, s{SW}, 5")
    p("s_add_u32 s51, s51, s52")
    p(f"s_mul_i32 s{SXB}, s51, {D*2}")
    p(f"s_lshl_b32 s51, s{SRB}, 7")
    p(f"s_lshl_b32 s52, s{SW8}, 4")
    p("s_add_u32 s51, s51, s52")
    p(f"s_mul_i32 s94, s51, {D*2}")
    p(f"s_lshl_b32 s51, s{SCB}, 7")
    p(f"s_add_u32 s52, s51, {FH*2}")
    p(f"s_sub_u32 s53, s51, 256")
    p(f"s_cmp_lt_u32 s{SCB}, 14")
    p(f"s_cselect_b32 s{SP1}, s52, s53")
    p(f"s_lshl_b32 s95, s{SW8}, 3")
    p(f"s_mul_i32 s95, s95, {F*2}")
    p(f"s_add_u32 s95, s95, s{SP1}")
    p(f"s_sub_u32 s54, s{SCB}, 2")
    p(f"s_cmp_lt_u32 s54, 12")
    p(f"s_cselect_b32 s{SP2}, s53, 0")
    p(f"s_lshl_b32 s51, s{SW}, 4")
    p(f"s_mul_i32 s51, s51, {F*2}")
    p(f"s_add_u32 s{SP1}, s{SP1}, s51")
    p(f"s_add_u32 s{SP2}, s{SP2}, s51")

def dma_x(p, kc, which=range(4)):
    for i in which:
        p(f"s_lshl_b32 m0, s{SW}, 12")
        p(f"s_add_u32 m0, m0, {L_X+kc*16384+i*1024}")
        p(f"s_add_u32 s{ST}, s{SXB}, {i*8*D*2+kc*128}")
        p(f"buffer_load_dwordx4 v{VXD[i&1]}, s[{XS}:{XS+3}], s{ST} offen lds", tag=f'x{kc}')
def dma_pair(p, sbase, kc, ldsaddr, tag, which=range(2)):
    for i in which:
        p(f"s_lshl_b32 m0, s{SW}, 11")
        p(f"s_add_u32 m0, m0, {ldsaddr+i*1024}")
        p(f"s_add_u32 s{ST}, s{sbase}, {kc*64*F*2+i*8*F*2}")
        p(f"buffer_load_dwordx4 v{VWD}, s[{WIN}:{WIN+3}], s{ST} offen lds", tag=tag)

def dma_init(p, kc):
    for i in range(2):
        p(f"s_lshl_b32 m0, s{SW8}, 11")
        p(f"s_add_u32 m0, m0, {L_X+kc*16384+i*1024}")
        p(f"s_add_u32 s{ST}, s94, {i*8*D*2+kc*128}")
        p(f"buffer_load_dwordx4 v{VXD[i]}, s[{XS}:{XS+3}], s{ST} offen lds", tag=f'x{kc}')
    p(f"s_lshl_b32 m0, s{SW8}, 10")
    p(f"s_add_u32 m0, m0, {p1_addr(kc)}")
    p(f"s_add_u32 s{ST}, s95, {kc*64*F*2}")
    p(f"buffer_load_dwordx4 v{VWD}, s[{WIN}:{WIN+3}], s{ST} offen lds", tag=f'w{kc}')

def setup_reads(p):
    p("v_and_b32 v18, 31, v0")
    p("v_lshrrev_b32 v19, 5, v0")
    p("v_lshrrev_b32 v20, 1, v18")
    p("v_and_b32 v20, 7, v20")
    p("v_xor_b32 v20, v20, v19")
    p("v_lshlrev_b32 v18, 7, v18")
    p(f"s_lshl_b32 s51, s{SW}, 12")
    p(f"v_add_u32 v18, s51, v18")
    for u in range(4):
        p(f"v_xor_b32 v21, {2*u}, v20")
        p(f"v_lshl_add_u32 v{VXR[u]}, v21, 4, v18")
    p("v_lshrrev_b32 v18, 4, v0")
    p("v_and_b32 v19, 1, v18")
    p("v_lshrrev_b32 v18, 1, v18")
    p("v_lshrrev_b32 v20, 2, v0")
    p("v_and_b32 v20, 3, v20")
    p("v_and_b32 v21, 3, v0")
    p("v_lshl_add_u32 v22, v18, 3, v20")
    p("v_lshlrev_b32 v23, 7, v22")
    p("v_lshrrev_b32 v24, 1, v21")
    p("v_lshl_add_u32 v24, v19, 1, v24")
    p(f"s_lshl_b32 s51, s{SG}, 2")
    p("v_add_u32 v24, s51, v24")
    p("v_lshrrev_b32 v25, 1, v20")
    p("v_lshlrev_b32 v25, 2, v25")
    p("v_xor_b32 v24, v24, v25")
    p("v_lshl_add_u32 v23, v24, 4, v23")
    p("v_and_b32 v24, 1, v21")
    p(f"v_lshl_add_u32 v{VWR}, v24, 3, v23")
    p(f"s_lshl_b32 s51, s{SW}, 11")
    p(f"v_add_u32 v{VCSR}, s51, v{VWR}")
    p(f"v_add_u32 v{VH+12}, {L_P1}, v{VWR}")
    p(f"v_add_u32 v{VH+13}, {L_P1}, v{VCSR}")
    for r in range(3):
        p(f"v_add_u32 v23, {64*r}, v0")
        p(f"v_mul_u32_u24 v24, 43691, v23")
        p(f"v_lshrrev_b32 v24, 19, v24")
        p(f"v_mul_u32_u24 v25, 12, v24")
        p(f"v_sub_u32 v25, v23, v25")
        p(f"v_mul_u32_u24 v24, {3*D*2}, v24")
        p(f"v_lshl_add_u32 v{VP3D[r]}, v25, 4, v24")
    p("v_mul_u32_u24 v23, 192, v22")
    p("v_lshl_add_u32 v23, v19, 5, v23")
    p(f"v_lshl_add_u32 v{VP3R}, v21, 3, v23")
    p(f"v_add_u32 v{VP3R}, {L_P3}, v{VP3R}")
    p("v_and_b32 v23, 31, v0")
    p("v_mul_u32_u24 v23, 72, v23")
    p("v_lshrrev_b32 v24, 5, v0")
    p("v_lshl_add_u32 v23, v24, 3, v23")
    p(f"s_mul_i32 s51, s{SW8}, 2304")
    p(f"s_add_u32 s51, s51, {L_T}")
    p(f"v_add_u32 v{VH+1}, s51, v23")
    p("v_lshl_add_u32 v23, v18, 2, v20")
    p("v_mul_u32_u24 v23, 72, v23")
    p("v_lshl_add_u32 v23, v19, 5, v23")
    p("v_lshl_add_u32 v23, v21, 3, v23")
    p(f"v_add_u32 v{VH+2}, s51, v23")
    p("v_mul_u32_u24 v23, 72, v22")
    p("v_lshl_add_u32 v23, v19, 5, v23")
    p("v_lshl_add_u32 v23, v21, 3, v23")
    p(f"v_add_u32 v{VH+3}, s51, v23")
    p("v_and_b32 v23, 31, v0")
    p("v_lshlrev_b32 v23, 2, v23")
    p(f"s_lshl_b32 s51, s{SG}, 9")
    p(f"s_add_u32 s51, s51, {L_CS}")
    p(f"v_add_u32 v23, s51, v23")
    p(f"s_lshl_b32 s52, s{SW}, 7")
    p(f"v_add_u32 v{CSW}, s52, v23")
    p("v_lshrrev_b32 v24, 5, v0")
    p(f"v_lshl_add_u32 v{CSR}, v24, 8, v23")
    p(f"v_mov_b32 v{ONES}, 0x3f803f80")
    p(f"v_mov_b32 v{ONES+1}, 0x3f803f80")
    p("v_and_b32 v23, 31, v0")
    p(f"s_lshl_b32 s51, s{SW}, 5")
    p("v_add_u32 v23, s51, v23")
    p(f"v_lshlrev_b32 v{VH+6}, 3, v23")

def cs_zero(p):
    for r in range(4): p(f"v_mov_b32 v{CSD+r}, 0")
def cs_step(p, fr):
    p(f"v_mfma_f32_4x4x4_16b_bf16 {v(CSD,4)}, {v(ONES,2)}, {v(fr,2)}, {v(CSD,4)}")
    p(f"v_mfma_f32_4x4x4_16b_bf16 {v(CSD,4)}, {v(ONES,2)}, {v(fr+2,2)}, {v(CSD,4)}")
def cs_flush(p):
    p(f"v_mov_b32 v46, v{CSD}")
    p(f"v_mov_b32 v33, v{CSD}")
    p(f"v_permlane32_swap_b32 v46, v33")
    p(f"v_add_f32 v46, v46, v33")
    p(f"ds_write_b32 v{CSW}, v46", tag='cs')
def meanfix(p, acc):
    F=28
    p(f"ds_read_b32 v26, v{CSR}")
    p(f"ds_read_b32 v27, v{CSR} offset:128")
    for k in range(2):
        a=26+k; d=F+2*k
        p(f"v_and_b32 v32, 0xffff0000, v{a}")
        p(f"v_sub_f32 v33, v{a}, v32")
        p(f"v_lshrrev_b32 v{d+1}, 16, v32")
        p(f"v_and_or_b32 v{d}, v33, s60, v{d+1}")
    p(f"v_mfma_f32_32x32x16_bf16 {v(acc,16)}, {v(F,4)}, {v(NMF,4)}, {v(acc,16)}")

def x_reads(kc):
    L=[]
    if kc==4: L+=[f"v_add_u32 v{r}, 0x10000, v{r}" for r in list(VXR)]
    xo=(kc*16384)&0xffff
    for u in range(4): L.append(f"ds_read_b128 {v(XF+4*(4*kc+u),4)}, v{VXR[u]} offset:{xo}")
    return L

def p0_compute(p):
    for r in range(40,44): p(f"v_mov_b32 v{r}, 0")
    cs_zero(p)
    CF=(28,120)
    def wreads(kc):
        if kc<5: wa,ca,wb=VH+12,VH+13,kc*8192
        else: wa,ca,wb=VWR,VCSR,(kc-5)*8192
        W=48+16*(kc&1); L=[]
        for u in range(4):
            L.append([f"ds_read_b64_tr_b16 {v(W+4*u,2)}, v{wa} offset:{wb+u*2048}",
                      f"ds_read_b64_tr_b16 {v(W+4*u+2,2)}, v{wa} offset:{wb+u*2048+512}"])
        cf=CF[kc&1]
        L.append([f"ds_read_b64_tr_b16 {v(cf,2)}, v{ca} offset:{wb}", f"ds_read_b64_tr_b16 {v(cf+2,2)}, v{ca} offset:{wb+512}"])
        return L
    for kc in range(8):
        if kc<7:
            if kc<3: p.wait(f'x{kc}', f'w{kc}')
            p("s_barrier")
            if kc in (0,6): stamp(p,f'c{kc}bar')
        xr = x_reads(kc) if kc<7 else []
        wr = wreads(kc) if kc<7 else []
        if kc==0:
            for x in xr: p(x)
            for gr in wr:
                for x in gr: p(x)
        else:
            c=kc-1; W=48+16*(c&1)
            sf=XF+16*c
            for u in range(4):
                cc = "0" if (c==0 and u==0) else v(ACC[0],16)
                p(f"v_mfma_f32_32x32x16_bf16 {v(ACC[0],16)}, {v(W+4*u,4)}, {v(XF+4*(4*c+u),4)}, {cc}")
                if u==0:
                    for x in xr: p(x)
                elif kc<7:
                    for gr in wr[[0,0,2,4][u]:[0,2,4,5][u]]:
                        for x in gr: p(x)
            cs_step(p, CF[c&1])
            for d in range(16):
                p(f"v_dot2c_f32_bf16 v{40+(d&1)}, v{sf+d}, v{ONES}")
                p(f"v_dot2c_f32_bf16 v{42+(d&1)}, v{sf+d}, v{sf+d}")
        if kc<7: p("s_waitcnt lgkmcnt(0)")
    cs_flush(p)
    p("v_add_f32 v40, v40, v41")
    p("v_add_f32 v41, v42, v43")
    p("v_mov_b32 v42, v40"); p("v_mov_b32 v43, v41")
    p("v_permlane32_swap_b32 v42, v40")
    p("v_permlane32_swap_b32 v43, v41")
    p("v_add_f32 v40, v40, v42")
    p("v_add_f32 v41, v41, v43")
    p(f"v_mul_f32 v{MU}, 0x3b124925, v40")
    p(f"v_mul_f32 v41, 0x3b124925, v41")
    p(f"v_fma_f32 v41, -v{MU}, v{MU}, v41")
    p(f"v_add_f32 v41, 0x3727c5ac, v41")
    p(f"v_rsq_f32 v{RS_}, v41")
    p(f"v_add_u32 v18, {L_XS}, v{VH+6}")
    p(f"ds_write_b64 v18, {v(MU,2)}", tag='xs')
    nmf(p)
    p.wait('xs','cs')
    p("s_barrier")

def p0_load(p):
    def dmas(kc):
        G=[]
        n=kc+3
        if n<7:
            G.append(lambda q,n=n: dma_x(q,n))
            G.append(lambda q,n=n: dma_pair(q, SP1, n, p1_addr(n), f'w{n}'))
        if kc==4: G+= [lambda q,i=i: dma_pair(q, SP2, i, L_P2+i*8192, 'p2') for i in (0,1,2)]
        if kc==5: G+= [lambda q,i=i: dma_pair(q, SP2, i, L_P2+i*8192, 'p2') for i in (3,4,5)]
        if kc==6: G+= [lambda q: dma_pair(q, SP2, 6, L_P2+6*8192, 'p2')]
        return G
    for kc in range(7):
        p.wait(f'x{kc}', f'w{kc}')
        p("s_barrier")
        if kc in (0,6): stamp(p,f'c{kc}bar')
        for x in x_reads(kc): p(x)
        for f in dmas(kc): f(p)
        p("s_waitcnt lgkmcnt(0)")
    p("s_barrier")
    p(f"v_add_u32 v18, {L_XS}, v{VH+6}")
    p(f"ds_read_b64 {v(MU,2)}, v18")
    nmf(p)

def nmf(p):
    p(f"v_sub_f32 v20, 0, v{MU}")
    p(f"v_and_b32 v21, 0xffff0000, v20")
    p(f"v_sub_f32 v22, v20, v21")
    p(f"v_lshrrev_b32 v23, 16, v21")
    p(f"v_or_b32 v{NMF}, v21, v23")
    p(f"v_lshrrev_b32 v{NMF+1}, 16, v22")
    p(f"v_mov_b32 v{NMF+2}, v{NMF}")
    p(f"v_mov_b32 v{NMF+3}, v{NMF+1}")

def dma_p3_groups(firsts):
    G=[]
    for n0 in firsts:
        def setup(q,n0=n0):
            q(f"s_add_u32 s88, s{SW}, {n0}")
            q(f"s_mul_i32 s87, s88, {16*3*D*2}")
            q(f"s_add_u32 s87, s87, s63")
            q(f"s_mul_i32 s89, s88, 3072")
        for r in range(3):
            def one(q,r=r,setup=setup):
                if r==0: setup(q)
                q(f"s_add_u32 m0, s89, {L_P3+r*1024}")
                q("s_nop 0")
                q(f"buffer_load_dwordx4 v{VP3D[r]}, s[{WQ}:{WQ+3}], s87 offen lds", tag='p3')
            G.append(one)
    return G

def center(p, acc, scale_v):
    meanfix(p, acc)
    for r in range(16):
        p(f"v_mul_f32 v{acc+r}, v{acc+r}, v{scale_v}")

def gelu(p, acc, dst):
    T=18
    for b in (0,8):
        R=range(b,b+8)
        for r in R: p(f"v_mul_f32 v{T+r-b}, v{acc+r}, v{acc+r}")
        for r in R: p(f"v_fma_f32 v{T+r-b}, v{T+r-b}, s56, v47")
        for r in R: p(f"v_mul_f32 v{T+r-b}, v{T+r-b}, v{acc+r}")
        for r in R: p(f"v_exp_f32 v{T+r-b}, v{T+r-b}")
        for r in R: p(f"v_add_f32 v{T+r-b}, 1.0, v{T+r-b}")
        for r in R: p(f"v_rcp_f32 v{T+r-b}, v{T+r-b}")
        for r in R: p(f"v_mul_f32 v{dst+r}, v{acc+r}, v{T+r-b}")

def pack(p, src, dst):
    for i in range(8): p(f"v_cvt_pk_bf16_f32 v{dst+i}, v{src+2*i}, v{src+2*i+1}")
def store2(p, src, sreg, off=0):
    p(f"buffer_store_dwordx4 {v(src,4)}, v{VL16}, s[{WS}:{WS+3}], s{sreg} offen offset:{off}{SM()}")
    p(f"buffer_store_dwordx4 {v(src+4,4)}, v{VL16}, s[{WS}:{WS+3}], s{sreg} offen offset:{off+1024}{SM()}")
def transpose(p, src, dst, traddr, order):
    for q in range(4):
        p(f"ds_write_b64 v{VH+1}, {v(src+2*q,2)} offset:{q*16}", tag='tw')
    p.wait('tw')
    for u in range(2):
        for ii in range(2):
            row = (16*u+8*ii) if order=='v' else (16*u+4*ii)
            p(f"ds_read_b64_tr_b16 {v(dst+4*u+2*ii,2)}, v{traddr} offset:{row*72}")

def epi_z1(p, acc, pairreg, g):
    center(p, acc, RS_)
    gelu(p, acc, acc)
    pack(p, acc, 34)
    p(f"s_mul_i32 s51, s{SSB}, {28*2048}")
    p(f"s_lshl_b32 s52, s{pairreg}, 12")
    p("s_add_u32 s51, s51, s52")
    p(f"s_add_u32 s51, s51, {WS_Z1+g*2048}")
    store2(p, 34, 51)

def epi_z2(p, acc):
    center(p, acc, RS_)
    gelu(p, acc, ZH)
    p(f"v_mov_b32 v34, v{ZH}")
    p(f"v_mul_f32 v35, v{ZH}, v{ZH}")
    for r in range(1,16):
        p(f"v_add_f32 v34, v34, v{ZH+r}")
        p(f"v_fmac_f32 v35, v{ZH+r}, v{ZH+r}")
    p("v_mov_b32 v36, v34"); p("v_mov_b32 v37, v35")
    p("v_permlane32_swap_b32 v36, v34")
    p("v_permlane32_swap_b32 v37, v35")
    p("v_add_f32 v34, v34, v36")
    p("v_add_f32 v35, v35, v37")

LA=5
def mtile(p, acc, addr, off_fn, cs_addr, cs_off_fn, addr2=None, cs_addr2=None, part='all', sides=(), split=43008):
    NB=8; WB=48
    def rd(ks):
        b=WB+4*(ks%NB)
        for ii in range(2):
            o=off_fn(ks,ii); r=addr
            if o>=split and addr2 is not None: r=addr2; o-=split
            p(f"ds_read_b64_tr_b16 {v(b+2*ii,2)}, v{r} offset:{o}")
    def csrd(kc):
        for ii in range(2):
            o=cs_off_fn(kc,ii); r=cs_addr
            if o>=split and cs_addr2 is not None: r=cs_addr2; o-=split
            p(f"ds_read_b64_tr_b16 {v(26+4*(kc&1)+2*ii,2)}, v{r} offset:{o}")
    if part in ('all','pre'):
        for ks in range(LA): rd(ks)
        csrd(0)
    if part=='pre': return
    cs_zero(p)
    sched_rd={3*kc-2:kc for kc in range(1,7)}
    sched_st={3*kc+1:kc for kc in range(7)}
    for ks in range(28):
        c = "0" if ks==0 else v(acc,16)
        p(f"v_mfma_f32_32x32x16_bf16 {v(acc,16)}, {v(WB+4*(ks%NB),4)}, {v(XF+4*ks,4)}, {c}")
        if ks+LA<28: rd(ks+LA)
        if ks in sched_st: cs_step(p, 26+4*(sched_st[ks]&1))
        if ks in sched_rd: csrd(sched_rd[ks])
        if ks==23: cs_flush(p)
        if ks%3==2 and ks//3<len(sides): sides[ks//3](p)

def epi_head(p, acc, treg, lab):
    p(f"s_lshr_b32 s52, s{treg}, 4")
    p(f"s_and_b32 s53, s{treg}, 15")
    p(f"v_mov_b32 v46, v{RS_}")
    p("s_cmp_lg_u32 s52, 0")
    p(f"s_cbranch_scc1 {lab}_NQ")
    p(f"v_mul_f32 v46, 0x3e8b97f6, v46")
    p.label(f"{lab}_NQ")
    center(p, acc, 46)
    p("s_cmp_eq_u32 s52, 0"); p("s_cselect_b32 s54, 0, 1.0")
    p("s_cmp_eq_u32 s52, 1"); p("s_cselect_b32 s55, 1.0, 0")
    p("s_mov_b64 exec, s[58:59]")
    p(f"v_mov_b32 v{acc+12}, s54"); p(f"v_mov_b32 v{acc+13}, s55"); p(f"v_mov_b32 v{acc+14}, 0"); p(f"v_mov_b32 v{acc+15}, 0")
    p("s_mov_b64 exec, -1")
    pack(p, acc, 34)
    p(f"s_lshl_b32 s54, s53, 6")
    p(f"s_add_u32 s54, s54, s{SSB}")
    p("s_cmp_eq_u32 s52, 2")
    p(f"s_cbranch_scc1 {lab}_V")
    p("s_lshl_b32 s55, s54, 11")
    p(f"s_add_u32 s55, s55, {WS_Q}")
    p("s_lshl_b32 s54, s54, 12")
    p(f"s_add_u32 s54, s54, {WS_KV}")
    p("s_cmp_eq_u32 s52, 0")
    p("s_cselect_b32 s54, s55, s54")
    p.begin_opt()
    store2(p, 34, 54)
    p(f"s_branch {lab}_D")
    p.end_opt()
    p.label(f"{lab}_V")
    p.begin_opt()
    transpose(p, 34, 20, VH+2, 'v')
    p("s_lshl_b32 s54, s54, 12")
    p(f"s_add_u32 s54, s54, {WS_KV+2048}")
    store2(p, 20, 54)
    p.end_opt()
    p.label(f"{lab}_D")

def publish_z2(p):
    p(f"v_add_u32 v18, {L_ZS}, v{VH+6}")
    p("ds_read_b64 v[36:37], v18")
    p("v_add_f32 v36, v36, v34")
    p("v_add_f32 v38, v37, v35")
    p(f"v_mov_b32 v37, s{STAG}")
    p(f"v_mov_b32 v39, s{STAG}")
    p(f"s_mul_i32 s51, s{SSB}, {14*512}")
    p(f"s_lshl_b32 s52, s{SCB}, 9")
    p("s_add_u32 s51, s51, s52")
    p(f"s_add_u32 s51, s51, {WS_ST}")
    p("s_mov_b32 exec_hi, 0")
    p(f"buffer_store_dwordx4 v[36:39], v{VL16}, s[{WS}:{WS+3}], s51 offen sc1")
    p("s_mov_b64 exec, -1")

GR=48
def granule_loads(p):
    p(f"s_mul_i32 s90, s{SSB}, {14*512}")
    p(f"s_add_u32 s90, s90, {WS_ST}")
    for i in range(7):
        p(f"s_add_u32 s53, s90, {i*1024}")
        p(f"buffer_load_dwordx4 {v(GR+4*i,4)}, v{VL16}, s[{WS}:{WS+3}], s53 offen sc1", tag='gr')

def fin_stats(p, lab):
    p(f"s_mov_b32 s52, 0")
    p.wait('gr')
    p.label(f"{lab}_CHECK")
    p("s_mov_b64 s[54:55], 0")
    for i in range(7):
        p(f"v_cmp_ne_u32 vcc, s{STAG}, v{GR+4*i+1}")
        p("s_or_b64 s[54:55], s[54:55], vcc")
        p(f"v_cmp_ne_u32 vcc, s{STAG}, v{GR+4*i+3}")
        p("s_or_b64 s[54:55], s[54:55], vcc")
    p("s_cmp_eq_u64 s[54:55], 0")
    p(f"s_cbranch_scc1 {lab}_POLLDONE")
    p("s_add_u32 s52, s52, 1")
    p("s_cmp_gt_u32 s52, 0x40000")
    p(f"s_cbranch_scc1 {lab}_POLLDONE")
    granule_loads(p)
    p("s_waitcnt vmcnt(0)")
    p(f"s_branch {lab}_CHECK")
    p.label(f"{lab}_POLLDONE")
    stamp(p,'polled')
    a=GR
    p(f"v_add_f32 v34, v{a}, v{a+4}")
    p(f"v_add_f32 v35, v{a+2}, v{a+6}")
    for i in range(2,7):
        p(f"v_add_f32 v34, v34, v{a+4*i}")
        p(f"v_add_f32 v35, v35, v{a+4*i+2}")
    p("v_mov_b32 v36, v34"); p("v_mov_b32 v37, v35")
    p("v_permlane32_swap_b32 v36, v34")
    p("v_permlane32_swap_b32 v37, v35")
    p("v_add_f32 v34, v34, v36")
    p("v_add_f32 v35, v35, v37")
    p("v_mul_f32 v34, 0x3a924925, v34")
    p("v_mul_f32 v35, 0x3a924925, v35")
    p("v_fma_f32 v35, -v34, v34, v35")
    p("v_add_f32 v35, 0x3727c5ac, v35")
    p("v_rsq_f32 v35, v35")
    p(f"v_add_u32 v18, {L_ZS}, v{VH+6}")
    p("v_mul_f32 v34, v34, v35")
    p("ds_write_b64 v18, v[34:35]", tag='zf')
    if layout.FUSE: return
    p(f"s_sub_u32 s53, s{SW8}, 4")
    p(f"s_or_b32 s53, s53, s{SCB}")
    p("s_cmp_lg_u32 s53, 0")
    p(f"s_cbranch_scc1 {lab}_NOBUMP")
    p.begin_opt()
    p(f"v_mov_b32 v18, s{STAG}")
    p("s_mov_b64 exec, 1")
    p(f"buffer_store_dword v18, v{VH+8}, s[{WS}:{WS+3}], s{SEP} offen sc1")
    p("s_mov_b64 exec, -1")
    p.end_opt()
    p.label(f"{lab}_NOBUMP")

def fin_tile(p):
    for r in range(16):
        p(f"v_fma_f32 v{ZH+r}, v{ZH+r}, v35, -v34")
    pack(p, ZH, 36)
    transpose(p, 36, 20, VH+3, 'z')
    p(f"s_lshl_b32 s51, s{SCB}, 7")
    p(f"s_lshl_b32 s52, s{SSB}, 1")
    p("s_add_u32 s51, s51, s52")
    p("s_lshl_b32 s51, s51, 11")
    p(f"s_lshl_b32 s52, s{SG}, 10")
    p("s_add_u32 s51, s51, s52")
    p(f"s_add_u32 s51, s51, {WS_Z2}")
    p(f"buffer_store_dwordx4 {v(20,4)}, v{VL16}, s[{WS}:{WS+3}], s51 offen{SM()}")
    p(f"buffer_store_dwordx4 {v(24,4)}, v{VL16}, s[{WS}:{WS+3}], s51 offen offset:2048{SM()}")

def touch_wsp(p):
    srd(p, 76, 92, S*S*2)
    p(f"s_lshl_b32 s51, s2, 2")
    p(f"s_add_u32 s51, s51, s{SW}")
    p(f"s_lshl_b32 s51, s51, 13")
    p(f"v_lshlrev_b32 v11, 7, v0")
    p(f"buffer_load_dword v{VH}, v11, s[76:79], s51 offen")

def first_epi(p, g, lab, firsts, after_z2=None):
    G=dma_p3_groups(firsts)
    p(f"s_cmp_ge_u32 s{SCB}, 14")
    p(f"s_cbranch_scc1 {lab}_Z1")
    p.begin_alt(); p.alt_branch()
    main=capture(lambda q: epi_z2(q, ACC[0]))
    p.extend(interleave(main, [capture(f) for f in G], 14, 150))
    if after_z2: after_z2(p)
    p(f"s_branch {lab}_D")
    p.alt_branch()
    p.label(f"{lab}_Z1")
    p(f"s_sub_u32 s57, s{SCB}, 2")
    main=capture(lambda q: epi_z1(q, ACC[0], 57, g))
    p.extend(interleave(main, [capture(f) for f in G], 14, 130))
    p.end_alt()
    p.label(f"{lab}_D")

def first_mtile(p, sides=()):
    mtile(p, ACC[0], VH+12, lambda ks,ii: ks*2048+ii*512, VH+13, lambda kc,ii: kc*8192+ii*512, VWR, VCSR, sides=sides, split=5*8192)
def pair_mtile(p, g, part='all', sides=()):
    if part!='post':
        p(f"v_add_u32 v{VH+10}, {L_P2}, v{VWR}")
        p(f"v_add_u32 v{VH+11}, {L_P2}, v{VCSR}")
    mtile(p, ACC[0], VH+10, lambda ks,ii: ks*2048+ii*512, VH+11, lambda kc,ii: kc*8192+ii*512, part=part, sides=sides)
def head_mtile(p, t, part='all'):
    if part!='post':
        p(f"v_add_u32 v{VH+10}, {56*t}, v{VP3R}")
        p(f"s_mul_i32 s51, s{SW}, {16*192}")
        p(f"v_add_u32 v{VH+11}, s51, v{VH+10}")
        p(f"v_add_u32 v{VH+12}, 43008, v{VH+10}")
        p(f"v_add_u32 v{VH+13}, 43008, v{VH+11}")
    mtile(p, ACC[0], VH+10, lambda ks,ii: ks*16*192+ii*4*192, VH+11, lambda kc,ii: kc*64*192+ii*4*192, VH+12, VH+13, part=part)
def head_epi(p, t, lab):
    p(f"s_mul_i32 s62, s{SCB}, 3")
    if t: p(f"s_add_u32 s62, s62, {t}")
    epi_head(p, ACC[0], 62, lab)
def bar(p, name, *tags):
    stamp(p,name+'w')
    if tags: p.wait(*tags)
    stamp(p,name+'a')
    p("s_barrier")
    stamp(p,name)

def group_code(p, g):
    A = (g==0); L = "KA" if A else "KB"
    p(f"s_mul_i32 s63, s{SCB}, 168")
    if A:
        p0_compute(p)
        stamp(p,'p0end')
        def zs_out(q):
            q(f"v_add_u32 v18, {L_ZS}, v{VH+6}")
            q("ds_write_b64 v18, v[34:35]", tag='zs')
        first_epi(p, 0, L+"F", [0,8], zs_out)
        bar(p,'s1end','zs')
        p(f"s_sub_u32 s57, s{SCB}, 2")
        p("s_cmp_ge_u32 s57, 12")
        p(f"s_cbranch_scc1 {L}_NOSECOND")
        p.begin_alt(); p.alt_branch()
        pair_mtile(p, 0, sides=dma_p3_groups([12])); bar(p,'s2end','cs')
        main=capture(lambda q: epi_z1(q, ACC[0], 57, 0))
        p.extend(interleave(main, [capture(f) for f in dma_p3_groups([24])], 14, 80))
        if MALLPF: touch_wsp(p)
        bar(p,'s3end','p3')
        head_mtile(p, 0); bar(p,'s4end','cs')
        p(f"s_branch {L}_JOIN")
        p.alt_branch()
        p.label(f"{L}_NOSECOND")
        for f in dma_p3_groups([12,24]): f(p)
        bar(p,'sx','p3')
        head_mtile(p, 0); bar(p,'s4x','cs')
        p.end_alt()
        p.label(f"{L}_JOIN")
        head_epi(p, 0, L+"H0")
        head_mtile(p, 2, 'pre')
        bar(p,'s5end')
        head_mtile(p, 2, 'post'); bar(p,'s6end','cs')
        head_epi(p, 2, L+"H2")
        stamp(p,'headsE')
        p(f"s_cmp_ge_u32 s{SCB}, 14")
        p(f"s_cbranch_scc1 {L}_NOFIN")
        p.begin_opt()
        bar(p,'s7end')
        p(f"v_add_u32 v18, {L_ZS}, v{VH+6}")
        p("ds_read_b64 v[34:35], v18")
        fin_tile(p)
        p.end_opt()
        p.label(f"{L}_NOFIN")
    else:
        p0_load(p)
        stamp(p,'p0end')
        first_mtile(p, sides=dma_p3_groups([4]))
        bar(p,'s1end','cs','p2')
        p(f"s_sub_u32 s57, s{SCB}, 2")
        p("s_cmp_ge_u32 s57, 12")
        p(f"s_cbranch_scc1 {L}_NOSECOND")
        p.begin_alt(); p.alt_branch()
        main=capture(lambda q: epi_z2(q, ACC[0]))
        p.extend(interleave(main, [capture(f) for f in dma_p3_groups([16,20])], 14, 150))
        publish_z2(p)
        pair_mtile(p, 1, 'pre')
        bar(p,'s2end')
        pair_mtile(p, 1, 'post'); bar(p,'s3end','cs','p3')
        epi_z1(p, ACC[0], 57, 1)
        head_mtile(p, 1, 'pre')
        bar(p,'s4end')
        p(f"s_branch {L}_JOIN")
        p.alt_branch()
        p.label(f"{L}_NOSECOND")
        for f in dma_p3_groups([16,20]): f(p)
        bar(p,'sx','p3')
        first_epi(p, 1, L+"F", [], publish_z2)
        prep_issue(p)
        head_mtile(p, 1, 'pre')
        bar(p,'s4x')
        p.end_alt()
        p.label(f"{L}_JOIN")
        head_mtile(p, 1, 'post'); bar(p,'s5end','cs')
        p(f"s_cmp_ge_u32 s{SCB}, 14")
        p(f"s_cbranch_scc1 {L}_NOGL")
        p.begin_opt(); granule_loads(p); p.end_opt()
        p.label(f"{L}_NOGL")
        head_epi(p, 1, L+"H1")
        bar(p,'s6end')
        stamp(p,'headsE')
        p(f"s_cmp_ge_u32 s{SCB}, 14")
        p(f"s_cbranch_scc1 {L}_NOFIN")
        p.begin_opt()
        fin_stats(p, L)
        bar(p,'s7end','zf')
        fin_tile(p)
        p.end_opt()
        p.label(f"{L}_NOFIN")
        p(f"s_sub_u32 s57, s{SCB}, 2")
        p("s_cmp_lt_u32 s57, 12")
        p(f"s_cbranch_scc1 {L}_NOPREP")
        p.begin_opt(); prep_finish(p); p.end_opt()
        p.label(f"{L}_NOPREP")
    stamp(p,'end')
    PR.dump(p)
    if layout.FUSE:
        p("s_waitcnt vmcnt(0)")
        p("s_barrier")
        p("s_branch K2_FUSED")

def mall_prefetch(p, g):
    p(f"s_load_dwordx2 s[66:67], s[0:1], {KA_WSP if g else KA_WO}")
    if not g: p(f"s_load_dwordx2 s[70:71], s[0:1], {KA_WOUT}")
    p(f"s_sub_u32 s51, s{SCB}, 12")
    p(f"s_cmp_lt_u32 s{SCB}, 2")
    p(f"s_cselect_b32 s51, s{SCB}, s51")
    p(f"s_lshl_b32 s52, s{SRB}, 2")
    p("s_add_u32 s51, s51, s52")
    p("v_lshlrev_b32 v26, 7, v0")
    p("s_waitcnt lgkmcnt(0)")
    if g:
        srd(p, 72, 66, S*S*2)
        p("s_lshl_b32 s51, s51, 2")
        p(f"s_add_u32 s51, s51, s{SW}")
        p("s_lshl_b32 s51, s51, 15")
        for i in range(4):
            p(f"buffer_load_dword v27, v26, s[72:75], s51 offen")
            if i<3: p("s_add_u32 s51, s51, 8192")
    else:
        srd(p, 72, 66, D*D*2); srd(p, 76, 70, FH*D*2)
        p(f"s_mul_i32 s52, s51, {49*128}")
        p(f"s_mul_i32 s53, s51, {98*128}")
        p(f"s_sub_u32 s54, s{SW}, 1")
        p("s_min_u32 s54, s54, 1")
        p(f"s_mul_i32 s54, s54, {49*128}")
        p("s_add_u32 s53, s53, s54")
        p("v_min_u32 v28, 48, v0")
        p("v_lshlrev_b32 v28, 7, v28")
        p(f"s_cmp_lg_u32 s{SW}, 0")
        p.begin_alt()
        p("s_cbranch_scc1 K1_MPA")
        p.alt_branch()
        p(f"buffer_load_dword v27, v28, s[72:75], s52 offen")
        p("s_branch K1_MPB")
        p.alt_branch()
        p.label("K1_MPA")
        p(f"buffer_load_dword v27, v28, s[76:79], s53 offen")
        p.end_alt()
        p.label("K1_MPB")

NPREP=5
L_PREP=L_P2+4096
def prep_issue(p):
    p(f"s_load_dwordx2 s[66:67], s[0:1], {KA_WO}")
    p(f"s_load_dwordx2 s[68:69], s[0:1], {KA_WOUT}")
    p(f"s_sub_u32 s51, s{SCB}, 12")
    p(f"s_cmp_lt_u32 s{SCB}, 2")
    p(f"s_cselect_b32 s51, s{SCB}, s51")
    p(f"s_lshl_b32 s52, s{SRB}, 2")
    p("s_add_u32 s51, s51, s52")
    p("s_lshl_b32 s51, s51, 2")
    p(f"s_add_u32 s70, s51, s{SW}")
    p(f"s_mul_i32 s71, s{SW}, {NPREP*1024}")
    p(f"s_add_u32 s71, s71, {L_PREP}")
    p(f"s_mov_b32 s81, {D*D*2}")
    p(f"s_mov_b32 s82, {FH*D*2}")
    p("v_lshrrev_b32 v26, 2, v0")
    p(f"v_mul_u32_u24 v27, {D*2}, v26")
    p("v_and_b32 v28, 3, v0")
    p("v_lshl_add_u32 v27, v28, 4, v27")
    p("v_cmp_le_u32 vcc, 12, v26")
    p("v_mov_b32 v28, 0")
    p("v_mov_b32 v29, 0x7ff00000")
    p("v_cndmask_b32 v28, v28, v29, vcc")
    p("s_waitcnt lgkmcnt(0)")
    for i in range(NPREP):
        p(f"s_add_u32 s80, s70, {256*i}")
        p(f"s_mul_i32 s51, s80, 745")
        p("s_lshr_b32 s51, s51, 16")
        p("s_mul_i32 s52, s51, 88")
        p(f"s_sub_u32 s52, s80, s52")
        p("s_lshl_b32 s51, s51, 6")
        p("s_lshr_b32 s53, s52, 1")
        p("s_mul_i32 s53, s53, 28")
        p("s_and_b32 s54, s52, 1")
        p("s_lshl_b32 s55, s54, 4")
        p("s_add_u32 s53, s53, s55")
        p("s_sub_u32 s55, s52, 32")
        p("s_lshl_b32 s55, s55, 4")
        p("s_cmp_lt_u32 s52, 32")
        p("s_cselect_b32 s53, s53, s55")
        p("s_cselect_b32 s72, s66, s68")
        p("s_cselect_b32 s73, s67, s69")
        p("s_cselect_b32 s74, s81, s82")
        p("s_mov_b32 s75, 0x00020000")
        p("s_cselect_b32 s54, s54, 0")
        p(f"s_mul_i32 s53, s53, {D*2}")
        p("s_add_u32 s53, s53, s51")
        p("s_cmp_lt_u32 s80, 1232")
        p("s_cselect_b32 s53, s53, 0x7ff00000")
        p("s_sub_u32 s54, 0, s54")
        p("v_and_b32 v29, s54, v28")
        p("v_add_u32 v29, v29, v27")
        p(f"s_add_u32 m0, s71, {i*1024}")
        p("s_nop 0")
        p("buffer_load_dwordx4 v29, s[72:75], s53 offen lds", tag='pd')

def prep_finish(p):
    p("v_lshrrev_b32 v26, 4, v0")
    p("v_and_b32 v27, 1, v26")
    p("v_lshrrev_b32 v26, 1, v26")
    p("v_lshrrev_b32 v28, 2, v0")
    p("v_and_b32 v28, 3, v28")
    p("v_lshl_add_u32 v26, v26, 2, v28")
    p("v_lshlrev_b32 v26, 6, v26")
    p("v_lshl_add_u32 v26, v27, 5, v26")
    p("v_and_b32 v27, 3, v0")
    p("v_lshl_add_u32 v26, v27, 3, v26")
    p("v_add_u32 v26, s71, v26")
    p("s_waitcnt vmcnt(0)")
    for i in range(NPREP):
        p(f"ds_read_b64_tr_b16 {v(96+4*i,2)}, v26 offset:{i*1024}")
        p(f"ds_read_b64_tr_b16 {v(96+4*i+2,2)}, v26 offset:{i*1024+512}")
    for i in range(NPREP):
        p(f"s_add_u32 s80, s70, {256*i}")
        p(f"s_lshl_b32 s51, s80, 10")
        p(f"s_add_u32 s51, s51, {WS_WC}")
        p("s_cmp_lt_u32 s80, 1232")
        p("s_cselect_b32 s51, s51, 0x7ff00000")
        p(f"buffer_store_dwordx4 {v(96+4*i,4)}, v1, s[{WS}:{WS+3}], s51 offen{SM()}")

def KNAME(): return (NAME+'_kernel') if layout.FUSE else 'k1_kernel'
def code_prefetch(p):
    p(f"s_cmp_lg_u32 s{SW8}, 7")
    p("s_cbranch_scc1 K1_CP1")
    p.begin_opt()
    p("s_getpc_b64 s[66:67]")
    p.label("K1_PC")
    p(f"s_sub_u32 s66, s66, K1_PC-{KNAME()}")
    p("s_subb_u32 s67, s67, 0")
    p("s_mul_i32 s51, s15, 10")
    p("v_add_u32 v26, s51, v0")
    p("s_lshl_b32 s52, s2, 1")
    p(f"s_add_u32 s52, s52, ({'K2_FUSED' if layout.FUSE else 'k2_kernel'}-{KNAME()})/128-10")
    p("v_add_u32 v27, s52, v0")
    p("v_cmp_gt_u32 vcc, 10, v0")
    p("v_cndmask_b32 v26, v27, v26, vcc")
    p("v_lshlrev_b32 v26, 7, v26")
    p(f"v_min_u32 v26, CODE_END-{KNAME()}-4, v26")
    p("v_cmp_gt_u32 vcc, 12, v0")
    p("s_and_saveexec_b64 s[68:69], vcc")
    p("global_load_dword v27, v26, s[66:67]")
    p("s_mov_b64 exec, s[68:69]")
    p.end_opt()
    p.label("K1_CP1")

def l2_prefetch(p):
    T=38
    p("s_and_b32 s51, s15, 7")
    p("s_lshr_b32 s52, s15, 3")
    p.begin_alt()
    p(f"s_cmp_ge_u32 s{SW8}, 2")
    p("s_cbranch_scc1 K1_PF2")
    p.alt_branch()
    p("s_lshl_b32 s53, s52, 7")
    p(f"s_lshl_b32 s54, s{SW8}, 6")
    p("s_add_u32 s53, s53, s54")
    p("v_add_u32 v18, s53, v0")
    p("v_lshrrev_b32 v19, 2, v18")
    p(f"v_mul_u32_u24 v19, {D*2}, v19")
    p("v_and_b32 v18, 3, v18")
    p("v_lshl_add_u32 v19, v18, 7, v19")
    p(f"s_mul_i32 s53, s{SRB}, {128*D*2}")
    p(f"s_add_u32 s53, s53, {3*128}")
    p(f"buffer_load_dword v{T}, v19, s[{XS}:{XS+3}], s53 offen")
    p("s_branch K1_PFD")
    p.alt_branch()
    p.label("K1_PF2")
    p(f"s_cmp_ge_u32 s{SW8}, 4")
    p("s_cbranch_scc1 K1_PF4")
    p(f"s_lshl_b32 s53, s{SW8}, 3")
    p(f"s_mul_i32 s53, s53, {F*2}")
    p(f"s_cmp_eq_u32 s{SW8}, 2")
    p(f"s_cselect_b32 s54, s{SP1}, s{SP2}")
    p("s_sub_u32 s54, s54, s53")
    p(f"s_cmp_eq_u32 s{SW8}, 2")
    p("s_cselect_b32 s55, 32, 56")
    p("s_cselect_b32 s53, 192, 0")
    p("s_mul_i32 s61, s51, s55")
    p("s_add_u32 s53, s53, s61")
    p("s_sub_u32 s55, s55, 1")
    p("v_min_u32 v18, s55, v0")
    p("v_add_u32 v18, s53, v18")
    p(f"v_mul_u32_u24 v19, {F*2}, v18")
    p(f"buffer_load_dword v{T}, v19, s[{WIN}:{WIN+3}], s54 offen")
    p("s_branch K1_PFD")
    p.alt_branch()
    p.label("K1_PF4")
    p(f"s_sub_u32 s53, s{SW8}, 4")
    p("s_min_u32 s53, s53, 2")
    p("s_mul_i32 s53, s53, 94")
    p(f"s_mul_i32 s54, s{SCB}, 168")
    p("s_add_u32 s54, s54, s53")
    p("s_mul_i32 s53, s51, 56")
    p("v_min_u32 v18, 55, v0")
    p("v_add_u32 v18, s53, v18")
    p(f"v_mul_u32_u24 v19, {3*D*2}, v18")
    p(f"buffer_load_dword v{T}, v19, s[{WQ}:{WQ+3}], s54 offen")
    p.end_alt()
    p.label("K1_PFD")

def epoch_load(p):
    if layout.FUSE: p(f"s_mov_b32 s{SEP}, {WS_EP}")
    else:
        p(f"s_lshl_b32 s{SEP}, s{SRB}, 7")
        p(f"s_add_u32 s{SEP}, s{SEP}, {WS_EP}")
    p(f"buffer_load_dword v{EPV}, v{VH+8}, s[{WS}:{WS+3}], s{SEP} offen sc1")

def gen():
    p=Prog(); prologue(p)
    p("s_mov_b32 s56, 0xbdd2d3e8")
    p("s_mov_b32 s58, 0"); p("s_mov_b32 s59, -1")
    p("s_mov_b32 s60, 0xffff0000")
    p(f"v_mov_b32 v{VH+8}, 0")
    p(f"s_cmp_ge_u32 s{SW8}, 4")
    p("s_cbranch_scc1 K1_GROUPB")
    p.begin_alt(); p.alt_branch()
    n0=PR.n; names0=list(PR.names)
    if layout.FUSE: epoch_load(p)
    for kc in range(3): dma_init(p,kc)
    setup_reads(p)
    p("v_mov_b32 v47, 0xc0135761")
    if layout.FUSE:
        p(f"v_add_u32 v{EPV}, 1, v{EPV}")
        p(f"v_readfirstlane_b32 s{STAG}, v{EPV}")
    stamp(p,'setup')
    group_code(p, 0)
    namesA=list(PR.names); PR.n=n0; PR.names=list(names0)
    if not layout.FUSE: p("s_branch K1_END")
    p.alt_branch()
    p.label("K1_GROUPB")
    epoch_load(p)
    for kc in range(3): dma_init(p,kc)
    if CODEPF: code_prefetch(p)
    setup_reads(p)
    p("v_mov_b32 v47, 0xc0135761")
    p(f"v_add_u32 v{EPV}, 1, v{EPV}")
    p(f"v_readfirstlane_b32 s{STAG}, v{EPV}")
    stamp(p,'setup')
    group_code(p, 1)
    PR.namesA=namesA
    p.end_alt()
    p.label("K1_END")
    p("s_endpgm")
    return p

PREFETCH=False; MALLPF=False; CODEPF=True
def kernel(**opt):
    global PR, PREFETCH, MALLPF, CODEPF
    MALLPF=bool(int(opt.get('mpf',0))); CODEPF=bool(int(opt.get('cpf',1)))
    PREFETCH=bool(int(opt.get('pf',0)))
    PR=Prof(bool(int(opt.get('prof',0))),WS,SW8,WS_EP+(1<<19))
    text=gen().finalize()
    if PR.on: open('k1_stamps.txt','w').write(" ".join(PR.namesA)+"\n"+" ".join(PR.names))
    return dict(name="k1_kernel", text=text, grid=256, block=512, lds=LDS_K1, vgpr=256, sgpr=102, accum=256)
```

```python
from asmlib import *
from layout import *
import layout
def SM(): return layout.STMOD
def LM(): return ' sc1' if layout.FUSE else ''
from k3 import srd

LDS_RING = 0
LDS_AC   = 98304
LDS_AM   = 147456
LDS_CNT  = 147456 + 4096
LDS_K2   = 147456 + 4096 + 64

SW=16; SHEAD=17; SQB=18; STB=19; SFB=20; SJ=21; SX=22
WS=24; WSP=28; AUX=32; AUX2=36; STAG=15; XS3=88; OUT3=92

from profutil import Prof
PR=Prof(False,WS,23,0)
PROF=False
PRION=0
SKIPDMA=0
PRIOPAT=''
STARTPRIO=0
ONLY=''
WPF=1
DELAYW=1
ROT=2
KINT=1
EARLYRING=1
def stamp(p,name): PR.stamp(p,str(name))
def dump_stamps(p,n): PR.dump(p)

def role_sync(p, idx, lab):
    p(f"v_mov_b32 v12, {LDS_CNT+4*idx}")
    p("v_mov_b32 v13, 1")
    p("s_mov_b64 exec, 1")
    p("ds_add_u32 v12, v13")
    p("s_mov_b64 exec, -1")
    p.label(lab)
    p("ds_read_b32 v13, v12")
    p("s_waitcnt lgkmcnt(0)")
    p("v_readfirstlane_b32 s61, v13")
    p("s_cmp_lt_u32 s61, 4")
    p(f"s_cbranch_scc1 {lab}")

def prologue(p):
    F=layout.FUSE
    if F:
        p.label("K2_FUSED")
        p("s_mov_b32 s23, s16")
        p(f"s_mov_b32 s{STAG}, s21")
    else:
        p("s_cmp_ge_u32 s2, 256")
        p("s_cbranch_scc1 K2_END")
        p(f"s_load_dwordx2 s[4:5], s[0:1], {KA_WS}")
    p(f"s_load_dwordx2 s[6:7], s[0:1], {KA_WSP}")
    p(f"s_load_dwordx2 s[8:9], s[0:1], {KA_BSP}")
    p(f"s_load_dwordx2 s[10:11], s[0:1], {KA_X}")
    p(f"s_load_dwordx2 s[12:13], s[0:1], {KA_OUT}")
    if not F:
        p("v_lshrrev_b32 v1, 6, v0")
        p("v_and_b32 v0, 63, v0")
        p("v_readfirstlane_b32 s23, v1")
    p(f"s_and_b32 s{SX}, s2, 7")
    p(f"s_lshr_b32 s{SJ}, s2, 3")
    p(f"s_and_b32 s{SW}, s23, 3")
    p("v_lshlrev_b32 v1, 4, v0")
    if F:
        p("s_cmp_lg_u32 s23, 0")
        p("s_cbranch_scc1 K2_NOF1")
        p.begin_opt()
        p("v_lshlrev_b32 v2, 10, v0")
        p(f"v_mov_b32 v3, s{STAG}")
        p("s_lshl_b32 s63, s2, 2")
        p(f"s_add_u32 s63, s63, {WS_F1}")
        p("s_mov_b64 exec, 0xff")
        p(f"buffer_store_dword v3, v2, s[{WS}:{WS+3}], s63 offen sc1")
        p("s_mov_b64 exec, -1")
        p.end_opt()
        p.label("K2_NOF1")
    p("s_waitcnt lgkmcnt(0)")
    if not F:
        srd(p, WS, 4, WS_SIZE)
        p(f"s_mov_b32 s63, {WS_EP}")
        p("v_mov_b32 v14, 0")
        p(f"buffer_load_dword v14, v14, s[{WS}:{WS+3}], s63 offen sc1")
    p(f"v_mov_b32 v2, {LDS_CNT}")
    p("v_mov_b32 v3, 0")
    p("ds_write_b32 v2, v3")
    p("ds_write_b32 v2, v3 offset:4")
    p("ds_write_b32 v2, v3 offset:8")
    p("s_waitcnt lgkmcnt(0)")
    if not F: p("s_barrier")
    PR.real(p,62)
    stamp(p,'start')
    p("s_cmp_ge_u32 s23, 4")
    p("s_cbranch_scc1 K2_ROLEB")

def phase1_wait(p):
    p("s_cmp_lg_u32 s23, 0")
    p("s_cbranch_scc1 K2_P1GO")
    p.begin_opt()
    p(f"s_lshl_b32 s63, s{SX}, 10")
    p(f"s_add_u32 s63, s63, {WS_F1}")
    p("s_mov_b32 s62, 0")
    p.label("K2_P1POLL")
    p(f"buffer_load_dwordx4 v[4:7], v1, s[{WS}:{WS+3}], s63 offen sc1")
    p("s_waitcnt vmcnt(0)")
    p(f"v_cmp_ne_u32 s[64:65], s{STAG}, v4")
    p(f"v_cmp_ne_u32 s[66:67], s{STAG}, v5")
    p(f"v_cmp_ne_u32 s[68:69], s{STAG}, v6")
    p(f"v_cmp_ne_u32 s[70:71], s{STAG}, v7")
    p("s_or_b64 s[64:65], s[64:65], s[66:67]")
    p("s_or_b64 s[68:69], s[68:69], s[70:71]")
    p("s_or_b64 s[64:65], s[64:65], s[68:69]")
    p("s_cmp_eq_u64 s[64:65], 0")
    p("s_cbranch_scc1 K2_P1OK")
    p("s_add_u32 s62, s62, 1")
    p("s_cmp_lt_u32 s62, 0x40000")
    p("s_cbranch_scc1 K2_P1POLL")
    p.label("K2_P1OK")
    p("s_cmp_lg_u32 s2, 0")
    p("s_cbranch_scc1 K2_P1GO")
    p(f"s_mov_b32 s63, {WS_EP}")
    p(f"v_mov_b32 v3, s{STAG}")
    p("v_mov_b32 v2, 0")
    p("s_mov_b64 exec, 1")
    p(f"buffer_store_dword v3, v2, s[{WS}:{WS+3}], s63 offen sc1")
    p("s_mov_b64 exec, -1")
    p.end_opt()
    p.label("K2_P1GO")
    p("s_barrier")

Q0=16; O0=48; S_=[112,128]; P_=[144,152]; KV0=160; ME=224; T0=228
def kvb(b): return KV0+16*b

def attention(p, force_fallback=False):
    SKV=40; SQ=41; SNT=42; SOFF=43; SK=44; SCNT=45; SIT=46
    p(f"s_lshr_b32 s40, s{SJ}, 4")
    p(f"s_lshl_b32 s41, s{SX}, 1")
    p(f"s_add_u32 s{SHEAD}, s40, s41")
    p(f"s_and_b32 s{SQB}, s{SJ}, 15")
    p(f"s_lshl_b32 s40, s{SHEAD}, 17")
    p(f"s_lshl_b32 s41, s{SQB}, 13")
    p(f"s_add_u32 s47, s40, s41")
    if WS_Q: p(f"s_add_u32 s47, s47, {WS_Q}")
    for rho in range(4):
        p(f"s_add_u32 s40, s{SW}, {rho}")
        p("s_and_b32 s40, s40, 3")
        p("s_lshl_b32 s40, s40, 11")
        p("s_add_u32 s40, s40, s47")
        p(f"buffer_load_dwordx4 {v(Q0+8*rho,4)}, v1, s[{WS}:{WS+3}], s40 offen{LM()}")
        p(f"buffer_load_dwordx4 {v(Q0+8*rho+4,4)}, v1, s[{WS}:{WS+3}], s40 offen offset:1024{LM()}")
    p(f"s_lshl_b32 s40, s{SHEAD}, 18")
    p(f"s_lshl_b32 s41, s{SW}, 16")
    p(f"s_add_u32 s40, s40, s41")
    p(f"s_add_u32 s{SKV}, s40, {WS_KV}")
    p(f"s_mov_b32 s{SNT}, {16 if force_fallback else 1}")
    p(f"s_mov_b32 s{SOFF}, {'0' if force_fallback else '0x42800000'}")
    p.label("A_RETRY")
    for j in range(4): p(f"v_mov_b32 v{ME+j}, 0xff7fffff")
    p(f"s_mov_b32 s{SCNT}, s{SNT}")
    def ld_tile(t_imm_base_sreg, b, part):
        for i in range(2):
            p(f"buffer_load_dwordx4 {v(kvb(b)+8*part+4*i,4)}, v1, s[{WS}:{WS+3}], s{t_imm_base_sreg} offen offset:{(2*part+i)*1024}{LM()}")
    ld_tile(SKV, 0, 0)
    if EARLYRING:
        ld_tile(SKV, 0, 1)
        p(f"s_add_u32 s{SK}, s{SKV}, 4096")
        for t in range(1,3):
            ld_tile(SK, t, 0); ld_tile(SK, t, 1)
            p(f"s_add_u32 s{SK}, s{SK}, 4096")
    p(f"s_mov_b32 s62, s{SKV}")
    p.label("A_MAXLOOP")
    for j in range(4):
        Sx = S_[j&1]
        p(f"v_mfma_f32_32x32x16_bf16 {v(Sx,16)}, {v(kvb(0),4)}, {v(Q0+8*j,4)}, 0")
        p(f"v_mfma_f32_32x32x16_bf16 {v(Sx,16)}, {v(kvb(0)+4,4)}, {v(Q0+8*j+4,4)}, {v(Sx,16)}")
        if j>0:
            Sy=S_[(j-1)&1]
            maxtree(p,Sy,ME+j-1)
    maxtree(p,S_[1],ME+3)
    p(f"s_sub_u32 s{SCNT}, s{SCNT}, 1")
    p(f"s_cmp_eq_u32 s{SCNT}, 0")
    p("s_cbranch_scc1 A_MAXDONE")
    p.begin_opt()
    p("s_add_u32 s62, s62, 4096")
    ld_tile(62, 0, 0)
    p("s_waitcnt vmcnt(0)")
    p("s_branch A_MAXLOOP")
    p.end_opt()
    p.label("A_MAXDONE")
    stamp(p,'maxdone')
    p(f"s_cmp_eq_u32 s{SNT}, 1")
    p("s_cbranch_scc1 A_KEEPK")
    p.begin_opt()
    ld_tile(SKV, 0, 0)
    p.end_opt()
    p.label("A_KEEPK")
    for j in range(4):
        m=ME+j; t=T0
        p(f"v_mov_b32 v{t}, v{m}")
        p(f"v_permlane32_swap_b32 v{t}, v{m}")
        p(f"v_max_f32 v{m}, v{t}, v{m}")
        p(f"v_add_f32 v{m}, s{SOFF}, v{m}")
        p(f"v_sub_f32 v{t}, 0, v{m}")
        p(f"v_and_b32 v{t+1}, 0xffff0000, v{t}")
        p(f"v_sub_f32 v{t+2}, v{t}, v{t+1}")
        p(f"v_and_b32 v{t+2}, 0xffff0000, v{t+2}")
        p(f"v_add_f32 v{t+3}, v{t+1}, v{t+2}")
        p(f"v_sub_f32 v{m}, 0, v{t+3}")
        p(f"v_lshrrev_b32 v{t+1}, 16, v{t+1}")
        p(f"v_or_b32 v{t+1}, v{t+1}, v{t+2}")
        p(f"s_mov_b64 exec, s[48:49]")
        p(f"v_mov_b32 v{Q0+8*j+6}, v{t+1}")
        p(f"s_mov_b64 exec, -1")
    def QK(u):
        j=u&3; b=(u>>2)&3; Sx=S_[u&1]
        return [f"v_mfma_f32_32x32x16_bf16 {v(Sx,16)}, {v(kvb(b),4)}, {v(Q0+8*j,4)}, 0",
                f"v_mfma_f32_32x32x16_bf16 {v(Sx,16)}, {v(kvb(b)+4,4)}, {v(Q0+8*j+4,4)}, {v(Sx,16)}"]
    def PV(u):
        j=u&3; b=(u>>2)&3; Px=P_[u&1]; O=O0+16*j
        return [f"v_mfma_f32_32x32x16_bf16 {v(O,16)}, {v(kvb(b)+8,4)}, {v(Px,4)}, {v(O,16)}",
                f"v_mfma_f32_32x32x16_bf16 {v(O,16)}, {v(kvb(b)+12,4)}, {v(Px+4,4)}, {v(O,16)}"]
    for r in range(8): p(f"v_mov_b32 v{kvb(3)+8+r}, 0")
    for m_ in QK(0): p(m_)
    main=capture(lambda q: ([q(f"v_mov_b32 v{O0+r}, 0") for r in range(64)], [q(f"v_mov_b32 v{P_[1]+r}, 0") for r in range(8)]))
    if EARLYRING: p.extend(main)
    else:
        def ringload(q, t, b, k):
            q(f"buffer_load_dwordx4 {v(kvb(b)+4*k,4)}, v1, s[{WS}:{WS+3}], s{SK} offen offset:{k*1024}{LM()}")
        sides=[]
        p(f"s_mov_b32 s{SK}, s{SKV}")
        sides.append(capture(lambda q: ringload(q,0,0,2))); sides.append(capture(lambda q: (ringload(q,0,0,3), q(f"s_add_u32 s{SK}, s{SK}, 4096"))))
        for t in (1,2):
            for k in range(4):
                sides.append(capture(lambda q,t=t,k=k: (ringload(q,t,t,k), q(f"s_add_u32 s{SK}, s{SK}, 4096") if k==3 else None)))
        p.extend(interleave(main, sides, 0, 70))
    def period(u, loads):
        Sx=S_[u&1]; Px=P_[u&1]
        qk=QK(u+1); pv=PV(u-1)
        ms=[qk[0],pv[0],qk[1],pv[1]]
        ex=[f"v_exp_f32 v{Sx+i}, v{Sx+i}" for i in range(16)]
        cv=[f"v_cvt_pk_bf16_f32 v{Px+i}, v{Sx+2*i}, v{Sx+2*i+1}" for i in range(8)]
        for g in range(4):
            p(ms[g])
            if g < len(loads) and loads[g]:
                for x in loads[g]: p(x)
            for k in range(2):
                i=2*g+k
                p(ex[2*i]); p(ex[2*i+1])
                if i>0: p(cv[i-1])
        p(cv[7])
    def iteration(last):
        for tl in range(4):
            for j in range(4):
                u=4*tl+j
                loads=[None]*4
                nb=(tl+3)&3
                doload = (not last) or tl==0
                if doload and j==0:
                    loads[2]=[f"buffer_load_dwordx4 {v(kvb(nb),4)}, v1, s[{WS}:{WS+3}], s{SK} offen offset:0{LM()}"]
                    loads[3]=[f"buffer_load_dwordx4 {v(kvb(nb)+4,4)}, v1, s[{WS}:{WS+3}], s{SK} offen offset:1024{LM()}"]
                if doload and j==1:
                    loads[0]=[f"buffer_load_dwordx4 {v(kvb(nb)+8,4)}, v1, s[{WS}:{WS+3}], s{SK} offen offset:2048{LM()}"]
                    loads[1]=[f"buffer_load_dwordx4 {v(kvb(nb)+12,4)}, v1, s[{WS}:{WS+3}], s{SK} offen offset:3072{LM()}",
                              f"s_add_u32 s{SK}, s{SK}, 4096"]
                period(u,loads)
    stamp(p,'loopstart')
    p(f"s_mov_b32 s{SIT}, 3")
    p.begin_loop(visits=3)
    p.label("A_LOOP")
    iteration(False)
    p(f"s_sub_u32 s{SIT}, s{SIT}, 1")
    p(f"s_cmp_lg_u32 s{SIT}, 0")
    p("s_cbranch_scc1 A_LOOP")
    p.end_loop()
    iteration(True)
    for m_ in PV(63): p(m_)
    stamp(p,'loopend')
    p("s_mov_b32 s50, 0x71800000")
    p("s_mov_b64 s[52:53], 0")
    for j in range(4):
        p(f"v_cmp_ngt_f32 vcc, s50, v{O0+16*j+12}")
        p("s_or_b64 s[52:53], s[52:53], vcc")
    p(f"s_cmp_eq_u32 s53, 0")
    p("s_cbranch_scc1 A_OK")
    p(f"s_cmp_eq_u32 s{SNT}, 16")
    p("s_cbranch_scc1 A_OK")
    p(f"s_mov_b32 s{SNT}, 16")
    p(f"s_mov_b32 s{SOFF}, 0")
    p(f"s_mov_b64 exec, s[48:49]")
    for j in range(4): p(f"v_mov_b32 v{Q0+8*j+6}, 0")
    p(f"s_mov_b64 exec, -1")
    p("s_branch A_RETRY")
    p.label("A_OK")

def maxtree(p, Sy, dst):
    t=T0
    for i in range(4):
        p(f"v_max3_f32 v{t+i}, v{Sy+4*i}, v{Sy+4*i+1}, v{Sy+4*i+2}")
    p(f"v_max3_f32 v{t}, v{t}, v{Sy+3}, v{Sy+7}")
    p(f"v_max3_f32 v{t+1}, v{t+1}, v{Sy+11}, v{Sy+15}")
    p(f"v_max3_f32 v{t}, v{t}, v{t+2}, v{t+3}")
    p(f"v_max3_f32 v{dst}, v{dst}, v{t}, v{t+1}")

def attention_publish(p):
    p(f"s_mul_i32 s40, s{SW}, 12288")
    p(f"s_add_u32 s40, s40, {LDS_AC}")
    p(f"v_add_u32 v2, s40, v1")
    for rho in range(1,4):
        for q in range(4):
            p(f"ds_write_b128 v2, {v(O0+16*rho+4*q,4)} offset:{(rho-1)*4096+q*1024}", tag='apub')
    p(f"v_and_b32 v3, 31, v0")
    p(f"v_lshlrev_b32 v3, 2, v3")
    p(f"s_lshl_b32 s40, s{SW}, 10")
    p(f"s_add_u32 s40, s40, {LDS_AM}")
    p(f"v_add_u32 v4, s40, v3")
    for rho in range(4):
        p(f"v_log_f32 v{T0+rho}, v{O0+16*rho+12}")
    for rho in range(4):
        p(f"v_add_f32 v{T0+rho}, v{T0+rho}, v{ME+rho}")
    p(f"s_mov_b64 exec, s[48:49]")
    for rho in range(4):
        p(f"ds_write_b32 v4, v{ME+rho} offset:{rho*256}", tag='apub')
        p(f"ds_write_b32 v4, v{T0+rho} offset:{rho*256+128}", tag='apub')
    p(f"s_mov_b64 exec, -1")
    p.wait('apub')

def attention_finish(p):
    R=112
    MM=160; LG=164
    for rho in range(4):
        p(f"s_sub_u32 s40, s{SW}, {rho}")
        p("s_and_b32 s40, s40, 3")
        p("s_lshl_b32 s41, s40, 10")
        p(f"s_add_u32 s41, s41, {LDS_AM+rho*256}")
        p(f"v_add_u32 v4, s41, v3")
        p(f"ds_read_b32 v{MM+rho}, v4")
        p(f"ds_read_b32 v{LG+rho}, v4 offset:128")
        if rho>0:
            p("s_mul_i32 s41, s40, 12288")
            p(f"s_add_u32 s41, s41, {LDS_AC+(rho-1)*4096}")
            p(f"v_add_u32 v2, s41, v1")
            for q in range(4):
                p(f"ds_read_b128 {v(R+16*(rho-1)+4*q,4)}, v2 offset:{q*1024}")
    t=T0
    p(f"v_max3_f32 v{t}, v{LG}, v{LG+1}, v{LG+2}")
    p(f"v_max_f32 v{t}, v{t}, v{LG+3}")
    for rho in range(4):
        p(f"v_sub_f32 v{LG+rho}, v{LG+rho}, v{t}")
        p(f"v_sub_f32 v{MM+rho}, v{MM+rho}, v{t}")
    for rho in range(4):
        p(f"v_exp_f32 v{LG+rho}, v{LG+rho}")
        p(f"v_exp_f32 v{MM+rho}, v{MM+rho}")
    p(f"v_add_f32 v{LG}, v{LG}, v{LG+1}")
    p(f"v_add_f32 v{LG+2}, v{LG+2}, v{LG+3}")
    p(f"v_add_f32 v{LG}, v{LG}, v{LG+2}")
    p(f"v_rcp_f32 v{LG}, v{LG}")
    for rho in range(4):
        p(f"v_mul_f32 v{MM+rho}, v{MM+rho}, v{LG}")
    for r in range(16):
        p(f"v_mul_f32 v{O0+r}, v{O0+r}, v{MM}")
    for rho in range(1,4):
        for r in range(16):
            p(f"v_fmac_f32 v{O0+r}, v{R+16*(rho-1)+r}, v{MM+rho}")
    p(f"s_mov_b64 exec, s[48:49]")
    for r in range(12,16): p(f"v_mov_b32 v{O0+r}, 0")
    p(f"s_mov_b64 exec, -1")
    for i in range(8):
        p(f"v_cvt_pk_bf16_f32 v{R+i}, v{O0+2*i}, v{O0+2*i+1}")
    p(f"s_lshl_b32 s40, s{SQB}, 2")
    p(f"s_add_u32 s40, s40, s{SW}")
    p(f"s_mul_i32 s40, s40, {88*1024}")
    p(f"s_lshl_b32 s41, s{SHEAD}, 11")
    p(f"s_add_u32 s40, s40, s41")
    p(f"s_add_u32 s40, s40, {WS_H}")
    p(f"buffer_store_dwordx4 {v(R,4)}, v1, s[{WS}:{WS+3}], s40 offen{SM()}")
    p(f"buffer_store_dwordx4 {v(R+4,4)}, v1, s[{WS}:{WS+3}], s40 offen offset:1024{SM()}")

GACC=128; GA=64; GB=48
def gemm(p):
    SROW=[40,41,42,43]; SRING=44; SZ=45; ST=46
    VD=[2,3]; VR=[4,5,6,7]
    p(f"s_mul_i32 s46, s{SJ}, 37")
    p("s_lshr_b32 s46, s46, 8")
    p("s_mul_i32 s47, s46, 7")
    p(f"s_sub_u32 s47, s{SJ}, s47")
    p(f"s_lshr_b32 s48, s{SX}, 1")
    p("s_lshl_b32 s48, s48, 2")
    p(f"s_add_u32 s{STB}, s48, s46")
    p(f"s_and_b32 s48, s{SX}, 1")
    p("s_mul_i32 s48, s48, 7")
    p(f"s_add_u32 s{SFB}, s48, s47")
    srd(p, WSP, 6, S*S*2)
    srd(p, AUX, 8, S*2)
    for rho in range(4):
        p(f"s_add_u32 s46, s{SW}, {rho}")
        p("s_and_b32 s46, s46, 3")
        p("s_lshl_b32 s46, s46, 5")
        p(f"s_lshl_b32 s47, s{STB}, 7")
        p("s_add_u32 s46, s46, s47")
        p("s_lshl_b32 s46, s46, 12")
        p(f"s_lshl_b32 s47, s{SW}, {7 if KINT else 10}")
        p(f"s_add_u32 s{SROW[rho]}, s46, s47")
    p(f"s_mul_i32 s{SRING}, s{SW}, 24576")
    p(f"s_lshl_b32 s46, s{SFB}, 7")
    p(f"s_lshl_b32 s47, s{SW}, {2 if KINT else 5}")
    p("s_add_u32 s46, s46, s47")
    p("s_lshl_b32 s46, s46, 11")
    p(f"s_add_u32 s{SZ}, s46, {WS_Z2}")
    p("v_lshrrev_b32 v8, 3, v0")
    p("v_lshlrev_b32 v8, 12, v8")
    p("v_lshrrev_b32 v9, 4, v0")
    p("v_and_b32 v10, 7, v0")
    p("v_xor_b32 v11, v10, v9")
    p("v_lshl_add_u32 v2, v11, 4, v8")
    p("v_xor_b32 v11, 4, v11")
    p("v_lshl_add_u32 v3, v11, 4, v8")
    p("v_and_b32 v8, 31, v0")
    p("v_lshrrev_b32 v9, 5, v0")
    p("v_lshrrev_b32 v10, 1, v8")
    p("v_and_b32 v10, 7, v10")
    p("v_xor_b32 v10, v10, v9")
    p("v_lshlrev_b32 v8, 7, v8")
    p(f"v_add_u32 v8, s{SRING}, v8")
    for u in range(4):
        p(f"v_xor_b32 v11, {2*u}, v10")
        p(f"v_lshl_add_u32 v{VR[u]}, v11, 4, v8")
    SROT=52; SWO=[53,54]; SZO=[55,56]
    p(f"s_and_b32 s{SROT}, s{STB if ROT==1 else SFB}, { {3:1,4:3}.get(ROT,7) }")
    if ROT==3: p(f"s_lshl_b32 s{SROT}, s{SROT}, 2")
    if ROT==4: p(f"s_lshl_b32 s{SROT}, s{SROT}, 1")
    def chunk_offsets(sc):
        e=sc&1
        if ROT:
            p(f"s_add_u32 s57, s{SROT}, {sc}")
            p("s_and_b32 s57, s57, 7")
            p(f"s_lshl_b32 s{SWO[e]}, s57, {9 if KINT else 7}")
            p(f"s_lshl_b32 s57, s57, {15 if KINT else 13}")
            p(f"s_add_u32 s{SZO[e]}, s57, s{SZ}")
        else:
            p(f"s_mov_b32 s{SWO[e]}, {sc*(512 if KINT else 128)}")
            p(f"s_add_u32 s{SZO[e]}, s{SZ}, {sc*(32768 if KINT else 8192)}")
    done=set()
    def need(sc):
        if sc not in done: done.add(sc); chunk_offsets(sc)
    def dma(c, which=range(8)):
        sc=c>>1; th=c&1; slot=c%3
        need(sc)
        for i in which:
            if SKIPDMA and (i&1) and c>1: continue
            rho=2*th+(i>>2)
            p(f"s_add_u32 m0, s{SRING}, {slot*8192+i*1024}")
            p(f"s_add_u32 s{ST}, s{SROW[rho]}, s{SWO[sc&1]}")
            if i&3: p(f"s_add_u32 s{ST}, s{ST}, {(8*(i&3))*4096}")
            p(f"buffer_load_dwordx4 v{VD[i&1]}, s[{WSP}:{WSP+3}], s{ST} offen lds", tag=f'dma{slot}')
    def aload(sc, lo, hi):
        e=sc&1
        need(sc)
        for k in range(lo,hi):
            if k%4==0 or k==lo: p(f"s_add_u32 s{ST+1}, s{SZO[e]}, {(k&~3)*1024}")
            p(f"buffer_load_dwordx4 {v(GA+e*32+4*k,4)}, v1, s[{WS}:{WS+3}], s{ST+1} offen offset:{(k%4)*1024}{LM()}")
    def bread(c,u):
        slot=c%3; st=(c*4+u)&1
        for tl in range(2):
            p(f"ds_read_b128 {v(GB+st*8+4*tl,4)}, v{VR[u]} offset:{slot*8192+tl*4096}")
    if STARTPRIO: p("s_setprio 1")
    if layout.FUSE:
        dma(0); dma(1)
        p("s_barrier")
        aload(0,0,8)
    else:
        dma(0); aload(0,0,4); dma(1); aload(0,4,8)
    stamp(p,'issued')
    p.wait('dma0')
    bread(0,0)
    stamp(p,'loopstart')
    for c in range(16):
        if c in (2,4,8,12): stamp(p,f'c{c}')
        sc=c>>1; th=c&1; e=sc&1
        for u in range(4):
            if PRIOPAT:
                on = PRIOPAT[(c*4+u) % len(PRIOPAT)]=='1'
                prev = PRIOPAT[(c*4+u-1) % len(PRIOPAT)]=='1' if (c or u) else False
                if on!=prev: p(f"s_setprio {1 if on else 0}")
            if u<3: nxt=(c,u+1)
            else: nxt=(c+1,0) if c<15 else None
            st=(c*4+u)&1
            k=0
            for tl in range(2):
                for fi in range(2):
                    acc=GACC+((2*th+tl)*2+fi)*16
                    cc = "0" if (sc==0 and u==0) else v(acc,16)
                    p(f"v_mfma_f32_32x32x16_bf16 {v(acc,16)}, {v(GA+e*32+4*(u*2+fi),4)}, {v(GB+st*8+4*tl,4)}, {cc}")
                    if k==0 and nxt:
                        if nxt[0]!=c: p.wait(f'dma{nxt[0]%3}')
                        bread(*nxt)
                    slot=u*4+k
                    if c==0:
                        if slot<8: dma(2,[slot])
                        if slot==8 and STARTPRIO: p("s_setprio 0")
                    else:
                        if c+2<16 and slot<8: dma(c+2,[slot])
                    if sc+1<8 and slot in (9,11,13,15) and c>=0:
                        kk=4*th+(slot-9)//2
                        aload(sc+1, kk, kk+1)
                    k+=1
    if PRIOPAT: p("s_setprio 0")

def gemm_publish(p):
    p(f"v_add_u32 v2, s44, v1")
    for rho in range(1,4):
        for fi in range(2):
            for q in range(4):
                p(f"ds_write_b128 v2, {v(GACC+(rho*2+fi)*16+4*q,4)} offset:{(rho-1)*8192+fi*4096+q*1024}", tag='gpub')
    p(f"s_lshl_b32 s46, s{STB}, 2")
    p(f"s_add_u32 s46, s46, s{SW}")
    p(f"s_mul_i32 s47, s46, {28*2048}")
    p(f"s_lshl_b32 s48, s{SFB}, 12")
    p("s_add_u32 s47, s47, s48")
    p(f"s_add_u32 s47, s47, {WS_Z1}")
    for k in range(4):
        p(f"buffer_load_dwordx4 {v(16+4*k,4)}, v1, s[{WS}:{WS+3}], s47 offen offset:{k*1024}{LM()}")
    p("v_and_b32 v8, 31, v0")
    p("v_lshlrev_b32 v8, 1, v8")
    p("s_lshl_b32 s48, s46, 6")
    p(f"buffer_load_ushort v9, v8, s[{AUX}:{AUX+3}], s48 offen")
    p.wait('gpub')

def gemm_finish(p):
    R=32
    for rho in range(1,4):
        p(f"s_sub_u32 s47, s{SW}, {rho}")
        p("s_and_b32 s47, s47, 3")
        p("s_mul_i32 s47, s47, 24576")
        p(f"s_add_u32 s47, s47, {(rho-1)*8192}")
        p("v_add_u32 v2, s47, v1")
        for k in range(8):
            p(f"ds_read_b128 {v(R+32*(rho-1)+4*k,4)}, v2 offset:{k*1024}")
    p("v_lshlrev_b32 v9, 16, v9")
    for r in range(32):
        p(f"v_add_f32 v{GACC+r}, v{GACC+r}, v{R+r}")
        p(f"v_add_f32 v{R+32+r}, v{R+32+r}, v{R+64+r}")
        p(f"v_add_f32 v{GACC+r}, v{GACC+r}, v9")
        p(f"v_add_f32 v{GACC+r}, v{GACC+r}, v{R+32+r}")
    for d in range(16):
        p(f"v_lshlrev_b32 v10, 16, v{16+d}")
        p(f"v_and_b32 v11, 0xffff0000, v{16+d}")
        p(f"v_mul_f32 v{GACC+2*d}, v{GACC+2*d}, v10")
        p(f"v_mul_f32 v{GACC+2*d+1}, v{GACC+2*d+1}, v11")
        p(f"v_cvt_pk_bf16_f32 v{R+d}, v{GACC+2*d}, v{GACC+2*d+1}")
    p(f"s_mul_i32 s47, s46, {88*1024}")
    p(f"s_lshl_b32 s48, s{SFB}, 12")
    p("s_add_u32 s47, s47, s48")
    p(f"s_add_u32 s47, s47, {WS_H+32*1024}")
    for k in range(4):
        p(f"buffer_store_dwordx4 {v(R+4*k,4)}, v1, s[{WS}:{WS+3}], s47 offen offset:{k*1024}{SM()}")

def signal(p, tblk_sreg, slot_expr_sreg):
    p("s_waitcnt vmcnt(0)")
    if not layout.FUSE: p(f"v_readfirstlane_b32 s{STAG}, v14")
    p(f"s_lshl_b32 s64, s{tblk_sreg}, 7")
    p(f"s_lshl_b32 s65, s{slot_expr_sreg}, 2")
    p("s_add_u32 s64, s64, s65")
    p(f"s_add_u32 s64, s64, {WS_FL}")
    p(f"v_mov_b32 v12, s{STAG}")
    p("v_mov_b32 v13, 0")
    p("s_mov_b64 exec, 1")
    p(f"buffer_store_dword v12, v13, s[{WS}:{WS+3}], s64 offen sc1")
    p("s_mov_b64 exec, -1")

WO0=16; WH0=80; H0=136; FACC=192; RS3=272
STB3=66; SNB3=67
def hreg(k): return H0+4*k if k<14 else 4+4*(k-14)
def final_ids(p):
    srd(p, XS3, 10, S*D*2); srd(p, OUT3, 12, S*D*2)
    p(f"s_mul_i32 s72, s{SJ}, 37")
    p("s_lshr_b32 s72, s72, 8")
    p("s_mul_i32 s73, s72, 7")
    p(f"s_sub_u32 s{SNB3}, s{SJ}, s73")
    p(f"s_lshl_b32 s73, s{SX}, 2")
    p(f"s_add_u32 s{STB3}, s73, s72")
    p(f"s_mul_i32 s72, s{SNB3}, {2*88*1024}")
    p(f"s_add_u32 s68, s72, {WS_WC}")
    p(f"s_mul_i32 s72, s{STB3}, {2*88*1024}")
    p(f"s_add_u32 s69, s72, {WS_H}")
def frag_loads(p, base, ks0_sreg, nk, regf, mod):
    p(f"s_lshl_b32 s72, s{ks0_sreg}, 10")
    p(f"s_add_u32 s70, s{base}, s72")
    p(f"s_add_u32 s71, s70, {88*1024}")
    for k in range(nk):
        for i in range(2):
            p(f"buffer_load_dwordx4 {v(regf(2*k+i),4)}, v1, s[{WS}:{WS+3}], s{70+i} offen offset:{(k%4)*1024}{mod}")
        if k%4==3 and k+1<nk:
            p("s_add_u32 s70, s70, 4096"); p("s_add_u32 s71, s71, 4096")
def frag_mfma(p, nk, wf, hf, first_zero):
    for k in range(nk):
        for ti in range(2):
            for ni in range(2):
                acc = FACC + (ti*2+ni)*16
                c = "0" if (k==0 and first_zero) else v(acc,16)
                p(f"v_mfma_f32_32x32x16_bf16 {v(acc,16)}, {v(wf(2*k+ni),4)}, {v(hf(2*k+ti),4)}, {c}")
def lds_wait(p, idx, n, lab):
    p(f"v_mov_b32 v12, {LDS_CNT+4*idx}")
    p.label(lab)
    p("ds_read_b32 v13, v12")
    p("s_waitcnt lgkmcnt(0)")
    p("v_readfirstlane_b32 s61, v13")
    p(f"s_cmp_lt_u32 s61, {n}")
    p(f"s_cbranch_scc1 {lab}")
def poll_flags(p, mask_lo, lab):
    p(f"s_lshl_b32 s72, s{STB3}, 8")
    p(f"s_add_u32 s72, s72, {WS_FL}")
    p("v_lshlrev_b32 v3, 2, v0")
    p(f"s_mov_b32 s74, {mask_lo}"); p(f"s_mov_b32 s75, {mask_lo}")
    p("s_mov_b32 s76, 0")
    p.label(lab)
    p(f"buffer_load_dword v12, v3, s[{WS}:{WS+3}], s72 offen sc1")
    p("s_waitcnt vmcnt(0)")
    p(f"v_cmp_ne_u32 vcc, s{STAG}, v12")
    p("s_and_b64 s[78:79], vcc, s[74:75]")
    p("s_cmp_eq_u64 s[78:79], 0")
    p(f"s_cbranch_scc1 {lab}_OK")
    p("s_add_u32 s76, s76, 1")
    p("s_cmp_lt_u32 s76, 0x40000")
    p(f"s_cbranch_scc1 {lab}")
    p.label(lab+"_OK")

NK3=11; W30=16; H30=104
def final_attention(p):
    final_ids(p)
    lds_wait(p, 2, 4, "K2_AWAIT")
    p(f"s_mul_i32 s77, s23, {NK3}")
    frag_loads(p, 68, 77, NK3, lambda k: W30+4*k, LM())
    stamp(p,'wissued')
    p("s_branch K2_FH")

def final_gemm(p):
    final_ids(p)
    p(f"s_mul_i32 s77, s23, {NK3}")
    frag_loads(p, 68, 77, NK3, lambda k: W30+4*k, LM())
    stamp(p,'wissued')
    p("s_cmp_lg_u32 s23, 7")
    p("s_cbranch_scc1 K2_FH")
    poll_flags(p, "0x3fffffff", "K2_GPOLL")
    p("s_branch K2_FH")

def final_common(p):
    p.label("K2_FH")
    p("s_barrier")
    stamp(p,'flags')
    p(f"s_mul_i32 s77, s23, {NK3}")
    frag_loads(p, 69, 77, NK3, lambda k: H30+4*k, " sc1")
    p("v_lshrrev_b32 v3, 3, v0")
    p(f"s_lshl_b32 s72, s{STB3}, 6")
    p(f"s_lshl_b32 s73, s23, 3")
    p("s_add_u32 s72, s72, s73")
    p("v_add_u32 v3, s72, v3")
    p(f"v_mul_u32_u24 v3, {D*2}, v3")
    p("v_and_b32 v2, 7, v0")
    p("v_lshlrev_b32 v2, 4, v2")
    p(f"s_lshl_b32 s73, s{SNB3}, 7")
    p("v_add3_u32 v2, v3, v2, s73")
    p(f"buffer_load_dwordx4 v[4:7], v2, s[{XS3}:{XS3+3}], 0 offen")
    frag_mfma(p, NK3, lambda k: W30+4*k, lambda k: H30+4*k, True)
    stamp(p,'fmfma')
    RS=RS3; ACC=FACC
    p("v_and_b32 v8, 31, v0")
    p(f"v_mul_u32_u24 v8, {RS}, v8")
    p("v_lshrrev_b32 v9, 5, v0")
    p("v_lshlrev_b32 v9, 4, v9")
    p(f"s_mul_i32 s72, s23, {64*RS}")
    p("v_add3_u32 v8, v8, v9, s72")
    for ti in range(2):
        for ni in range(2):
            acc = ACC + (ti*2+ni)*16
            for q in range(4):
                p(f"ds_write_b128 v8, {v(acc+4*q,4)} offset:{ti*32*RS+ni*128+q*32}", tag='pw')
    p.wait('pw')
    p("s_barrier")
    stamp(p,'fbar')
    p("v_lshrrev_b32 v8, 3, v0")
    p(f"s_lshl_b32 s72, s23, 3")
    p("v_add_u32 v8, s72, v8")
    p(f"v_mul_u32_u24 v8, {RS}, v8")
    p("v_and_b32 v9, 7, v0")
    p("v_lshlrev_b32 v9, 5, v9")
    p("v_add_u32 v8, v8, v9")
    p(f"v_add_u32 v9, {4*64*RS}, v8")
    R=16
    for w in range(8):
        for hh in range(2):
            a=8 if w<4 else 9
            p(f"ds_read_b128 {v(R+(w*2+hh)*4,4)}, v{a} offset:{(w%4)*64*RS+hh*16}")
    for st_ in (1,2,4):
        for w in range(0,8,2*st_):
            for e in range(8):
                p(f"v_add_f32 v{R+8*w+e}, v{R+8*w+e}, v{R+8*(w+st_)+e}")
    for d in range(4):
        p(f"v_lshlrev_b32 v10, 16, v{4+d}")
        p(f"v_and_b32 v11, 0xffff0000, v{4+d}")
        p(f"v_add_f32 v{R+2*d}, v{R+2*d}, v10")
        p(f"v_add_f32 v{R+2*d+1}, v{R+2*d+1}, v11")
    for d in range(4):
        p(f"v_cvt_pk_bf16_f32 v{R+8+d}, v{R+2*d}, v{R+2*d+1}")
    p(f"buffer_store_dwordx4 {v(R+8,4)}, v2, s[{OUT3}:{OUT3+3}], 0 offen")
    stamp(p,'fend')

def prep(p):
    srd(p, AUX, 10, D*D*2)
    srd(p, AUX2, 12, FH*D*2)
    p(f"s_lshl_b32 s40, s{SX}, 2")
    p(f"s_add_u32 s40, s40, s{SJ}")
    p("s_sub_u32 s40, s40, 28")
    p("s_lshl_b32 s40, s40, 2")
    p(f"s_add_u32 s40, s40, s{SW}")
    p(f"s_mul_i32 s44, s{SW}, 24576")
    p("v_lshrrev_b32 v2, 2, v0")
    p(f"v_mul_u32_u24 v3, {D*2}, v2")
    p("v_and_b32 v4, 3, v0")
    p("v_lshl_add_u32 v3, v4, 4, v3")
    p("v_cmp_gt_u32 vcc, 12, v2")
    p("v_mov_b32 v5, 0x7ff00000")
    p("v_cndmask_b32 v4, v5, v3, vcc")
    p("v_lshrrev_b32 v5, 4, v0")
    p("v_and_b32 v6, 1, v5")
    p("v_lshrrev_b32 v5, 1, v5")
    p("v_lshrrev_b32 v7, 2, v0")
    p("v_and_b32 v7, 3, v7")
    p("v_lshl_add_u32 v5, v5, 2, v7")
    p("v_lshlrev_b32 v5, 6, v5")
    p("v_lshl_add_u32 v5, v6, 5, v5")
    p("v_and_b32 v6, 3, v0")
    p("v_lshl_add_u32 v5, v6, 3, v5")
    p("v_add_u32 v5, s44, v5")
    NI=10
    for i in range(NI):
        f=50+i
        p(f"s_add_u32 s{f}, s40, {128*i}")
        p(f"s_add_u32 m0, s44, {i*1024}")
        p(f"s_cmp_ge_u32 s{f}, 1232")
        p(f"s_cbranch_scc1 P_SKIP{i}")
        p(f"s_mul_i32 s41, s{f}, 745")
        p("s_lshr_b32 s41, s41, 16")
        p("s_mul_i32 s42, s41, 88")
        p(f"s_sub_u32 s42, s{f}, s42")
        p("s_lshl_b32 s41, s41, 6")
        p("s_cmp_ge_u32 s42, 32")
        p(f"s_cbranch_scc1 P_OUT{i}")
        p("s_lshr_b32 s43, s42, 1")
        p("s_mul_i32 s43, s43, 28")
        p("s_and_b32 s45, s42, 1")
        p("s_lshl_b32 s46, s45, 4")
        p("s_add_u32 s43, s43, s46")
        p(f"s_mul_i32 s43, s43, {D*2}")
        p("s_add_u32 s43, s43, s41")
        p("s_cmp_eq_u32 s45, 1")
        p(f"s_cbranch_scc1 P_PAD{i}")
        p(f"buffer_load_dwordx4 v3, s[{AUX}:{AUX+3}], s43 offen lds", tag='pd')
        p(f"s_branch P_SKIP{i}")
        p.label(f"P_PAD{i}")
        p(f"buffer_load_dwordx4 v4, s[{AUX}:{AUX+3}], s43 offen lds", tag='pd')
        p(f"s_branch P_SKIP{i}")
        p.label(f"P_OUT{i}")
        p("s_sub_u32 s43, s42, 32")
        p("s_lshl_b32 s43, s43, 4")
        p(f"s_mul_i32 s43, s43, {D*2}")
        p("s_add_u32 s43, s43, s41")
        p(f"buffer_load_dwordx4 v3, s[{AUX2}:{AUX2+3}], s43 offen lds", tag='pd')
        p.label(f"P_SKIP{i}")
    p("s_waitcnt vmcnt(0)")
    for i in range(NI):
        p(f"ds_read_b64_tr_b16 {v(16+4*i,2)}, v5 offset:{i*1024}")
        p(f"ds_read_b64_tr_b16 {v(16+4*i+2,2)}, v5 offset:{i*1024+512}")
    p("s_waitcnt lgkmcnt(0)")
    for i in range(NI):
        f=50+i
        p(f"s_cmp_ge_u32 s{f}, 1232")
        p(f"s_cbranch_scc1 P_SK2{i}")
        p(f"s_lshl_b32 s41, s{f}, 10")
        p(f"s_add_u32 s41, s41, {WS_WC}")
        p(f"buffer_store_dwordx4 {v(16+4*i,4)}, v1, s[{WS}:{WS+3}], s41 offen{SM()}")
        p.label(f"P_SK2{i}")

def gen(force_fallback=False):
    p=Prog(); prologue(p)
    n0=PR.n
    p.begin_alt()
    p.alt_branch()
    p("s_mov_b32 s48, 0"); p("s_mov_b32 s49, -1")
    if ONLY=='g': p("s_branch K2_END")
    if layout.FUSE: phase1_wait(p)
    attention(p, force_fallback); attention_publish(p)
    stamp(p,'published')
    role_sync(p,0,"A_SYNC")
    stamp(p,'barrier')
    attention_finish(p)
    stamp(p,'finished')
    p(f"s_lshl_b32 s62, s{SQB}, 2")
    p(f"s_add_u32 s62, s62, s{SW}")
    signal(p, 62, SHEAD)
    stamp(p,'end')
    p(f"s_cmp_ge_u32 s{SJ}, 28")
    p("s_cbranch_scc1 K2_AEXIT")
    final_attention(p)
    namesA=list(PR.names); PR.n=n0; PR.names=PR.names[:n0]
    p.alt_branch()
    p.label("K2_ROLEB")
    p(f"s_cmp_ge_u32 s{SJ}, 28")
    p("s_cbranch_scc1 K2_WPF" if WPF else "s_cbranch_scc1 K2_END")
    if ONLY=='a': p("s_branch K2_END")
    gemm(p); stamp(p,'loopend'); gemm_publish(p)
    stamp(p,'published')
    role_sync(p,1,"B_SYNC")
    stamp(p,'barrier')
    gemm_finish(p)
    p(f"v_mov_b32 v12, {LDS_CNT+8}")
    p("v_mov_b32 v13, 1")
    p("s_mov_b64 exec, 1")
    p("ds_add_u32 v12, v13")
    p("s_mov_b64 exec, -1")
    stamp(p,'finished')
    p(f"s_add_u32 s62, s{SFB}, 16")
    signal(p, 46, 62)
    stamp(p,'end')
    final_gemm(p)
    namesB=list(PR.names)
    p.end_alt()
    PR.n=24; PR.names=[]
    final_common(p)
    dump_stamps(p,8)
    p("s_branch K2_END")
    texts=[p.finalize()]
    p=Prog()
    p.label("K2_AEXIT")
    dump_stamps(p,8)
    p("s_branch K2_END")
    if WPF:
        p.label("K2_WPF")
        if layout.FUSE: p("s_barrier")
        lds_wait(p, 0, 1, "K2_WPFW")
        p(f"s_sub_u32 s61, s{SJ}, 28")
        p("s_lshl_b32 s61, s61, 2")
        p(f"s_add_u32 s61, s61, s{SW}")
        p(f"s_mul_i32 s61, s61, {616*128}")
        p(f"s_add_u32 s61, s61, {WS_WC}")
        p("v_lshlrev_b32 v12, 7, v0")
        for i in range(10):
            p(f"buffer_load_dword v13, v12, s[{WS}:{WS+3}], s61 offen")
            if i<9: p("s_add_u32 s61, s61, 8192")
    p.label("K2_END")
    p("s_endpgm")
    if PR.on:
        pad=lambda L: L+['-']*(24-len(L))
        open('k2_stamps.txt','w').write(" ".join(pad(namesA)+PR.names)+"\n"+" ".join(pad(namesB)+PR.names))
    texts.append(p.finalize())
    return "".join(texts)

def kernel(**opt):
    global PROF, PR, PRION, SKIPDMA, PRIOPAT, STARTPRIO, ONLY, WPF
    WPF=int(opt.get('wpf',1))
    global DELAYW
    DELAYW=int(opt.get('dw',1))
    global ROT, KINT, EARLYRING
    EARLYRING=int(opt.get('er',1))
    ROT=int(opt.get('rot',2)); KINT=int(opt.get('kint',1))
    ONLY=opt.get('only','')
    STARTPRIO=int(opt.get('sp',0))
    PRIOPAT=opt.get('pp','')
    SKIPDMA=int(opt.get('skipdma',0))
    PRION=int(opt.get('prion',0))
    PROF=bool(int(opt.get('prof',0)))
    PR=Prof(PROF,WS,23,WS_ST+(1<<19),vr=15)
    return dict(name="k2_kernel", text=gen(force_fallback=bool(int(opt.get('ff',0)))), grid=256, block=512, lds=LDS_K2, vgpr=256, sgpr=102, accum=256)
```

```python
import sys
from layout import *
import importlib

HEADER = open("cdna_kernels/%s.s.ref" % NAME).read().split("; Override launch geometry")[0]

def desc(name, vgpr, sgpr, accum):
    return f""".amdhsa_kernel {name}
  .amdhsa_next_free_vgpr {vgpr}
  .amdhsa_next_free_sgpr {sgpr}
  .amdhsa_accum_offset {accum}
  .amdhsa_group_segment_fixed_size 0
  .amdhsa_kernarg_size 88
  .amdhsa_user_sgpr_count 2
  .amdhsa_user_sgpr_kernarg_segment_ptr 1
  .amdhsa_system_sgpr_workgroup_id_x 1
  .amdhsa_float_denorm_mode_32 3
.end_amdhsa_kernel
"""

def build(kernels):
    out = HEADER
    for k in kernels:
        if k.get('single'): out += f"; @launch grid=({k['grid']},1,1) block=({k['block']},1,1) lds={k['lds']}\n"
        else: out += f"; @launch kernel={k['name']} grid=({k['grid']},1,1) block=({k['block']},1,1) lds={k['lds']}\n"
    out += '.amdgcn_target "amdgcn-amd-amdhsa--gfx950"\n.text\n'
    for k in kernels:
        out += f".globl {k['name']}\n.p2align 8\n.type {k['name']},@function\n{k['name']}:\n"
        out += k['text']
    out += 'CODE_END:\n    s_endpgm\n'
    out += '.section .rodata,"a"\n'
    for k in kernels:
        out += ".p2align 6\n" + desc(k['name'], k['vgpr'], k['sgpr'], k['accum'])
    return out

def all_kernels(which="123", **opt):
    import layout
    layout.STMOD={'0':'','1':' sc1','2':' sc0 sc1','3':' nt'}[opt.get('st','1')]
    ks = []
    layout.FUSE = (which == "F")
    if which == "F":
        import k1, k2; importlib.reload(k1); importlib.reload(k2)
        a = k1.kernel(**opt); c = k2.kernel(**opt)
        return [dict(name=NAME+"_kernel", text=a['text']+c['text'], grid=256, block=512, lds=163840, vgpr=256, sgpr=102, accum=256, single=True)]
    if "1" in which:
        import k1; importlib.reload(k1)
        ks.append(k1.kernel(**opt))
    if "2" in which:
        import k2; importlib.reload(k2)
        ks.append(k2.kernel(**opt))
    if "3" in which:
        import k3; importlib.reload(k3)
        ks.append(dict(name="k3_kernel", text=k3.gen_k3(prof=bool(int(opt.get('prof',0)))).finalize(), grid=224, block=256, lds=4*64*272, vgpr=256, sgpr=96, accum=256))
    return ks

if __name__ == "__main__":
    which = sys.argv[1] if len(sys.argv) > 1 else "123"
    path = sys.argv[2] if len(sys.argv) > 2 else "cdna_kernels/%s.s" % NAME
    opt = dict(a.split("=") for a in sys.argv[3:])
    text = build(all_kernels(which, **opt))
    open(path, "w").write(text)
    print("wrote", path, len(text), "bytes")
```

```python
from asmlib import *
from layout import *
import layout
def SM(): return layout.STMOD
from k3 import srd

L_X   = 0
L_P1  = 112*1024
L_P2  = 16*1024
L_P3  = 72*1024
L_SM  = 156*1024
L_CS  = L_SM
L_XS  = L_SM + 1024
L_ZS  = L_SM + 3072
L_T   = 0
LDS_K1 = 160*1024
def p1_addr(kc): return L_P1 + kc*8192 if kc < 5 else (kc-5)*8192

SW8=16; SW=17; SG=18; SRB=19; SCB=20; STAG=21; SSB=22
WS=24; XS=28; WIN=32; WQ=36; DBG=40
SP1=44; SP2=45; SP3=46; SXB=47; ST=48; ST2=49; SEP=50
VL16=1; VXD=(2,3); VWD=4; VXR=(5,6,7,8); VWR=9; VCSR=10; VSR=11; VP3D=(12,13,14); VP3R=15
MU=16; RS_=17; VT=18
CS=48; WF=64; ZH=80; ACC=(96,112); XF=128
VH=240
ONES=244; CSW=249; CSR=247; CSD=124; NMF=42; EPV=39

from profutil import Prof
PR=Prof(False,WS,SW8,0)
def stamp(p,name): PR.stamp(p,str(name))

def prologue(p):
    p("s_cmp_ge_u32 s2, 256")
    p("s_cbranch_scc1 K1_END")
    p(f"s_load_dwordx2 s[4:5], s[0:1], {KA_WS}")
    p(f"s_load_dwordx2 s[6:7], s[0:1], {KA_X}")
    p(f"s_load_dwordx2 s[8:9], s[0:1], {KA_WIN}")
    p(f"s_load_dwordx2 s[10:11], s[0:1], {KA_WQKV}")
    p(f"s_load_dwordx2 s[12:13], s[0:1], {KA_DBG}")
    p(f"s_load_dwordx2 s[92:93], s[0:1], {KA_WSP}")
    p("v_lshrrev_b32 v1, 6, v0")
    p("v_and_b32 v0, 63, v0")
    p(f"v_readfirstlane_b32 s{SW8}, v1")
    p("s_and_b32 s14, s2, 7")
    p("s_lshr_b32 s15, s2, 3")
    p("s_and_b32 s51, s14, 1")
    p("s_lshl_b32 s51, s51, 3")
    p("s_and_b32 s52, s15, 7")
    p(f"s_add_u32 s{SRB}, s51, s52")
    p("s_lshr_b32 s51, s14, 1")
    p("s_lshl_b32 s51, s51, 2")
    p("s_lshr_b32 s52, s15, 3")
    p(f"s_add_u32 s{SCB}, s51, s52")
    p("s_and_b32 s64, s15, 7")
    p("s_lshr_b32 s65, s15, 3")
    p("s_lshl_b32 s65, s65, 1")
    p("s_add_u32 s64, s64, s65")
    p("s_sub_u32 s65, s64, 7")
    p("s_cmp_ge_u32 s64, 7")
    p("s_cselect_b32 s64, s65, s64")
    if not KROT: p("s_mov_b32 s64, 0")
    p(f"s_and_b32 s{SW}, s{SW8}, 3")
    p(f"s_lshr_b32 s{SG}, s{SW8}, 2")
    p(f"s_lshl_b32 s{SSB}, s{SRB}, 2")
    p(f"s_add_u32 s{SSB}, s{SSB}, s{SW}")
    p(f"v_lshlrev_b32 v{VL16}, 4, v0")
    p("s_waitcnt lgkmcnt(0)")
    srd(p, WS, 4, WS_SIZE); srd(p, XS, 6, S*D*2); srd(p, WIN, 8, D*F*2); srd(p, WQ, 10, D*3*D*2); srd(p, DBG, 12, 256)
    PR.real(p,62)
    stamp(p,'start')
    p("v_lshrrev_b32 v18, 3, v0")
    p(f"v_mul_u32_u24 v19, {D*2}, v18")
    p("v_lshrrev_b32 v20, 4, v0")
    p("v_and_b32 v21, 7, v0")
    p("v_xor_b32 v22, v21, v20")
    p(f"v_lshl_add_u32 v{VXD[0]}, v22, 4, v19")
    p("v_xor_b32 v22, 4, v22")
    p(f"v_lshl_add_u32 v{VXD[1]}, v22, 4, v19")
    p(f"v_mul_u32_u24 v19, {F*2}, v18")
    p("v_and_b32 v20, 1, v20")
    p("v_lshlrev_b32 v20, 2, v20")
    p("v_xor_b32 v22, v21, v20")
    p(f"v_lshl_add_u32 v{VWD}, v22, 4, v19")
    p(f"s_lshl_b32 s51, s{SRB}, 7")
    p(f"s_lshl_b32 s52, s{SW}, 5")
    p("s_add_u32 s51, s51, s52")
    p(f"s_mul_i32 s{SXB}, s51, {D*2}")
    p(f"s_lshl_b32 s51, s{SRB}, 7")
    p(f"s_lshl_b32 s52, s{SW8}, 4")
    p("s_add_u32 s51, s51, s52")
    p(f"s_mul_i32 s94, s51, {D*2}")
    p(f"s_lshl_b32 s51, s{SCB}, 7")
    p(f"s_add_u32 s52, s51, {FH*2}")
    p(f"s_sub_u32 s53, s51, 256")
    p(f"s_cmp_lt_u32 s{SCB}, 14")
    p(f"s_cselect_b32 s{SP1}, s52, s53")
    p(f"s_lshl_b32 s95, s{SW8}, 3")
    p(f"s_mul_i32 s95, s95, {F*2}")
    p(f"s_add_u32 s95, s95, s{SP1}")
    p(f"s_sub_u32 s54, s{SCB}, 2")
    p(f"s_cmp_lt_u32 s54, 12")
    p(f"s_cselect_b32 s{SP2}, s53, 0")
    p(f"s_lshl_b32 s51, s{SW}, 4")
    p(f"s_mul_i32 s51, s51, {F*2}")
    p(f"s_add_u32 s{SP1}, s{SP1}, s51")
    p(f"s_add_u32 s{SP2}, s{SP2}, s51")

def kcd(p, i):
    p(f"s_add_u32 s65, s64, {i}")
    p("s_sub_u32 s83, s65, 7")
    p("s_cmp_ge_u32 s65, 7")
    p("s_cselect_b32 s65, s83, s65")
def dma_x(p, kc, which=range(4)):
    kcd(p, kc)
    p(f"s_lshl_b32 s{ST2}, s65, 7")
    p(f"s_add_u32 s{ST2}, s{ST2}, s{SXB}")
    for i in which:
        p(f"s_lshl_b32 m0, s{SW}, 12")
        p(f"s_add_u32 m0, m0, {L_X+kc*16384+i*1024}")
        p(f"s_add_u32 s{ST}, s{ST2}, {i*8*D*2}")
        p(f"buffer_load_dwordx4 v{VXD[i&1]}, s[{XS}:{XS+3}], s{ST} offen lds", tag=f'x{kc}')
def dma_pair(p, sbase, kc, ldsaddr, tag, which=range(2)):
    kcd(p, kc)
    p(f"s_mul_i32 s{ST2}, s65, {64*F*2}")
    p(f"s_add_u32 s{ST2}, s{ST2}, s{sbase}")
    for i in which:
        p(f"s_lshl_b32 m0, s{SW}, 11")
        p(f"s_add_u32 m0, m0, {ldsaddr+i*1024}")
        p(f"s_add_u32 s{ST}, s{ST2}, {i*8*F*2}")
        p(f"buffer_load_dwordx4 v{VWD}, s[{WIN}:{WIN+3}], s{ST} offen lds", tag=tag)

def dma_init(p, kc):
    kcd(p, kc)
    p(f"s_lshl_b32 s{ST2}, s65, 7")
    p(f"s_add_u32 s{ST2}, s{ST2}, s94")
    for i in range(2):
        p(f"s_lshl_b32 m0, s{SW8}, 11")
        p(f"s_add_u32 m0, m0, {L_X+kc*16384+i*1024}")
        p(f"s_add_u32 s{ST}, s{ST2}, {i*8*D*2}")
        p(f"buffer_load_dwordx4 v{VXD[i]}, s[{XS}:{XS+3}], s{ST} offen lds", tag=f'x{kc}')
    p(f"s_lshl_b32 m0, s{SW8}, 10")
    p(f"s_add_u32 m0, m0, {p1_addr(kc)}")
    p(f"s_mul_i32 s{ST}, s65, {64*F*2}")
    p(f"s_add_u32 s{ST}, s{ST}, s95")
    p(f"buffer_load_dwordx4 v{VWD}, s[{WIN}:{WIN+3}], s{ST} offen lds", tag=f'w{kc}')

def setup_reads(p):
    p("v_and_b32 v18, 31, v0")
    p("v_lshrrev_b32 v19, 5, v0")
    p("v_lshrrev_b32 v20, 1, v18")
    p("v_and_b32 v20, 7, v20")
    p("v_xor_b32 v20, v20, v19")
    p("v_lshlrev_b32 v18, 7, v18")
    p(f"s_lshl_b32 s51, s{SW}, 12")
    p(f"v_add_u32 v18, s51, v18")
    for u in range(4):
        p(f"v_xor_b32 v21, {2*u}, v20")
        p(f"v_lshl_add_u32 v{VXR[u]}, v21, 4, v18")
    p("v_lshrrev_b32 v18, 4, v0")
    p("v_and_b32 v19, 1, v18")
    p("v_lshrrev_b32 v18, 1, v18")
    p("v_lshrrev_b32 v20, 2, v0")
    p("v_and_b32 v20, 3, v20")
    p("v_and_b32 v21, 3, v0")
    p("v_lshl_add_u32 v22, v18, 3, v20")
    p("v_lshlrev_b32 v23, 7, v22")
    p("v_lshrrev_b32 v24, 1, v21")
    p("v_lshl_add_u32 v24, v19, 1, v24")
    p(f"s_lshl_b32 s51, s{SG}, 2")
    p("v_add_u32 v24, s51, v24")
    p("v_lshrrev_b32 v25, 1, v20")
    p("v_lshlrev_b32 v25, 2, v25")
    p("v_xor_b32 v24, v24, v25")
    p("v_lshl_add_u32 v23, v24, 4, v23")
    p("v_and_b32 v24, 1, v21")
    p(f"v_lshl_add_u32 v{VWR}, v24, 3, v23")
    p(f"s_lshl_b32 s51, s{SW}, 11")
    p(f"v_add_u32 v{VCSR}, s51, v{VWR}")
    p(f"v_add_u32 v{VH+12}, {L_P1}, v{VWR}")
    p(f"v_add_u32 v{VH+13}, {L_P1}, v{VCSR}")
    for r in range(3):
        p(f"v_add_u32 v23, {64*r}, v0")
        p(f"v_mul_u32_u24 v24, 43691, v23")
        p(f"v_lshrrev_b32 v24, 19, v24")
        p(f"v_mul_u32_u24 v25, 12, v24")
        p(f"v_sub_u32 v25, v23, v25")
        p(f"v_mul_u32_u24 v24, {3*D*2}, v24")
        p(f"v_lshl_add_u32 v{VP3D[r]}, v25, 4, v24")
    p("v_mul_u32_u24 v23, 192, v22")
    p("v_lshl_add_u32 v23, v19, 5, v23")
    p(f"v_lshl_add_u32 v{VP3R}, v21, 3, v23")
    p(f"v_add_u32 v{VP3R}, {L_P3}, v{VP3R}")
    p("v_and_b32 v23, 31, v0")
    p("v_mul_u32_u24 v23, 72, v23")
    p("v_lshrrev_b32 v24, 5, v0")
    p("v_lshl_add_u32 v23, v24, 3, v23")
    p(f"s_mul_i32 s51, s{SW8}, 2304")
    p(f"s_add_u32 s51, s51, {L_T}")
    p(f"v_add_u32 v{VH+1}, s51, v23")
    p("v_lshl_add_u32 v23, v18, 2, v20")
    p("v_mul_u32_u24 v23, 72, v23")
    p("v_lshl_add_u32 v23, v19, 5, v23")
    p("v_lshl_add_u32 v23, v21, 3, v23")
    p(f"v_add_u32 v{VH+2}, s51, v23")
    p("v_mul_u32_u24 v23, 72, v22")
    p("v_lshl_add_u32 v23, v19, 5, v23")
    p("v_lshl_add_u32 v23, v21, 3, v23")
    p(f"v_add_u32 v{VH+3}, s51, v23")
    p("v_and_b32 v23, 31, v0")
    p("v_lshlrev_b32 v23, 2, v23")
    p(f"s_lshl_b32 s51, s{SG}, 9")
    p(f"s_add_u32 s51, s51, {L_CS}")
    p(f"v_add_u32 v23, s51, v23")
    p(f"s_lshl_b32 s52, s{SW}, 7")
    p(f"v_add_u32 v{CSW}, s52, v23")
    p("v_lshrrev_b32 v24, 5, v0")
    p(f"v_lshl_add_u32 v{CSR}, v24, 8, v23")
    p(f"v_mov_b32 v{ONES}, 0x3f803f80")
    p(f"v_mov_b32 v{ONES+1}, 0x3f803f80")
    p("v_and_b32 v23, 31, v0")
    p(f"s_lshl_b32 s51, s{SW}, 5")
    p("v_add_u32 v23, s51, v23")
    p(f"v_lshlrev_b32 v{VH+6}, 3, v23")

def cs_zero(p):
    for r in range(4): p(f"v_mov_b32 v{CSD+r}, 0")
def cs_step(p, fr):
    p(f"v_mfma_f32_4x4x4_16b_bf16 {v(CSD,4)}, {v(ONES,2)}, {v(fr,2)}, {v(CSD,4)}")
    p(f"v_mfma_f32_4x4x4_16b_bf16 {v(CSD,4)}, {v(ONES,2)}, {v(fr+2,2)}, {v(CSD,4)}")
def cs_flush(p):
    p(f"v_mov_b32 v46, v{CSD}")
    p(f"v_mov_b32 v33, v{CSD}")
    p(f"v_permlane32_swap_b32 v46, v33")
    p(f"v_add_f32 v46, v46, v33")
    p(f"ds_write_b32 v{CSW}, v46", tag='cs')
def meanfix(p, acc):
    F=28
    p(f"ds_read_b32 v26, v{CSR}")
    p(f"ds_read_b32 v27, v{CSR} offset:128")
    for k in range(2):
        a=26+k; d=F+2*k
        p(f"v_and_b32 v32, 0xffff0000, v{a}")
        p(f"v_sub_f32 v33, v{a}, v32")
        p(f"v_lshrrev_b32 v{d+1}, 16, v32")
        p(f"v_and_or_b32 v{d}, v33, s60, v{d+1}")
    p(f"v_mfma_f32_32x32x16_bf16 {v(acc,16)}, {v(F,4)}, {v(NMF,4)}, {v(acc,16)}")

def x_reads(kc):
    L=[]
    if kc==4: L+=[f"v_add_u32 v{r}, 0x10000, v{r}" for r in list(VXR)]
    xo=(kc*16384)&0xffff
    for u in range(4): L.append(f"ds_read_b128 {v(XF+4*(4*kc+u),4)}, v{VXR[u]} offset:{xo}")
    return L

def p0_compute(p):
    for r in range(40,44): p(f"v_mov_b32 v{r}, 0")
    cs_zero(p)
    CF=(28,120)
    def wreads(kc):
        if kc<5: wa,ca,wb=VH+12,VH+13,kc*8192
        else: wa,ca,wb=VWR,VCSR,(kc-5)*8192
        W=48+16*(kc&1); L=[]
        for u in range(4):
            L.append([f"ds_read_b64_tr_b16 {v(W+4*u,2)}, v{wa} offset:{wb+u*2048}",
                      f"ds_read_b64_tr_b16 {v(W+4*u+2,2)}, v{wa} offset:{wb+u*2048+512}"])
        cf=CF[kc&1]
        L.append([f"ds_read_b64_tr_b16 {v(cf,2)}, v{ca} offset:{wb}", f"ds_read_b64_tr_b16 {v(cf+2,2)}, v{ca} offset:{wb+512}"])
        return L
    for kc in range(8):
        if kc<7:
            if kc<3: p.wait(f'x{kc}', f'w{kc}')
            p("s_barrier")
            if kc in (0,6): stamp(p,f'c{kc}bar')
        xr = x_reads(kc) if kc<7 else []
        wr = wreads(kc) if kc<7 else []
        if kc==0:
            for x in xr: p(x)
            for gr in wr:
                for x in gr: p(x)
        else:
            c=kc-1; W=48+16*(c&1)
            sf=XF+16*c
            for u in range(4):
                cc = "0" if (c==0 and u==0) else v(ACC[0],16)
                p(f"v_mfma_f32_32x32x16_bf16 {v(ACC[0],16)}, {v(W+4*u,4)}, {v(XF+4*(4*c+u),4)}, {cc}")
                if u==0:
                    for x in xr: p(x)
                elif kc<7:
                    for gr in wr[[0,0,2,4][u]:[0,2,4,5][u]]:
                        for x in gr: p(x)
            cs_step(p, CF[c&1])
            for d in range(16):
                p(f"v_dot2c_f32_bf16 v{40+(d&1)}, v{sf+d}, v{ONES}")
                p(f"v_dot2c_f32_bf16 v{42+(d&1)}, v{sf+d}, v{sf+d}")
        if kc<7: p("s_waitcnt lgkmcnt(0)")
    cs_flush(p)
    p("v_add_f32 v40, v40, v41")
    p("v_add_f32 v41, v42, v43")
    p("v_mov_b32 v42, v40"); p("v_mov_b32 v43, v41")
    p("v_permlane32_swap_b32 v42, v40")
    p("v_permlane32_swap_b32 v43, v41")
    p("v_add_f32 v40, v40, v42")
    p("v_add_f32 v41, v41, v43")
    p(f"v_mul_f32 v{MU}, 0x3b124925, v40")
    p(f"v_mul_f32 v41, 0x3b124925, v41")
    p(f"v_fma_f32 v41, -v{MU}, v{MU}, v41")
    p(f"v_add_f32 v41, 0x3727c5ac, v41")
    p(f"v_rsq_f32 v{RS_}, v41")
    p(f"v_add_u32 v18, {L_XS}, v{VH+6}")
    p(f"ds_write_b64 v18, {v(MU,2)}", tag='xs')
    nmf(p)
    p.wait('xs','cs')
    p("s_barrier")

def p0_load(p):
    def dmas(kc):
        G=[]
        n=kc+3
        if n<7:
            G.append(lambda q,n=n: dma_x(q,n))
            G.append(lambda q,n=n: dma_pair(q, SP1, n, p1_addr(n), f'w{n}'))
        if kc==4: G+= [lambda q,i=i: dma_pair(q, SP2, i, L_P2+i*8192, 'p2') for i in (0,1,2)]
        if kc==5: G+= [lambda q,i=i: dma_pair(q, SP2, i, L_P2+i*8192, 'p2') for i in (3,4,5)]
        if kc==6: G+= [lambda q: dma_pair(q, SP2, 6, L_P2+6*8192, 'p2')]
        return G
    for kc in range(7):
        p.wait(f'x{kc}', f'w{kc}')
        p("s_barrier")
        if kc in (0,6): stamp(p,f'c{kc}bar')
        for x in x_reads(kc): p(x)
        for f in dmas(kc): f(p)
        p("s_waitcnt lgkmcnt(0)")
    p("s_barrier")
    p(f"v_add_u32 v18, {L_XS}, v{VH+6}")
    p(f"ds_read_b64 {v(MU,2)}, v18")
    nmf(p)

def nmf(p):
    p(f"v_sub_f32 v20, 0, v{MU}")
    p(f"v_and_b32 v21, 0xffff0000, v20")
    p(f"v_sub_f32 v22, v20, v21")
    p(f"v_lshrrev_b32 v23, 16, v21")
    p(f"v_or_b32 v{NMF}, v21, v23")
    p(f"v_lshrrev_b32 v{NMF+1}, 16, v22")
    p(f"v_mov_b32 v{NMF+2}, v{NMF}")
    p(f"v_mov_b32 v{NMF+3}, v{NMF+1}")

def dma_p3_groups(firsts):
    G=[]
    for n0 in firsts:
        def setup(q,n0=n0):
            q(f"s_add_u32 s88, s{SW}, {n0}")
            q(f"s_mul_i32 s89, s88, 3072")
            q("s_lshr_b32 s87, s88, 2")
            q("s_add_u32 s87, s87, s64")
            q("s_sub_u32 s83, s87, 7")
            q("s_cmp_ge_u32 s87, 7")
            q("s_cselect_b32 s87, s83, s87")
            q("s_lshl_b32 s87, s87, 2")
            q("s_and_b32 s88, s88, 3")
            q("s_add_u32 s87, s87, s88")
            q(f"s_mul_i32 s87, s87, {16*3*D*2}")
            q(f"s_add_u32 s87, s87, s63")
        for r in range(3):
            def one(q,r=r,setup=setup):
                if r==0: setup(q)
                q(f"s_add_u32 m0, s89, {L_P3+r*1024}")
                q("s_nop 0")
                q(f"buffer_load_dwordx4 v{VP3D[r]}, s[{WQ}:{WQ+3}], s87 offen lds", tag='p3')
            G.append(one)
    return G

def center(p, acc, scale_v):
    meanfix(p, acc)
    for r in range(16):
        p(f"v_mul_f32 v{acc+r}, v{acc+r}, v{scale_v}")

def gelu(p, acc, dst):
    T=18
    for b in (0,8):
        R=range(b,b+8)
        for r in R: p(f"v_mul_f32 v{T+r-b}, v{acc+r}, v{acc+r}")
        for r in R: p(f"v_fma_f32 v{T+r-b}, v{T+r-b}, s56, v47")
        for r in R: p(f"v_mul_f32 v{T+r-b}, v{T+r-b}, v{acc+r}")
        for r in R: p(f"v_exp_f32 v{T+r-b}, v{T+r-b}")
        for r in R: p(f"v_add_f32 v{T+r-b}, 1.0, v{T+r-b}")
        for r in R: p(f"v_rcp_f32 v{T+r-b}, v{T+r-b}")
        for r in R: p(f"v_mul_f32 v{dst+r}, v{acc+r}, v{T+r-b}")

def pack(p, src, dst):
    for i in range(8): p(f"v_cvt_pk_bf16_f32 v{dst+i}, v{src+2*i}, v{src+2*i+1}")
def store2(p, src, sreg, off=0):
    p(f"buffer_store_dwordx4 {v(src,4)}, v{VL16}, s[{WS}:{WS+3}], s{sreg} offen offset:{off}{SM()}")
    p(f"buffer_store_dwordx4 {v(src+4,4)}, v{VL16}, s[{WS}:{WS+3}], s{sreg} offen offset:{off+1024}{SM()}")
def transpose(p, src, dst, traddr, order):
    for q in range(4):
        p(f"ds_write_b64 v{VH+1}, {v(src+2*q,2)} offset:{q*16}", tag='tw')
    p.wait('tw')
    for u in range(2):
        for ii in range(2):
            row = (16*u+8*ii) if order=='v' else (16*u+4*ii)
            p(f"ds_read_b64_tr_b16 {v(dst+4*u+2*ii,2)}, v{traddr} offset:{row*72}")

def epi_z1(p, acc, pairreg, g):
    center(p, acc, RS_)
    gelu(p, acc, acc)
    pack(p, acc, 34)
    p(f"s_mul_i32 s51, s{SSB}, {28*2048}")
    p(f"s_lshl_b32 s52, s{pairreg}, 12")
    p("s_add_u32 s51, s51, s52")
    p(f"s_add_u32 s51, s51, {WS_Z1+g*2048}")
    store2(p, 34, 51)

def epi_z2(p, acc):
    center(p, acc, RS_)
    gelu(p, acc, ZH)
    p(f"v_mov_b32 v34, v{ZH}")
    p(f"v_mul_f32 v35, v{ZH}, v{ZH}")
    for r in range(1,16):
        p(f"v_add_f32 v34, v34, v{ZH+r}")
        p(f"v_fmac_f32 v35, v{ZH+r}, v{ZH+r}")
    p("v_mov_b32 v36, v34"); p("v_mov_b32 v37, v35")
    p("v_permlane32_swap_b32 v36, v34")
    p("v_permlane32_swap_b32 v37, v35")
    p("v_add_f32 v34, v34, v36")
    p("v_add_f32 v35, v35, v37")

LA=5
def mtile(p, acc, addr, off_fn, cs_addr, cs_off_fn, addr2=None, cs_addr2=None, part='all', sides=(), split=43008):
    NB=8; WB=48
    def rd(ks):
        b=WB+4*(ks%NB)
        for ii in range(2):
            o=off_fn(ks,ii); r=addr
            if o>=split and addr2 is not None: r=addr2; o-=split
            p(f"ds_read_b64_tr_b16 {v(b+2*ii,2)}, v{r} offset:{o}")
    def csrd(kc):
        for ii in range(2):
            o=cs_off_fn(kc,ii); r=cs_addr
            if o>=split and cs_addr2 is not None: r=cs_addr2; o-=split
            p(f"ds_read_b64_tr_b16 {v(26+4*(kc&1)+2*ii,2)}, v{r} offset:{o}")
    if part in ('all','pre'):
        for ks in range(LA): rd(ks)
        csrd(0)
    if part=='pre': return
    cs_zero(p)
    sched_rd={3*kc-2:kc for kc in range(1,7)}
    sched_st={3*kc+1:kc for kc in range(7)}
    for ks in range(28):
        c = "0" if ks==0 else v(acc,16)
        p(f"v_mfma_f32_32x32x16_bf16 {v(acc,16)}, {v(WB+4*(ks%NB),4)}, {v(XF+4*ks,4)}, {c}")
        if ks+LA<28: rd(ks+LA)
        if ks in sched_st: cs_step(p, 26+4*(sched_st[ks]&1))
        if ks in sched_rd: csrd(sched_rd[ks])
        if ks==23: cs_flush(p)
        if ks%3==2 and ks//3<len(sides): sides[ks//3](p)

def epi_head(p, acc, treg, lab):
    p(f"s_lshr_b32 s52, s{treg}, 4")
    p(f"s_and_b32 s53, s{treg}, 15")
    p(f"v_mov_b32 v46, v{RS_}")
    p("s_cmp_lg_u32 s52, 0")
    p(f"s_cbranch_scc1 {lab}_NQ")
    p(f"v_mul_f32 v46, 0x3e8b97f6, v46")
    p.label(f"{lab}_NQ")
    center(p, acc, 46)
    p("s_cmp_eq_u32 s52, 0"); p("s_cselect_b32 s54, 0, 1.0")
    p("s_cmp_eq_u32 s52, 1"); p("s_cselect_b32 s55, 1.0, 0")
    p("s_mov_b64 exec, s[58:59]")
    p(f"v_mov_b32 v{acc+12}, s54"); p(f"v_mov_b32 v{acc+13}, s55"); p(f"v_mov_b32 v{acc+14}, 0"); p(f"v_mov_b32 v{acc+15}, 0")
    p("s_mov_b64 exec, -1")
    pack(p, acc, 34)
    p(f"s_lshl_b32 s54, s53, 6")
    p(f"s_add_u32 s54, s54, s{SSB}")
    p("s_cmp_eq_u32 s52, 2")
    p(f"s_cbranch_scc1 {lab}_V")
    p("s_lshl_b32 s55, s54, 11")
    p(f"s_add_u32 s55, s55, {WS_Q}")
    p("s_lshl_b32 s54, s54, 12")
    p(f"s_add_u32 s54, s54, {WS_KV}")
    p("s_cmp_eq_u32 s52, 0")
    p("s_cselect_b32 s54, s55, s54")
    p.begin_opt()
    store2(p, 34, 54)
    p(f"s_branch {lab}_D")
    p.end_opt()
    p.label(f"{lab}_V")
    p.begin_opt()
    transpose(p, 34, 20, VH+2, 'v')
    p("s_lshl_b32 s54, s54, 12")
    p(f"s_add_u32 s54, s54, {WS_KV+2048}")
    store2(p, 20, 54)
    p.end_opt()
    p.label(f"{lab}_D")

def publish_z2(p):
    p(f"v_add_u32 v18, {L_ZS}, v{VH+6}")
    p("ds_read_b64 v[36:37], v18")
    p("v_add_f32 v36, v36, v34")
    p("v_add_f32 v38, v37, v35")
    p(f"v_mov_b32 v37, s{STAG}")
    p(f"v_mov_b32 v39, s{STAG}")
    p(f"s_mul_i32 s51, s{SSB}, {14*512}")
    p(f"s_lshl_b32 s52, s{SCB}, 9")
    p("s_add_u32 s51, s51, s52")
    p(f"s_add_u32 s51, s51, {WS_ST}")
    p("s_mov_b32 exec_hi, 0")
    p(f"buffer_store_dwordx4 v[36:39], v{VL16}, s[{WS}:{WS+3}], s51 offen sc1")
    p("s_mov_b64 exec, -1")

GR=48
def granule_loads(p):
    p(f"s_mul_i32 s90, s{SSB}, {14*512}")
    p(f"s_add_u32 s90, s90, {WS_ST}")
    for i in range(7):
        p(f"s_add_u32 s53, s90, {i*1024}")
        p(f"buffer_load_dwordx4 {v(GR+4*i,4)}, v{VL16}, s[{WS}:{WS+3}], s53 offen sc1", tag='gr')

def fin_stats(p, lab):
    p(f"s_mov_b32 s52, 0")
    p.wait('gr')
    p.label(f"{lab}_CHECK")
    p("s_mov_b64 s[54:55], 0")
    for i in range(7):
        p(f"v_cmp_ne_u32 vcc, s{STAG}, v{GR+4*i+1}")
        p("s_or_b64 s[54:55], s[54:55], vcc")
        p(f"v_cmp_ne_u32 vcc, s{STAG}, v{GR+4*i+3}")
        p("s_or_b64 s[54:55], s[54:55], vcc")
    p("s_cmp_eq_u64 s[54:55], 0")
    p(f"s_cbranch_scc1 {lab}_POLLDONE")
    p("s_add_u32 s52, s52, 1")
    p("s_cmp_gt_u32 s52, 0x40000")
    p(f"s_cbranch_scc1 {lab}_POLLDONE")
    granule_loads(p)
    p("s_waitcnt vmcnt(0)")
    p(f"s_branch {lab}_CHECK")
    p.label(f"{lab}_POLLDONE")
    stamp(p,'polled')
    a=GR
    p(f"v_add_f32 v34, v{a}, v{a+4}")
    p(f"v_add_f32 v35, v{a+2}, v{a+6}")
    for i in range(2,7):
        p(f"v_add_f32 v34, v34, v{a+4*i}")
        p(f"v_add_f32 v35, v35, v{a+4*i+2}")
    p("v_mov_b32 v36, v34"); p("v_mov_b32 v37, v35")
    p("v_permlane32_swap_b32 v36, v34")
    p("v_permlane32_swap_b32 v37, v35")
    p("v_add_f32 v34, v34, v36")
    p("v_add_f32 v35, v35, v37")
    p("v_mul_f32 v34, 0x3a924925, v34")
    p("v_mul_f32 v35, 0x3a924925, v35")
    p("v_fma_f32 v35, -v34, v34, v35")
    p("v_add_f32 v35, 0x3727c5ac, v35")
    p("v_rsq_f32 v35, v35")
    p(f"v_add_u32 v18, {L_ZS}, v{VH+6}")
    p("v_mul_f32 v34, v34, v35")
    p("ds_write_b64 v18, v[34:35]", tag='zf')
    if layout.FUSE: return
    p(f"s_sub_u32 s53, s{SW8}, 4")
    p(f"s_or_b32 s53, s53, s{SCB}")
    p("s_cmp_lg_u32 s53, 0")
    p(f"s_cbranch_scc1 {lab}_NOBUMP")
    p.begin_opt()
    p(f"v_mov_b32 v18, s{STAG}")
    p("s_mov_b64 exec, 1")
    p(f"buffer_store_dword v18, v{VH+8}, s[{WS}:{WS+3}], s{SEP} offen sc1")
    p("s_mov_b64 exec, -1")
    p.end_opt()
    p.label(f"{lab}_NOBUMP")

def fin_tile(p):
    for r in range(16):
        p(f"v_fma_f32 v{ZH+r}, v{ZH+r}, v35, -v34")
    pack(p, ZH, 36)
    transpose(p, 36, 20, VH+3, 'z')
    p(f"s_lshl_b32 s51, s{SCB}, 7")
    p(f"s_lshl_b32 s52, s{SSB}, 1")
    p("s_add_u32 s51, s51, s52")
    p("s_lshl_b32 s51, s51, 11")
    p(f"s_lshl_b32 s52, s{SG}, 10")
    p("s_add_u32 s51, s51, s52")
    p(f"s_add_u32 s51, s51, {WS_Z2}")
    p(f"buffer_store_dwordx4 {v(20,4)}, v{VL16}, s[{WS}:{WS+3}], s51 offen{SM()}")
    p(f"buffer_store_dwordx4 {v(24,4)}, v{VL16}, s[{WS}:{WS+3}], s51 offen offset:2048{SM()}")

def touch_wsp(p):
    srd(p, 76, 92, S*S*2)
    p(f"s_lshl_b32 s51, s2, 2")
    p(f"s_add_u32 s51, s51, s{SW}")
    p(f"s_lshl_b32 s51, s51, 13")
    p(f"v_lshlrev_b32 v11, 7, v0")
    p(f"buffer_load_dword v{VH}, v11, s[76:79], s51 offen")

def first_epi(p, g, lab, firsts, after_z2=None):
    G=dma_p3_groups(firsts)
    p(f"s_cmp_ge_u32 s{SCB}, 14")
    p(f"s_cbranch_scc1 {lab}_Z1")
    p.begin_alt(); p.alt_branch()
    main=capture(lambda q: epi_z2(q, ACC[0]))
    p.extend(interleave(main, [capture(f) for f in G], 14, 150))
    if after_z2: after_z2(p)
    p(f"s_branch {lab}_D")
    p.alt_branch()
    p.label(f"{lab}_Z1")
    p(f"s_sub_u32 s57, s{SCB}, 2")
    main=capture(lambda q: epi_z1(q, ACC[0], 57, g))
    p.extend(interleave(main, [capture(f) for f in G], 14, 130))
    p.end_alt()
    p.label(f"{lab}_D")

def first_mtile(p, sides=()):
    mtile(p, ACC[0], VH+12, lambda ks,ii: ks*2048+ii*512, VH+13, lambda kc,ii: kc*8192+ii*512, VWR, VCSR, sides=sides, split=5*8192)
def pair_mtile(p, g, part='all', sides=()):
    if part!='post':
        p(f"v_add_u32 v{VH+10}, {L_P2}, v{VWR}")
        p(f"v_add_u32 v{VH+11}, {L_P2}, v{VCSR}")
    mtile(p, ACC[0], VH+10, lambda ks,ii: ks*2048+ii*512, VH+11, lambda kc,ii: kc*8192+ii*512, part=part, sides=sides)
def head_mtile(p, t, part='all'):
    if part!='post':
        p(f"v_add_u32 v{VH+10}, {56*t}, v{VP3R}")
        p(f"s_mul_i32 s51, s{SW}, {16*192}")
        p(f"v_add_u32 v{VH+11}, s51, v{VH+10}")
        p(f"v_add_u32 v{VH+12}, 43008, v{VH+10}")
        p(f"v_add_u32 v{VH+13}, 43008, v{VH+11}")
    mtile(p, ACC[0], VH+10, lambda ks,ii: ks*16*192+ii*4*192, VH+11, lambda kc,ii: kc*64*192+ii*4*192, VH+12, VH+13, part=part)
def head_epi(p, t, lab):
    p(f"s_mul_i32 s62, s{SCB}, 3")
    if t: p(f"s_add_u32 s62, s62, {t}")
    epi_head(p, ACC[0], 62, lab)
def bar(p, name, *tags):
    stamp(p,name+'w')
    if tags: p.wait(*tags)
    stamp(p,name+'a')
    p("s_barrier")
    stamp(p,name)

def group_code(p, g):
    A = (g==0); L = "KA" if A else "KB"
    p(f"s_mul_i32 s63, s{SCB}, 168")
    if A:
        p0_compute(p)
        stamp(p,'p0end')
        def zs_out(q):
            q(f"v_add_u32 v18, {L_ZS}, v{VH+6}")
            q("ds_write_b64 v18, v[34:35]", tag='zs')
        first_epi(p, 0, L+"F", [0,8], zs_out)
        bar(p,'s1end','zs')
        p(f"s_sub_u32 s57, s{SCB}, 2")
        p("s_cmp_ge_u32 s57, 12")
        p(f"s_cbranch_scc1 {L}_NOSECOND")
        p.begin_alt(); p.alt_branch()
        pair_mtile(p, 0, sides=dma_p3_groups([12])); bar(p,'s2end','cs')
        main=capture(lambda q: epi_z1(q, ACC[0], 57, 0))
        p.extend(interleave(main, [capture(f) for f in dma_p3_groups([24])], 14, 80))
        if MALLPF: touch_wsp(p)
        bar(p,'s3end','p3')
        head_mtile(p, 0); bar(p,'s4end','cs')
        p(f"s_branch {L}_JOIN")
        p.alt_branch()
        p.label(f"{L}_NOSECOND")
        for f in dma_p3_groups([12,24]): f(p)
        bar(p,'sx','p3')
        head_mtile(p, 0); bar(p,'s4x','cs')
        p.end_alt()
        p.label(f"{L}_JOIN")
        head_epi(p, 0, L+"H0")
        head_mtile(p, 2, 'pre')
        bar(p,'s5end')
        head_mtile(p, 2, 'post'); bar(p,'s6end','cs')
        head_epi(p, 2, L+"H2")
        stamp(p,'headsE')
        p(f"s_cmp_ge_u32 s{SCB}, 14")
        p(f"s_cbranch_scc1 {L}_NOFIN")
        p.begin_opt()
        bar(p,'s7end')
        p(f"v_add_u32 v18, {L_ZS}, v{VH+6}")
        p("ds_read_b64 v[34:35], v18")
        fin_tile(p)
        p.end_opt()
        p.label(f"{L}_NOFIN")
    else:
        p0_load(p)
        stamp(p,'p0end')
        first_mtile(p, sides=dma_p3_groups([4]))
        bar(p,'s1end','cs','p2')
        p(f"s_sub_u32 s57, s{SCB}, 2")
        p("s_cmp_ge_u32 s57, 12")
        p(f"s_cbranch_scc1 {L}_NOSECOND")
        p.begin_alt(); p.alt_branch()
        main=capture(lambda q: epi_z2(q, ACC[0]))
        p.extend(interleave(main, [capture(f) for f in dma_p3_groups([16,20])], 14, 150))
        publish_z2(p)
        pair_mtile(p, 1, 'pre')
        bar(p,'s2end')
        pair_mtile(p, 1, 'post'); bar(p,'s3end','cs','p3')
        epi_z1(p, ACC[0], 57, 1)
        head_mtile(p, 1, 'pre')
        bar(p,'s4end')
        p(f"s_branch {L}_JOIN")
        p.alt_branch()
        p.label(f"{L}_NOSECOND")
        for f in dma_p3_groups([16,20]): f(p)
        bar(p,'sx','p3')
        first_epi(p, 1, L+"F", [], publish_z2)
        prep_issue(p)
        head_mtile(p, 1, 'pre')
        bar(p,'s4x')
        p.end_alt()
        p.label(f"{L}_JOIN")
        head_mtile(p, 1, 'post'); bar(p,'s5end','cs')
        p(f"s_cmp_ge_u32 s{SCB}, 14")
        p(f"s_cbranch_scc1 {L}_NOGL")
        p.begin_opt(); granule_loads(p); p.end_opt()
        p.label(f"{L}_NOGL")
        head_epi(p, 1, L+"H1")
        bar(p,'s6end')
        stamp(p,'headsE')
        p(f"s_cmp_ge_u32 s{SCB}, 14")
        p(f"s_cbranch_scc1 {L}_NOFIN")
        p.begin_opt()
        fin_stats(p, L)
        bar(p,'s7end','zf')
        fin_tile(p)
        p.end_opt()
        p.label(f"{L}_NOFIN")
        p(f"s_sub_u32 s57, s{SCB}, 2")
        p("s_cmp_lt_u32 s57, 12")
        p(f"s_cbranch_scc1 {L}_NOPREP")
        p.begin_opt(); prep_finish(p); p.end_opt()
        p.label(f"{L}_NOPREP")
    stamp(p,'end')
    PR.dump(p)
    if layout.FUSE:
        p("s_waitcnt vmcnt(0)")
        p("s_barrier")
        p("s_branch K2_FUSED")

def mall_prefetch(p, g):
    p(f"s_load_dwordx2 s[66:67], s[0:1], {KA_WSP if g else KA_WO}")
    if not g: p(f"s_load_dwordx2 s[70:71], s[0:1], {KA_WOUT}")
    p(f"s_sub_u32 s51, s{SCB}, 12")
    p(f"s_cmp_lt_u32 s{SCB}, 2")
    p(f"s_cselect_b32 s51, s{SCB}, s51")
    p(f"s_lshl_b32 s52, s{SRB}, 2")
    p("s_add_u32 s51, s51, s52")
    p("v_lshlrev_b32 v26, 7, v0")
    p("s_waitcnt lgkmcnt(0)")
    if g:
        srd(p, 72, 66, S*S*2)
        p("s_lshl_b32 s51, s51, 2")
        p(f"s_add_u32 s51, s51, s{SW}")
        p("s_lshl_b32 s51, s51, 15")
        for i in range(4):
            p(f"buffer_load_dword v27, v26, s[72:75], s51 offen")
            if i<3: p("s_add_u32 s51, s51, 8192")
    else:
        srd(p, 72, 66, D*D*2); srd(p, 76, 70, FH*D*2)
        p(f"s_mul_i32 s52, s51, {49*128}")
        p(f"s_mul_i32 s53, s51, {98*128}")
        p(f"s_sub_u32 s54, s{SW}, 1")
        p("s_min_u32 s54, s54, 1")
        p(f"s_mul_i32 s54, s54, {49*128}")
        p("s_add_u32 s53, s53, s54")
        p("v_min_u32 v28, 48, v0")
        p("v_lshlrev_b32 v28, 7, v28")
        p(f"s_cmp_lg_u32 s{SW}, 0")
        p.begin_alt()
        p("s_cbranch_scc1 K1_MPA")
        p.alt_branch()
        p(f"buffer_load_dword v27, v28, s[72:75], s52 offen")
        p("s_branch K1_MPB")
        p.alt_branch()
        p.label("K1_MPA")
        p(f"buffer_load_dword v27, v28, s[76:79], s53 offen")
        p.end_alt()
        p.label("K1_MPB")

NPREP=5
L_PREP=L_P2+4096
def prep_issue(p):
    p(f"s_load_dwordx2 s[66:67], s[0:1], {KA_WO}")
    p(f"s_load_dwordx2 s[68:69], s[0:1], {KA_WOUT}")
    p(f"s_sub_u32 s51, s{SCB}, 12")
    p(f"s_cmp_lt_u32 s{SCB}, 2")
    p(f"s_cselect_b32 s51, s{SCB}, s51")
    p(f"s_lshl_b32 s52, s{SRB}, 2")
    p("s_add_u32 s51, s51, s52")
    p("s_lshl_b32 s51, s51, 2")
    p(f"s_add_u32 s70, s51, s{SW}")
    p(f"s_mul_i32 s71, s{SW}, {NPREP*1024}")
    p(f"s_add_u32 s71, s71, {L_PREP}")
    p(f"s_mov_b32 s81, {D*D*2}")
    p(f"s_mov_b32 s82, {FH*D*2}")
    p("v_lshrrev_b32 v26, 2, v0")
    p(f"v_mul_u32_u24 v27, {D*2}, v26")
    p("v_and_b32 v28, 3, v0")
    p("v_lshl_add_u32 v27, v28, 4, v27")
    p("v_cmp_le_u32 vcc, 12, v26")
    p("v_mov_b32 v28, 0")
    p("v_mov_b32 v29, 0x7ff00000")
    p("v_cndmask_b32 v28, v28, v29, vcc")
    p("s_waitcnt lgkmcnt(0)")
    for i in range(NPREP):
        p(f"s_add_u32 s80, s70, {256*i}")
        p(f"s_mul_i32 s51, s80, 745")
        p("s_lshr_b32 s51, s51, 16")
        p("s_mul_i32 s52, s51, 88")
        p(f"s_sub_u32 s52, s80, s52")
        p("s_lshl_b32 s51, s51, 6")
        p("s_lshr_b32 s53, s52, 1")
        p("s_mul_i32 s53, s53, 28")
        p("s_and_b32 s54, s52, 1")
        p("s_lshl_b32 s55, s54, 4")
        p("s_add_u32 s53, s53, s55")
        p("s_sub_u32 s55, s52, 32")
        p("s_lshl_b32 s55, s55, 4")
        p("s_cmp_lt_u32 s52, 32")
        p("s_cselect_b32 s53, s53, s55")
        p("s_cselect_b32 s72, s66, s68")
        p("s_cselect_b32 s73, s67, s69")
        p("s_cselect_b32 s74, s81, s82")
        p("s_mov_b32 s75, 0x00020000")
        p("s_cselect_b32 s54, s54, 0")
        p(f"s_mul_i32 s53, s53, {D*2}")
        p("s_add_u32 s53, s53, s51")
        p("s_cmp_lt_u32 s80, 1232")
        p("s_cselect_b32 s53, s53, 0x7ff00000")
        p("s_sub_u32 s54, 0, s54")
        p("v_and_b32 v29, s54, v28")
        p("v_add_u32 v29, v29, v27")
        p(f"s_add_u32 m0, s71, {i*1024}")
        p("s_nop 0")
        p("buffer_load_dwordx4 v29, s[72:75], s53 offen lds", tag='pd')

def prep_finish(p):
    p("v_lshrrev_b32 v26, 4, v0")
    p("v_and_b32 v27, 1, v26")
    p("v_lshrrev_b32 v26, 1, v26")
    p("v_lshrrev_b32 v28, 2, v0")
    p("v_and_b32 v28, 3, v28")
    p("v_lshl_add_u32 v26, v26, 2, v28")
    p("v_lshlrev_b32 v26, 6, v26")
    p("v_lshl_add_u32 v26, v27, 5, v26")
    p("v_and_b32 v27, 3, v0")
    p("v_lshl_add_u32 v26, v27, 3, v26")
    p("v_add_u32 v26, s71, v26")
    p("s_waitcnt vmcnt(0)")
    for i in range(NPREP):
        p(f"ds_read_b64_tr_b16 {v(96+4*i,2)}, v26 offset:{i*1024}")
        p(f"ds_read_b64_tr_b16 {v(96+4*i+2,2)}, v26 offset:{i*1024+512}")
    for i in range(NPREP):
        p(f"s_add_u32 s80, s70, {256*i}")
        p(f"s_lshl_b32 s51, s80, 10")
        p(f"s_add_u32 s51, s51, {WS_WC}")
        p("s_cmp_lt_u32 s80, 1232")
        p("s_cselect_b32 s51, s51, 0x7ff00000")
        p(f"buffer_store_dwordx4 {v(96+4*i,4)}, v1, s[{WS}:{WS+3}], s51 offen{SM()}")

def KNAME(): return (NAME+'_kernel') if layout.FUSE else 'k1_kernel'
def code_prefetch(p):
    p(f"s_cmp_lg_u32 s{SW8}, 7")
    p("s_cbranch_scc1 K1_CP1")
    p.begin_opt()
    p("s_getpc_b64 s[66:67]")
    p.label("K1_PC")
    p(f"s_sub_u32 s66, s66, K1_PC-{KNAME()}")
    p("s_subb_u32 s67, s67, 0")
    p("s_mul_i32 s51, s15, 10")
    p("v_add_u32 v26, s51, v0")
    p("s_lshl_b32 s52, s2, 1")
    p(f"s_add_u32 s52, s52, ({'K2_FUSED' if layout.FUSE else 'k2_kernel'}-{KNAME()})/128-10")
    p("v_add_u32 v27, s52, v0")
    p("v_cmp_gt_u32 vcc, 10, v0")
    p("v_cndmask_b32 v26, v27, v26, vcc")
    p("v_lshlrev_b32 v26, 7, v26")
    p(f"v_min_u32 v26, CODE_END-{KNAME()}-4, v26")
    p("v_cmp_gt_u32 vcc, 12, v0")
    p("s_and_saveexec_b64 s[68:69], vcc")
    p("global_load_dword v27, v26, s[66:67]")
    p("s_mov_b64 exec, s[68:69]")
    p.end_opt()
    p.label("K1_CP1")

def l2_prefetch(p, g):
    T=38; L="K1_PF%d"%g
    p("s_and_b32 s51, s15, 7")
    p("s_lshr_b32 s52, s15, 3")
    if g==0:
        p.begin_alt()
        p(f"s_cmp_ge_u32 s{SW}, 2")
        p(f"s_cbranch_scc1 {L}_2")
        p.alt_branch()
        p("s_lshl_b32 s53, s52, 7")
        p(f"s_lshl_b32 s54, s{SW}, 6")
        p("s_add_u32 s53, s53, s54")
        p("v_add_u32 v18, s53, v0")
        p("v_lshrrev_b32 v19, 2, v18")
        p(f"v_mul_u32_u24 v19, {D*2}, v19")
        p("v_and_b32 v18, 3, v18")
        p("v_lshl_add_u32 v19, v18, 7, v19")
        p(f"s_mul_i32 s53, s{SRB}, {128*D*2}")
        p(f"s_add_u32 s53, s53, {3*128}")
        p(f"buffer_load_dword v{T}, v19, s[{XS}:{XS+3}], s53 offen")
        p(f"s_branch {L}_D")
        p.alt_branch()
        p.label(f"{L}_2")
        p(f"s_lshl_b32 s53, s{SW}, 4")
        p(f"s_mul_i32 s53, s53, {F*2}")
        p(f"s_cmp_eq_u32 s{SW}, 2")
        p(f"s_cselect_b32 s54, s{SP1}, s{SP2}")
        p("s_sub_u32 s54, s54, s53")
        p(f"s_cmp_eq_u32 s{SW}, 2")
        p("s_cselect_b32 s55, 32, 56")
        p("s_cselect_b32 s53, 192, 0")
        p("s_mul_i32 s62, s51, s55")
        p("s_add_u32 s53, s53, s62")
        p("s_sub_u32 s55, s55, 1")
        p("v_min_u32 v18, s55, v0")
        p("v_add_u32 v18, s53, v18")
        p(f"v_mul_u32_u24 v19, {F*2}, v18")
        p(f"buffer_load_dword v{T}, v19, s[{WIN}:{WIN+3}], s54 offen")
        p.end_alt()
        p.label(f"{L}_D")
    else:
        p(f"s_min_u32 s53, s{SW}, 2")
        p("s_mul_i32 s53, s53, 94")
        p(f"s_mul_i32 s54, s{SCB}, 168")
        p("s_add_u32 s54, s54, s53")
        p("s_mul_i32 s53, s51, 56")
        p("v_min_u32 v18, 55, v0")
        p("v_add_u32 v18, s53, v18")
        p(f"v_mul_u32_u24 v19, {3*D*2}, v18")
        p(f"buffer_load_dword v{T}, v19, s[{WQ}:{WQ+3}], s54 offen")

def epoch_load(p):
    if layout.FUSE: p(f"s_mov_b32 s{SEP}, {WS_EP}")
    else:
        p(f"s_lshl_b32 s{SEP}, s{SRB}, 7")
        p(f"s_add_u32 s{SEP}, s{SEP}, {WS_EP}")
    p(f"buffer_load_dword v{EPV}, v{VH+8}, s[{WS}:{WS+3}], s{SEP} offen sc1")

def gen():
    p=Prog(); prologue(p)
    p("s_mov_b32 s56, 0xbdd2d3e8")
    p("s_mov_b32 s58, 0"); p("s_mov_b32 s59, -1")
    p("s_mov_b32 s60, 0xffff0000")
    p(f"v_mov_b32 v{VH+8}, 0")
    p(f"s_cmp_ge_u32 s{SW8}, 4")
    p("s_cbranch_scc1 K1_GROUPB")
    p.begin_alt(); p.alt_branch()
    n0=PR.n; names0=list(PR.names)
    if layout.FUSE: epoch_load(p)
    for kc in range(3): dma_init(p,kc)
    if PREFETCH&1: l2_prefetch(p,0)
    setup_reads(p)
    p("v_mov_b32 v47, 0xc0135761")
    if layout.FUSE:
        p(f"v_add_u32 v{EPV}, 1, v{EPV}")
        p(f"v_readfirstlane_b32 s{STAG}, v{EPV}")
    stamp(p,'setup')
    group_code(p, 0)
    namesA=list(PR.names); PR.n=n0; PR.names=list(names0)
    if not layout.FUSE: p("s_branch K1_END")
    p.alt_branch()
    p.label("K1_GROUPB")
    epoch_load(p)
    for kc in range(3): dma_init(p,kc)
    if PREFETCH&2: l2_prefetch(p,1)
    if CODEPF: code_prefetch(p)
    setup_reads(p)
    p("v_mov_b32 v47, 0xc0135761")
    p(f"v_add_u32 v{EPV}, 1, v{EPV}")
    p(f"v_readfirstlane_b32 s{STAG}, v{EPV}")
    stamp(p,'setup')
    group_code(p, 1)
    PR.namesA=namesA
    p.end_alt()
    p.label("K1_END")
    p("s_endpgm")
    return p

PREFETCH=False; MALLPF=False; CODEPF=True; KROT=False
def kernel(**opt):
    global PR, PREFETCH, MALLPF, CODEPF, KROT
    KROT=bool(int(opt.get('krot',0)))
    MALLPF=bool(int(opt.get('mpf',0))); CODEPF=bool(int(opt.get('cpf',1)))
    PREFETCH=int(opt.get('pf',0))
    PR=Prof(bool(int(opt.get('prof',0))),WS,SW8,WS_EP+(1<<19))
    text=gen().finalize()
    if PR.on: open('k1_stamps.txt','w').write(" ".join(PR.namesA)+"\n"+" ".join(PR.names))
    return dict(name="k1_kernel", text=text, grid=256, block=512, lds=LDS_K1, vgpr=256, sgpr=102, accum=256)
```

```python
from asmlib import *
from layout import *
import layout
def SM(): return layout.STMOD
def LM(): return ' sc1' if layout.FUSE else ''
from k3 import srd

LDS_RING = 0
LDS_AC   = 98304
LDS_AM   = 147456
LDS_CNT  = 147456 + 4096
LDS_K2   = 147456 + 4096 + 64

SW=16; SHEAD=17; SQB=18; STB=19; SFB=20; SJ=21; SX=22
WS=24; WSP=28; AUX=32; AUX2=36; STAG=15; XS3=88; OUT3=92

from profutil import Prof
PR=Prof(False,WS,23,0)
PROF=False
PRION=0
SKIPDMA=0
PRIOPAT=''
STARTPRIO=0
ONLY=''
WPF=1
DELAYW=1
ROT=3
KINT=1
EARLYRING=1
FPF=0
CODEPF2=0
FROT=0
HMOD=' sc1'
def stamp(p,name): PR.stamp(p,str(name))
def dump_stamps(p,n): PR.dump(p)

def role_sync(p, idx, lab):
    p(f"v_mov_b32 v12, {LDS_CNT+4*idx}")
    p("v_mov_b32 v13, 1")
    p("s_mov_b64 exec, 1")
    p("ds_add_u32 v12, v13")
    p("s_mov_b64 exec, -1")
    p.label(lab)
    p("ds_read_b32 v13, v12")
    p("s_waitcnt lgkmcnt(0)")
    p("v_readfirstlane_b32 s61, v13")
    p("s_cmp_lt_u32 s61, 4")
    p(f"s_cbranch_scc1 {lab}")

def prologue(p):
    F=layout.FUSE
    if F:
        p.label("K2_FUSED")
        p("s_mov_b32 s23, s16")
        p(f"s_mov_b32 s{STAG}, s21")
    else:
        p("s_cmp_ge_u32 s2, 256")
        p("s_cbranch_scc1 K2_END")
        p(f"s_load_dwordx2 s[4:5], s[0:1], {KA_WS}")
    p(f"s_load_dwordx2 s[6:7], s[0:1], {KA_WSP}")
    p(f"s_load_dwordx2 s[8:9], s[0:1], {KA_BSP}")
    p(f"s_load_dwordx2 s[10:11], s[0:1], {KA_X}")
    p(f"s_load_dwordx2 s[12:13], s[0:1], {KA_OUT}")
    if CODEPF2 and not F:
        p("s_getpc_b64 s[66:67]")
        p.label("K2_PC")
        p("s_sub_u32 s66, s66, K2_PC-k2_kernel")
        p("s_subb_u32 s67, s67, 0")
        p("v_lshrrev_b32 v2, 6, v0")
        p("s_lshr_b32 s68, s2, 3")
        p("s_lshl_b32 s68, s68, 3")
        p("v_add_u32 v3, s68, v2")
        p("v_lshlrev_b32 v3, 7, v3")
        p("v_min_u32 v3, CODE_END-k2_kernel-4, v3")
        p("s_mov_b64 exec, 1")
        p(f"global_load_dword v15, v3, s[66:67]")
        if PROF: p("s_waitcnt vmcnt(0)")
        p("s_mov_b64 exec, -1")
    if not F:
        p("v_lshrrev_b32 v1, 6, v0")
        p("v_and_b32 v0, 63, v0")
        p("v_readfirstlane_b32 s23, v1")
    p(f"s_and_b32 s{SX}, s2, 7")
    p(f"s_lshr_b32 s{SJ}, s2, 3")
    p(f"s_and_b32 s{SW}, s23, 3")
    p("v_lshlrev_b32 v1, 4, v0")
    if F:
        p("s_cmp_lg_u32 s23, 0")
        p("s_cbranch_scc1 K2_NOF1")
        p.begin_opt()
        p("v_lshlrev_b32 v2, 10, v0")
        p(f"v_mov_b32 v3, s{STAG}")
        p("s_lshl_b32 s63, s2, 2")
        p(f"s_add_u32 s63, s63, {WS_F1}")
        p("s_mov_b64 exec, 0xff")
        p(f"buffer_store_dword v3, v2, s[{WS}:{WS+3}], s63 offen sc1")
        p("s_mov_b64 exec, -1")
        p.end_opt()
        p.label("K2_NOF1")
    p("s_waitcnt lgkmcnt(0)")
    if not F:
        srd(p, WS, 4, WS_SIZE)
        p(f"s_mov_b32 s63, {WS_EP}")
        p("v_mov_b32 v14, 0")
        p(f"buffer_load_dword v14, v14, s[{WS}:{WS+3}], s63 offen sc1")
    p(f"v_mov_b32 v2, {LDS_CNT}")
    p("v_mov_b32 v3, 0")
    p("ds_write_b32 v2, v3")
    p("ds_write_b32 v2, v3 offset:4")
    p("ds_write_b32 v2, v3 offset:8")
    p("s_waitcnt lgkmcnt(0)")
    if not F: p("s_barrier")
    PR.real(p,62)
    stamp(p,'start')
    p("s_cmp_ge_u32 s23, 4")
    p("s_cbranch_scc1 K2_ROLEB")

def phase1_wait(p):
    p("s_cmp_lg_u32 s23, 0")
    p("s_cbranch_scc1 K2_P1GO")
    p.begin_opt()
    p(f"s_lshl_b32 s63, s{SX}, 10")
    p(f"s_add_u32 s63, s63, {WS_F1}")
    p("s_mov_b32 s62, 0")
    p.label("K2_P1POLL")
    p(f"buffer_load_dwordx4 v[4:7], v1, s[{WS}:{WS+3}], s63 offen sc1")
    p("s_waitcnt vmcnt(0)")
    p(f"v_cmp_ne_u32 s[64:65], s{STAG}, v4")
    p(f"v_cmp_ne_u32 s[66:67], s{STAG}, v5")
    p(f"v_cmp_ne_u32 s[68:69], s{STAG}, v6")
    p(f"v_cmp_ne_u32 s[70:71], s{STAG}, v7")
    p("s_or_b64 s[64:65], s[64:65], s[66:67]")
    p("s_or_b64 s[68:69], s[68:69], s[70:71]")
    p("s_or_b64 s[64:65], s[64:65], s[68:69]")
    p("s_cmp_eq_u64 s[64:65], 0")
    p("s_cbranch_scc1 K2_P1OK")
    p("s_add_u32 s62, s62, 1")
    p("s_cmp_lt_u32 s62, 0x40000")
    p("s_cbranch_scc1 K2_P1POLL")
    p.label("K2_P1OK")
    p("s_cmp_lg_u32 s2, 0")
    p("s_cbranch_scc1 K2_P1GO")
    p(f"s_mov_b32 s63, {WS_EP}")
    p(f"v_mov_b32 v3, s{STAG}")
    p("v_mov_b32 v2, 0")
    p("s_mov_b64 exec, 1")
    p(f"buffer_store_dword v3, v2, s[{WS}:{WS+3}], s63 offen sc1")
    p("s_mov_b64 exec, -1")
    p.end_opt()
    p.label("K2_P1GO")
    p("s_barrier")
    PR.real(p,61)
    stamp(p,'p1go')

Q0=16; O0=48; S_=[112,128]; P_=[144,152]; KV0=160; ME=224; T0=228
def kvb(b): return KV0+16*b

def attention(p, force_fallback=False):
    SKV=40; SQ=41; SNT=42; SOFF=43; SK=44; SCNT=45; SIT=46
    p(f"s_lshr_b32 s40, s{SJ}, 4")
    p(f"s_lshl_b32 s41, s{SX}, 1")
    p(f"s_add_u32 s{SHEAD}, s40, s41")
    p(f"s_and_b32 s{SQB}, s{SJ}, 15")
    p(f"s_lshl_b32 s40, s{SHEAD}, 17")
    p(f"s_lshl_b32 s41, s{SQB}, 13")
    p(f"s_add_u32 s47, s40, s41")
    if WS_Q: p(f"s_add_u32 s47, s47, {WS_Q}")
    for rho in range(4):
        p(f"s_add_u32 s40, s{SW}, {rho}")
        p("s_and_b32 s40, s40, 3")
        p("s_lshl_b32 s40, s40, 11")
        p("s_add_u32 s40, s40, s47")
        p(f"buffer_load_dwordx4 {v(Q0+8*rho,4)}, v1, s[{WS}:{WS+3}], s40 offen{LM()}")
        p(f"buffer_load_dwordx4 {v(Q0+8*rho+4,4)}, v1, s[{WS}:{WS+3}], s40 offen offset:1024{LM()}")
    p(f"s_lshl_b32 s40, s{SHEAD}, 18")
    p(f"s_lshl_b32 s41, s{SW}, 16")
    p(f"s_add_u32 s40, s40, s41")
    p(f"s_add_u32 s{SKV}, s40, {WS_KV}")
    p(f"s_mov_b32 s{SNT}, {16 if force_fallback else 1}")
    p(f"s_mov_b32 s{SOFF}, {'0' if force_fallback else '0x42800000'}")
    p.label("A_RETRY")
    for j in range(4): p(f"v_mov_b32 v{ME+j}, 0xff7fffff")
    p(f"s_mov_b32 s{SCNT}, s{SNT}")
    def ld_tile(t_imm_base_sreg, b, part):
        for i in range(2):
            p(f"buffer_load_dwordx4 {v(kvb(b)+8*part+4*i,4)}, v1, s[{WS}:{WS+3}], s{t_imm_base_sreg} offen offset:{(2*part+i)*1024}{LM()}")
    ld_tile(SKV, 0, 0)
    if EARLYRING:
        ld_tile(SKV, 0, 1)
        p(f"s_add_u32 s{SK}, s{SKV}, 4096")
        for t in range(1,3):
            ld_tile(SK, t, 0); ld_tile(SK, t, 1)
            p(f"s_add_u32 s{SK}, s{SK}, 4096")
    p(f"s_mov_b32 s62, s{SKV}")
    p.label("A_MAXLOOP")
    for j in range(4):
        Sx = S_[j&1]
        p(f"v_mfma_f32_32x32x16_bf16 {v(Sx,16)}, {v(kvb(0),4)}, {v(Q0+8*j,4)}, 0")
        p(f"v_mfma_f32_32x32x16_bf16 {v(Sx,16)}, {v(kvb(0)+4,4)}, {v(Q0+8*j+4,4)}, {v(Sx,16)}")
        if j>0:
            Sy=S_[(j-1)&1]
            maxtree(p,Sy,ME+j-1)
    maxtree(p,S_[1],ME+3)
    p(f"s_sub_u32 s{SCNT}, s{SCNT}, 1")
    p(f"s_cmp_eq_u32 s{SCNT}, 0")
    p("s_cbranch_scc1 A_MAXDONE")
    p.begin_opt()
    p("s_add_u32 s62, s62, 4096")
    ld_tile(62, 0, 0)
    p("s_waitcnt vmcnt(0)")
    p("s_branch A_MAXLOOP")
    p.end_opt()
    p.label("A_MAXDONE")
    stamp(p,'maxdone')
    p(f"s_cmp_eq_u32 s{SNT}, 1")
    p("s_cbranch_scc1 A_KEEPK")
    p.begin_opt()
    ld_tile(SKV, 0, 0)
    p.end_opt()
    p.label("A_KEEPK")
    for j in range(4):
        m=ME+j; t=T0
        p(f"v_mov_b32 v{t}, v{m}")
        p(f"v_permlane32_swap_b32 v{t}, v{m}")
        p(f"v_max_f32 v{m}, v{t}, v{m}")
        p(f"v_add_f32 v{m}, s{SOFF}, v{m}")
        p(f"v_sub_f32 v{t}, 0, v{m}")
        p(f"v_and_b32 v{t+1}, 0xffff0000, v{t}")
        p(f"v_sub_f32 v{t+2}, v{t}, v{t+1}")
        p(f"v_and_b32 v{t+2}, 0xffff0000, v{t+2}")
        p(f"v_add_f32 v{t+3}, v{t+1}, v{t+2}")
        p(f"v_sub_f32 v{m}, 0, v{t+3}")
        p(f"v_lshrrev_b32 v{t+1}, 16, v{t+1}")
        p(f"v_or_b32 v{t+1}, v{t+1}, v{t+2}")
        p(f"s_mov_b64 exec, s[48:49]")
        p(f"v_mov_b32 v{Q0+8*j+6}, v{t+1}")
        p(f"s_mov_b64 exec, -1")
    def QK(u):
        j=u&3; b=(u>>2)&3; Sx=S_[u&1]
        return [f"v_mfma_f32_32x32x16_bf16 {v(Sx,16)}, {v(kvb(b),4)}, {v(Q0+8*j,4)}, 0",
                f"v_mfma_f32_32x32x16_bf16 {v(Sx,16)}, {v(kvb(b)+4,4)}, {v(Q0+8*j+4,4)}, {v(Sx,16)}"]
    def PV(u):
        j=u&3; b=(u>>2)&3; Px=P_[u&1]; O=O0+16*j
        return [f"v_mfma_f32_32x32x16_bf16 {v(O,16)}, {v(kvb(b)+8,4)}, {v(Px,4)}, {v(O,16)}",
                f"v_mfma_f32_32x32x16_bf16 {v(O,16)}, {v(kvb(b)+12,4)}, {v(Px+4,4)}, {v(O,16)}"]
    for r in range(8): p(f"v_mov_b32 v{kvb(3)+8+r}, 0")
    for m_ in QK(0): p(m_)
    main=capture(lambda q: ([q(f"v_mov_b32 v{O0+r}, 0") for r in range(64)], [q(f"v_mov_b32 v{P_[1]+r}, 0") for r in range(8)]))
    if EARLYRING: p.extend(main)
    else:
        def ringload(q, t, b, k):
            q(f"buffer_load_dwordx4 {v(kvb(b)+4*k,4)}, v1, s[{WS}:{WS+3}], s{SK} offen offset:{k*1024}{LM()}")
        sides=[]
        p(f"s_mov_b32 s{SK}, s{SKV}")
        sides.append(capture(lambda q: ringload(q,0,0,2))); sides.append(capture(lambda q: (ringload(q,0,0,3), q(f"s_add_u32 s{SK}, s{SK}, 4096"))))
        for t in (1,2):
            for k in range(4):
                sides.append(capture(lambda q,t=t,k=k: (ringload(q,t,t,k), q(f"s_add_u32 s{SK}, s{SK}, 4096") if k==3 else None)))
        p.extend(interleave(main, sides, 0, 70))
    def period(u, loads):
        Sx=S_[u&1]; Px=P_[u&1]
        qk=QK(u+1); pv=PV(u-1)
        ms=[qk[0],pv[0],qk[1],pv[1]]
        ex=[f"v_exp_f32 v{Sx+i}, v{Sx+i}" for i in range(16)]
        cv=[f"v_cvt_pk_bf16_f32 v{Px+i}, v{Sx+2*i}, v{Sx+2*i+1}" for i in range(8)]
        for g in range(4):
            p(ms[g])
            if g < len(loads) and loads[g]:
                for x in loads[g]: p(x)
            for k in range(2):
                i=2*g+k
                p(ex[2*i]); p(ex[2*i+1])
                if i>0: p(cv[i-1])
        p(cv[7])
    def iteration(last):
        for tl in range(4):
            for j in range(4):
                u=4*tl+j
                loads=[None]*4
                nb=(tl+3)&3
                doload = (not last) or tl==0
                if doload and j==0:
                    loads[2]=[f"buffer_load_dwordx4 {v(kvb(nb),4)}, v1, s[{WS}:{WS+3}], s{SK} offen offset:0{LM()}"]
                    loads[3]=[f"buffer_load_dwordx4 {v(kvb(nb)+4,4)}, v1, s[{WS}:{WS+3}], s{SK} offen offset:1024{LM()}"]
                if doload and j==1:
                    loads[0]=[f"buffer_load_dwordx4 {v(kvb(nb)+8,4)}, v1, s[{WS}:{WS+3}], s{SK} offen offset:2048{LM()}"]
                    loads[1]=[f"buffer_load_dwordx4 {v(kvb(nb)+12,4)}, v1, s[{WS}:{WS+3}], s{SK} offen offset:3072{LM()}",
                              f"s_add_u32 s{SK}, s{SK}, 4096"]
                period(u,loads)
    stamp(p,'loopstart')
    p(f"s_mov_b32 s{SIT}, 3")
    p.begin_loop(visits=3)
    p.label("A_LOOP")
    iteration(False)
    p(f"s_sub_u32 s{SIT}, s{SIT}, 1")
    p(f"s_cmp_lg_u32 s{SIT}, 0")
    p("s_cbranch_scc1 A_LOOP")
    p.end_loop()
    iteration(True)
    for m_ in PV(63): p(m_)
    stamp(p,'loopend')
    p("s_mov_b32 s50, 0x71800000")
    p("s_mov_b64 s[52:53], 0")
    for j in range(4):
        p(f"v_cmp_ngt_f32 vcc, s50, v{O0+16*j+12}")
        p("s_or_b64 s[52:53], s[52:53], vcc")
    p(f"s_cmp_eq_u32 s53, 0")
    p("s_cbranch_scc1 A_OK")
    p(f"s_cmp_eq_u32 s{SNT}, 16")
    p("s_cbranch_scc1 A_OK")
    p(f"s_mov_b32 s{SNT}, 16")
    p(f"s_mov_b32 s{SOFF}, 0")
    p(f"s_mov_b64 exec, s[48:49]")
    for j in range(4): p(f"v_mov_b32 v{Q0+8*j+6}, 0")
    p(f"s_mov_b64 exec, -1")
    p("s_branch A_RETRY")
    p.label("A_OK")

def maxtree(p, Sy, dst):
    t=T0
    for i in range(4):
        p(f"v_max3_f32 v{t+i}, v{Sy+4*i}, v{Sy+4*i+1}, v{Sy+4*i+2}")
    p(f"v_max3_f32 v{t}, v{t}, v{Sy+3}, v{Sy+7}")
    p(f"v_max3_f32 v{t+1}, v{t+1}, v{Sy+11}, v{Sy+15}")
    p(f"v_max3_f32 v{t}, v{t}, v{t+2}, v{t+3}")
    p(f"v_max3_f32 v{dst}, v{dst}, v{t}, v{t+1}")

def attention_publish(p):
    p(f"s_mul_i32 s40, s{SW}, 12288")
    p(f"s_add_u32 s40, s40, {LDS_AC}")
    p(f"v_add_u32 v2, s40, v1")
    for rho in range(1,4):
        for q in range(4):
            p(f"ds_write_b128 v2, {v(O0+16*rho+4*q,4)} offset:{(rho-1)*4096+q*1024}", tag='apub')
    p(f"v_and_b32 v3, 31, v0")
    p(f"v_lshlrev_b32 v3, 2, v3")
    p(f"s_lshl_b32 s40, s{SW}, 10")
    p(f"s_add_u32 s40, s40, {LDS_AM}")
    p(f"v_add_u32 v4, s40, v3")
    for rho in range(4):
        p(f"v_log_f32 v{T0+rho}, v{O0+16*rho+12}")
    for rho in range(4):
        p(f"v_add_f32 v{T0+rho}, v{T0+rho}, v{ME+rho}")
    p(f"s_mov_b64 exec, s[48:49]")
    for rho in range(4):
        p(f"ds_write_b32 v4, v{ME+rho} offset:{rho*256}", tag='apub')
        p(f"ds_write_b32 v4, v{T0+rho} offset:{rho*256+128}", tag='apub')
    p(f"s_mov_b64 exec, -1")
    p.wait('apub')

def attention_finish(p):
    R=112
    MM=160; LG=164
    for rho in range(4):
        p(f"s_sub_u32 s40, s{SW}, {rho}")
        p("s_and_b32 s40, s40, 3")
        p("s_lshl_b32 s41, s40, 10")
        p(f"s_add_u32 s41, s41, {LDS_AM+rho*256}")
        p(f"v_add_u32 v4, s41, v3")
        p(f"ds_read_b32 v{MM+rho}, v4")
        p(f"ds_read_b32 v{LG+rho}, v4 offset:128")
        if rho>0:
            p("s_mul_i32 s41, s40, 12288")
            p(f"s_add_u32 s41, s41, {LDS_AC+(rho-1)*4096}")
            p(f"v_add_u32 v2, s41, v1")
            for q in range(4):
                p(f"ds_read_b128 {v(R+16*(rho-1)+4*q,4)}, v2 offset:{q*1024}")
    t=T0
    p(f"v_max3_f32 v{t}, v{LG}, v{LG+1}, v{LG+2}")
    p(f"v_max_f32 v{t}, v{t}, v{LG+3}")
    for rho in range(4):
        p(f"v_sub_f32 v{LG+rho}, v{LG+rho}, v{t}")
        p(f"v_sub_f32 v{MM+rho}, v{MM+rho}, v{t}")
    for rho in range(4):
        p(f"v_exp_f32 v{LG+rho}, v{LG+rho}")
        p(f"v_exp_f32 v{MM+rho}, v{MM+rho}")
    p(f"v_add_f32 v{LG}, v{LG}, v{LG+1}")
    p(f"v_add_f32 v{LG+2}, v{LG+2}, v{LG+3}")
    p(f"v_add_f32 v{LG}, v{LG}, v{LG+2}")
    p(f"v_rcp_f32 v{LG}, v{LG}")
    for rho in range(4):
        p(f"v_mul_f32 v{MM+rho}, v{MM+rho}, v{LG}")
    for r in range(16):
        p(f"v_mul_f32 v{O0+r}, v{O0+r}, v{MM}")
    for rho in range(1,4):
        for r in range(16):
            p(f"v_fmac_f32 v{O0+r}, v{R+16*(rho-1)+r}, v{MM+rho}")
    p(f"s_mov_b64 exec, s[48:49]")
    for r in range(12,16): p(f"v_mov_b32 v{O0+r}, 0")
    p(f"s_mov_b64 exec, -1")
    for i in range(8):
        p(f"v_cvt_pk_bf16_f32 v{R+i}, v{O0+2*i}, v{O0+2*i+1}")
    p(f"s_lshl_b32 s40, s{SQB}, 2")
    p(f"s_add_u32 s40, s40, s{SW}")
    p(f"s_mul_i32 s40, s40, {88*1024}")
    p(f"s_lshl_b32 s41, s{SHEAD}, 11")
    p(f"s_add_u32 s40, s40, s41")
    p(f"s_add_u32 s40, s40, {WS_H}")
    p(f"buffer_store_dwordx4 {v(R,4)}, v1, s[{WS}:{WS+3}], s40 offen{SM()}")
    p(f"buffer_store_dwordx4 {v(R+4,4)}, v1, s[{WS}:{WS+3}], s40 offen offset:1024{SM()}")

GACC=128; GA=64; GB=48
def gemm(p):
    SROW=[40,41,42,43]; SRING=44; SZ=45; ST=46
    VD=[2,3]; VR=[4,5,6,7]
    p(f"s_mul_i32 s46, s{SJ}, 37")
    p("s_lshr_b32 s46, s46, 8")
    p("s_mul_i32 s47, s46, 7")
    p(f"s_sub_u32 s47, s{SJ}, s47")
    p(f"s_lshr_b32 s48, s{SX}, 1")
    p("s_lshl_b32 s48, s48, 2")
    p(f"s_add_u32 s{STB}, s48, s46")
    p(f"s_and_b32 s48, s{SX}, 1")
    p("s_mul_i32 s48, s48, 7")
    p(f"s_add_u32 s{SFB}, s48, s47")
    srd(p, WSP, 6, S*S*2)
    srd(p, AUX, 8, S*2)
    for rho in range(4):
        p(f"s_add_u32 s46, s{SW}, {rho}")
        p("s_and_b32 s46, s46, 3")
        p("s_lshl_b32 s46, s46, 5")
        p(f"s_lshl_b32 s47, s{STB}, 7")
        p("s_add_u32 s46, s46, s47")
        p("s_lshl_b32 s46, s46, 12")
        p(f"s_lshl_b32 s47, s{SW}, {7 if KINT else 10}")
        p(f"s_add_u32 s{SROW[rho]}, s46, s47")
    p(f"s_mul_i32 s{SRING}, s{SW}, 24576")
    p(f"s_lshl_b32 s46, s{SFB}, 7")
    p(f"s_lshl_b32 s47, s{SW}, {2 if KINT else 5}")
    p("s_add_u32 s46, s46, s47")
    p("s_lshl_b32 s46, s46, 11")
    p(f"s_add_u32 s{SZ}, s46, {WS_Z2}")
    p("v_lshrrev_b32 v8, 3, v0")
    p("v_lshlrev_b32 v8, 12, v8")
    p("v_lshrrev_b32 v9, 4, v0")
    p("v_and_b32 v10, 7, v0")
    p("v_xor_b32 v11, v10, v9")
    p("v_lshl_add_u32 v2, v11, 4, v8")
    p("v_xor_b32 v11, 4, v11")
    p("v_lshl_add_u32 v3, v11, 4, v8")
    p("v_and_b32 v8, 31, v0")
    p("v_lshrrev_b32 v9, 5, v0")
    p("v_lshrrev_b32 v10, 1, v8")
    p("v_and_b32 v10, 7, v10")
    p("v_xor_b32 v10, v10, v9")
    p("v_lshlrev_b32 v8, 7, v8")
    p(f"v_add_u32 v8, s{SRING}, v8")
    for u in range(4):
        p(f"v_xor_b32 v11, {2*u}, v10")
        p(f"v_lshl_add_u32 v{VR[u]}, v11, 4, v8")
    SROT=52; SWO=[53,54]; SZO=[55,56]
    p(f"s_and_b32 s{SROT}, s{STB if ROT==1 else SFB}, { {3:1,4:3}.get(ROT,7) }")
    if ROT==3: p(f"s_lshl_b32 s{SROT}, s{SROT}, 2")
    if ROT==4: p(f"s_lshl_b32 s{SROT}, s{SROT}, 1")
    def chunk_offsets(sc):
        e=sc&1
        if ROT:
            p(f"s_add_u32 s57, s{SROT}, {sc}")
            p("s_and_b32 s57, s57, 7")
            p(f"s_lshl_b32 s{SWO[e]}, s57, {9 if KINT else 7}")
            p(f"s_lshl_b32 s57, s57, {15 if KINT else 13}")
            p(f"s_add_u32 s{SZO[e]}, s57, s{SZ}")
        else:
            p(f"s_mov_b32 s{SWO[e]}, {sc*(512 if KINT else 128)}")
            p(f"s_add_u32 s{SZO[e]}, s{SZ}, {sc*(32768 if KINT else 8192)}")
    done=set()
    def need(sc):
        if sc not in done: done.add(sc); chunk_offsets(sc)
    def dma(c, which=range(8)):
        sc=c>>1; th=c&1; slot=c%3
        need(sc)
        for i in which:
            if SKIPDMA and (i&1) and c>1: continue
            rho=2*th+(i>>2)
            p(f"s_add_u32 m0, s{SRING}, {slot*8192+i*1024}")
            p(f"s_add_u32 s{ST}, s{SROW[rho]}, s{SWO[sc&1]}")
            if i&3: p(f"s_add_u32 s{ST}, s{ST}, {(8*(i&3))*4096}")
            p(f"buffer_load_dwordx4 v{VD[i&1]}, s[{WSP}:{WSP+3}], s{ST} offen lds", tag=f'dma{slot}')
    def aload(sc, lo, hi):
        e=sc&1
        need(sc)
        for k in range(lo,hi):
            if k%4==0 or k==lo: p(f"s_add_u32 s{ST+1}, s{SZO[e]}, {(k&~3)*1024}")
            p(f"buffer_load_dwordx4 {v(GA+e*32+4*k,4)}, v1, s[{WS}:{WS+3}], s{ST+1} offen offset:{(k%4)*1024}{LM()}")
    def bread(c,u):
        slot=c%3; st=(c*4+u)&1
        for tl in range(2):
            p(f"ds_read_b128 {v(GB+st*8+4*tl,4)}, v{VR[u]} offset:{slot*8192+tl*4096}")
    if STARTPRIO: p("s_setprio 1")
    if layout.FUSE and FPF==2:
        dma(0); dma(1)
        p("s_barrier")
        aload(0,0,8)
    elif layout.FUSE and FPF==1:
        dma(0)
        p("s_barrier")
        aload(0,0,4); dma(1); aload(0,4,8)
    elif layout.FUSE:
        p("s_barrier")
        dma(0); aload(0,0,4); dma(1); aload(0,4,8)
    else:
        dma(0); aload(0,0,4); dma(1); aload(0,4,8)
    stamp(p,'issued')
    p.wait('dma0')
    bread(0,0)
    stamp(p,'loopstart')
    for c in range(16):
        if c in (2,4,8,12): stamp(p,f'c{c}')
        sc=c>>1; th=c&1; e=sc&1
        for u in range(4):
            if PRIOPAT:
                on = PRIOPAT[(c*4+u) % len(PRIOPAT)]=='1'
                prev = PRIOPAT[(c*4+u-1) % len(PRIOPAT)]=='1' if (c or u) else False
                if on!=prev: p(f"s_setprio {1 if on else 0}")
            if u<3: nxt=(c,u+1)
            else: nxt=(c+1,0) if c<15 else None
            st=(c*4+u)&1
            k=0
            for tl in range(2):
                for fi in range(2):
                    acc=GACC+((2*th+tl)*2+fi)*16
                    cc = "0" if (sc==0 and u==0) else v(acc,16)
                    p(f"v_mfma_f32_32x32x16_bf16 {v(acc,16)}, {v(GA+e*32+4*(u*2+fi),4)}, {v(GB+st*8+4*tl,4)}, {cc}")
                    if k==0 and nxt:
                        if nxt[0]!=c: p.wait(f'dma{nxt[0]%3}')
                        bread(*nxt)
                    slot=u*4+k
                    if c==0:
                        if slot<8: dma(2,[slot])
                        if slot==8 and STARTPRIO: p("s_setprio 0")
                    else:
                        if c+2<16 and slot<8: dma(c+2,[slot])
                    if sc+1<8 and slot in (9,11,13,15) and c>=0:
                        kk=4*th+(slot-9)//2
                        aload(sc+1, kk, kk+1)
                    k+=1
    if PRIOPAT: p("s_setprio 0")

def gemm_publish(p):
    p(f"v_add_u32 v2, s44, v1")
    for rho in range(1,4):
        for fi in range(2):
            for q in range(4):
                p(f"ds_write_b128 v2, {v(GACC+(rho*2+fi)*16+4*q,4)} offset:{(rho-1)*8192+fi*4096+q*1024}", tag='gpub')
    p(f"s_lshl_b32 s46, s{STB}, 2")
    p(f"s_add_u32 s46, s46, s{SW}")
    p(f"s_mul_i32 s47, s46, {28*2048}")
    p(f"s_lshl_b32 s48, s{SFB}, 12")
    p("s_add_u32 s47, s47, s48")
    p(f"s_add_u32 s47, s47, {WS_Z1}")
    for k in range(4):
        p(f"buffer_load_dwordx4 {v(16+4*k,4)}, v1, s[{WS}:{WS+3}], s47 offen offset:{k*1024}{LM()}")
    p("v_and_b32 v8, 31, v0")
    p("v_lshlrev_b32 v8, 1, v8")
    p("s_lshl_b32 s48, s46, 6")
    p(f"buffer_load_ushort v9, v8, s[{AUX}:{AUX+3}], s48 offen")
    p.wait('gpub')

def gemm_finish(p):
    R=32
    for rho in range(1,4):
        p(f"s_sub_u32 s47, s{SW}, {rho}")
        p("s_and_b32 s47, s47, 3")
        p("s_mul_i32 s47, s47, 24576")
        p(f"s_add_u32 s47, s47, {(rho-1)*8192}")
        p("v_add_u32 v2, s47, v1")
        for k in range(8):
            p(f"ds_read_b128 {v(R+32*(rho-1)+4*k,4)}, v2 offset:{k*1024}")
    p("v_lshlrev_b32 v9, 16, v9")
    for r in range(32):
        p(f"v_add_f32 v{GACC+r}, v{GACC+r}, v{R+r}")
        p(f"v_add_f32 v{R+32+r}, v{R+32+r}, v{R+64+r}")
        p(f"v_add_f32 v{GACC+r}, v{GACC+r}, v9")
        p(f"v_add_f32 v{GACC+r}, v{GACC+r}, v{R+32+r}")
    for d in range(16):
        p(f"v_lshlrev_b32 v10, 16, v{16+d}")
        p(f"v_and_b32 v11, 0xffff0000, v{16+d}")
        p(f"v_mul_f32 v{GACC+2*d}, v{GACC+2*d}, v10")
        p(f"v_mul_f32 v{GACC+2*d+1}, v{GACC+2*d+1}, v11")
        p(f"v_cvt_pk_bf16_f32 v{R+d}, v{GACC+2*d}, v{GACC+2*d+1}")
    p(f"s_mul_i32 s47, s46, {88*1024}")
    p(f"s_lshl_b32 s48, s{SFB}, 12")
    p("s_add_u32 s47, s47, s48")
    p(f"s_add_u32 s47, s47, {WS_H+32*1024}")
    for k in range(4):
        p(f"buffer_store_dwordx4 {v(R+4*k,4)}, v1, s[{WS}:{WS+3}], s47 offen offset:{k*1024}{SM()}")

def signal(p, tblk_sreg, slot_expr_sreg):
    p("s_waitcnt vmcnt(0)")
    if not layout.FUSE: p(f"v_readfirstlane_b32 s{STAG}, v14")
    p(f"s_lshl_b32 s64, s{tblk_sreg}, 7")
    p(f"s_lshl_b32 s65, s{slot_expr_sreg}, 2")
    p("s_add_u32 s64, s64, s65")
    p(f"s_add_u32 s64, s64, {WS_FL}")
    p(f"v_mov_b32 v12, s{STAG}")
    p("v_mov_b32 v13, 0")
    p("s_mov_b64 exec, 1")
    p(f"buffer_store_dword v12, v13, s[{WS}:{WS+3}], s64 offen sc1")
    p("s_mov_b64 exec, -1")

WO0=16; WH0=80; H0=136; FACC=192; RS3=272
STB3=66; SNB3=67
def hreg(k): return H0+4*k if k<14 else 4+4*(k-14)
def final_ids(p):
    srd(p, XS3, 10, S*D*2); srd(p, OUT3, 12, S*D*2)
    p(f"s_mul_i32 s72, s{SJ}, 37")
    p("s_lshr_b32 s72, s72, 8")
    p("s_mul_i32 s73, s72, 7")
    p(f"s_sub_u32 s{SNB3}, s{SJ}, s73")
    p(f"s_lshl_b32 s73, s{SX}, 2")
    p(f"s_add_u32 s{STB3}, s73, s72")
    p("s_mul_i32 s80, s72, 3")
    p(f"s_add_u32 s80, s80, s{SNB3}")
    p("s_sub_u32 s81, s80, 11")
    p("s_cmp_ge_u32 s80, 11")
    p("s_cselect_b32 s80, s81, s80")
    p(f"s_mul_i32 s72, s{SNB3}, {2*88*1024}")
    p(f"s_add_u32 s68, s72, {WS_WC}")
    p(f"s_mul_i32 s72, s{STB3}, {2*88*1024}")
    p(f"s_add_u32 s69, s72, {WS_H}")
def frag_loads(p, base, ks0_sreg, nk, regf, mod):
    p(f"s_lshl_b32 s72, s{ks0_sreg}, 10")
    p(f"s_add_u32 s73, s{base}, s72")
    if not FROT:
        p(f"s_mov_b32 s70, s73")
        p(f"s_add_u32 s71, s70, {88*1024}")
        for k in range(nk):
            for i in range(2):
                p(f"buffer_load_dwordx4 {v(regf(2*k+i),4)}, v1, s[{WS}:{WS+3}], s{70+i} offen offset:{(k%4)*1024}{mod}")
            if k%4==3 and k+1<nk:
                p("s_add_u32 s70, s70, 4096"); p("s_add_u32 s71, s71, 4096")
        return
    p("s_mov_b32 s81, s80")
    for k in range(nk):
        p("s_lshl_b32 s72, s81, 10")
        p("s_add_u32 s70, s73, s72")
        p(f"s_add_u32 s71, s70, {88*1024}")
        if k+1<nk:
            p("s_add_u32 s81, s81, 1")
            p(f"s_cmp_eq_u32 s81, {nk}")
            p("s_cselect_b32 s81, 0, s81")
        for i in range(2):
            p(f"buffer_load_dwordx4 {v(regf(2*k+i),4)}, v1, s[{WS}:{WS+3}], s{70+i} offen{mod}")
def frag_mfma(p, nk, wf, hf, first_zero):
    for k in range(nk):
        for ti in range(2):
            for ni in range(2):
                acc = FACC + (ti*2+ni)*16
                c = "0" if (k==0 and first_zero) else v(acc,16)
                p(f"v_mfma_f32_32x32x16_bf16 {v(acc,16)}, {v(wf(2*k+ni),4)}, {v(hf(2*k+ti),4)}, {c}")
def lds_wait(p, idx, n, lab):
    p(f"v_mov_b32 v12, {LDS_CNT+4*idx}")
    p.label(lab)
    p("ds_read_b32 v13, v12")
    p("s_waitcnt lgkmcnt(0)")
    p("v_readfirstlane_b32 s61, v13")
    p(f"s_cmp_lt_u32 s61, {n}")
    p(f"s_cbranch_scc1 {lab}")
def poll_flags(p, mask_lo, lab):
    p(f"s_lshl_b32 s72, s{STB3}, 8")
    p(f"s_add_u32 s72, s72, {WS_FL}")
    p("v_lshlrev_b32 v3, 2, v0")
    p(f"s_mov_b32 s74, {mask_lo}"); p(f"s_mov_b32 s75, {mask_lo}")
    p("s_mov_b32 s76, 0")
    p.label(lab)
    p(f"buffer_load_dword v12, v3, s[{WS}:{WS+3}], s72 offen sc1")
    p("s_waitcnt vmcnt(0)")
    p(f"v_cmp_ne_u32 vcc, s{STAG}, v12")
    p("s_and_b64 s[78:79], vcc, s[74:75]")
    p("s_cmp_eq_u64 s[78:79], 0")
    p(f"s_cbranch_scc1 {lab}_OK")
    p("s_add_u32 s76, s76, 1")
    p("s_cmp_lt_u32 s76, 0x40000")
    p(f"s_cbranch_scc1 {lab}")
    p.label(lab+"_OK")

NK3=11; W30=16; H30=104
def final_attention(p):
    final_ids(p)
    lds_wait(p, 2, 4, "K2_AWAIT")
    p(f"s_mul_i32 s77, s23, {NK3}")
    frag_loads(p, 68, 77, NK3, lambda k: W30+4*k, LM())
    stamp(p,'wissued')
    p("s_branch K2_FH")

def final_gemm(p):
    final_ids(p)
    p(f"s_mul_i32 s77, s23, {NK3}")
    frag_loads(p, 68, 77, NK3, lambda k: W30+4*k, LM())
    stamp(p,'wissued')
    p("s_cmp_lg_u32 s23, 7")
    p("s_cbranch_scc1 K2_FH")
    poll_flags(p, "0x3fffffff", "K2_GPOLL")
    p("s_branch K2_FH")

def final_common(p):
    p.label("K2_FH")
    p("s_barrier")
    stamp(p,'flags')
    p(f"s_mul_i32 s77, s23, {NK3}")
    frag_loads(p, 69, 77, NK3, lambda k: H30+4*k, HMOD)
    p("v_lshrrev_b32 v3, 3, v0")
    p(f"s_lshl_b32 s72, s{STB3}, 6")
    p(f"s_lshl_b32 s73, s23, 3")
    p("s_add_u32 s72, s72, s73")
    p("v_add_u32 v3, s72, v3")
    p(f"v_mul_u32_u24 v3, {D*2}, v3")
    p("v_and_b32 v2, 7, v0")
    p("v_lshlrev_b32 v2, 4, v2")
    p(f"s_lshl_b32 s73, s{SNB3}, 7")
    p("v_add3_u32 v2, v3, v2, s73")
    p(f"buffer_load_dwordx4 v[4:7], v2, s[{XS3}:{XS3+3}], 0 offen")
    frag_mfma(p, NK3, lambda k: W30+4*k, lambda k: H30+4*k, True)
    stamp(p,'fmfma')
    RS=RS3; ACC=FACC
    p("v_and_b32 v8, 31, v0")
    p(f"v_mul_u32_u24 v8, {RS}, v8")
    p("v_lshrrev_b32 v9, 5, v0")
    p("v_lshlrev_b32 v9, 4, v9")
    p(f"s_mul_i32 s72, s23, {64*RS}")
    p("v_add3_u32 v8, v8, v9, s72")
    for ti in range(2):
        for ni in range(2):
            acc = ACC + (ti*2+ni)*16
            for q in range(4):
                p(f"ds_write_b128 v8, {v(acc+4*q,4)} offset:{ti*32*RS+ni*128+q*32}", tag='pw')
    p.wait('pw')
    p("s_barrier")
    stamp(p,'fbar')
    p("v_lshrrev_b32 v8, 3, v0")
    p(f"s_lshl_b32 s72, s23, 3")
    p("v_add_u32 v8, s72, v8")
    p(f"v_mul_u32_u24 v8, {RS}, v8")
    p("v_and_b32 v9, 7, v0")
    p("v_lshlrev_b32 v9, 5, v9")
    p("v_add_u32 v8, v8, v9")
    p(f"v_add_u32 v9, {4*64*RS}, v8")
    R=16
    for w in range(8):
        for hh in range(2):
            a=8 if w<4 else 9
            p(f"ds_read_b128 {v(R+(w*2+hh)*4,4)}, v{a} offset:{(w%4)*64*RS+hh*16}")
    for st_ in (1,2,4):
        for w in range(0,8,2*st_):
            for e in range(8):
                p(f"v_add_f32 v{R+8*w+e}, v{R+8*w+e}, v{R+8*(w+st_)+e}")
    for d in range(4):
        p(f"v_lshlrev_b32 v10, 16, v{4+d}")
        p(f"v_and_b32 v11, 0xffff0000, v{4+d}")
        p(f"v_add_f32 v{R+2*d}, v{R+2*d}, v10")
        p(f"v_add_f32 v{R+2*d+1}, v{R+2*d+1}, v11")
    for d in range(4):
        p(f"v_cvt_pk_bf16_f32 v{R+8+d}, v{R+2*d}, v{R+2*d+1}")
    p(f"buffer_store_dwordx4 {v(R+8,4)}, v2, s[{OUT3}:{OUT3+3}], 0 offen")
    stamp(p,'fend')

def prep(p):
    srd(p, AUX, 10, D*D*2)
    srd(p, AUX2, 12, FH*D*2)
    p(f"s_lshl_b32 s40, s{SX}, 2")
    p(f"s_add_u32 s40, s40, s{SJ}")
    p("s_sub_u32 s40, s40, 28")
    p("s_lshl_b32 s40, s40, 2")
    p(f"s_add_u32 s40, s40, s{SW}")
    p(f"s_mul_i32 s44, s{SW}, 24576")
    p("v_lshrrev_b32 v2, 2, v0")
    p(f"v_mul_u32_u24 v3, {D*2}, v2")
    p("v_and_b32 v4, 3, v0")
    p("v_lshl_add_u32 v3, v4, 4, v3")
    p("v_cmp_gt_u32 vcc, 12, v2")
    p("v_mov_b32 v5, 0x7ff00000")
    p("v_cndmask_b32 v4, v5, v3, vcc")
    p("v_lshrrev_b32 v5, 4, v0")
    p("v_and_b32 v6, 1, v5")
    p("v_lshrrev_b32 v5, 1, v5")
    p("v_lshrrev_b32 v7, 2, v0")
    p("v_and_b32 v7, 3, v7")
    p("v_lshl_add_u32 v5, v5, 2, v7")
    p("v_lshlrev_b32 v5, 6, v5")
    p("v_lshl_add_u32 v5, v6, 5, v5")
    p("v_and_b32 v6, 3, v0")
    p("v_lshl_add_u32 v5, v6, 3, v5")
    p("v_add_u32 v5, s44, v5")
    NI=10
    for i in range(NI):
        f=50+i
        p(f"s_add_u32 s{f}, s40, {128*i}")
        p(f"s_add_u32 m0, s44, {i*1024}")
        p(f"s_cmp_ge_u32 s{f}, 1232")
        p(f"s_cbranch_scc1 P_SKIP{i}")
        p(f"s_mul_i32 s41, s{f}, 745")
        p("s_lshr_b32 s41, s41, 16")
        p("s_mul_i32 s42, s41, 88")
        p(f"s_sub_u32 s42, s{f}, s42")
        p("s_lshl_b32 s41, s41, 6")
        p("s_cmp_ge_u32 s42, 32")
        p(f"s_cbranch_scc1 P_OUT{i}")
        p("s_lshr_b32 s43, s42, 1")
        p("s_mul_i32 s43, s43, 28")
        p("s_and_b32 s45, s42, 1")
        p("s_lshl_b32 s46, s45, 4")
        p("s_add_u32 s43, s43, s46")
        p(f"s_mul_i32 s43, s43, {D*2}")
        p("s_add_u32 s43, s43, s41")
        p("s_cmp_eq_u32 s45, 1")
        p(f"s_cbranch_scc1 P_PAD{i}")
        p(f"buffer_load_dwordx4 v3, s[{AUX}:{AUX+3}], s43 offen lds", tag='pd')
        p(f"s_branch P_SKIP{i}")
        p.label(f"P_PAD{i}")
        p(f"buffer_load_dwordx4 v4, s[{AUX}:{AUX+3}], s43 offen lds", tag='pd')
        p(f"s_branch P_SKIP{i}")
        p.label(f"P_OUT{i}")
        p("s_sub_u32 s43, s42, 32")
        p("s_lshl_b32 s43, s43, 4")
        p(f"s_mul_i32 s43, s43, {D*2}")
        p("s_add_u32 s43, s43, s41")
        p(f"buffer_load_dwordx4 v3, s[{AUX2}:{AUX2+3}], s43 offen lds", tag='pd')
        p.label(f"P_SKIP{i}")
    p("s_waitcnt vmcnt(0)")
    for i in range(NI):
        p(f"ds_read_b64_tr_b16 {v(16+4*i,2)}, v5 offset:{i*1024}")
        p(f"ds_read_b64_tr_b16 {v(16+4*i+2,2)}, v5 offset:{i*1024+512}")
    p("s_waitcnt lgkmcnt(0)")
    for i in range(NI):
        f=50+i
        p(f"s_cmp_ge_u32 s{f}, 1232")
        p(f"s_cbranch_scc1 P_SK2{i}")
        p(f"s_lshl_b32 s41, s{f}, 10")
        p(f"s_add_u32 s41, s41, {WS_WC}")
        p(f"buffer_store_dwordx4 {v(16+4*i,4)}, v1, s[{WS}:{WS+3}], s41 offen{SM()}")
        p.label(f"P_SK2{i}")

def gen(force_fallback=False):
    p=Prog(); prologue(p)
    n0=PR.n
    p.begin_alt()
    p.alt_branch()
    p("s_mov_b32 s48, 0"); p("s_mov_b32 s49, -1")
    if ONLY=='g': p("s_branch K2_END")
    if layout.FUSE: phase1_wait(p)
    attention(p, force_fallback); attention_publish(p)
    stamp(p,'published')
    role_sync(p,0,"A_SYNC")
    stamp(p,'barrier')
    attention_finish(p)
    stamp(p,'finished')
    p(f"s_lshl_b32 s62, s{SQB}, 2")
    p(f"s_add_u32 s62, s62, s{SW}")
    signal(p, 62, SHEAD)
    stamp(p,'end')
    p(f"s_cmp_ge_u32 s{SJ}, 28")
    p("s_cbranch_scc1 K2_AEXIT")
    final_attention(p)
    namesA=list(PR.names); PR.n=n0; PR.names=PR.names[:n0]
    p.alt_branch()
    p.label("K2_ROLEB")
    p(f"s_cmp_ge_u32 s{SJ}, 28")
    p("s_cbranch_scc1 K2_WPF" if WPF else "s_cbranch_scc1 K2_END")
    if ONLY=='a': p("s_branch K2_END")
    gemm(p); stamp(p,'loopend'); gemm_publish(p)
    stamp(p,'published')
    role_sync(p,1,"B_SYNC")
    stamp(p,'barrier')
    gemm_finish(p)
    p(f"v_mov_b32 v12, {LDS_CNT+8}")
    p("v_mov_b32 v13, 1")
    p("s_mov_b64 exec, 1")
    p("ds_add_u32 v12, v13")
    p("s_mov_b64 exec, -1")
    stamp(p,'finished')
    p(f"s_add_u32 s62, s{SFB}, 16")
    signal(p, 46, 62)
    stamp(p,'end')
    final_gemm(p)
    namesB=list(PR.names)
    p.end_alt()
    PR.n=24; PR.names=[]
    final_common(p)
    dump_stamps(p,8)
    p("s_branch K2_END")
    texts=[p.finalize()]
    p=Prog()
    p.label("K2_AEXIT")
    dump_stamps(p,8)
    p("s_branch K2_END")
    if WPF:
        p.label("K2_WPF")
        if layout.FUSE: p("s_barrier")
        lds_wait(p, 0, 1, "K2_WPFW")
        p(f"s_sub_u32 s61, s{SJ}, 28")
        p("s_lshl_b32 s61, s61, 2")
        p(f"s_add_u32 s61, s61, s{SW}")
        p(f"s_mul_i32 s61, s61, {616*128}")
        p(f"s_add_u32 s61, s61, {WS_WC}")
        p("v_lshlrev_b32 v12, 7, v0")
        for i in range(10):
            p(f"buffer_load_dword v13, v12, s[{WS}:{WS+3}], s61 offen")
            if i<9: p("s_add_u32 s61, s61, 8192")
    p.label("K2_END")
    p("s_endpgm")
    if PR.on:
        pad=lambda L: L+['-']*(24-len(L))
        open('k2_stamps.txt','w').write(" ".join(pad(namesA)+PR.names)+"\n"+" ".join(pad(namesB)+PR.names))
    texts.append(p.finalize())
    return "".join(texts)

def kernel(**opt):
    global PROF, PR, PRION, SKIPDMA, PRIOPAT, STARTPRIO, ONLY, WPF
    WPF=int(opt.get('wpf',1))
    global DELAYW
    DELAYW=int(opt.get('dw',1))
    global ROT, KINT, EARLYRING, FPF, CODEPF2, FROT
    FROT=int(opt.get('frot',0))
    global HMOD
    HMOD={'0':'','1':' sc1','2':' nt','3':' sc0 sc1'}[opt.get('hmod','1')]
    CODEPF2=int(opt.get('cpf2',0))
    FPF=int(opt.get('fpf',0))
    EARLYRING=int(opt.get('er',1))
    ROT=int(opt.get('rot',3)); KINT=int(opt.get('kint',1))
    ONLY=opt.get('only','')
    STARTPRIO=int(opt.get('sp',0))
    PRIOPAT=opt.get('pp','')
    SKIPDMA=int(opt.get('skipdma',0))
    PRION=int(opt.get('prion',0))
    PROF=bool(int(opt.get('prof',0)))
    PR=Prof(PROF,WS,23,WS_ST+(1<<19),vr=15)
    return dict(name="k2_kernel", text=gen(force_fallback=bool(int(opt.get('ff',0)))), grid=256, block=512, lds=LDS_K2, vgpr=256, sgpr=102, accum=256)
```

```python
from asmlib import *
from layout import *
import layout
def SM(): return layout.STMOD
from k3 import srd

L_X   = 0
L_P1  = 112*1024
L_P2  = 16*1024
L_P3  = 72*1024
L_SM  = 156*1024
L_CS  = L_SM
L_XS  = L_SM + 2048
L_ZS  = L_SM + 3072
L_TAG = 0
L_T   = 64
LDS_K1 = 160*1024
def p1_addr(kc): return L_P1 + kc*8192 if kc < 5 else (kc-5)*8192

SW8=16; SW=17; SG=18; SRB=19; SCB=20; STAG=21; SSB=22
WS=24; XS=28; WIN=32; WQ=36; DBG=40
SP1=44; SP2=45; SP3=46; SXB=47; ST=48; ST2=49; SEP=50
VL16=1; VXD=(2,3); VWD=4; VXR=(5,6,7,8); VWR=9; VCSR=10; VSR=11; VP3D=(12,13,14); VP3R=15
MU=16; RS_=17; VT=18
CS=48; WF=64; ZH=80; ACC=(96,112); XF=128
VH=240
ONES=244; CSW=249; CSR=247; CSD=124; NMF=42; EPV=39; TAGA=11; TAGV=240

from profutil import Prof
PR=Prof(False,WS,SW8,0)
def stamp(p,name): PR.stamp(p,str(name))

def prologue(p):
    p("s_cmp_ge_u32 s2, 256")
    p("s_cbranch_scc1 K1_END")
    p(f"s_load_dwordx2 s[4:5], s[0:1], {KA_WS}")
    p(f"s_load_dwordx2 s[6:7], s[0:1], {KA_X}")
    p(f"s_load_dwordx2 s[8:9], s[0:1], {KA_WIN}")
    p(f"s_load_dwordx2 s[10:11], s[0:1], {KA_WQKV}")
    p(f"s_load_dwordx2 s[12:13], s[0:1], {KA_DBG}")
    p(f"s_load_dwordx2 s[92:93], s[0:1], {KA_WSP}")
    p("v_lshrrev_b32 v1, 6, v0")
    p("v_and_b32 v0, 63, v0")
    p(f"v_readfirstlane_b32 s{SW8}, v1")
    p("s_and_b32 s14, s2, 7")
    p("s_lshr_b32 s15, s2, 3")
    p("s_and_b32 s51, s14, 1")
    p("s_lshl_b32 s51, s51, 3")
    p("s_and_b32 s52, s15, 7")
    p(f"s_add_u32 s{SRB}, s51, s52")
    p("s_lshr_b32 s51, s14, 1")
    p("s_lshl_b32 s51, s51, 2")
    p("s_lshr_b32 s52, s15, 3")
    p(f"s_add_u32 s{SCB}, s51, s52")
    p(f"s_and_b32 s{SW}, s{SW8}, 3")
    p(f"s_lshr_b32 s{SG}, s{SW8}, 2")
    p(f"s_lshl_b32 s{SSB}, s{SRB}, 2")
    p(f"s_add_u32 s{SSB}, s{SSB}, s{SW}")
    p(f"v_lshlrev_b32 v{VL16}, 4, v0")
    p("s_waitcnt lgkmcnt(0)")
    srd(p, WS, 4, WS_SIZE); srd(p, XS, 6, S*D*2); srd(p, WIN, 8, D*F*2); srd(p, WQ, 10, D*3*D*2); srd(p, DBG, 12, 256)
    PR.real(p,62)
    stamp(p,'start')
    p("v_lshrrev_b32 v18, 3, v0")
    p(f"v_mul_u32_u24 v19, {D*2}, v18")
    p("v_lshrrev_b32 v20, 4, v0")
    p("v_and_b32 v21, 7, v0")
    p("v_xor_b32 v22, v21, v20")
    p(f"v_lshl_add_u32 v{VXD[0]}, v22, 4, v19")
    p("v_xor_b32 v22, 4, v22")
    p(f"v_lshl_add_u32 v{VXD[1]}, v22, 4, v19")
    p(f"v_mul_u32_u24 v19, {F*2}, v18")
    p("v_and_b32 v20, 1, v20")
    p("v_lshlrev_b32 v20, 2, v20")
    p("v_xor_b32 v22, v21, v20")
    p(f"v_lshl_add_u32 v{VWD}, v22, 4, v19")
    p(f"s_lshl_b32 s51, s{SRB}, 7")
    p(f"s_lshl_b32 s52, s{SW}, 5")
    p("s_add_u32 s51, s51, s52")
    p(f"s_mul_i32 s{SXB}, s51, {D*2}")
    p(f"s_lshl_b32 s51, s{SRB}, 7")
    p(f"s_lshl_b32 s52, s{SW8}, 4")
    p("s_add_u32 s51, s51, s52")
    p(f"s_mul_i32 s94, s51, {D*2}")
    p(f"s_lshl_b32 s51, s{SCB}, 7")
    p(f"s_add_u32 s52, s51, {FH*2}")
    p(f"s_sub_u32 s53, s51, 256")
    p(f"s_cmp_lt_u32 s{SCB}, 14")
    p(f"s_cselect_b32 s{SP1}, s52, s53")
    p(f"s_lshl_b32 s95, s{SW8}, 3")
    p(f"s_mul_i32 s95, s95, {F*2}")
    p(f"s_add_u32 s95, s95, s{SP1}")
    p(f"s_sub_u32 s54, s{SCB}, 2")
    p(f"s_cmp_lt_u32 s54, 12")
    p(f"s_cselect_b32 s{SP2}, s53, 0")
    p(f"s_lshl_b32 s51, s{SW}, 4")
    p(f"s_mul_i32 s51, s51, {F*2}")
    p(f"s_add_u32 s{SP1}, s{SP1}, s51")
    p(f"s_add_u32 s{SP2}, s{SP2}, s51")

def dma_x(p, kc, which=range(4)):
    for i in which:
        p(f"s_lshl_b32 m0, s{SW}, 12")
        p(f"s_add_u32 m0, m0, {L_X+kc*16384+i*1024}")
        p(f"s_add_u32 s{ST}, s{SXB}, {i*8*D*2+kc*128}")
        p(f"buffer_load_dwordx4 v{VXD[i&1]}, s[{XS}:{XS+3}], s{ST} offen lds", tag=f'x{kc}')
def dma_pair(p, sbase, kc, ldsaddr, tag, which=range(2)):
    for i in which:
        p(f"s_lshl_b32 m0, s{SW}, 11")
        p(f"s_add_u32 m0, m0, {ldsaddr+i*1024}")
        p(f"s_add_u32 s{ST}, s{sbase}, {kc*64*F*2+i*8*F*2}")
        p(f"buffer_load_dwordx4 v{VWD}, s[{WIN}:{WIN+3}], s{ST} offen lds", tag=tag)

def dma_init(p, kc):
    for i in range(2):
        p(f"s_lshl_b32 m0, s{SW8}, 11")
        p(f"s_add_u32 m0, m0, {L_X+kc*16384+i*1024}")
        p(f"s_add_u32 s{ST}, s94, {i*8*D*2+kc*128}")
        p(f"buffer_load_dwordx4 v{VXD[i]}, s[{XS}:{XS+3}], s{ST} offen lds", tag=f'x{kc}')
    p(f"s_lshl_b32 m0, s{SW8}, 10")
    p(f"s_add_u32 m0, m0, {p1_addr(kc)}")
    p(f"s_add_u32 s{ST}, s95, {kc*64*F*2}")
    p(f"buffer_load_dwordx4 v{VWD}, s[{WIN}:{WIN+3}], s{ST} offen lds", tag=f'w{kc}')

def setup_reads(p):
    p("v_and_b32 v18, 31, v0")
    p("v_lshrrev_b32 v19, 5, v0")
    p("v_lshrrev_b32 v20, 1, v18")
    p("v_and_b32 v20, 7, v20")
    p("v_xor_b32 v20, v20, v19")
    p("v_lshlrev_b32 v18, 7, v18")
    p(f"s_lshl_b32 s51, s{SW}, 12")
    p(f"v_add_u32 v18, s51, v18")
    for u in range(4):
        p(f"v_xor_b32 v21, {2*u}, v20")
        p(f"v_lshl_add_u32 v{VXR[u]}, v21, 4, v18")
    p("v_lshrrev_b32 v18, 4, v0")
    p("v_and_b32 v19, 1, v18")
    p("v_lshrrev_b32 v18, 1, v18")
    p("v_lshrrev_b32 v20, 2, v0")
    p("v_and_b32 v20, 3, v20")
    p("v_and_b32 v21, 3, v0")
    p("v_lshl_add_u32 v22, v18, 3, v20")
    p("v_lshlrev_b32 v23, 7, v22")
    p("v_lshrrev_b32 v24, 1, v21")
    p("v_lshl_add_u32 v24, v19, 1, v24")
    p(f"s_lshl_b32 s51, s{SG}, 2")
    p("v_add_u32 v24, s51, v24")
    p("v_lshrrev_b32 v25, 1, v20")
    p("v_lshlrev_b32 v25, 2, v25")
    p("v_xor_b32 v24, v24, v25")
    p("v_lshl_add_u32 v23, v24, 4, v23")
    p("v_and_b32 v24, 1, v21")
    p(f"v_lshl_add_u32 v{VWR}, v24, 3, v23")
    p(f"s_lshl_b32 s51, s{SW}, 11")
    p(f"v_add_u32 v{VCSR}, s51, v{VWR}")
    p(f"v_add_u32 v{VH+12}, {L_P1}, v{VWR}")
    p(f"v_add_u32 v{VH+13}, {L_P1}, v{VCSR}")
    for r in range(3):
        p(f"v_add_u32 v23, {64*r}, v0")
        p(f"v_mul_u32_u24 v24, 43691, v23")
        p(f"v_lshrrev_b32 v24, 19, v24")
        p(f"v_mul_u32_u24 v25, 12, v24")
        p(f"v_sub_u32 v25, v23, v25")
        p(f"v_mul_u32_u24 v24, {3*D*2}, v24")
        p(f"v_lshl_add_u32 v{VP3D[r]}, v25, 4, v24")
    p("v_mul_u32_u24 v23, 192, v22")
    p("v_lshl_add_u32 v23, v19, 5, v23")
    p(f"v_lshl_add_u32 v{VP3R}, v21, 3, v23")
    p(f"v_add_u32 v{VP3R}, {L_P3}, v{VP3R}")
    p("v_and_b32 v23, 31, v0")
    p("v_mul_u32_u24 v23, 72, v23")
    p("v_lshrrev_b32 v24, 5, v0")
    p("v_lshl_add_u32 v23, v24, 3, v23")
    p(f"s_mul_i32 s51, s{SW8}, 2304")
    p(f"s_add_u32 s51, s51, {L_T}")
    p(f"v_add_u32 v{VH+1}, s51, v23")
    p("v_lshl_add_u32 v23, v18, 2, v20")
    p("v_mul_u32_u24 v23, 72, v23")
    p("v_lshl_add_u32 v23, v19, 5, v23")
    p("v_lshl_add_u32 v23, v21, 3, v23")
    p(f"v_add_u32 v{VH+2}, s51, v23")
    p("v_mul_u32_u24 v23, 72, v22")
    p("v_lshl_add_u32 v23, v19, 5, v23")
    p("v_lshl_add_u32 v23, v21, 3, v23")
    p(f"v_add_u32 v{VH+3}, s51, v23")
    p("v_and_b32 v23, 31, v0")
    p("v_lshlrev_b32 v23, 2, v23")
    p(f"s_lshl_b32 s51, s{SG}, 10")
    p(f"s_add_u32 s51, s51, {L_CS}")
    p(f"v_add_u32 v23, s51, v23")
    p(f"s_lshl_b32 s52, s{SW}, 7")
    p(f"v_add_u32 v{CSW}, s52, v23")
    p("v_lshrrev_b32 v24, 5, v0")
    p(f"v_lshl_add_u32 v{CSR}, v24, 8, v23")
    p(f"s_lshl_b32 s52, s{SW}, 2")
    p(f"v_mov_b32 v{TAGA}, s52")
    p(f"v_mov_b32 v{TAGV}, 0x7fc17fc1")
    p(f"v_mov_b32 v{ONES}, 0x3f803f80")
    p(f"v_mov_b32 v{ONES+1}, 0x3f803f80")
    p("v_and_b32 v23, 31, v0")
    p(f"s_lshl_b32 s51, s{SW}, 5")
    p("v_add_u32 v23, s51, v23")
    p(f"v_lshlrev_b32 v{VH+6}, 3, v23")

def cs_zero(p):
    for r in range(4): p(f"v_mov_b32 v{CSD+r}, 0")
def cs_step(p, fr):
    p(f"v_mfma_f32_4x4x4_16b_bf16 {v(CSD,4)}, {v(ONES,2)}, {v(fr,2)}, {v(CSD,4)}")
    p(f"v_mfma_f32_4x4x4_16b_bf16 {v(CSD,4)}, {v(ONES,2)}, {v(fr+2,2)}, {v(CSD,4)}")
def cs_flush(p, par, tag=None):
    p(f"v_mov_b32 v46, v{CSD}")
    p(f"v_mov_b32 v33, v{CSD}")
    p(f"v_permlane32_swap_b32 v46, v33")
    p(f"v_add_f32 v46, v46, v33")
    p(f"ds_write_b32 v{CSW}, v46 offset:{par*512}", tag='cs')
    if tag is not None: p(f"ds_write_b32 v{TAGA}, v{TAGV} offset:{L_TAG+tag*16}", tag='cs')
NLAB=[0]
def meanfix(p, acc, par, tag=None):
    F=28
    if tag is not None:
        NLAB[0]+=1; lab=f"K1_CSW{NLAB[0]}"
        p.label(lab)
        p(f"ds_read_b128 {v(F,4)}, v{VH+8} offset:{L_TAG+tag*16}")
    p(f"ds_read_b32 v26, v{CSR} offset:{par*512}")
    p(f"ds_read_b32 v27, v{CSR} offset:{par*512+128}")
    if tag is not None:
        p("s_waitcnt lgkmcnt(0)")
        for k in range(4): p(f"v_xor_b32 v{F+k}, s61, v{F+k}")
        p(f"v_or3_b32 v{F}, v{F}, v{F+1}, v{F+2}")
        p(f"v_or_b32 v{F}, v{F}, v{F+3}")
        p(f"v_readfirstlane_b32 s51, v{F}")
        p("s_cmp_lg_u32 s51, 0")
        p(f"s_cbranch_scc1 {lab}")
    for k in range(2):
        a=26+k; d=F+2*k
        p(f"v_and_b32 v32, 0xffff0000, v{a}")
        p(f"v_sub_f32 v33, v{a}, v32")
        p(f"v_lshrrev_b32 v{d+1}, 16, v32")
        p(f"v_and_or_b32 v{d}, v33, s60, v{d+1}")
    p(f"v_mfma_f32_32x32x16_bf16 {v(acc,16)}, {v(F,4)}, {v(NMF,4)}, {v(acc,16)}")

def x_reads(kc):
    L=[]
    if kc==4: L+=[f"v_add_u32 v{r}, 0x10000, v{r}" for r in list(VXR)]
    xo=(kc*16384)&0xffff
    for u in range(4): L.append(f"ds_read_b128 {v(XF+4*(4*kc+u),4)}, v{VXR[u]} offset:{xo}")
    return L

def p0_compute(p):
    for r in range(40,44): p(f"v_mov_b32 v{r}, 0")
    cs_zero(p)
    CF=(28,120)
    def wreads(kc):
        if kc<5: wa,ca,wb=VH+12,VH+13,kc*8192
        else: wa,ca,wb=VWR,VCSR,(kc-5)*8192
        W=48+16*(kc&1); L=[]
        for u in range(4):
            L.append([f"ds_read_b64_tr_b16 {v(W+4*u,2)}, v{wa} offset:{wb+u*2048}",
                      f"ds_read_b64_tr_b16 {v(W+4*u+2,2)}, v{wa} offset:{wb+u*2048+512}"])
        cf=CF[kc&1]
        L.append([f"ds_read_b64_tr_b16 {v(cf,2)}, v{ca} offset:{wb}", f"ds_read_b64_tr_b16 {v(cf+2,2)}, v{ca} offset:{wb+512}"])
        return L
    for kc in range(8):
        if kc<7:
            if kc<3: p.wait(f'x{kc}', f'w{kc}')
            p("s_barrier")
            if kc in (0,6): stamp(p,f'c{kc}bar')
        xr = x_reads(kc) if kc<7 else []
        wr = wreads(kc) if kc<7 else []
        if kc==0:
            for x in xr: p(x)
            for gr in wr:
                for x in gr: p(x)
        else:
            c=kc-1; W=48+16*(c&1)
            sf=XF+16*c
            for u in range(4):
                cc = "0" if (c==0 and u==0) else v(ACC[0],16)
                p(f"v_mfma_f32_32x32x16_bf16 {v(ACC[0],16)}, {v(W+4*u,4)}, {v(XF+4*(4*c+u),4)}, {cc}")
                if u==0:
                    for x in xr: p(x)
                elif kc<7:
                    for gr in wr[[0,0,2,4][u]:[0,2,4,5][u]]:
                        for x in gr: p(x)
            cs_step(p, CF[c&1])
            for d in range(16):
                p(f"v_dot2c_f32_bf16 v{40+(d&1)}, v{sf+d}, v{ONES}")
                p(f"v_dot2c_f32_bf16 v{42+(d&1)}, v{sf+d}, v{sf+d}")
        if kc<7: p("s_waitcnt lgkmcnt(0)")
    cs_flush(p, 0)
    p("v_add_f32 v40, v40, v41")
    p("v_add_f32 v41, v42, v43")
    p("v_mov_b32 v42, v40"); p("v_mov_b32 v43, v41")
    p("v_permlane32_swap_b32 v42, v40")
    p("v_permlane32_swap_b32 v43, v41")
    p("v_add_f32 v40, v40, v42")
    p("v_add_f32 v41, v41, v43")
    p(f"v_mul_f32 v{MU}, 0x3b124925, v40")
    p(f"v_mul_f32 v41, 0x3b124925, v41")
    p(f"v_fma_f32 v41, -v{MU}, v{MU}, v41")
    p(f"v_add_f32 v41, 0x3727c5ac, v41")
    p(f"v_rsq_f32 v{RS_}, v41")
    p(f"v_add_u32 v18, {L_XS}, v{VH+6}")
    p(f"ds_write_b64 v18, {v(MU,2)}", tag='xs')
    nmf(p)
    p.wait('xs','cs')
    p("s_barrier")

def p0_load(p):
    def dmas(kc):
        G=[]
        n=kc+3
        if n<7:
            G.append(lambda q,n=n: dma_x(q,n))
            G.append(lambda q,n=n: dma_pair(q, SP1, n, p1_addr(n), f'w{n}'))
        if kc==4: G+= [lambda q,i=i: dma_pair(q, SP2, i, L_P2+i*8192, 'p2') for i in (0,1,2)]
        if kc==5: G+= [lambda q,i=i: dma_pair(q, SP2, i, L_P2+i*8192, 'p2') for i in (3,4,5)]
        if kc==6: G+= [lambda q: dma_pair(q, SP2, 6, L_P2+6*8192, 'p2')]
        return G
    for kc in range(7):
        p.wait(f'x{kc}', f'w{kc}')
        p("s_barrier")
        if kc in (0,6): stamp(p,f'c{kc}bar')
        for x in x_reads(kc): p(x)
        for f in dmas(kc): f(p)
        p("s_waitcnt lgkmcnt(0)")
    p("s_barrier")
    p(f"v_add_u32 v18, {L_XS}, v{VH+6}")
    p(f"ds_read_b64 {v(MU,2)}, v18")
    nmf(p)

def nmf(p):
    p(f"v_sub_f32 v20, 0, v{MU}")
    p(f"v_and_b32 v21, 0xffff0000, v20")
    p(f"v_sub_f32 v22, v20, v21")
    p(f"v_lshrrev_b32 v23, 16, v21")
    p(f"v_or_b32 v{NMF}, v21, v23")
    p(f"v_lshrrev_b32 v{NMF+1}, 16, v22")
    p(f"v_mov_b32 v{NMF+2}, v{NMF}")
    p(f"v_mov_b32 v{NMF+3}, v{NMF+1}")

def dma_p3_groups(firsts):
    G=[]
    for n0 in firsts:
        def setup(q,n0=n0):
            q(f"s_add_u32 s88, s{SW}, {n0}")
            q(f"s_mul_i32 s87, s88, {16*3*D*2}")
            q(f"s_add_u32 s87, s87, s63")
            q(f"s_mul_i32 s89, s88, 3072")
        for r in range(3):
            def one(q,r=r,setup=setup):
                if r==0: setup(q)
                q(f"s_add_u32 m0, s89, {L_P3+r*1024}")
                q("s_nop 0")
                q(f"buffer_load_dwordx4 v{VP3D[r]}, s[{WQ}:{WQ+3}], s87 offen lds", tag='p3')
            G.append(one)
    return G

def center(p, acc, scale_v, cs):
    meanfix(p, acc, *cs)
    for r in range(16):
        p(f"v_mul_f32 v{acc+r}, v{acc+r}, v{scale_v}")

def gelu(p, acc, dst):
    T=18
    for b in (0,8):
        R=range(b,b+8)
        for r in R: p(f"v_mul_f32 v{T+r-b}, v{acc+r}, v{acc+r}")
        for r in R: p(f"v_fma_f32 v{T+r-b}, v{T+r-b}, s56, v47")
        for r in R: p(f"v_mul_f32 v{T+r-b}, v{T+r-b}, v{acc+r}")
        for r in R: p(f"v_exp_f32 v{T+r-b}, v{T+r-b}")
        for r in R: p(f"v_add_f32 v{T+r-b}, 1.0, v{T+r-b}")
        for r in R: p(f"v_rcp_f32 v{T+r-b}, v{T+r-b}")
        for r in R: p(f"v_mul_f32 v{dst+r}, v{acc+r}, v{T+r-b}")

def pack(p, src, dst):
    for i in range(8): p(f"v_cvt_pk_bf16_f32 v{dst+i}, v{src+2*i}, v{src+2*i+1}")
def store2(p, src, sreg, off=0):
    p(f"buffer_store_dwordx4 {v(src,4)}, v{VL16}, s[{WS}:{WS+3}], s{sreg} offen offset:{off}{SM()}")
    p(f"buffer_store_dwordx4 {v(src+4,4)}, v{VL16}, s[{WS}:{WS+3}], s{sreg} offen offset:{off+1024}{SM()}")
def transpose(p, src, dst, traddr, order):
    for q in range(4):
        p(f"ds_write_b64 v{VH+1}, {v(src+2*q,2)} offset:{q*16}", tag='tw')
    p.wait('tw')
    for u in range(2):
        for ii in range(2):
            row = (16*u+8*ii) if order=='v' else (16*u+4*ii)
            p(f"ds_read_b64_tr_b16 {v(dst+4*u+2*ii,2)}, v{traddr} offset:{row*72}")

def epi_z1(p, acc, pairreg, g, cs):
    center(p, acc, RS_, cs)
    gelu(p, acc, acc)
    pack(p, acc, 34)
    p(f"s_mul_i32 s51, s{SSB}, {28*2048}")
    p(f"s_lshl_b32 s52, s{pairreg}, 12")
    p("s_add_u32 s51, s51, s52")
    p(f"s_add_u32 s51, s51, {WS_Z1+g*2048}")
    store2(p, 34, 51)

def epi_z2(p, acc, cs):
    center(p, acc, RS_, cs)
    gelu(p, acc, ZH)
    p(f"v_mov_b32 v34, v{ZH}")
    p(f"v_mul_f32 v35, v{ZH}, v{ZH}")
    for r in range(1,16):
        p(f"v_add_f32 v34, v34, v{ZH+r}")
        p(f"v_fmac_f32 v35, v{ZH+r}, v{ZH+r}")
    p("v_mov_b32 v36, v34"); p("v_mov_b32 v37, v35")
    p("v_permlane32_swap_b32 v36, v34")
    p("v_permlane32_swap_b32 v37, v35")
    p("v_add_f32 v34, v34, v36")
    p("v_add_f32 v35, v35, v37")

LA=5
def mtile(p, acc, addr, off_fn, cs_addr, cs_off_fn, addr2=None, cs_addr2=None, part='all', sides=(), split=43008, cs=(0,None)):
    NB=8; WB=48
    def rd(ks):
        b=WB+4*(ks%NB)
        for ii in range(2):
            o=off_fn(ks,ii); r=addr
            if o>=split and addr2 is not None: r=addr2; o-=split
            p(f"ds_read_b64_tr_b16 {v(b+2*ii,2)}, v{r} offset:{o}")
    def csrd(kc):
        for ii in range(2):
            o=cs_off_fn(kc,ii); r=cs_addr
            if o>=split and cs_addr2 is not None: r=cs_addr2; o-=split
            p(f"ds_read_b64_tr_b16 {v(26+4*(kc&1)+2*ii,2)}, v{r} offset:{o}")
    if part in ('all','pre'):
        for ks in range(LA): rd(ks)
        csrd(0)
    if part=='pre': return
    cs_zero(p)
    sched_rd={3*kc-2:kc for kc in range(1,7)}
    sched_st={3*kc+1:kc for kc in range(7)}
    for ks in range(28):
        c = "0" if ks==0 else v(acc,16)
        p(f"v_mfma_f32_32x32x16_bf16 {v(acc,16)}, {v(WB+4*(ks%NB),4)}, {v(XF+4*ks,4)}, {c}")
        if ks+LA<28: rd(ks+LA)
        if ks in sched_st: cs_step(p, 26+4*(sched_st[ks]&1))
        if ks in sched_rd: csrd(sched_rd[ks])
        if ks==23: cs_flush(p, *cs)
        if ks%3==2 and ks//3<len(sides): sides[ks//3](p)

def epi_head(p, acc, treg, lab, cs):
    p(f"s_lshr_b32 s52, s{treg}, 4")
    p(f"s_and_b32 s53, s{treg}, 15")
    p(f"v_mov_b32 v46, v{RS_}")
    p("s_cmp_lg_u32 s52, 0")
    p(f"s_cbranch_scc1 {lab}_NQ")
    p(f"v_mul_f32 v46, 0x3e8b97f6, v46")
    p.label(f"{lab}_NQ")
    center(p, acc, 46, cs)
    p("s_cmp_eq_u32 s52, 0"); p("s_cselect_b32 s54, 0, 1.0")
    p("s_cmp_eq_u32 s52, 1"); p("s_cselect_b32 s55, 1.0, 0")
    p("s_mov_b64 exec, s[58:59]")
    p(f"v_mov_b32 v{acc+12}, s54"); p(f"v_mov_b32 v{acc+13}, s55"); p(f"v_mov_b32 v{acc+14}, 0"); p(f"v_mov_b32 v{acc+15}, 0")
    p("s_mov_b64 exec, -1")
    pack(p, acc, 34)
    p(f"s_lshl_b32 s54, s53, 6")
    p(f"s_add_u32 s54, s54, s{SSB}")
    p("s_cmp_eq_u32 s52, 2")
    p(f"s_cbranch_scc1 {lab}_V")
    p("s_lshl_b32 s55, s54, 11")
    p(f"s_add_u32 s55, s55, {WS_Q}")
    p("s_lshl_b32 s54, s54, 12")
    p(f"s_add_u32 s54, s54, {WS_KV}")
    p("s_cmp_eq_u32 s52, 0")
    p("s_cselect_b32 s54, s55, s54")
    p.begin_opt()
    store2(p, 34, 54)
    p(f"s_branch {lab}_D")
    p.end_opt()
    p.label(f"{lab}_V")
    p.begin_opt()
    transpose(p, 34, 20, VH+2, 'v')
    p("s_lshl_b32 s54, s54, 12")
    p(f"s_add_u32 s54, s54, {WS_KV+2048}")
    store2(p, 20, 54)
    p.end_opt()
    p.label(f"{lab}_D")

def publish_z2(p):
    p(f"v_add_u32 v18, {L_ZS}, v{VH+6}")
    p("ds_read_b64 v[36:37], v18")
    p("v_add_f32 v36, v36, v34")
    p("v_add_f32 v38, v37, v35")
    p(f"v_mov_b32 v37, s{STAG}")
    p(f"v_mov_b32 v39, s{STAG}")
    p(f"s_mul_i32 s51, s{SSB}, {14*512}")
    p(f"s_lshl_b32 s52, s{SCB}, 9")
    p("s_add_u32 s51, s51, s52")
    p(f"s_add_u32 s51, s51, {WS_ST}")
    p("s_mov_b32 exec_hi, 0")
    p(f"buffer_store_dwordx4 v[36:39], v{VL16}, s[{WS}:{WS+3}], s51 offen sc1")
    p("s_mov_b64 exec, -1")

GRQ=[112,116,120,18,22,34,38]
def granule_loads(p):
    p(f"s_mul_i32 s90, s{SSB}, {14*512}")
    p(f"s_add_u32 s90, s90, {WS_ST}")
    for i in range(7):
        p(f"s_add_u32 s53, s90, {i*1024}")
        p(f"buffer_load_dwordx4 {v(GRQ[i],4)}, v{VL16}, s[{WS}:{WS+3}], s53 offen sc1", tag='gr')

def fin_stats(p, lab):
    p(f"s_mov_b32 s52, 0")
    p.wait('gr')
    p.label(f"{lab}_CHECK")
    p("s_mov_b64 s[54:55], 0")
    for i in range(7):
        p(f"v_cmp_ne_u32 vcc, s{STAG}, v{GRQ[i]+1}")
        p("s_or_b64 s[54:55], s[54:55], vcc")
        p(f"v_cmp_ne_u32 vcc, s{STAG}, v{GRQ[i]+3}")
        p("s_or_b64 s[54:55], s[54:55], vcc")
    p("s_cmp_eq_u64 s[54:55], 0")
    p(f"s_cbranch_scc1 {lab}_POLLDONE")
    p("s_add_u32 s52, s52, 1")
    p("s_cmp_gt_u32 s52, 0x40000")
    p(f"s_cbranch_scc1 {lab}_POLLDONE")
    granule_loads(p)
    p("s_waitcnt vmcnt(0)")
    p(f"s_branch {lab}_CHECK")
    p.label(f"{lab}_POLLDONE")
    stamp(p,'polled')
    Q=GRQ
    p(f"v_add_f32 v30, v{Q[0]}, v{Q[1]}")
    p(f"v_add_f32 v31, v{Q[0]+2}, v{Q[1]+2}")
    for i in range(2,7):
        p(f"v_add_f32 v30, v30, v{Q[i]}")
        p(f"v_add_f32 v31, v31, v{Q[i]+2}")
    p("v_mov_b32 v34, v30"); p("v_mov_b32 v35, v31")
    p("v_mov_b32 v36, v34"); p("v_mov_b32 v37, v35")
    p("v_permlane32_swap_b32 v36, v34")
    p("v_permlane32_swap_b32 v37, v35")
    p("v_add_f32 v34, v34, v36")
    p("v_add_f32 v35, v35, v37")
    p("v_mul_f32 v34, 0x3a924925, v34")
    p("v_mul_f32 v35, 0x3a924925, v35")
    p("v_fma_f32 v35, -v34, v34, v35")
    p("v_add_f32 v35, 0x3727c5ac, v35")
    p("v_rsq_f32 v35, v35")
    p(f"v_add_u32 v18, {L_ZS}, v{VH+6}")
    p("v_mul_f32 v34, v34, v35")
    p("ds_write_b64 v18, v[34:35]", tag='zf')
    if layout.FUSE: return
    p(f"s_sub_u32 s53, s{SW8}, 4")
    p(f"s_or_b32 s53, s53, s{SCB}")
    p("s_cmp_lg_u32 s53, 0")
    p(f"s_cbranch_scc1 {lab}_NOBUMP")
    p.begin_opt()
    p(f"v_mov_b32 v18, s{STAG}")
    p("s_mov_b64 exec, 1")
    p(f"buffer_store_dword v18, v{VH+8}, s[{WS}:{WS+3}], s{SEP} offen sc1")
    p("s_mov_b64 exec, -1")
    p.end_opt()
    p.label(f"{lab}_NOBUMP")

def fin_tile(p):
    for r in range(16):
        p(f"v_fma_f32 v{ZH+r}, v{ZH+r}, v35, -v34")
    pack(p, ZH, 36)
    transpose(p, 36, 20, VH+3, 'z')
    p(f"s_lshl_b32 s51, s{SCB}, 7")
    p(f"s_lshl_b32 s52, s{SSB}, 1")
    p("s_add_u32 s51, s51, s52")
    p("s_lshl_b32 s51, s51, 11")
    p(f"s_lshl_b32 s52, s{SG}, 10")
    p("s_add_u32 s51, s51, s52")
    p(f"s_add_u32 s51, s51, {WS_Z2}")
    p(f"buffer_store_dwordx4 {v(20,4)}, v{VL16}, s[{WS}:{WS+3}], s51 offen{SM()}")
    p(f"buffer_store_dwordx4 {v(24,4)}, v{VL16}, s[{WS}:{WS+3}], s51 offen offset:2048{SM()}")

def touch_wsp(p):
    srd(p, 76, 92, S*S*2)
    p(f"s_lshl_b32 s51, s2, 2")
    p(f"s_add_u32 s51, s51, s{SW}")
    p(f"s_lshl_b32 s51, s51, 13")
    p(f"v_lshlrev_b32 v11, 7, v0")
    p(f"buffer_load_dword v{VH}, v11, s[76:79], s51 offen")

def first_epi(p, g, lab, firsts, after_z2=None):
    G=dma_p3_groups(firsts)
    p(f"s_cmp_ge_u32 s{SCB}, 14")
    p(f"s_cbranch_scc1 {lab}_Z1")
    p.begin_alt(); p.alt_branch()
    main=capture(lambda q: epi_z2(q, ACC[0], (0,None)))
    p.extend(interleave(main, [capture(f) for f in G], 14, 150))
    if after_z2: after_z2(p)
    p(f"s_branch {lab}_D")
    p.alt_branch()
    p.label(f"{lab}_Z1")
    p(f"s_sub_u32 s57, s{SCB}, 2")
    main=capture(lambda q: epi_z1(q, ACC[0], 57, g, (0,None)))
    p.extend(interleave(main, [capture(f) for f in G], 14, 130))
    p.end_alt()
    p.label(f"{lab}_D")

def first_mtile(p, sides=()):
    mtile(p, ACC[0], VH+12, lambda ks,ii: ks*2048+ii*512, VH+13, lambda kc,ii: kc*8192+ii*512, VWR, VCSR, sides=sides, split=5*8192, cs=(0,None))
def pair_mtile(p, g, cs, part='all', sides=()):
    if part!='post':
        p(f"v_add_u32 v{VH+10}, {L_P2}, v{VWR}")
        p(f"v_add_u32 v{VH+11}, {L_P2}, v{VCSR}")
    mtile(p, ACC[0], VH+10, lambda ks,ii: ks*2048+ii*512, VH+11, lambda kc,ii: kc*8192+ii*512, part=part, sides=sides, cs=cs)
def head_mtile(p, t, cs, part='all'):
    if part!='post':
        p(f"v_add_u32 v{VH+10}, {56*t}, v{VP3R}")
        p(f"s_mul_i32 s51, s{SW}, {16*192}")
        p(f"v_add_u32 v{VH+11}, s51, v{VH+10}")
        p(f"v_add_u32 v{VH+12}, 43008, v{VH+10}")
        p(f"v_add_u32 v{VH+13}, 43008, v{VH+11}")
    mtile(p, ACC[0], VH+10, lambda ks,ii: ks*16*192+ii*4*192, VH+11, lambda kc,ii: kc*64*192+ii*4*192, VH+12, VH+13, part=part, cs=cs)
def head_epi(p, t, lab, cs):
    p(f"s_mul_i32 s62, s{SCB}, 3")
    if t: p(f"s_add_u32 s62, s62, {t}")
    epi_head(p, ACC[0], 62, lab, cs)
def bar(p, name, *tags):
    stamp(p,name+'w')
    if tags: p.wait(*tags)
    stamp(p,name+'a')
    p("s_barrier")
    stamp(p,name)

def group_code(p, g):
    A = (g==0); L = "KA" if A else "KB"
    p(f"s_mul_i32 s63, s{SCB}, 168")
    if A:
        CS_C=(1,0); CS_E=(0,1); CS_G=(1,2)
        p0_compute(p)
        stamp(p,'p0end')
        def zs_out(q):
            q(f"v_add_u32 v18, {L_ZS}, v{VH+6}")
            q("ds_write_b64 v18, v[34:35]", tag='zs')
        first_epi(p, 0, L+"F", [0,8], zs_out)
        bar(p,'s1end','zs')
        p(f"s_sub_u32 s57, s{SCB}, 2")
        p("s_cmp_ge_u32 s57, 12")
        p(f"s_cbranch_scc1 {L}_NOSECOND")
        p.begin_alt(); p.alt_branch()
        if P3EARLY:
            pair_mtile(p, 0, CS_C, sides=dma_p3_groups([12,24]))
            stamp(p,'Mc')
            epi_z1(p, ACC[0], 57, 0, CS_C)
        else:
            pair_mtile(p, 0, CS_C, sides=dma_p3_groups([12]))
            stamp(p,'Mc')
            main=capture(lambda q: epi_z1(q, ACC[0], 57, 0, CS_C))
            p.extend(interleave(main, [capture(f) for f in dma_p3_groups([24])], 30, 90))
        if MALLPF: touch_wsp(p)
        bar(p,'s3end','p3')
        p(f"s_branch {L}_JOIN")
        p.alt_branch()
        p.label(f"{L}_NOSECOND")
        for f in dma_p3_groups([12,24]): f(p)
        bar(p,'sx','p3')
        p.end_alt()
        p.label(f"{L}_JOIN")
        head_mtile(p, 0, CS_E)
        stamp(p,'Me')
        head_epi(p, 0, L+"H0", CS_E)
        stamp(p,'Ee')
        head_mtile(p, 2, CS_G)
        stamp(p,'Mg')
        head_epi(p, 2, L+"H2", CS_G)
        stamp(p,'headsE')
        p(f"s_cmp_ge_u32 s{SCB}, 14")
        p(f"s_cbranch_scc1 {L}_NOFIN")
        p.begin_opt()
        bar(p,'s7end')
        p(f"v_add_u32 v18, {L_ZS}, v{VH+6}")
        p("ds_read_b64 v[34:35], v18")
        fin_tile(p)
        p.end_opt()
        p.label(f"{L}_NOFIN")
    else:
        CS_D=(1,None); CS_F=(2,3)
        p0_load(p)
        stamp(p,'p0end')
        first_mtile(p, sides=dma_p3_groups([4]))
        bar(p,'s1end','cs','p2')
        p(f"s_sub_u32 s57, s{SCB}, 2")
        p("s_cmp_ge_u32 s57, 12")
        p(f"s_cbranch_scc1 {L}_NOSECOND")
        p.begin_alt(); p.alt_branch()
        main=capture(lambda q: epi_z2(q, ACC[0], (0,None)))
        p.extend(interleave(main, [capture(f) for f in dma_p3_groups([16,20])], 14, 150))
        publish_z2(p)
        stamp(p,'Eb')
        pair_mtile(p, 1, CS_D); bar(p,'s3end','cs','p3')
        epi_z1(p, ACC[0], 57, 1, CS_D)
        stamp(p,'Ed')
        p(f"s_branch {L}_JOIN")
        p.alt_branch()
        p.label(f"{L}_NOSECOND")
        for f in dma_p3_groups([16,20]): f(p)
        bar(p,'sx','p3')
        first_epi(p, 1, L+"F", [], publish_z2)
        prep_issue(p)
        p.end_alt()
        p.label(f"{L}_JOIN")
        global GRQ
        if GLPOS=='pre':
            GRQ=[112,116,120,18,22,34,38]
            p(f"s_cmp_ge_u32 s{SCB}, 14")
            p(f"s_cbranch_scc1 {L}_NOGL")
            p.begin_opt(); granule_loads(p); p.end_opt()
            p.label(f"{L}_NOGL")
        if BPRIO: p("s_setprio 1")
        head_mtile(p, 1, CS_F)
        if BPRIO: p("s_setprio 0")
        stamp(p,'Mf')
        if GLPOS=='pre':
            p(f"s_cmp_ge_u32 s{SCB}, 14")
            p(f"s_cbranch_scc1 {L}_NOST")
            p.begin_opt(); fin_stats(p, L); p.end_opt()
            p.label(f"{L}_NOST")
            head_epi(p, 1, L+"H1", CS_F)
        else:
            GRQ=[48+4*i for i in range(7)]
            p(f"s_cmp_ge_u32 s{SCB}, 14")
            p(f"s_cbranch_scc1 {L}_NOGL")
            p.begin_opt(); granule_loads(p); p.end_opt()
            p.label(f"{L}_NOGL")
            head_epi(p, 1, L+"H1", CS_F)
            p(f"s_cmp_ge_u32 s{SCB}, 14")
            p(f"s_cbranch_scc1 {L}_NOST")
            p.begin_opt(); fin_stats(p, L); p.end_opt()
            p.label(f"{L}_NOST")
        stamp(p,'headsE')
        p(f"s_cmp_ge_u32 s{SCB}, 14")
        p(f"s_cbranch_scc1 {L}_NOFIN")
        p.begin_opt()
        bar(p,'s7end','zf')
        p(f"v_add_u32 v18, {L_ZS}, v{VH+6}")
        p("ds_read_b64 v[34:35], v18")
        fin_tile(p)
        p.end_opt()
        p.label(f"{L}_NOFIN")
        p(f"s_sub_u32 s57, s{SCB}, 2")
        p("s_cmp_lt_u32 s57, 12")
        p(f"s_cbranch_scc1 {L}_NOPREP")
        p.begin_opt(); prep_finish(p); p.end_opt()
        p.label(f"{L}_NOPREP")
    stamp(p,'end')
    PR.dump(p)
    if layout.FUSE:
        p("s_waitcnt vmcnt(0)")
        p("s_barrier")
        p("s_branch K2_FUSED")

def mall_prefetch(p, g):
    p(f"s_load_dwordx2 s[66:67], s[0:1], {KA_WSP if g else KA_WO}")
    if not g: p(f"s_load_dwordx2 s[70:71], s[0:1], {KA_WOUT}")
    p(f"s_sub_u32 s51, s{SCB}, 12")
    p(f"s_cmp_lt_u32 s{SCB}, 2")
    p(f"s_cselect_b32 s51, s{SCB}, s51")
    p(f"s_lshl_b32 s52, s{SRB}, 2")
    p("s_add_u32 s51, s51, s52")
    p("v_lshlrev_b32 v26, 7, v0")
    p("s_waitcnt lgkmcnt(0)")
    if g:
        srd(p, 72, 66, S*S*2)
        p("s_lshl_b32 s51, s51, 2")
        p(f"s_add_u32 s51, s51, s{SW}")
        p("s_lshl_b32 s51, s51, 15")
        for i in range(4):
            p(f"buffer_load_dword v27, v26, s[72:75], s51 offen")
            if i<3: p("s_add_u32 s51, s51, 8192")
    else:
        srd(p, 72, 66, D*D*2); srd(p, 76, 70, FH*D*2)
        p(f"s_mul_i32 s52, s51, {49*128}")
        p(f"s_mul_i32 s53, s51, {98*128}")
        p(f"s_sub_u32 s54, s{SW}, 1")
        p("s_min_u32 s54, s54, 1")
        p(f"s_mul_i32 s54, s54, {49*128}")
        p("s_add_u32 s53, s53, s54")
        p("v_min_u32 v28, 48, v0")
        p("v_lshlrev_b32 v28, 7, v28")
        p(f"s_cmp_lg_u32 s{SW}, 0")
        p.begin_alt()
        p("s_cbranch_scc1 K1_MPA")
        p.alt_branch()
        p(f"buffer_load_dword v27, v28, s[72:75], s52 offen")
        p("s_branch K1_MPB")
        p.alt_branch()
        p.label("K1_MPA")
        p(f"buffer_load_dword v27, v28, s[76:79], s53 offen")
        p.end_alt()
        p.label("K1_MPB")

NPREP=5
L_PREP=L_P2+4096
def prep_issue(p):
    p(f"s_load_dwordx2 s[66:67], s[0:1], {KA_WO}")
    p(f"s_load_dwordx2 s[68:69], s[0:1], {KA_WOUT}")
    p(f"s_sub_u32 s51, s{SCB}, 12")
    p(f"s_cmp_lt_u32 s{SCB}, 2")
    p(f"s_cselect_b32 s51, s{SCB}, s51")
    p(f"s_lshl_b32 s52, s{SRB}, 2")
    p("s_add_u32 s51, s51, s52")
    p("s_lshl_b32 s51, s51, 2")
    p(f"s_add_u32 s70, s51, s{SW}")
    p(f"s_mul_i32 s71, s{SW}, {NPREP*1024}")
    p(f"s_add_u32 s71, s71, {L_PREP}")
    p(f"s_mov_b32 s81, {D*D*2}")
    p(f"s_mov_b32 s82, {FH*D*2}")
    p("v_lshrrev_b32 v26, 2, v0")
    p(f"v_mul_u32_u24 v27, {D*2}, v26")
    p("v_and_b32 v28, 3, v0")
    p("v_lshl_add_u32 v27, v28, 4, v27")
    p("v_cmp_le_u32 vcc, 12, v26")
    p("v_mov_b32 v28, 0")
    p("v_mov_b32 v29, 0x7ff00000")
    p("v_cndmask_b32 v28, v28, v29, vcc")
    p("s_waitcnt lgkmcnt(0)")
    for i in range(NPREP):
        p(f"s_add_u32 s80, s70, {256*i}")
        p(f"s_mul_i32 s51, s80, 745")
        p("s_lshr_b32 s51, s51, 16")
        p("s_mul_i32 s52, s51, 88")
        p(f"s_sub_u32 s52, s80, s52")
        p("s_lshl_b32 s51, s51, 6")
        p("s_lshr_b32 s53, s52, 1")
        p("s_mul_i32 s53, s53, 28")
        p("s_and_b32 s54, s52, 1")
        p("s_lshl_b32 s55, s54, 4")
        p("s_add_u32 s53, s53, s55")
        p("s_sub_u32 s55, s52, 32")
        p("s_lshl_b32 s55, s55, 4")
        p("s_cmp_lt_u32 s52, 32")
        p("s_cselect_b32 s53, s53, s55")
        p("s_cselect_b32 s72, s66, s68")
        p("s_cselect_b32 s73, s67, s69")
        p("s_cselect_b32 s74, s81, s82")
        p("s_mov_b32 s75, 0x00020000")
        p("s_cselect_b32 s54, s54, 0")
        p(f"s_mul_i32 s53, s53, {D*2}")
        p("s_add_u32 s53, s53, s51")
        p("s_cmp_lt_u32 s80, 1232")
        p("s_cselect_b32 s53, s53, 0x7ff00000")
        p("s_sub_u32 s54, 0, s54")
        p("v_and_b32 v29, s54, v28")
        p("v_add_u32 v29, v29, v27")
        p(f"s_add_u32 m0, s71, {i*1024}")
        p("s_nop 0")
        p("buffer_load_dwordx4 v29, s[72:75], s53 offen lds", tag='pd')

def prep_finish(p):
    p("v_lshrrev_b32 v26, 4, v0")
    p("v_and_b32 v27, 1, v26")
    p("v_lshrrev_b32 v26, 1, v26")
    p("v_lshrrev_b32 v28, 2, v0")
    p("v_and_b32 v28, 3, v28")
    p("v_lshl_add_u32 v26, v26, 2, v28")
    p("v_lshlrev_b32 v26, 6, v26")
    p("v_lshl_add_u32 v26, v27, 5, v26")
    p("v_and_b32 v27, 3, v0")
    p("v_lshl_add_u32 v26, v27, 3, v26")
    p("v_add_u32 v26, s71, v26")
    p("s_waitcnt vmcnt(0)")
    for i in range(NPREP):
        p(f"ds_read_b64_tr_b16 {v(96+4*i,2)}, v26 offset:{i*1024}")
        p(f"ds_read_b64_tr_b16 {v(96+4*i+2,2)}, v26 offset:{i*1024+512}")
    for i in range(NPREP):
        p(f"s_add_u32 s80, s70, {256*i}")
        p(f"s_lshl_b32 s51, s80, 10")
        p(f"s_add_u32 s51, s51, {WS_WC}")
        p("s_cmp_lt_u32 s80, 1232")
        p("s_cselect_b32 s51, s51, 0x7ff00000")
        p(f"buffer_store_dwordx4 {v(96+4*i,4)}, v1, s[{WS}:{WS+3}], s51 offen{SM()}")

def KNAME(): return (NAME+'_kernel') if layout.FUSE else 'k1_kernel'
def code_prefetch(p):
    p(f"s_cmp_lg_u32 s{SW8}, 7")
    p("s_cbranch_scc1 K1_CP1")
    p.begin_opt()
    p("s_getpc_b64 s[66:67]")
    p.label("K1_PC")
    p(f"s_sub_u32 s66, s66, K1_PC-{KNAME()}")
    p("s_subb_u32 s67, s67, 0")
    p("s_mul_i32 s51, s15, 10")
    p("v_add_u32 v26, s51, v0")
    p("s_lshl_b32 s52, s2, 1")
    p(f"s_add_u32 s52, s52, ({'K2_FUSED' if layout.FUSE else 'k2_kernel'}-{KNAME()})/128-10")
    p("v_add_u32 v27, s52, v0")
    p("v_cmp_gt_u32 vcc, 10, v0")
    p("v_cndmask_b32 v26, v27, v26, vcc")
    p("v_lshlrev_b32 v26, 7, v26")
    p(f"v_min_u32 v26, CODE_END-{KNAME()}-4, v26")
    p("v_cmp_gt_u32 vcc, 12, v0")
    p("s_and_saveexec_b64 s[68:69], vcc")
    p("global_load_dword v27, v26, s[66:67]")
    p("s_mov_b64 exec, s[68:69]")
    p.end_opt()
    p.label("K1_CP1")

def l2_prefetch(p, g):
    T=38; L="K1_PF%d"%g
    p("s_and_b32 s51, s15, 7")
    p("s_lshr_b32 s52, s15, 3")
    if g==0:
        p.begin_alt()
        p(f"s_cmp_ge_u32 s{SW}, 2")
        p(f"s_cbranch_scc1 {L}_2")
        p.alt_branch()
        p("s_lshl_b32 s53, s52, 7")
        p(f"s_lshl_b32 s54, s{SW}, 6")
        p("s_add_u32 s53, s53, s54")
        p("v_add_u32 v18, s53, v0")
        p("v_lshrrev_b32 v19, 2, v18")
        p(f"v_mul_u32_u24 v19, {D*2}, v19")
        p("v_and_b32 v18, 3, v18")
        p("v_lshl_add_u32 v19, v18, 7, v19")
        p(f"s_mul_i32 s53, s{SRB}, {128*D*2}")
        p(f"s_add_u32 s53, s53, {3*128}")
        p(f"buffer_load_dword v{T}, v19, s[{XS}:{XS+3}], s53 offen")
        p(f"s_branch {L}_D")
        p.alt_branch()
        p.label(f"{L}_2")
        p(f"s_lshl_b32 s53, s{SW}, 4")
        p(f"s_mul_i32 s53, s53, {F*2}")
        p(f"s_cmp_eq_u32 s{SW}, 2")
        p(f"s_cselect_b32 s54, s{SP1}, s{SP2}")
        p("s_sub_u32 s54, s54, s53")
        p(f"s_cmp_eq_u32 s{SW}, 2")
        p("s_cselect_b32 s55, 32, 56")
        p("s_cselect_b32 s53, 192, 0")
        p("s_mul_i32 s62, s51, s55")
        p("s_add_u32 s53, s53, s62")
        p("s_sub_u32 s55, s55, 1")
        p("v_min_u32 v18, s55, v0")
        p("v_add_u32 v18, s53, v18")
        p(f"v_mul_u32_u24 v19, {F*2}, v18")
        p(f"buffer_load_dword v{T}, v19, s[{WIN}:{WIN+3}], s54 offen")
        p.end_alt()
        p.label(f"{L}_D")
    else:
        p(f"s_min_u32 s53, s{SW}, 2")
        p("s_mul_i32 s53, s53, 94")
        p(f"s_mul_i32 s54, s{SCB}, 168")
        p("s_add_u32 s54, s54, s53")
        p("s_mul_i32 s53, s51, 56")
        p("v_min_u32 v18, 55, v0")
        p("v_add_u32 v18, s53, v18")
        p(f"v_mul_u32_u24 v19, {3*D*2}, v18")
        p(f"buffer_load_dword v{T}, v19, s[{WQ}:{WQ+3}], s54 offen")

def epoch_load(p):
    if layout.FUSE: p(f"s_mov_b32 s{SEP}, {WS_EP}")
    else:
        p(f"s_lshl_b32 s{SEP}, s{SRB}, 7")
        p(f"s_add_u32 s{SEP}, s{SEP}, {WS_EP}")
    p(f"buffer_load_dword v{EPV}, v{VH+8}, s[{WS}:{WS+3}], s{SEP} offen sc1")

def gen():
    p=Prog(); prologue(p)
    p("s_mov_b32 s56, 0xbdd2d3e8")
    p("s_mov_b32 s58, 0"); p("s_mov_b32 s59, -1")
    p("s_mov_b32 s60, 0xffff0000")
    p("s_mov_b32 s61, 0x7fc17fc1")
    p(f"v_mov_b32 v{VH+8}, 0")
    p(f"s_cmp_ge_u32 s{SW8}, 4")
    p("s_cbranch_scc1 K1_GROUPB")
    p.begin_alt(); p.alt_branch()
    n0=PR.n; names0=list(PR.names)
    if layout.FUSE: epoch_load(p)
    for kc in range(3): dma_init(p,kc)
    if PREFETCH&1: l2_prefetch(p,0)
    setup_reads(p)
    p("v_mov_b32 v47, 0xc0135761")
    if layout.FUSE:
        p(f"v_add_u32 v{EPV}, 1, v{EPV}")
        p(f"v_readfirstlane_b32 s{STAG}, v{EPV}")
    stamp(p,'setup')
    group_code(p, 0)
    namesA=list(PR.names); PR.n=n0; PR.names=list(names0)
    if not layout.FUSE: p("s_branch K1_END")
    p.alt_branch()
    p.label("K1_GROUPB")
    epoch_load(p)
    for kc in range(3): dma_init(p,kc)
    if PREFETCH&2: l2_prefetch(p,1)
    if CODEPF: code_prefetch(p)
    setup_reads(p)
    p("v_mov_b32 v47, 0xc0135761")
    p(f"v_add_u32 v{EPV}, 1, v{EPV}")
    p(f"v_readfirstlane_b32 s{STAG}, v{EPV}")
    stamp(p,'setup')
    group_code(p, 1)
    PR.namesA=namesA
    p.end_alt()
    p.label("K1_END")
    p("s_endpgm")
    return p

PREFETCH=False; MALLPF=False; CODEPF=True; BPRIO=True; P3EARLY=True; GLPOS='post'
def kernel(**opt):
    global PR, PREFETCH, MALLPF, CODEPF, BPRIO, P3EARLY, GLPOS
    P3EARLY=bool(int(opt.get('p3e',1))); GLPOS=opt.get('gl','post')
    BPRIO=bool(int(opt.get('bprio',1)))
    MALLPF=bool(int(opt.get('mpf',0))); CODEPF=bool(int(opt.get('cpf',1)))
    PREFETCH=int(opt.get('pf',3))
    PR=Prof(bool(int(opt.get('prof',0))),WS,SW8,WS_EP+(1<<19))
    text=gen().finalize()
    if PR.on: open('k1_stamps.txt','w').write(" ".join(PR.namesA)+"\n"+" ".join(PR.names))
    return dict(name="k1_kernel", text=text, grid=256, block=512, lds=LDS_K1, vgpr=256, sgpr=102, accum=256)
```

```python
from asmlib import *
from layout import *
import layout
def SM(): return layout.STMOD
def LM(): return ' sc1' if layout.FUSE else ''
from k3 import srd

LDS_RING = 0
LDS_AC   = 98304
LDS_AM   = 147456
LDS_CNT  = 147456 + 4096
LDS_K2   = 147456 + 4096 + 64

SW=16; SHEAD=17; SQB=18; STB=19; SFB=20; SJ=21; SX=22
WS=24; WSP=28; AUX=32; AUX2=36; STAG=15; XS3=88; OUT3=92

from profutil import Prof
PR=Prof(False,WS,23,0)
PROF=False
PRION=0
SKIPDMA=0
PRIOPAT=''
STARTPRIO=0
ONLY=''
WPF=1
DELAYW=1
ROT=3
KINT=1
EARLYRING=1
FPF=0
CODEPF2=0
FROT=0
HMOD=' sc1'
EARLYPUB=1
LATEBAR=0
POLLW=7
OMOD=' sc1'
PRIOLATE=0
def stamp(p,name): PR.stamp(p,str(name))
def dump_stamps(p,n): PR.dump(p)

def role_sync(p, idx, lab):
    p(f"v_mov_b32 v12, {LDS_CNT+4*idx}")
    p("v_mov_b32 v13, 1")
    p("s_mov_b64 exec, 1")
    p("ds_add_u32 v12, v13")
    p("s_mov_b64 exec, -1")
    p.label(lab)
    p("ds_read_b32 v13, v12")
    p("s_waitcnt lgkmcnt(0)")
    p("v_readfirstlane_b32 s61, v13")
    p("s_cmp_lt_u32 s61, 4")
    p(f"s_cbranch_scc1 {lab}")

def prologue(p):
    F=layout.FUSE
    if F:
        p.label("K2_FUSED")
        p("s_mov_b32 s23, s16")
        p(f"s_mov_b32 s{STAG}, s21")
    else:
        p("s_cmp_ge_u32 s2, 256")
        p("s_cbranch_scc1 K2_END")
        p(f"s_load_dwordx2 s[4:5], s[0:1], {KA_WS}")
    p(f"s_load_dwordx2 s[6:7], s[0:1], {KA_WSP}")
    p(f"s_load_dwordx2 s[8:9], s[0:1], {KA_BSP}")
    p(f"s_load_dwordx2 s[10:11], s[0:1], {KA_X}")
    p(f"s_load_dwordx2 s[12:13], s[0:1], {KA_OUT}")
    if CODEPF2 and not F:
        p("s_getpc_b64 s[66:67]")
        p.label("K2_PC")
        p("s_sub_u32 s66, s66, K2_PC-k2_kernel")
        p("s_subb_u32 s67, s67, 0")
        p("v_lshrrev_b32 v2, 6, v0")
        p("s_lshr_b32 s68, s2, 3")
        p("s_lshl_b32 s68, s68, 3")
        p("v_add_u32 v3, s68, v2")
        p("v_lshlrev_b32 v3, 7, v3")
        p("v_min_u32 v3, CODE_END-k2_kernel-4, v3")
        p("s_mov_b64 exec, 1")
        p(f"global_load_dword v15, v3, s[66:67]")
        if PROF: p("s_waitcnt vmcnt(0)")
        p("s_mov_b64 exec, -1")
    if not F:
        p("v_lshrrev_b32 v1, 6, v0")
        p("v_and_b32 v0, 63, v0")
        p("v_readfirstlane_b32 s23, v1")
    p(f"s_and_b32 s{SX}, s2, 7")
    p(f"s_lshr_b32 s{SJ}, s2, 3")
    p(f"s_and_b32 s{SW}, s23, 3")
    p("v_lshlrev_b32 v1, 4, v0")
    if F:
        p("s_cmp_lg_u32 s23, 0")
        p("s_cbranch_scc1 K2_NOF1")
        p.begin_opt()
        p("v_lshlrev_b32 v2, 10, v0")
        p(f"v_mov_b32 v3, s{STAG}")
        p("s_lshl_b32 s63, s2, 2")
        p(f"s_add_u32 s63, s63, {WS_F1}")
        p("s_mov_b64 exec, 0xff")
        p(f"buffer_store_dword v3, v2, s[{WS}:{WS+3}], s63 offen sc1")
        p("s_mov_b64 exec, -1")
        p.end_opt()
        p.label("K2_NOF1")
    if F:
        p("s_waitcnt lgkmcnt(0)")
        counters_init(p)
    elif not LATEBAR:
        kernarg_ready(p, True)
        counters_init(p)
        p("s_barrier")
    PR.real(p,62)
    stamp(p,'start')
    p("s_cmp_ge_u32 s23, 4")
    p("s_cbranch_scc1 K2_ROLEB")

def kernarg_ready(p, now=False):
    if layout.FUSE: return
    if not LATEBAR and not now: return
    p("s_waitcnt lgkmcnt(0)")
    srd(p, WS, 4, WS_SIZE)
    p(f"s_mov_b32 s63, {WS_EP}")
    p("v_mov_b32 v14, 0")
    p(f"buffer_load_dword v14, v14, s[{WS}:{WS+3}], s63 offen sc1")
def counters_init(p):
    p(f"v_mov_b32 v12, {LDS_CNT}")
    p("v_mov_b32 v13, 0")
    p("ds_write_b32 v12, v13")
    p("ds_write_b32 v12, v13 offset:4")
    p("ds_write_b32 v12, v13 offset:8")
    p("s_waitcnt lgkmcnt(0)")
def start_barrier(p, writer=False, lab=""):
    if layout.FUSE or not LATEBAR: return
    if writer:
        p("s_cmp_lg_u32 s23, 0")
        p(f"s_cbranch_scc1 {lab}")
        counters_init(p)
        p.label(lab)
    p("s_barrier")

def phase1_wait(p):
    p("s_cmp_lg_u32 s23, 0")
    p("s_cbranch_scc1 K2_P1GO")
    p.begin_opt()
    p(f"s_lshl_b32 s63, s{SX}, 10")
    p(f"s_add_u32 s63, s63, {WS_F1}")
    p("s_mov_b32 s62, 0")
    p.label("K2_P1POLL")
    p(f"buffer_load_dwordx4 v[4:7], v1, s[{WS}:{WS+3}], s63 offen sc1")
    p("s_waitcnt vmcnt(0)")
    p(f"v_cmp_ne_u32 s[64:65], s{STAG}, v4")
    p(f"v_cmp_ne_u32 s[66:67], s{STAG}, v5")
    p(f"v_cmp_ne_u32 s[68:69], s{STAG}, v6")
    p(f"v_cmp_ne_u32 s[70:71], s{STAG}, v7")
    p("s_or_b64 s[64:65], s[64:65], s[66:67]")
    p("s_or_b64 s[68:69], s[68:69], s[70:71]")
    p("s_or_b64 s[64:65], s[64:65], s[68:69]")
    p("s_cmp_eq_u64 s[64:65], 0")
    p("s_cbranch_scc1 K2_P1OK")
    p("s_add_u32 s62, s62, 1")
    p("s_cmp_lt_u32 s62, 0x40000")
    p("s_cbranch_scc1 K2_P1POLL")
    p.label("K2_P1OK")
    p("s_cmp_lg_u32 s2, 0")
    p("s_cbranch_scc1 K2_P1GO")
    p(f"s_mov_b32 s63, {WS_EP}")
    p(f"v_mov_b32 v3, s{STAG}")
    p("v_mov_b32 v2, 0")
    p("s_mov_b64 exec, 1")
    p(f"buffer_store_dword v3, v2, s[{WS}:{WS+3}], s63 offen sc1")
    p("s_mov_b64 exec, -1")
    p.end_opt()
    p.label("K2_P1GO")
    p("s_barrier")
    PR.real(p,61)
    stamp(p,'p1go')

Q0=16; O0=48; S_=[112,128]; P_=[144,152]; KV0=160; ME=224; T0=228
def kvb(b): return KV0+16*b

def attention(p, force_fallback=False):
    SKV=40; SQ=41; SNT=42; SOFF=43; SK=44; SCNT=45; SIT=46
    p(f"s_lshr_b32 s40, s{SJ}, 4")
    p(f"s_lshl_b32 s41, s{SX}, 1")
    p(f"s_add_u32 s{SHEAD}, s40, s41")
    p(f"s_and_b32 s{SQB}, s{SJ}, 15")
    p(f"s_lshl_b32 s40, s{SHEAD}, 17")
    p(f"s_lshl_b32 s41, s{SQB}, 13")
    p(f"s_add_u32 s47, s40, s41")
    if WS_Q: p(f"s_add_u32 s47, s47, {WS_Q}")
    for rho in range(4):
        p(f"s_add_u32 s{54+rho}, s{SW}, {rho}")
        p(f"s_and_b32 s{54+rho}, s{54+rho}, 3")
        p(f"s_lshl_b32 s{54+rho}, s{54+rho}, 11")
        p(f"s_add_u32 s{54+rho}, s{54+rho}, s47")
    p(f"s_lshl_b32 s40, s{SHEAD}, 18")
    p(f"s_lshl_b32 s41, s{SW}, 16")
    p(f"s_add_u32 s40, s40, s41")
    p(f"s_add_u32 s{SKV}, s40, {WS_KV}")
    kernarg_ready(p)
    for rho in range(4):
        p(f"buffer_load_dwordx4 {v(Q0+8*rho,4)}, v1, s[{WS}:{WS+3}], s{54+rho} offen{LM()}")
        p(f"buffer_load_dwordx4 {v(Q0+8*rho+4,4)}, v1, s[{WS}:{WS+3}], s{54+rho} offen offset:1024{LM()}")
    p("s_mov_b32 s58, 1")
    p(f"s_mov_b32 s{SNT}, {16 if force_fallback else 1}")
    p(f"s_mov_b32 s{SOFF}, {'0' if force_fallback else '0x42800000'}")
    p.label("A_RETRY")
    for j in range(4): p(f"v_mov_b32 v{ME+j}, 0xff7fffff")
    p(f"s_mov_b32 s{SCNT}, s{SNT}")
    def ld_tile(t_imm_base_sreg, b, part):
        for i in range(2):
            p(f"buffer_load_dwordx4 {v(kvb(b)+8*part+4*i,4)}, v1, s[{WS}:{WS+3}], s{t_imm_base_sreg} offen offset:{(2*part+i)*1024}{LM()}")
    ld_tile(SKV, 0, 0)
    if EARLYRING:
        ld_tile(SKV, 0, 1)
        p(f"s_add_u32 s{SK}, s{SKV}, 4096")
        for t in range(1,3):
            ld_tile(SK, t, 0); ld_tile(SK, t, 1)
            p(f"s_add_u32 s{SK}, s{SK}, 4096")
    p(f"s_mov_b32 s62, s{SKV}")
    for r in range(64): p(f"v_mov_b32 v{O0+r}, 0")
    for r in range(8): p(f"v_mov_b32 v{P_[1]+r}, 0")
    for r in range(8): p(f"v_mov_b32 v{kvb(3)+8+r}, 0")
    p("s_cmp_eq_u32 s58, 1")
    p("s_cbranch_scc0 A_MAXLOOP")
    p("s_mov_b32 s58, 0")
    start_barrier(p, True, "A_NOINIT")
    p.label("A_MAXLOOP")
    for j in range(4):
        Sx = S_[j&1]
        p(f"v_mfma_f32_32x32x16_bf16 {v(Sx,16)}, {v(kvb(0),4)}, {v(Q0+8*j,4)}, 0")
        p(f"v_mfma_f32_32x32x16_bf16 {v(Sx,16)}, {v(kvb(0)+4,4)}, {v(Q0+8*j+4,4)}, {v(Sx,16)}")
        if j>0:
            Sy=S_[(j-1)&1]
            maxtree(p,Sy,ME+j-1)
    maxtree(p,S_[1],ME+3)
    p(f"s_sub_u32 s{SCNT}, s{SCNT}, 1")
    p(f"s_cmp_eq_u32 s{SCNT}, 0")
    p("s_cbranch_scc1 A_MAXDONE")
    p.begin_opt()
    p("s_add_u32 s62, s62, 4096")
    ld_tile(62, 0, 0)
    p("s_waitcnt vmcnt(0)")
    p("s_branch A_MAXLOOP")
    p.end_opt()
    p.label("A_MAXDONE")
    stamp(p,'maxdone')
    p(f"s_cmp_eq_u32 s{SNT}, 1")
    p("s_cbranch_scc1 A_KEEPK")
    p.begin_opt()
    ld_tile(SKV, 0, 0)
    p.end_opt()
    p.label("A_KEEPK")
    for j in range(4):
        m=ME+j; t=T0
        p(f"v_mov_b32 v{t}, v{m}")
        p(f"v_permlane32_swap_b32 v{t}, v{m}")
        p(f"v_max_f32 v{m}, v{t}, v{m}")
        p(f"v_add_f32 v{m}, s{SOFF}, v{m}")
        p(f"v_sub_f32 v{t}, 0, v{m}")
        p(f"v_and_b32 v{t+1}, 0xffff0000, v{t}")
        p(f"v_sub_f32 v{t+2}, v{t}, v{t+1}")
        p(f"v_and_b32 v{t+2}, 0xffff0000, v{t+2}")
        p(f"v_add_f32 v{t+3}, v{t+1}, v{t+2}")
        p(f"v_sub_f32 v{m}, 0, v{t+3}")
        p(f"v_lshrrev_b32 v{t+1}, 16, v{t+1}")
        p(f"v_or_b32 v{t+1}, v{t+1}, v{t+2}")
        p(f"s_mov_b64 exec, s[48:49]")
        p(f"v_mov_b32 v{Q0+8*j+6}, v{t+1}")
        p(f"s_mov_b64 exec, -1")
    def QK(u):
        j=u&3; b=(u>>2)&3; Sx=S_[u&1]
        return [f"v_mfma_f32_32x32x16_bf16 {v(Sx,16)}, {v(kvb(b),4)}, {v(Q0+8*j,4)}, 0",
                f"v_mfma_f32_32x32x16_bf16 {v(Sx,16)}, {v(kvb(b)+4,4)}, {v(Q0+8*j+4,4)}, {v(Sx,16)}"]
    def PV(u):
        j=u&3; b=(u>>2)&3; Px=P_[u&1]; O=O0+16*j
        return [f"v_mfma_f32_32x32x16_bf16 {v(O,16)}, {v(kvb(b)+8,4)}, {v(Px,4)}, {v(O,16)}",
                f"v_mfma_f32_32x32x16_bf16 {v(O,16)}, {v(kvb(b)+12,4)}, {v(Px+4,4)}, {v(O,16)}"]
    for m_ in QK(0): p(m_)
    main=[]
    assert EARLYRING
    if not EARLYRING:
        def ringload(q, t, b, k):
            q(f"buffer_load_dwordx4 {v(kvb(b)+4*k,4)}, v1, s[{WS}:{WS+3}], s{SK} offen offset:{k*1024}{LM()}")
        sides=[]
        p(f"s_mov_b32 s{SK}, s{SKV}")
        sides.append(capture(lambda q: ringload(q,0,0,2))); sides.append(capture(lambda q: (ringload(q,0,0,3), q(f"s_add_u32 s{SK}, s{SK}, 4096"))))
        for t in (1,2):
            for k in range(4):
                sides.append(capture(lambda q,t=t,k=k: (ringload(q,t,t,k), q(f"s_add_u32 s{SK}, s{SK}, 4096") if k==3 else None)))
        p.extend(interleave(main, sides, 0, 70))
    def period(u, loads):
        Sx=S_[u&1]; Px=P_[u&1]
        qk=QK(u+1); pv=PV(u-1)
        ms=[qk[0],pv[0],qk[1],pv[1]]
        ex=[f"v_exp_f32 v{Sx+i}, v{Sx+i}" for i in range(16)]
        cv=[f"v_cvt_pk_bf16_f32 v{Px+i}, v{Sx+2*i}, v{Sx+2*i+1}" for i in range(8)]
        for g in range(4):
            p(ms[g])
            if g < len(loads) and loads[g]:
                for x in loads[g]: p(x)
            for k in range(2):
                i=2*g+k
                p(ex[2*i]); p(ex[2*i+1])
                if i>0: p(cv[i-1])
        p(cv[7])
    def iteration(last):
        for tl in range(4):
            for j in range(4):
                u=4*tl+j
                loads=[None]*4
                nb=(tl+3)&3
                doload = (not last) or tl==0
                if doload and j==0:
                    loads[2]=[f"buffer_load_dwordx4 {v(kvb(nb),4)}, v1, s[{WS}:{WS+3}], s{SK} offen offset:0{LM()}"]
                    loads[3]=[f"buffer_load_dwordx4 {v(kvb(nb)+4,4)}, v1, s[{WS}:{WS+3}], s{SK} offen offset:1024{LM()}"]
                if doload and j==1:
                    loads[0]=[f"buffer_load_dwordx4 {v(kvb(nb)+8,4)}, v1, s[{WS}:{WS+3}], s{SK} offen offset:2048{LM()}"]
                    loads[1]=[f"buffer_load_dwordx4 {v(kvb(nb)+12,4)}, v1, s[{WS}:{WS+3}], s{SK} offen offset:3072{LM()}",
                              f"s_add_u32 s{SK}, s{SK}, 4096"]
                period(u,loads)
    stamp(p,'loopstart')
    p(f"s_mov_b32 s{SIT}, 3")
    p.begin_loop(visits=3)
    p.label("A_LOOP")
    iteration(False)
    p(f"s_sub_u32 s{SIT}, s{SIT}, 1")
    p(f"s_cmp_lg_u32 s{SIT}, 0")
    p("s_cbranch_scc1 A_LOOP")
    p.end_loop()
    iteration(True)
    for m_ in PV(63): p(m_)
    stamp(p,'loopend')
    p("s_mov_b32 s50, 0x71800000")
    p("s_mov_b64 s[52:53], 0")
    for j in range(4):
        p(f"v_cmp_ngt_f32 vcc, s50, v{O0+16*j+12}")
        p("s_or_b64 s[52:53], s[52:53], vcc")
    p(f"s_cmp_eq_u32 s53, 0")
    p("s_cbranch_scc1 A_OK")
    p(f"s_cmp_eq_u32 s{SNT}, 16")
    p("s_cbranch_scc1 A_OK")
    p(f"s_mov_b32 s{SNT}, 16")
    p(f"s_mov_b32 s{SOFF}, 0")
    p(f"s_mov_b64 exec, s[48:49]")
    for j in range(4): p(f"v_mov_b32 v{Q0+8*j+6}, 0")
    p(f"s_mov_b64 exec, -1")
    p("s_branch A_RETRY")
    p.label("A_OK")

def maxtree(p, Sy, dst):
    t=T0
    for i in range(4):
        p(f"v_max3_f32 v{t+i}, v{Sy+4*i}, v{Sy+4*i+1}, v{Sy+4*i+2}")
    p(f"v_max3_f32 v{t}, v{t}, v{Sy+3}, v{Sy+7}")
    p(f"v_max3_f32 v{t+1}, v{t+1}, v{Sy+11}, v{Sy+15}")
    p(f"v_max3_f32 v{t}, v{t}, v{t+2}, v{t+3}")
    p(f"v_max3_f32 v{dst}, v{dst}, v{t}, v{t+1}")

def attention_publish(p):
    p(f"s_mul_i32 s40, s{SW}, 12288")
    p(f"s_add_u32 s40, s40, {LDS_AC}")
    p(f"v_add_u32 v2, s40, v1")
    for rho in range(1,4):
        for q in range(4):
            p(f"ds_write_b128 v2, {v(O0+16*rho+4*q,4)} offset:{(rho-1)*4096+q*1024}", tag='apub')
    p(f"v_and_b32 v3, 31, v0")
    p(f"v_lshlrev_b32 v3, 2, v3")
    p(f"s_lshl_b32 s40, s{SW}, 10")
    p(f"s_add_u32 s40, s40, {LDS_AM}")
    p(f"v_add_u32 v4, s40, v3")
    for rho in range(4):
        p(f"v_log_f32 v{T0+rho}, v{O0+16*rho+12}")
    for rho in range(4):
        p(f"v_add_f32 v{T0+rho}, v{T0+rho}, v{ME+rho}")
    p(f"s_mov_b64 exec, s[48:49]")
    for rho in range(4):
        p(f"ds_write_b32 v4, v{ME+rho} offset:{rho*256}", tag='apub')
        p(f"ds_write_b32 v4, v{T0+rho} offset:{rho*256+128}", tag='apub')
    p(f"s_mov_b64 exec, -1")
    p.wait('apub')

def attention_finish(p):
    R=112
    MM=160; LG=164
    for rho in range(4):
        p(f"s_sub_u32 s40, s{SW}, {rho}")
        p("s_and_b32 s40, s40, 3")
        p("s_lshl_b32 s41, s40, 10")
        p(f"s_add_u32 s41, s41, {LDS_AM+rho*256}")
        p(f"v_add_u32 v4, s41, v3")
        p(f"ds_read_b32 v{MM+rho}, v4")
        p(f"ds_read_b32 v{LG+rho}, v4 offset:128")
        if rho>0:
            p("s_mul_i32 s41, s40, 12288")
            p(f"s_add_u32 s41, s41, {LDS_AC+(rho-1)*4096}")
            p(f"v_add_u32 v2, s41, v1")
            for q in range(4):
                p(f"ds_read_b128 {v(R+16*(rho-1)+4*q,4)}, v2 offset:{q*1024}")
    t=T0
    p(f"v_max3_f32 v{t}, v{LG}, v{LG+1}, v{LG+2}")
    p(f"v_max_f32 v{t}, v{t}, v{LG+3}")
    for rho in range(4):
        p(f"v_sub_f32 v{LG+rho}, v{LG+rho}, v{t}")
        p(f"v_sub_f32 v{MM+rho}, v{MM+rho}, v{t}")
    for rho in range(4):
        p(f"v_exp_f32 v{LG+rho}, v{LG+rho}")
        p(f"v_exp_f32 v{MM+rho}, v{MM+rho}")
    p(f"v_add_f32 v{LG}, v{LG}, v{LG+1}")
    p(f"v_add_f32 v{LG+2}, v{LG+2}, v{LG+3}")
    p(f"v_add_f32 v{LG}, v{LG}, v{LG+2}")
    p(f"v_rcp_f32 v{LG}, v{LG}")
    for rho in range(4):
        p(f"v_mul_f32 v{MM+rho}, v{MM+rho}, v{LG}")
    for r in range(16):
        p(f"v_mul_f32 v{O0+r}, v{O0+r}, v{MM}")
    for rho in range(1,4):
        for r in range(16):
            p(f"v_fmac_f32 v{O0+r}, v{R+16*(rho-1)+r}, v{MM+rho}")
    p(f"s_mov_b64 exec, s[48:49]")
    for r in range(12,16): p(f"v_mov_b32 v{O0+r}, 0")
    p(f"s_mov_b64 exec, -1")
    for i in range(8):
        p(f"v_cvt_pk_bf16_f32 v{R+i}, v{O0+2*i}, v{O0+2*i+1}")
    p(f"s_lshl_b32 s40, s{SQB}, 2")
    p(f"s_add_u32 s40, s40, s{SW}")
    p(f"s_mul_i32 s40, s40, {88*1024}")
    p(f"s_lshl_b32 s41, s{SHEAD}, 11")
    p(f"s_add_u32 s40, s40, s41")
    p(f"s_add_u32 s40, s40, {WS_H}")
    p(f"buffer_store_dwordx4 {v(R,4)}, v1, s[{WS}:{WS+3}], s40 offen{SM()}")
    p(f"buffer_store_dwordx4 {v(R+4,4)}, v1, s[{WS}:{WS+3}], s40 offen offset:1024{SM()}")

GACC=128; GA=64; GB=48
def TH(c): return (1-(c&1)) if EARLYPUB else (c&1)
def gemm(p):
    SROW=[40,41,42,43]; SRING=44; SZ=45; ST=46
    VD=[2,3]; VR=[4,5,6,7]
    p(f"s_mul_i32 s46, s{SJ}, 37")
    p("s_lshr_b32 s46, s46, 8")
    p("s_mul_i32 s47, s46, 7")
    p(f"s_sub_u32 s47, s{SJ}, s47")
    p(f"s_lshr_b32 s48, s{SX}, 1")
    p("s_lshl_b32 s48, s48, 2")
    p(f"s_add_u32 s{STB}, s48, s46")
    p(f"s_and_b32 s48, s{SX}, 1")
    p("s_mul_i32 s48, s48, 7")
    p(f"s_add_u32 s{SFB}, s48, s47")
    for rho in range(4):
        p(f"s_add_u32 s46, s{SW}, {rho}")
        p("s_and_b32 s46, s46, 3")
        p("s_lshl_b32 s46, s46, 5")
        p(f"s_lshl_b32 s47, s{STB}, 7")
        p("s_add_u32 s46, s46, s47")
        p("s_lshl_b32 s46, s46, 12")
        p(f"s_lshl_b32 s47, s{SW}, {7 if KINT else 10}")
        p(f"s_add_u32 s{SROW[rho]}, s46, s47")
    p(f"s_mul_i32 s{SRING}, s{SW}, 24576")
    p(f"s_lshl_b32 s46, s{SFB}, 7")
    p(f"s_lshl_b32 s47, s{SW}, {2 if KINT else 5}")
    p("s_add_u32 s46, s46, s47")
    p("s_lshl_b32 s46, s46, 11")
    p(f"s_add_u32 s{SZ}, s46, {WS_Z2}")
    p("v_lshrrev_b32 v8, 3, v0")
    p("v_lshlrev_b32 v8, 12, v8")
    p("v_lshrrev_b32 v9, 4, v0")
    p("v_and_b32 v10, 7, v0")
    p("v_xor_b32 v11, v10, v9")
    p("v_lshl_add_u32 v2, v11, 4, v8")
    p("v_xor_b32 v11, 4, v11")
    p("v_lshl_add_u32 v3, v11, 4, v8")
    p("v_and_b32 v8, 31, v0")
    p("v_lshrrev_b32 v9, 5, v0")
    p("v_lshrrev_b32 v10, 1, v8")
    p("v_and_b32 v10, 7, v10")
    p("v_xor_b32 v10, v10, v9")
    p("v_lshlrev_b32 v8, 7, v8")
    p(f"v_add_u32 v8, s{SRING}, v8")
    for u in range(4):
        p(f"v_xor_b32 v11, {2*u}, v10")
        p(f"v_lshl_add_u32 v{VR[u]}, v11, 4, v8")
    SROT=52; SWO=[53,54]; SZO=[55,56]
    p(f"s_and_b32 s{SROT}, s{STB if ROT==1 else SFB}, { {3:1,4:3}.get(ROT,7) }")
    if ROT==3: p(f"s_lshl_b32 s{SROT}, s{SROT}, 2")
    if ROT==4: p(f"s_lshl_b32 s{SROT}, s{SROT}, 1")
    def chunk_offsets(sc):
        e=sc&1
        if ROT:
            p(f"s_add_u32 s57, s{SROT}, {sc}")
            p("s_and_b32 s57, s57, 7")
            p(f"s_lshl_b32 s{SWO[e]}, s57, {9 if KINT else 7}")
            p(f"s_lshl_b32 s57, s57, {15 if KINT else 13}")
            p(f"s_add_u32 s{SZO[e]}, s57, s{SZ}")
        else:
            p(f"s_mov_b32 s{SWO[e]}, {sc*(512 if KINT else 128)}")
            p(f"s_add_u32 s{SZO[e]}, s{SZ}, {sc*(32768 if KINT else 8192)}")
    done=set()
    def need(sc):
        if sc not in done: done.add(sc); chunk_offsets(sc)
    def dma(c, which=range(8)):
        sc=c>>1; th=TH(c); slot=c%3
        need(sc)
        for i in which:
            if SKIPDMA and (i&1) and c>1: continue
            rho=2*th+(i>>2)
            p(f"s_add_u32 m0, s{SRING}, {slot*8192+i*1024}")
            p(f"s_add_u32 s{ST}, s{SROW[rho]}, s{SWO[sc&1]}")
            if i&3: p(f"s_add_u32 s{ST}, s{ST}, {(8*(i&3))*4096}")
            p(f"buffer_load_dwordx4 v{VD[i&1]}, s[{WSP}:{WSP+3}], s{ST} offen lds", tag=f'dma{slot}')
    def aload(sc, lo, hi):
        e=sc&1
        need(sc)
        for k in range(lo,hi):
            if k%4==0 or k==lo: p(f"s_add_u32 s{ST+1}, s{SZO[e]}, {(k&~3)*1024}")
            p(f"buffer_load_dwordx4 {v(GA+e*32+4*k,4)}, v1, s[{WS}:{WS+3}], s{ST+1} offen offset:{(k%4)*1024}{LM()}")
    def bread(c,u):
        slot=c%3; st=(c*4+u)&1
        for tl in range(2):
            p(f"ds_read_b128 {v(GB+st*8+4*tl,4)}, v{VR[u]} offset:{slot*8192+tl*4096}")
    kernarg_ready(p)
    srd(p, WSP, 6, S*S*2)
    srd(p, AUX, 8, S*2)
    if STARTPRIO: p("s_setprio 1")
    if layout.FUSE and FPF==2:
        dma(0); dma(1)
        p("s_barrier")
        aload(0,0,8)
    elif layout.FUSE and FPF==1:
        dma(0)
        p("s_barrier")
        aload(0,0,4); dma(1); aload(0,4,8)
    elif layout.FUSE:
        p("s_barrier")
        dma(0); aload(0,0,4); dma(1); aload(0,4,8)
    else:
        dma(0); aload(0,0,4); dma(1); aload(0,4,8)
        start_barrier(p)
    stamp(p,'issued')
    p.wait('dma0')
    bread(0,0)
    stamp(p,'loopstart')
    for c in range(16):
        if c in (2,4,8,12): stamp(p,f'c{c}')
        if PRIOLATE and c==PRIOLATE: p("s_setprio 1")
        sc=c>>1; th=TH(c); e=sc&1
        for u in range(4):
            if PRIOPAT:
                on = PRIOPAT[(c*4+u) % len(PRIOPAT)]=='1'
                prev = PRIOPAT[(c*4+u-1) % len(PRIOPAT)]=='1' if (c or u) else False
                if on!=prev: p(f"s_setprio {1 if on else 0}")
            if u<3: nxt=(c,u+1)
            else: nxt=(c+1,0) if c<15 else None
            st=(c*4+u)&1
            k=0
            for tl in range(2):
                for fi in range(2):
                    acc=GACC+((2*th+tl)*2+fi)*16
                    cc = "0" if (sc==0 and u==0) else v(acc,16)
                    p(f"v_mfma_f32_32x32x16_bf16 {v(acc,16)}, {v(GA+e*32+4*(u*2+fi),4)}, {v(GB+st*8+4*tl,4)}, {cc}")
                    if k==0 and nxt:
                        if nxt[0]!=c: p.wait(f'dma{nxt[0]%3}')
                        bread(*nxt)
                    slot=u*4+k
                    if c==0:
                        if slot<8: dma(2,[slot])
                        if slot==8 and STARTPRIO: p("s_setprio 0")
                    else:
                        if c+2<16 and slot<8: dma(c+2,[slot])
                    if sc+1<8 and slot in (9,11,13,15) and c>=0:
                        kk=4*(c&1)+(slot-9)//2
                        aload(sc+1, kk, kk+1)
                    if EARLYPUB and c==15 and slot>=4:
                        for n in range((slot-4)*16//12, (slot-3)*16//12):
                            rho=2+n//8; fi_=(n//4)&1; q=n&3
                            if n==0: p(f"v_add_u32 v2, s44, v1")
                            p(f"ds_write_b128 v2, {v(GACC+(rho*2+fi_)*16+4*q,4)} offset:{(rho-1)*8192+fi_*4096+q*1024}", tag='gpub')
                    k+=1
    if PRIOPAT: p("s_setprio 0")

def gemm_publish(p):
    p(f"v_add_u32 v2, s44, v1")
    for rho in range(1,2 if EARLYPUB else 4):
        for fi in range(2):
            for q in range(4):
                p(f"ds_write_b128 v2, {v(GACC+(rho*2+fi)*16+4*q,4)} offset:{(rho-1)*8192+fi*4096+q*1024}", tag='gpub')
    p(f"s_lshl_b32 s46, s{STB}, 2")
    p(f"s_add_u32 s46, s46, s{SW}")
    p(f"s_mul_i32 s47, s46, {28*2048}")
    p(f"s_lshl_b32 s48, s{SFB}, 12")
    p("s_add_u32 s47, s47, s48")
    p(f"s_add_u32 s47, s47, {WS_Z1}")
    for k in range(4):
        p(f"buffer_load_dwordx4 {v(16+4*k,4)}, v1, s[{WS}:{WS+3}], s47 offen offset:{k*1024}{LM()}")
    p("v_and_b32 v8, 31, v0")
    p("v_lshlrev_b32 v8, 1, v8")
    p("s_lshl_b32 s48, s46, 6")
    p(f"buffer_load_ushort v9, v8, s[{AUX}:{AUX+3}], s48 offen")
    p.wait('gpub')

def gemm_finish(p):
    R=32
    for rho in range(1,4):
        p(f"s_sub_u32 s47, s{SW}, {rho}")
        p("s_and_b32 s47, s47, 3")
        p("s_mul_i32 s47, s47, 24576")
        p(f"s_add_u32 s47, s47, {(rho-1)*8192}")
        p(f"v_add_u32 v{2+rho}, s47, v1")
    for fi in range(2):
        for rho in range(1,4):
            for q in range(4):
                p(f"ds_read_b128 {v(R+32*(rho-1)+16*fi+4*q,4)}, v{2+rho} offset:{fi*4096+q*1024}")
    p(f"s_mul_i32 s47, s46, {88*1024}")
    p(f"s_lshl_b32 s48, s{SFB}, 12")
    p("s_add_u32 s47, s47, s48")
    p(f"s_add_u32 s47, s47, {WS_H+32*1024}")
    p("v_lshlrev_b32 v8, 16, v9")
    p("v_mov_b32 v9, v8")
    for fi in range(2):
        A=GACC+16*fi; P1=R+16*fi; P2=R+32+16*fi; P3=R+64+16*fi
        for r in range(0,16,2):
            p(f"v_pk_add_f32 {v(A+r,2)}, {v(A+r,2)}, {v(P1+r,2)}")
        for r in range(0,16,2):
            p(f"v_pk_add_f32 {v(P2+r,2)}, {v(P2+r,2)}, {v(P3+r,2)}")
        for r in range(0,16,2):
            p(f"v_pk_add_f32 {v(A+r,2)}, {v(A+r,2)}, v[8:9]")
        for r in range(0,16,2):
            p(f"v_pk_add_f32 {v(A+r,2)}, {v(A+r,2)}, {v(P2+r,2)}")
        for d in range(8):
            p(f"v_lshlrev_b32 v{P1+2*d}, 16, v{16+8*fi+d}")
            p(f"v_and_b32 v{P1+2*d+1}, 0xffff0000, v{16+8*fi+d}")
        for r in range(0,16,2):
            p(f"v_pk_mul_f32 {v(A+r,2)}, {v(A+r,2)}, {v(P1+r,2)}")
        for d in range(8):
            p(f"v_cvt_pk_bf16_f32 v{P3+d}, v{A+2*d}, v{A+2*d+1}")
        for u in range(2):
            p(f"buffer_store_dwordx4 {v(P3+4*u,4)}, v1, s[{WS}:{WS+3}], s47 offen offset:{(fi*2+u)*1024}{SM()}")

def signal(p, tblk_sreg, slot_expr_sreg):
    p("s_waitcnt vmcnt(0)")
    if not layout.FUSE: p(f"v_readfirstlane_b32 s{STAG}, v14")
    p(f"s_lshl_b32 s64, s{tblk_sreg}, 7")
    p(f"s_lshl_b32 s65, s{slot_expr_sreg}, 2")
    p("s_add_u32 s64, s64, s65")
    p(f"s_add_u32 s64, s64, {WS_FL}")
    p(f"v_mov_b32 v12, s{STAG}")
    p("v_mov_b32 v13, 0")
    p("s_mov_b64 exec, 1")
    p(f"buffer_store_dword v12, v13, s[{WS}:{WS+3}], s64 offen sc1")
    p("s_mov_b64 exec, -1")

WO0=16; WH0=80; H0=136; FACC=192; RS3=272
STB3=66; SNB3=67
def hreg(k): return H0+4*k if k<14 else 4+4*(k-14)
def final_ids(p):
    srd(p, XS3, 10, S*D*2); srd(p, OUT3, 12, S*D*2)
    p(f"s_mul_i32 s72, s{SJ}, 37")
    p("s_lshr_b32 s72, s72, 8")
    p("s_mul_i32 s73, s72, 7")
    p(f"s_sub_u32 s{SNB3}, s{SJ}, s73")
    p(f"s_lshl_b32 s73, s{SX}, 2")
    p(f"s_add_u32 s{STB3}, s73, s72")
    p("s_mul_i32 s80, s72, 3")
    p(f"s_add_u32 s80, s80, s{SNB3}")
    p("s_sub_u32 s81, s80, 11")
    p("s_cmp_ge_u32 s80, 11")
    p("s_cselect_b32 s80, s81, s80")
    p(f"s_mul_i32 s72, s{SNB3}, {2*88*1024}")
    p(f"s_add_u32 s68, s72, {WS_WC}")
    p(f"s_mul_i32 s72, s{STB3}, {2*88*1024}")
    p(f"s_add_u32 s69, s72, {WS_H}")
def frag_loads(p, base, ks0_sreg, nk, regf, mod):
    p(f"s_lshl_b32 s72, s{ks0_sreg}, 10")
    p(f"s_add_u32 s73, s{base}, s72")
    if not FROT:
        p(f"s_mov_b32 s70, s73")
        p(f"s_add_u32 s71, s70, {88*1024}")
        for k in range(nk):
            for i in range(2):
                p(f"buffer_load_dwordx4 {v(regf(2*k+i),4)}, v1, s[{WS}:{WS+3}], s{70+i} offen offset:{(k%4)*1024}{mod}")
            if k%4==3 and k+1<nk:
                p("s_add_u32 s70, s70, 4096"); p("s_add_u32 s71, s71, 4096")
        return
    p("s_mov_b32 s81, s80")
    for k in range(nk):
        p("s_lshl_b32 s72, s81, 10")
        p("s_add_u32 s70, s73, s72")
        p(f"s_add_u32 s71, s70, {88*1024}")
        if k+1<nk:
            p("s_add_u32 s81, s81, 1")
            p(f"s_cmp_eq_u32 s81, {nk}")
            p("s_cselect_b32 s81, 0, s81")
        for i in range(2):
            p(f"buffer_load_dwordx4 {v(regf(2*k+i),4)}, v1, s[{WS}:{WS+3}], s{70+i} offen{mod}")
def frag_mfma(p, nk, wf, hf, first_zero):
    for k in range(nk):
        for ti in range(2):
            for ni in range(2):
                acc = FACC + (ti*2+ni)*16
                c = "0" if (k==0 and first_zero) else v(acc,16)
                p(f"v_mfma_f32_32x32x16_bf16 {v(acc,16)}, {v(wf(2*k+ni),4)}, {v(hf(2*k+ti),4)}, {c}")
def lds_wait(p, idx, n, lab):
    p(f"v_mov_b32 v12, {LDS_CNT+4*idx}")
    p.label(lab)
    p("ds_read_b32 v13, v12")
    p("s_waitcnt lgkmcnt(0)")
    p("v_readfirstlane_b32 s61, v13")
    p(f"s_cmp_lt_u32 s61, {n}")
    p(f"s_cbranch_scc1 {lab}")
def poll_flags(p, mask_lo, lab):
    p(f"s_lshl_b32 s72, s{STB3}, 8")
    p(f"s_add_u32 s72, s72, {WS_FL}")
    p("v_lshlrev_b32 v3, 2, v0")
    p(f"s_mov_b32 s74, {mask_lo}"); p(f"s_mov_b32 s75, {mask_lo}")
    p("s_mov_b32 s76, 0")
    p.label(lab)
    p(f"buffer_load_dword v12, v3, s[{WS}:{WS+3}], s72 offen sc1")
    p("s_waitcnt vmcnt(0)")
    p(f"v_cmp_ne_u32 vcc, s{STAG}, v12")
    p("s_and_b64 s[78:79], vcc, s[74:75]")
    p("s_cmp_eq_u64 s[78:79], 0")
    p(f"s_cbranch_scc1 {lab}_OK")
    p("s_add_u32 s76, s76, 1")
    p("s_cmp_lt_u32 s76, 0x40000")
    p(f"s_cbranch_scc1 {lab}")
    p.label(lab+"_OK")

NK3=11; W30=16; H30=104
def final_attention(p):
    final_ids(p)
    lds_wait(p, 2, 4, "K2_AWAIT")
    p(f"s_mul_i32 s77, s23, {NK3}")
    frag_loads(p, 68, 77, NK3, lambda k: W30+4*k, LM())
    stamp(p,'wissued')
    if POLLW<4:
        p(f"s_cmp_lg_u32 s23, {POLLW}")
        p("s_cbranch_scc1 K2_FH")
        poll_flags(p, "0x3fffffff", "K2_APOLL")
    p("s_branch K2_FH")

def final_gemm(p):
    final_ids(p)
    p(f"s_mul_i32 s77, s23, {NK3}")
    frag_loads(p, 68, 77, NK3, lambda k: W30+4*k, LM())
    stamp(p,'wissued')
    if POLLW>=4:
        p(f"s_cmp_lg_u32 s23, {POLLW}")
        p("s_cbranch_scc1 K2_FH")
        poll_flags(p, "0x3fffffff", "K2_GPOLL")
    p("s_branch K2_FH")

def final_common(p):
    p.label("K2_FH")
    p("s_barrier")
    stamp(p,'flags')
    p(f"s_mul_i32 s77, s23, {NK3}")
    frag_loads(p, 69, 77, NK3, lambda k: H30+4*k, HMOD)
    p("v_lshrrev_b32 v3, 3, v0")
    p(f"s_lshl_b32 s72, s{STB3}, 6")
    p(f"s_lshl_b32 s73, s23, 3")
    p("s_add_u32 s72, s72, s73")
    p("v_add_u32 v3, s72, v3")
    p(f"v_mul_u32_u24 v3, {D*2}, v3")
    p("v_and_b32 v2, 7, v0")
    p("v_lshlrev_b32 v2, 4, v2")
    p(f"s_lshl_b32 s73, s{SNB3}, 7")
    p("v_add3_u32 v2, v3, v2, s73")
    p(f"buffer_load_dwordx4 v[4:7], v2, s[{XS3}:{XS3+3}], 0 offen")
    frag_mfma(p, NK3, lambda k: W30+4*k, lambda k: H30+4*k, True)
    stamp(p,'fmfma')
    RS=RS3; ACC=FACC
    p("v_and_b32 v8, 31, v0")
    p(f"v_mul_u32_u24 v8, {RS}, v8")
    p("v_lshrrev_b32 v9, 5, v0")
    p("v_lshlrev_b32 v9, 4, v9")
    p(f"s_mul_i32 s72, s23, {64*RS}")
    p("v_add3_u32 v8, v8, v9, s72")
    for ti in range(2):
        for ni in range(2):
            acc = ACC + (ti*2+ni)*16
            for q in range(4):
                p(f"ds_write_b128 v8, {v(acc+4*q,4)} offset:{ti*32*RS+ni*128+q*32}", tag='pw')
    p.wait('pw')
    p("s_barrier")
    stamp(p,'fbar')
    p("v_lshrrev_b32 v8, 3, v0")
    p(f"s_lshl_b32 s72, s23, 3")
    p("v_add_u32 v8, s72, v8")
    p(f"v_mul_u32_u24 v8, {RS}, v8")
    p("v_and_b32 v9, 7, v0")
    p("v_lshlrev_b32 v9, 5, v9")
    p("v_add_u32 v8, v8, v9")
    p(f"v_add_u32 v9, {4*64*RS}, v8")
    R=16
    for w in range(8):
        for hh in range(2):
            a=8 if w<4 else 9
            p(f"ds_read_b128 {v(R+(w*2+hh)*4,4)}, v{a} offset:{(w%4)*64*RS+hh*16}")
    for st_ in (1,2,4):
        for w in range(0,8,2*st_):
            for e in range(0,8,2):
                p(f"v_pk_add_f32 {v(R+8*w+e,2)}, {v(R+8*w+e,2)}, {v(R+8*(w+st_)+e,2)}")
    for d in range(4):
        p(f"v_lshlrev_b32 v10, 16, v{4+d}")
        p(f"v_and_b32 v11, 0xffff0000, v{4+d}")
        p(f"v_add_f32 v{R+2*d}, v{R+2*d}, v10")
        p(f"v_add_f32 v{R+2*d+1}, v{R+2*d+1}, v11")
    for d in range(4):
        p(f"v_cvt_pk_bf16_f32 v{R+8+d}, v{R+2*d}, v{R+2*d+1}")
    p(f"buffer_store_dwordx4 {v(R+8,4)}, v2, s[{OUT3}:{OUT3+3}], 0 offen{OMOD}")
    stamp(p,'fend')

def prep(p):
    srd(p, AUX, 10, D*D*2)
    srd(p, AUX2, 12, FH*D*2)
    p(f"s_lshl_b32 s40, s{SX}, 2")
    p(f"s_add_u32 s40, s40, s{SJ}")
    p("s_sub_u32 s40, s40, 28")
    p("s_lshl_b32 s40, s40, 2")
    p(f"s_add_u32 s40, s40, s{SW}")
    p(f"s_mul_i32 s44, s{SW}, 24576")
    p("v_lshrrev_b32 v2, 2, v0")
    p(f"v_mul_u32_u24 v3, {D*2}, v2")
    p("v_and_b32 v4, 3, v0")
    p("v_lshl_add_u32 v3, v4, 4, v3")
    p("v_cmp_gt_u32 vcc, 12, v2")
    p("v_mov_b32 v5, 0x7ff00000")
    p("v_cndmask_b32 v4, v5, v3, vcc")
    p("v_lshrrev_b32 v5, 4, v0")
    p("v_and_b32 v6, 1, v5")
    p("v_lshrrev_b32 v5, 1, v5")
    p("v_lshrrev_b32 v7, 2, v0")
    p("v_and_b32 v7, 3, v7")
    p("v_lshl_add_u32 v5, v5, 2, v7")
    p("v_lshlrev_b32 v5, 6, v5")
    p("v_lshl_add_u32 v5, v6, 5, v5")
    p("v_and_b32 v6, 3, v0")
    p("v_lshl_add_u32 v5, v6, 3, v5")
    p("v_add_u32 v5, s44, v5")
    NI=10
    for i in range(NI):
        f=50+i
        p(f"s_add_u32 s{f}, s40, {128*i}")
        p(f"s_add_u32 m0, s44, {i*1024}")
        p(f"s_cmp_ge_u32 s{f}, 1232")
        p(f"s_cbranch_scc1 P_SKIP{i}")
        p(f"s_mul_i32 s41, s{f}, 745")
        p("s_lshr_b32 s41, s41, 16")
        p("s_mul_i32 s42, s41, 88")
        p(f"s_sub_u32 s42, s{f}, s42")
        p("s_lshl_b32 s41, s41, 6")
        p("s_cmp_ge_u32 s42, 32")
        p(f"s_cbranch_scc1 P_OUT{i}")
        p("s_lshr_b32 s43, s42, 1")
        p("s_mul_i32 s43, s43, 28")
        p("s_and_b32 s45, s42, 1")
        p("s_lshl_b32 s46, s45, 4")
        p("s_add_u32 s43, s43, s46")
        p(f"s_mul_i32 s43, s43, {D*2}")
        p("s_add_u32 s43, s43, s41")
        p("s_cmp_eq_u32 s45, 1")
        p(f"s_cbranch_scc1 P_PAD{i}")
        p(f"buffer_load_dwordx4 v3, s[{AUX}:{AUX+3}], s43 offen lds", tag='pd')
        p(f"s_branch P_SKIP{i}")
        p.label(f"P_PAD{i}")
        p(f"buffer_load_dwordx4 v4, s[{AUX}:{AUX+3}], s43 offen lds", tag='pd')
        p(f"s_branch P_SKIP{i}")
        p.label(f"P_OUT{i}")
        p("s_sub_u32 s43, s42, 32")
        p("s_lshl_b32 s43, s43, 4")
        p(f"s_mul_i32 s43, s43, {D*2}")
        p("s_add_u32 s43, s43, s41")
        p(f"buffer_load_dwordx4 v3, s[{AUX2}:{AUX2+3}], s43 offen lds", tag='pd')
        p.label(f"P_SKIP{i}")
    p("s_waitcnt vmcnt(0)")
    for i in range(NI):
        p(f"ds_read_b64_tr_b16 {v(16+4*i,2)}, v5 offset:{i*1024}")
        p(f"ds_read_b64_tr_b16 {v(16+4*i+2,2)}, v5 offset:{i*1024+512}")
    p("s_waitcnt lgkmcnt(0)")
    for i in range(NI):
        f=50+i
        p(f"s_cmp_ge_u32 s{f}, 1232")
        p(f"s_cbranch_scc1 P_SK2{i}")
        p(f"s_lshl_b32 s41, s{f}, 10")
        p(f"s_add_u32 s41, s41, {WS_WC}")
        p(f"buffer_store_dwordx4 {v(16+4*i,4)}, v1, s[{WS}:{WS+3}], s41 offen{SM()}")
        p.label(f"P_SK2{i}")

def gen(force_fallback=False):
    p=Prog(); prologue(p)
    n0=PR.n
    p.begin_alt()
    p.alt_branch()
    p("s_mov_b32 s48, 0"); p("s_mov_b32 s49, -1")
    if ONLY=='g': p("s_branch K2_END")
    if layout.FUSE: phase1_wait(p)
    attention(p, force_fallback); attention_publish(p)
    stamp(p,'published')
    role_sync(p,0,"A_SYNC")
    stamp(p,'barrier')
    attention_finish(p)
    stamp(p,'finished')
    p(f"s_lshl_b32 s62, s{SQB}, 2")
    p(f"s_add_u32 s62, s62, s{SW}")
    signal(p, 62, SHEAD)
    stamp(p,'end')
    p(f"s_cmp_ge_u32 s{SJ}, 28")
    p("s_cbranch_scc1 K2_AEXIT")
    final_attention(p)
    namesA=list(PR.names); PR.n=n0; PR.names=PR.names[:n0]
    p.alt_branch()
    p.label("K2_ROLEB")
    p(f"s_cmp_ge_u32 s{SJ}, 28")
    p("s_cbranch_scc1 K2_WPF" if WPF else "s_cbranch_scc1 K2_END")
    if ONLY=='a': p("s_branch K2_END")
    gemm(p); stamp(p,'loopend'); gemm_publish(p)
    stamp(p,'published')
    role_sync(p,1,"B_SYNC")
    stamp(p,'barrier')
    gemm_finish(p)
    p(f"v_mov_b32 v12, {LDS_CNT+8}")
    p("v_mov_b32 v13, 1")
    p("s_mov_b64 exec, 1")
    p("ds_add_u32 v12, v13")
    p("s_mov_b64 exec, -1")
    stamp(p,'finished')
    p(f"s_add_u32 s62, s{SFB}, 16")
    signal(p, 46, 62)
    stamp(p,'end')
    final_gemm(p)
    namesB=list(PR.names)
    p.end_alt()
    PR.n=24; PR.names=[]
    final_common(p)
    dump_stamps(p,8)
    p("s_branch K2_END")
    texts=[p.finalize()]
    p=Prog()
    p.label("K2_AEXIT")
    dump_stamps(p,8)
    p("s_branch K2_END")
    if WPF:
        p.label("K2_WPF")
        kernarg_ready(p)
        if layout.FUSE or LATEBAR: p("s_barrier")
        lds_wait(p, 0, 1, "K2_WPFW")
        p(f"s_sub_u32 s61, s{SJ}, 28")
        p("s_lshl_b32 s61, s61, 2")
        p(f"s_add_u32 s61, s61, s{SW}")
        p(f"s_mul_i32 s61, s61, {616*128}")
        p(f"s_add_u32 s61, s61, {WS_WC}")
        p("v_lshlrev_b32 v12, 7, v0")
        for i in range(10):
            p(f"buffer_load_dword v13, v12, s[{WS}:{WS+3}], s61 offen")
            if i<9: p("s_add_u32 s61, s61, 8192")
    p.label("K2_END")
    p("s_endpgm")
    if PR.on:
        pad=lambda L: L+['-']*(24-len(L))
        open('k2_stamps.txt','w').write(" ".join(pad(namesA)+PR.names)+"\n"+" ".join(pad(namesB)+PR.names))
    texts.append(p.finalize())
    return "".join(texts)

def kernel(**opt):
    global PROF, PR, PRION, SKIPDMA, PRIOPAT, STARTPRIO, ONLY, WPF
    WPF=int(opt.get('wpf',1))
    global DELAYW
    DELAYW=int(opt.get('dw',1))
    global ROT, KINT, EARLYRING, FPF, CODEPF2, FROT
    FROT=int(opt.get('frot',0))
    global HMOD, EARLYPUB, LATEBAR, POLLW, OMOD, PRIOLATE
    PRIOLATE=int(opt.get('plate',0))
    OMOD={'0':'','1':' sc1','2':' nt','3':' sc0 sc1'}[opt.get('omod','1')]
    POLLW=int(opt.get('pollw',7))
    LATEBAR=int(opt.get('lb',0))
    EARLYPUB=int(opt.get('epub',1))
    HMOD={'0':'','1':' sc1','2':' nt','3':' sc0 sc1'}[opt.get('hmod','1')]
    CODEPF2=int(opt.get('cpf2',0))
    FPF=int(opt.get('fpf',0))
    EARLYRING=int(opt.get('er',1))
    ROT=int(opt.get('rot',3)); KINT=int(opt.get('kint',1))
    ONLY=opt.get('only','')
    STARTPRIO=int(opt.get('sp',0))
    PRIOPAT=opt.get('pp','')
    SKIPDMA=int(opt.get('skipdma',0))
    PRION=int(opt.get('prion',0))
    PROF=bool(int(opt.get('prof',0)))
    PR=Prof(PROF,WS,23,WS_ST+(1<<19),vr=15)
    return dict(name="k2_kernel", text=gen(force_fallback=bool(int(opt.get('ff',0)))), grid=256, block=512, lds=LDS_K2, vgpr=256, sgpr=102, accum=256)
```

```python
from asmlib import *
from layout import *
import layout
def SM(): return layout.STMOD
def SML(): return layout.STMOD if (LASTSC1 or layout.FUSE) else ''
from k3 import srd

L_X   = 0
L_P1  = 112*1024
L_P2  = 16*1024
L_P3  = 72*1024
L_SM  = 156*1024
L_CS  = L_SM
L_XS  = L_SM + 1024
L_ZS  = L_SM + 3072
L_T   = 0
LDS_K1 = 160*1024
def p1_addr(kc): return L_P1 + kc*8192 if kc < 5 else (kc-5)*8192

SW8=16; SW=17; SG=18; SRB=19; SCB=20; STAG=21; SSB=22
WS=24; XS=28; WIN=32; WQ=36; DBG=40
SP1=44; SP2=45; SP3=46; SXB=47; ST=48; ST2=49; SEP=50
VL16=1; VXD=(2,3); VWD=4; VXR=(5,6,7,8); VWR=9; VCSR=10; VSR=11; VP3D=(12,13,14); VP3R=15
MU=16; RS_=17; VT=18
CS=48; WF=64; ZH=80; ACC=(96,112); XF=128
VH=240
ONES=244; CSW=249; CSR=247; CSD=124; NMF=42; EPV=39

from profutil import Prof
PR=Prof(False,WS,SW8,0)
def stamp(p,name): PR.stamp(p,str(name))

def kernargs_k1(p):
    p("s_waitcnt lgkmcnt(0)")
    srd(p, WS, 4, WS_SIZE); srd(p, XS, 6, S*D*2); srd(p, WIN, 8, D*F*2); srd(p, WQ, 10, D*3*D*2); srd(p, DBG, 12, 256)
    PR.real(p,62)
    stamp(p,'start')

def prologue(p):
    p("s_cmp_ge_u32 s2, 256")
    p("s_cbranch_scc1 K1_END")
    p(f"s_load_dwordx2 s[4:5], s[0:1], {KA_WS}")
    p(f"s_load_dwordx2 s[6:7], s[0:1], {KA_X}")
    p(f"s_load_dwordx2 s[8:9], s[0:1], {KA_WIN}")
    p(f"s_load_dwordx2 s[10:11], s[0:1], {KA_WQKV}")
    p(f"s_load_dwordx2 s[12:13], s[0:1], {KA_DBG}")
    p(f"s_load_dwordx2 s[92:93], s[0:1], {KA_WSP}")
    p("v_lshrrev_b32 v1, 6, v0")
    p("v_and_b32 v0, 63, v0")
    p(f"v_readfirstlane_b32 s{SW8}, v1")
    p("s_and_b32 s14, s2, 7")
    p("s_lshr_b32 s15, s2, 3")
    p("s_and_b32 s51, s14, 1")
    p("s_lshl_b32 s51, s51, 3")
    p("s_and_b32 s52, s15, 7")
    p(f"s_add_u32 s{SRB}, s51, s52")
    p("s_lshr_b32 s51, s14, 1")
    p("s_lshl_b32 s51, s51, 2")
    p("s_lshr_b32 s52, s15, 3")
    p(f"s_add_u32 s{SCB}, s51, s52")
    p("s_and_b32 s64, s15, 7")
    p("s_lshr_b32 s65, s15, 3")
    p("s_lshl_b32 s65, s65, 1")
    p("s_add_u32 s64, s64, s65")
    p("s_sub_u32 s65, s64, 7")
    p("s_cmp_ge_u32 s64, 7")
    p("s_cselect_b32 s64, s65, s64")
    if not KROT: p("s_mov_b32 s64, 0")
    p(f"s_and_b32 s{SW}, s{SW8}, 3")
    p(f"s_lshr_b32 s{SG}, s{SW8}, 2")
    p(f"s_lshl_b32 s{SSB}, s{SRB}, 2")
    p(f"s_add_u32 s{SSB}, s{SSB}, s{SW}")
    p(f"v_lshlrev_b32 v{VL16}, 4, v0")
    if not LATEKA: kernargs_k1(p)
    p("v_lshrrev_b32 v18, 3, v0")
    p(f"v_mul_u32_u24 v19, {D*2}, v18")
    p("v_lshrrev_b32 v20, 4, v0")
    p("v_and_b32 v21, 7, v0")
    p("v_xor_b32 v22, v21, v20")
    p(f"v_lshl_add_u32 v{VXD[0]}, v22, 4, v19")
    p("v_xor_b32 v22, 4, v22")
    p(f"v_lshl_add_u32 v{VXD[1]}, v22, 4, v19")
    p(f"v_mul_u32_u24 v19, {F*2}, v18")
    p("v_and_b32 v20, 1, v20")
    p("v_lshlrev_b32 v20, 2, v20")
    p("v_xor_b32 v22, v21, v20")
    p(f"v_lshl_add_u32 v{VWD}, v22, 4, v19")
    p(f"s_lshl_b32 s51, s{SRB}, 7")
    p(f"s_lshl_b32 s52, s{SW}, 5")
    p("s_add_u32 s51, s51, s52")
    p(f"s_mul_i32 s{SXB}, s51, {D*2}")
    p(f"s_lshl_b32 s51, s{SRB}, 7")
    p(f"s_lshl_b32 s52, s{SW8}, 4")
    p("s_add_u32 s51, s51, s52")
    p(f"s_mul_i32 s94, s51, {D*2}")
    p(f"s_lshl_b32 s51, s{SCB}, 7")
    p(f"s_add_u32 s52, s51, {FH*2}")
    p(f"s_sub_u32 s53, s51, 256")
    p(f"s_cmp_lt_u32 s{SCB}, 14")
    p(f"s_cselect_b32 s{SP1}, s52, s53")
    p(f"s_lshl_b32 s95, s{SW8}, 3")
    p(f"s_mul_i32 s95, s95, {F*2}")
    p(f"s_add_u32 s95, s95, s{SP1}")
    p(f"s_sub_u32 s54, s{SCB}, 2")
    p(f"s_cmp_lt_u32 s54, 12")
    p(f"s_cselect_b32 s{SP2}, s53, 0")
    p(f"s_lshl_b32 s51, s{SW}, 4")
    p(f"s_mul_i32 s51, s51, {F*2}")
    p(f"s_add_u32 s{SP1}, s{SP1}, s51")
    p(f"s_add_u32 s{SP2}, s{SP2}, s51")
    if LATEKA: kernargs_k1(p)

def kcd(p, i):
    p(f"s_add_u32 s65, s64, {i}")
    p("s_sub_u32 s83, s65, 7")
    p("s_cmp_ge_u32 s65, 7")
    p("s_cselect_b32 s65, s83, s65")
def dma_x(p, kc, which=range(4)):
    kcd(p, kc)
    p(f"s_lshl_b32 s{ST2}, s65, 7")
    p(f"s_add_u32 s{ST2}, s{ST2}, s{SXB}")
    for i in which:
        p(f"s_lshl_b32 m0, s{SW}, 12")
        p(f"s_add_u32 m0, m0, {L_X+kc*16384+i*1024}")
        p(f"s_add_u32 s{ST}, s{ST2}, {i*8*D*2}")
        p(f"buffer_load_dwordx4 v{VXD[i&1]}, s[{XS}:{XS+3}], s{ST} offen lds", tag=f'x{kc}')
def dma_pair(p, sbase, kc, ldsaddr, tag, which=range(2)):
    kcd(p, kc)
    p(f"s_mul_i32 s{ST2}, s65, {64*F*2}")
    p(f"s_add_u32 s{ST2}, s{ST2}, s{sbase}")
    for i in which:
        p(f"s_lshl_b32 m0, s{SW}, 11")
        p(f"s_add_u32 m0, m0, {ldsaddr+i*1024}")
        p(f"s_add_u32 s{ST}, s{ST2}, {i*8*F*2}")
        p(f"buffer_load_dwordx4 v{VWD}, s[{WIN}:{WIN+3}], s{ST} offen lds", tag=tag)

def dma_init(p, kc):
    kcd(p, kc)
    p(f"s_lshl_b32 s{ST2}, s65, 7")
    p(f"s_add_u32 s{ST2}, s{ST2}, s94")
    for i in range(2):
        p(f"s_lshl_b32 m0, s{SW8}, 11")
        p(f"s_add_u32 m0, m0, {L_X+kc*16384+i*1024}")
        p(f"s_add_u32 s{ST}, s{ST2}, {i*8*D*2}")
        p(f"buffer_load_dwordx4 v{VXD[i]}, s[{XS}:{XS+3}], s{ST} offen lds", tag=f'x{kc}')
    p(f"s_lshl_b32 m0, s{SW8}, 10")
    p(f"s_add_u32 m0, m0, {p1_addr(kc)}")
    p(f"s_mul_i32 s{ST}, s65, {64*F*2}")
    p(f"s_add_u32 s{ST}, s{ST}, s95")
    p(f"buffer_load_dwordx4 v{VWD}, s[{WIN}:{WIN+3}], s{ST} offen lds", tag=f'w{kc}')

def setup_reads(p):
    p("v_and_b32 v18, 31, v0")
    p("v_lshrrev_b32 v19, 5, v0")
    p("v_lshrrev_b32 v20, 1, v18")
    p("v_and_b32 v20, 7, v20")
    p("v_xor_b32 v20, v20, v19")
    p("v_lshlrev_b32 v18, 7, v18")
    p(f"s_lshl_b32 s51, s{SW}, 12")
    p(f"v_add_u32 v18, s51, v18")
    for u in range(4):
        p(f"v_xor_b32 v21, {2*u}, v20")
        p(f"v_lshl_add_u32 v{VXR[u]}, v21, 4, v18")
    p("v_lshrrev_b32 v18, 4, v0")
    p("v_and_b32 v19, 1, v18")
    p("v_lshrrev_b32 v18, 1, v18")
    p("v_lshrrev_b32 v20, 2, v0")
    p("v_and_b32 v20, 3, v20")
    p("v_and_b32 v21, 3, v0")
    p("v_lshl_add_u32 v22, v18, 3, v20")
    p("v_lshlrev_b32 v23, 7, v22")
    p("v_lshrrev_b32 v24, 1, v21")
    p("v_lshl_add_u32 v24, v19, 1, v24")
    p(f"s_lshl_b32 s51, s{SG}, 2")
    p("v_add_u32 v24, s51, v24")
    p("v_lshrrev_b32 v25, 1, v20")
    p("v_lshlrev_b32 v25, 2, v25")
    p("v_xor_b32 v24, v24, v25")
    p("v_lshl_add_u32 v23, v24, 4, v23")
    p("v_and_b32 v24, 1, v21")
    p(f"v_lshl_add_u32 v{VWR}, v24, 3, v23")
    p(f"s_lshl_b32 s51, s{SW}, 11")
    p(f"v_add_u32 v{VCSR}, s51, v{VWR}")
    p(f"v_add_u32 v{VH+12}, {L_P1}, v{VWR}")
    p(f"v_add_u32 v{VH+13}, {L_P1}, v{VCSR}")
    for r in range(3):
        p(f"v_add_u32 v23, {64*r}, v0")
        p(f"v_mul_u32_u24 v24, 43691, v23")
        p(f"v_lshrrev_b32 v24, 19, v24")
        p(f"v_mul_u32_u24 v25, 12, v24")
        p(f"v_sub_u32 v25, v23, v25")
        p(f"v_mul_u32_u24 v24, {3*D*2}, v24")
        p(f"v_lshl_add_u32 v{VP3D[r]}, v25, 4, v24")
    p("v_mul_u32_u24 v23, 192, v22")
    p("v_lshl_add_u32 v23, v19, 5, v23")
    p(f"v_lshl_add_u32 v{VP3R}, v21, 3, v23")
    p(f"v_add_u32 v{VP3R}, {L_P3}, v{VP3R}")
    p("v_and_b32 v23, 31, v0")
    p("v_mul_u32_u24 v23, 72, v23")
    p("v_lshrrev_b32 v24, 5, v0")
    p("v_lshl_add_u32 v23, v24, 3, v23")
    p(f"s_mul_i32 s51, s{SW8}, 2304")
    p(f"s_add_u32 s51, s51, {L_T}")
    p(f"v_add_u32 v{VH+1}, s51, v23")
    p("v_lshl_add_u32 v23, v18, 2, v20")
    p("v_mul_u32_u24 v23, 72, v23")
    p("v_lshl_add_u32 v23, v19, 5, v23")
    p("v_lshl_add_u32 v23, v21, 3, v23")
    p(f"v_add_u32 v{VH+2}, s51, v23")
    p("v_mul_u32_u24 v23, 72, v22")
    p("v_lshl_add_u32 v23, v19, 5, v23")
    p("v_lshl_add_u32 v23, v21, 3, v23")
    p(f"v_add_u32 v{VH+3}, s51, v23")
    p("v_and_b32 v23, 31, v0")
    p("v_lshlrev_b32 v23, 2, v23")
    p(f"s_lshl_b32 s51, s{SG}, 9")
    p(f"s_add_u32 s51, s51, {L_CS}")
    p(f"v_add_u32 v23, s51, v23")
    p(f"s_lshl_b32 s52, s{SW}, 7")
    p(f"v_add_u32 v{CSW}, s52, v23")
    p("v_lshrrev_b32 v24, 5, v0")
    p(f"v_lshl_add_u32 v{CSR}, v24, 8, v23")
    p(f"v_mov_b32 v{ONES}, 0x3f803f80")
    p(f"v_mov_b32 v{ONES+1}, 0x3f803f80")
    p("v_and_b32 v23, 31, v0")
    p(f"s_lshl_b32 s51, s{SW}, 5")
    p("v_add_u32 v23, s51, v23")
    p(f"v_lshlrev_b32 v{VH+6}, 3, v23")

def cs_zero(p):
    for r in range(4): p(f"v_mov_b32 v{CSD+r}, 0")
def cs_step(p, fr):
    p(f"v_mfma_f32_4x4x4_16b_bf16 {v(CSD,4)}, {v(ONES,2)}, {v(fr,2)}, {v(CSD,4)}")
    p(f"v_mfma_f32_4x4x4_16b_bf16 {v(CSD,4)}, {v(ONES,2)}, {v(fr+2,2)}, {v(CSD,4)}")
def cs_flush(p):
    p(f"v_mov_b32 v46, v{CSD}")
    p(f"v_mov_b32 v33, v{CSD}")
    p(f"v_permlane32_swap_b32 v46, v33")
    p(f"v_add_f32 v46, v46, v33")
    p(f"ds_write_b32 v{CSW}, v46", tag='cs')
def meanfix(p, acc):
    F=28
    p(f"ds_read_b32 v26, v{CSR}")
    p(f"ds_read_b32 v27, v{CSR} offset:128")
    for k in range(2):
        a=26+k; d=F+2*k
        p(f"v_and_b32 v32, 0xffff0000, v{a}")
        p(f"v_sub_f32 v33, v{a}, v32")
        p(f"v_lshrrev_b32 v{d+1}, 16, v32")
        p(f"v_and_or_b32 v{d}, v33, s60, v{d+1}")
    p(f"v_mfma_f32_32x32x16_bf16 {v(acc,16)}, {v(F,4)}, {v(NMF,4)}, {v(acc,16)}")

def x_reads(kc):
    L=[]
    if kc==4: L+=[f"v_add_u32 v{r}, 0x10000, v{r}" for r in list(VXR)]
    xo=(kc*16384)&0xffff
    for u in range(4): L.append(f"ds_read_b128 {v(XF+4*(4*kc+u),4)}, v{VXR[u]} offset:{xo}")
    return L

def p0_compute(p):
    for r in range(40,44): p(f"v_mov_b32 v{r}, 0")
    cs_zero(p)
    CF=(28,120)
    def wreads(kc):
        if kc<5: wa,ca,wb=VH+12,VH+13,kc*8192
        else: wa,ca,wb=VWR,VCSR,(kc-5)*8192
        W=48+16*(kc&1); L=[]
        for u in range(4):
            L.append([f"ds_read_b64_tr_b16 {v(W+4*u,2)}, v{wa} offset:{wb+u*2048}",
                      f"ds_read_b64_tr_b16 {v(W+4*u+2,2)}, v{wa} offset:{wb+u*2048+512}"])
        cf=CF[kc&1]
        L.append([f"ds_read_b64_tr_b16 {v(cf,2)}, v{ca} offset:{wb}", f"ds_read_b64_tr_b16 {v(cf+2,2)}, v{ca} offset:{wb+512}"])
        return L
    for kc in range(8):
        if kc<7:
            if kc<3: p.wait(f'x{kc}', f'w{kc}')
            p("s_barrier")
            if kc in (0,6): stamp(p,f'c{kc}bar')
        xr = x_reads(kc) if kc<7 else []
        wr = wreads(kc) if kc<7 else []
        if kc==0:
            for x in xr: p(x)
            for gr in wr:
                for x in gr: p(x)
        else:
            c=kc-1; W=48+16*(c&1)
            sf=XF+16*c
            for u in range(4):
                cc = "0" if (c==0 and u==0) else v(ACC[0],16)
                p(f"v_mfma_f32_32x32x16_bf16 {v(ACC[0],16)}, {v(W+4*u,4)}, {v(XF+4*(4*c+u),4)}, {cc}")
                if u==0:
                    for x in xr: p(x)
                elif kc<7:
                    for gr in wr[[0,0,2,4][u]:[0,2,4,5][u]]:
                        for x in gr: p(x)
            cs_step(p, CF[c&1])
            for d in range(16):
                p(f"v_dot2c_f32_bf16 v{40+(d&1)}, v{sf+d}, v{ONES}")
                p(f"v_dot2c_f32_bf16 v{42+(d&1)}, v{sf+d}, v{sf+d}")
        if kc<7: p("s_waitcnt lgkmcnt(0)")
    cs_flush(p)
    p("v_add_f32 v40, v40, v41")
    p("v_add_f32 v41, v42, v43")
    p("v_mov_b32 v42, v40"); p("v_mov_b32 v43, v41")
    p("v_permlane32_swap_b32 v42, v40")
    p("v_permlane32_swap_b32 v43, v41")
    p("v_add_f32 v40, v40, v42")
    p("v_add_f32 v41, v41, v43")
    p(f"v_mul_f32 v{MU}, 0x3b124925, v40")
    p(f"v_mul_f32 v41, 0x3b124925, v41")
    p(f"v_fma_f32 v41, -v{MU}, v{MU}, v41")
    p(f"v_add_f32 v41, 0x3727c5ac, v41")
    p(f"v_rsq_f32 v{RS_}, v41")
    p(f"v_add_u32 v18, {L_XS}, v{VH+6}")
    p(f"ds_write_b64 v18, {v(MU,2)}", tag='xs')
    nmf(p)
    p.wait('xs','cs')
    p("s_barrier")

def p0_load(p):
    def dmas(kc):
        G=[]
        n=kc+3
        if n<7:
            G.append(lambda q,n=n: dma_x(q,n))
            G.append(lambda q,n=n: dma_pair(q, SP1, n, p1_addr(n), f'w{n}'))
        if kc==4: G+= [lambda q,i=i: dma_pair(q, SP2, i, L_P2+i*8192, 'p2') for i in (0,1,2)]
        if kc==5: G+= [lambda q,i=i: dma_pair(q, SP2, i, L_P2+i*8192, 'p2') for i in (3,4,5)]
        if kc==6: G+= [lambda q: dma_pair(q, SP2, 6, L_P2+6*8192, 'p2')]
        return G
    for kc in range(7):
        p.wait(f'x{kc}', f'w{kc}')
        p("s_barrier")
        if kc in (0,6): stamp(p,f'c{kc}bar')
        for x in x_reads(kc): p(x)
        for f in dmas(kc): f(p)
        p("s_waitcnt lgkmcnt(0)")
    p("s_barrier")
    p(f"v_add_u32 v18, {L_XS}, v{VH+6}")
    p(f"ds_read_b64 {v(MU,2)}, v18")
    nmf(p)

def nmf(p):
    p(f"v_sub_f32 v20, 0, v{MU}")
    p(f"v_and_b32 v21, 0xffff0000, v20")
    p(f"v_sub_f32 v22, v20, v21")
    p(f"v_lshrrev_b32 v23, 16, v21")
    p(f"v_or_b32 v{NMF}, v21, v23")
    p(f"v_lshrrev_b32 v{NMF+1}, 16, v22")
    p(f"v_mov_b32 v{NMF+2}, v{NMF}")
    p(f"v_mov_b32 v{NMF+3}, v{NMF+1}")

def dma_p3_groups(firsts):
    G=[]
    for n0 in firsts:
        def setup(q,n0=n0):
            q(f"s_add_u32 s88, s{SW}, {n0}")
            q(f"s_mul_i32 s89, s88, 3072")
            q("s_lshr_b32 s87, s88, 2")
            q("s_add_u32 s87, s87, s64")
            q("s_sub_u32 s83, s87, 7")
            q("s_cmp_ge_u32 s87, 7")
            q("s_cselect_b32 s87, s83, s87")
            q("s_lshl_b32 s87, s87, 2")
            q("s_and_b32 s88, s88, 3")
            q("s_add_u32 s87, s87, s88")
            q(f"s_mul_i32 s87, s87, {16*3*D*2}")
            q(f"s_add_u32 s87, s87, s63")
        for r in range(3):
            def one(q,r=r,setup=setup):
                if r==0: setup(q)
                q(f"s_add_u32 m0, s89, {L_P3+r*1024}")
                q("s_nop 0")
                q(f"buffer_load_dwordx4 v{VP3D[r]}, s[{WQ}:{WQ+3}], s87 offen lds", tag='p3')
            G.append(one)
    return G

def center(p, acc, scale_v):
    if K1PRIO=='M': p("s_setprio 0")
    if K1PRIO=='E': p("s_setprio 1")
    meanfix(p, acc)
    for r in range(16):
        p(f"v_mul_f32 v{acc+r}, v{acc+r}, v{scale_v}")

def gelu(p, acc, dst):
    T=18
    for b in (0,8):
        R=range(b,b+8)
        for r in R: p(f"v_mul_f32 v{T+r-b}, v{acc+r}, v{acc+r}")
        for r in R: p(f"v_fma_f32 v{T+r-b}, v{T+r-b}, s56, v47")
        for r in R: p(f"v_mul_f32 v{T+r-b}, v{T+r-b}, v{acc+r}")
        for r in R: p(f"v_exp_f32 v{T+r-b}, v{T+r-b}")
        for r in R: p(f"v_add_f32 v{T+r-b}, 1.0, v{T+r-b}")
        for r in R: p(f"v_rcp_f32 v{T+r-b}, v{T+r-b}")
        for r in R: p(f"v_mul_f32 v{dst+r}, v{acc+r}, v{T+r-b}")

def pack(p, src, dst):
    for i in range(8): p(f"v_cvt_pk_bf16_f32 v{dst+i}, v{src+2*i}, v{src+2*i+1}")
def store2(p, src, sreg, off=0):
    p(f"buffer_store_dwordx4 {v(src,4)}, v{VL16}, s[{WS}:{WS+3}], s{sreg} offen offset:{off}{SM()}")
    p(f"buffer_store_dwordx4 {v(src+4,4)}, v{VL16}, s[{WS}:{WS+3}], s{sreg} offen offset:{off+1024}{SM()}")
def transpose(p, src, dst, traddr, order):
    for q in range(4):
        p(f"ds_write_b64 v{VH+1}, {v(src+2*q,2)} offset:{q*16}", tag='tw')
    p.wait('tw')
    for u in range(2):
        for ii in range(2):
            row = (16*u+8*ii) if order=='v' else (16*u+4*ii)
            p(f"ds_read_b64_tr_b16 {v(dst+4*u+2*ii,2)}, v{traddr} offset:{row*72}")

def epi_z1(p, acc, pairreg, g):
    center(p, acc, RS_)
    gelu(p, acc, acc)
    pack(p, acc, 34)
    p(f"s_mul_i32 s51, s{SSB}, {28*2048}")
    p(f"s_lshl_b32 s52, s{pairreg}, 12")
    p("s_add_u32 s51, s51, s52")
    p(f"s_add_u32 s51, s51, {WS_Z1+g*2048}")
    store2(p, 34, 51)

def epi_z2(p, acc):
    center(p, acc, RS_)
    gelu(p, acc, ZH)
    p(f"v_mov_b32 v34, v{ZH}")
    p(f"v_mul_f32 v35, v{ZH}, v{ZH}")
    for r in range(1,16):
        p(f"v_add_f32 v34, v34, v{ZH+r}")
        p(f"v_fmac_f32 v35, v{ZH+r}, v{ZH+r}")
    p("v_mov_b32 v36, v34"); p("v_mov_b32 v37, v35")
    p("v_permlane32_swap_b32 v36, v34")
    p("v_permlane32_swap_b32 v37, v35")
    p("v_add_f32 v34, v34, v36")
    p("v_add_f32 v35, v35, v37")

LA=5
def mtile(p, acc, addr, off_fn, cs_addr, cs_off_fn, addr2=None, cs_addr2=None, part='all', sides=(), split=43008):
    NB=8; WB=48
    def rd(ks):
        b=WB+4*(ks%NB)
        for ii in range(2):
            o=off_fn(ks,ii); r=addr
            if o>=split and addr2 is not None: r=addr2; o-=split
            p(f"ds_read_b64_tr_b16 {v(b+2*ii,2)}, v{r} offset:{o}")
    def csrd(kc):
        for ii in range(2):
            o=cs_off_fn(kc,ii); r=cs_addr
            if o>=split and cs_addr2 is not None: r=cs_addr2; o-=split
            p(f"ds_read_b64_tr_b16 {v(26+4*(kc&1)+2*ii,2)}, v{r} offset:{o}")
    if part in ('all','pre'):
        for ks in range(LA): rd(ks)
        csrd(0)
    if part=='pre': return
    if K1PRIO=='M': p("s_setprio 1")
    if K1PRIO=='E': p("s_setprio 0")
    cs_zero(p)
    sched_rd={3*kc-2:kc for kc in range(1,7)}
    sched_st={3*kc+1:kc for kc in range(7)}
    for ks in range(28):
        c = "0" if ks==0 else v(acc,16)
        p(f"v_mfma_f32_32x32x16_bf16 {v(acc,16)}, {v(WB+4*(ks%NB),4)}, {v(XF+4*ks,4)}, {c}")
        if ks+LA<28: rd(ks+LA)
        if ks in sched_st: cs_step(p, 26+4*(sched_st[ks]&1))
        if ks in sched_rd: csrd(sched_rd[ks])
        if ks==23: cs_flush(p)
        if ks%3==2 and ks//3<len(sides): sides[ks//3](p)

def epi_head(p, acc, treg, lab):
    p(f"s_lshr_b32 s52, s{treg}, 4")
    p(f"s_and_b32 s53, s{treg}, 15")
    p(f"v_mov_b32 v46, v{RS_}")
    p("s_cmp_lg_u32 s52, 0")
    p(f"s_cbranch_scc1 {lab}_NQ")
    p(f"v_mul_f32 v46, 0x3e8b97f6, v46")
    p.label(f"{lab}_NQ")
    center(p, acc, 46)
    p("s_cmp_eq_u32 s52, 0"); p("s_cselect_b32 s54, 0, 1.0")
    p("s_cmp_eq_u32 s52, 1"); p("s_cselect_b32 s55, 1.0, 0")
    p("s_mov_b64 exec, s[58:59]")
    p(f"v_mov_b32 v{acc+12}, s54"); p(f"v_mov_b32 v{acc+13}, s55"); p(f"v_mov_b32 v{acc+14}, 0"); p(f"v_mov_b32 v{acc+15}, 0")
    p("s_mov_b64 exec, -1")
    pack(p, acc, 34)
    p(f"s_lshl_b32 s54, s53, 6")
    p(f"s_add_u32 s54, s54, s{SSB}")
    p("s_cmp_eq_u32 s52, 2")
    p(f"s_cbranch_scc1 {lab}_V")
    p("s_lshl_b32 s55, s54, 11")
    p(f"s_add_u32 s55, s55, {WS_Q}")
    p("s_lshl_b32 s54, s54, 12")
    p(f"s_add_u32 s54, s54, {WS_KV}")
    p("s_cmp_eq_u32 s52, 0")
    p("s_cselect_b32 s54, s55, s54")
    p.begin_opt()
    store2(p, 34, 54)
    p(f"s_branch {lab}_D")
    p.end_opt()
    p.label(f"{lab}_V")
    p.begin_opt()
    transpose(p, 34, 20, VH+2, 'v')
    p("s_lshl_b32 s54, s54, 12")
    p(f"s_add_u32 s54, s54, {WS_KV+2048}")
    store2(p, 20, 54)
    p.end_opt()
    p.label(f"{lab}_D")

def publish_z2(p):
    p(f"v_add_u32 v18, {L_ZS}, v{VH+6}")
    p("ds_read_b64 v[36:37], v18")
    p("v_add_f32 v36, v36, v34")
    p("v_add_f32 v38, v37, v35")
    p(f"v_mov_b32 v37, s{STAG}")
    p(f"v_mov_b32 v39, s{STAG}")
    p(f"s_mul_i32 s51, s{SSB}, {14*512}")
    p(f"s_lshl_b32 s52, s{SCB}, 9")
    p("s_add_u32 s51, s51, s52")
    p(f"s_add_u32 s51, s51, {WS_ST}")
    p("s_mov_b32 exec_hi, 0")
    p(f"buffer_store_dwordx4 v[36:39], v{VL16}, s[{WS}:{WS+3}], s51 offen sc1")
    p("s_mov_b64 exec, -1")

GR=48
GRQ=[112,116,120,18,22,34,38]
def granule_loads(p):
    p(f"s_mul_i32 s90, s{SSB}, {14*512}")
    p(f"s_add_u32 s90, s90, {WS_ST}")
    for i in range(7):
        p(f"s_add_u32 s53, s90, {i*1024}")
        p(f"buffer_load_dwordx4 {v(GRQ[i],4)}, v{VL16}, s[{WS}:{WS+3}], s53 offen sc1", tag='gr')

def fin_stats(p, lab):
    Q=GRQ
    p(f"s_mov_b32 s52, 0")
    p.wait('gr')
    p.label(f"{lab}_CHECK")
    for i in range(7):
        p(f"v_xor_b32 v{26+(i&1)}, s{STAG}, v{Q[i]+1}")
        p(f"v_xor_b32 v{28+(i&1)}, s{STAG}, v{Q[i]+3}")
        if i<2: p(f"v_or_b32 v{30+i}, v{26+i}, v{28+i}")
        else: p(f"v_or3_b32 v{30+(i&1)}, v{30+(i&1)}, v{26+(i&1)}, v{28+(i&1)}")
    p("v_or_b32 v30, v30, v31")
    p("v_cmp_ne_u32 vcc, 0, v30")
    p("s_cmp_eq_u64 vcc, 0")
    p(f"s_cbranch_scc1 {lab}_POLLDONE")
    p("s_add_u32 s52, s52, 1")
    p("s_cmp_gt_u32 s52, 0x40000")
    p(f"s_cbranch_scc1 {lab}_POLLDONE")
    granule_loads(p)
    p("s_waitcnt vmcnt(0)")
    p(f"s_branch {lab}_CHECK")
    p.label(f"{lab}_POLLDONE")
    stamp(p,'polled')
    p(f"v_add_f32 v30, v{Q[0]}, v{Q[1]}")
    p(f"v_add_f32 v31, v{Q[0]+2}, v{Q[1]+2}")
    for i in range(2,7):
        p(f"v_add_f32 v30, v30, v{Q[i]}")
        p(f"v_add_f32 v31, v31, v{Q[i]+2}")
    p("v_mov_b32 v34, v30"); p("v_mov_b32 v35, v31")
    p("v_permlane32_swap_b32 v30, v34")
    p("v_permlane32_swap_b32 v31, v35")
    p("v_add_f32 v34, v34, v30")
    p("v_add_f32 v35, v35, v31")
    p("v_mul_f32 v34, 0x3a924925, v34")
    p("v_mul_f32 v35, 0x3a924925, v35")
    p("v_fma_f32 v35, -v34, v34, v35")
    p("v_add_f32 v35, 0x3727c5ac, v35")
    p("v_rsq_f32 v35, v35")
    p(f"v_add_u32 v18, {L_ZS}, v{VH+6}")
    p("v_mul_f32 v34, v34, v35")
    p("ds_write_b64 v18, v[34:35]", tag='zf')
    if layout.FUSE: return
    p(f"s_sub_u32 s53, s{SW8}, 4")
    p(f"s_or_b32 s53, s53, s{SCB}")
    p("s_cmp_lg_u32 s53, 0")
    p(f"s_cbranch_scc1 {lab}_NOBUMP")
    p.begin_opt()
    p(f"v_mov_b32 v18, s{STAG}")
    p("s_mov_b64 exec, 1")
    p(f"buffer_store_dword v18, v{VH+8}, s[{WS}:{WS+3}], s{SEP} offen sc1")
    p("s_mov_b64 exec, -1")
    p.end_opt()
    p.label(f"{lab}_NOBUMP")

def fin_tile(p):
    for r in range(16):
        p(f"v_fma_f32 v{ZH+r}, v{ZH+r}, v35, -v34")
    pack(p, ZH, 36)
    transpose(p, 36, 20, VH+3, 'z')
    p(f"s_lshl_b32 s51, s{SCB}, 7")
    p(f"s_lshl_b32 s52, s{SSB}, 1")
    p("s_add_u32 s51, s51, s52")
    p("s_lshl_b32 s51, s51, 11")
    p(f"s_lshl_b32 s52, s{SG}, 10")
    p("s_add_u32 s51, s51, s52")
    p(f"s_add_u32 s51, s51, {WS_Z2}")
    p(f"buffer_store_dwordx4 {v(20,4)}, v{VL16}, s[{WS}:{WS+3}], s51 offen{SML()}")
    p(f"buffer_store_dwordx4 {v(24,4)}, v{VL16}, s[{WS}:{WS+3}], s51 offen offset:2048{SML()}")

def touch_wsp(p):
    srd(p, 76, 92, S*S*2)
    p(f"s_lshl_b32 s51, s2, 2")
    p(f"s_add_u32 s51, s51, s{SW}")
    p(f"s_lshl_b32 s51, s51, 13")
    p(f"v_lshlrev_b32 v11, 7, v0")
    p(f"buffer_load_dword v{VH}, v11, s[76:79], s51 offen")

def first_epi(p, g, lab, firsts, after_z2=None):
    G=dma_p3_groups(firsts)
    p(f"s_cmp_ge_u32 s{SCB}, 14")
    p(f"s_cbranch_scc1 {lab}_Z1")
    p.begin_alt(); p.alt_branch()
    main=capture(lambda q: epi_z2(q, ACC[0]))
    p.extend(interleave(main, [capture(f) for f in G], 14, 150))
    if after_z2: after_z2(p)
    p(f"s_branch {lab}_D")
    p.alt_branch()
    p.label(f"{lab}_Z1")
    p(f"s_sub_u32 s57, s{SCB}, 2")
    main=capture(lambda q: epi_z1(q, ACC[0], 57, g))
    p.extend(interleave(main, [capture(f) for f in G], 14, 130))
    p.end_alt()
    p.label(f"{lab}_D")

def first_mtile(p, sides=()):
    mtile(p, ACC[0], VH+12, lambda ks,ii: ks*2048+ii*512, VH+13, lambda kc,ii: kc*8192+ii*512, VWR, VCSR, sides=sides, split=5*8192)
def pair_mtile(p, g, part='all', sides=()):
    if part!='post':
        p(f"v_add_u32 v{VH+10}, {L_P2}, v{VWR}")
        p(f"v_add_u32 v{VH+11}, {L_P2}, v{VCSR}")
    mtile(p, ACC[0], VH+10, lambda ks,ii: ks*2048+ii*512, VH+11, lambda kc,ii: kc*8192+ii*512, part=part, sides=sides)
def head_mtile(p, t, part='all'):
    if part!='post':
        p(f"v_add_u32 v{VH+10}, {56*t}, v{VP3R}")
        p(f"s_mul_i32 s51, s{SW}, {16*192}")
        p(f"v_add_u32 v{VH+11}, s51, v{VH+10}")
        p(f"v_add_u32 v{VH+12}, 43008, v{VH+10}")
        p(f"v_add_u32 v{VH+13}, 43008, v{VH+11}")
    mtile(p, ACC[0], VH+10, lambda ks,ii: ks*16*192+ii*4*192, VH+11, lambda kc,ii: kc*64*192+ii*4*192, VH+12, VH+13, part=part)
def head_epi(p, t, lab):
    p(f"s_mul_i32 s62, s{SCB}, 3")
    if t: p(f"s_add_u32 s62, s62, {t}")
    epi_head(p, ACC[0], 62, lab)
def bar(p, name, *tags):
    stamp(p,name+'w')
    if tags: p.wait(*tags)
    stamp(p,name+'a')
    p("s_barrier")
    stamp(p,name)

def group_code(p, g):
    A = (g==0); L = "KA" if A else "KB"
    p(f"s_mul_i32 s63, s{SCB}, 168")
    if A:
        p0_compute(p)
        stamp(p,'p0end')
        def zs_out(q):
            q(f"v_add_u32 v18, {L_ZS}, v{VH+6}")
            q("ds_write_b64 v18, v[34:35]", tag='zs')
        first_epi(p, 0, L+"F", [0,8], zs_out)
        bar(p,'s1end','zs')
        p(f"s_sub_u32 s57, s{SCB}, 2")
        p("s_cmp_ge_u32 s57, 12")
        p(f"s_cbranch_scc1 {L}_NOSECOND")
        p.begin_alt(); p.alt_branch()
        pair_mtile(p, 0, sides=dma_p3_groups([12])); bar(p,'s2end','cs')
        main=capture(lambda q: epi_z1(q, ACC[0], 57, 0))
        p.extend(interleave(main, [capture(f) for f in dma_p3_groups([24])], 14, 80))
        if MALLPF: touch_wsp(p)
        bar(p,'s3end','p3')
        head_mtile(p, 0); bar(p,'s4end','cs')
        p(f"s_branch {L}_JOIN")
        p.alt_branch()
        p.label(f"{L}_NOSECOND")
        for f in dma_p3_groups([12,24]): f(p)
        bar(p,'sx','p3')
        head_mtile(p, 0); bar(p,'s4x','cs')
        p.end_alt()
        p.label(f"{L}_JOIN")
        head_epi(p, 0, L+"H0")
        head_mtile(p, 2, 'pre')
        bar(p,'s5end')
        head_mtile(p, 2, 'post'); bar(p,'s6end','cs')
        head_epi(p, 2, L+"H2")
        stamp(p,'headsE')
        p(f"s_cmp_ge_u32 s{SCB}, 14")
        p(f"s_cbranch_scc1 {L}_NOFIN")
        p.begin_opt()
        p(f"v_add_u32 v18, {L_ZS}, v{VH+6}")
        p("ds_read_b64 v[34:35], v18")
        fin_tile(p)
        p.end_opt()
        p.label(f"{L}_NOFIN")
    else:
        p0_load(p)
        stamp(p,'p0end')
        first_mtile(p, sides=dma_p3_groups([4]))
        bar(p,'s1end','cs','p2')
        p(f"s_sub_u32 s57, s{SCB}, 2")
        p("s_cmp_ge_u32 s57, 12")
        p(f"s_cbranch_scc1 {L}_NOSECOND")
        p.begin_alt(); p.alt_branch()
        main=capture(lambda q: epi_z2(q, ACC[0]))
        p.extend(interleave(main, [capture(f) for f in dma_p3_groups([16,20])], 14, 150))
        publish_z2(p)
        pair_mtile(p, 1, 'pre')
        bar(p,'s2end')
        pair_mtile(p, 1, 'post'); bar(p,'s3end','cs','p3')
        epi_z1(p, ACC[0], 57, 1)
        granule_loads(p)
        head_mtile(p, 1, 'pre')
        bar(p,'s4end')
        p(f"s_branch {L}_JOIN")
        p.alt_branch()
        p.label(f"{L}_NOSECOND")
        for f in dma_p3_groups([16,20]): f(p)
        bar(p,'sx','p3')
        first_epi(p, 1, L+"F", [], publish_z2)
        prep_issue(p)
        p(f"s_cmp_ge_u32 s{SCB}, 14")
        p(f"s_cbranch_scc1 {L}_NOGL")
        p.begin_opt(); granule_loads(p); p.end_opt()
        p.label(f"{L}_NOGL")
        head_mtile(p, 1, 'pre')
        bar(p,'s4x')
        p.end_alt()
        p.label(f"{L}_JOIN")
        head_mtile(p, 1, 'post'); bar(p,'s5end','cs')
        p(f"s_cmp_ge_u32 s{SCB}, 14")
        p(f"s_cbranch_scc1 {L}_NOST")
        p.begin_opt(); fin_stats(p, L); p.end_opt()
        p.label(f"{L}_NOST")
        head_epi(p, 1, L+"H1")
        bar(p,'s6end','zf')
        stamp(p,'headsE')
        p(f"s_cmp_ge_u32 s{SCB}, 14")
        p(f"s_cbranch_scc1 {L}_NOFIN")
        p.begin_opt()
        p(f"v_add_u32 v18, {L_ZS}, v{VH+6}")
        p("ds_read_b64 v[34:35], v18")
        fin_tile(p)
        p.end_opt()
        p.label(f"{L}_NOFIN")
        p(f"s_sub_u32 s57, s{SCB}, 2")
        p("s_cmp_lt_u32 s57, 12")
        p(f"s_cbranch_scc1 {L}_NOPREP")
        p.begin_opt(); prep_finish(p); p.end_opt()
        p.label(f"{L}_NOPREP")
    stamp(p,'end')
    PR.dump(p)
    if layout.FUSE:
        p("s_waitcnt vmcnt(0)")
        p("s_barrier")
        p("s_branch K2_FUSED")

def mall_prefetch(p, g):
    p(f"s_load_dwordx2 s[66:67], s[0:1], {KA_WSP if g else KA_WO}")
    if not g: p(f"s_load_dwordx2 s[70:71], s[0:1], {KA_WOUT}")
    p(f"s_sub_u32 s51, s{SCB}, 12")
    p(f"s_cmp_lt_u32 s{SCB}, 2")
    p(f"s_cselect_b32 s51, s{SCB}, s51")
    p(f"s_lshl_b32 s52, s{SRB}, 2")
    p("s_add_u32 s51, s51, s52")
    p("v_lshlrev_b32 v26, 7, v0")
    p("s_waitcnt lgkmcnt(0)")
    if g:
        srd(p, 72, 66, S*S*2)
        p("s_lshl_b32 s51, s51, 2")
        p(f"s_add_u32 s51, s51, s{SW}")
        p("s_lshl_b32 s51, s51, 15")
        for i in range(4):
            p(f"buffer_load_dword v27, v26, s[72:75], s51 offen")
            if i<3: p("s_add_u32 s51, s51, 8192")
    else:
        srd(p, 72, 66, D*D*2); srd(p, 76, 70, FH*D*2)
        p(f"s_mul_i32 s52, s51, {49*128}")
        p(f"s_mul_i32 s53, s51, {98*128}")
        p(f"s_sub_u32 s54, s{SW}, 1")
        p("s_min_u32 s54, s54, 1")
        p(f"s_mul_i32 s54, s54, {49*128}")
        p("s_add_u32 s53, s53, s54")
        p("v_min_u32 v28, 48, v0")
        p("v_lshlrev_b32 v28, 7, v28")
        p(f"s_cmp_lg_u32 s{SW}, 0")
        p.begin_alt()
        p("s_cbranch_scc1 K1_MPA")
        p.alt_branch()
        p(f"buffer_load_dword v27, v28, s[72:75], s52 offen")
        p("s_branch K1_MPB")
        p.alt_branch()
        p.label("K1_MPA")
        p(f"buffer_load_dword v27, v28, s[76:79], s53 offen")
        p.end_alt()
        p.label("K1_MPB")

NPREP=5
L_PREP=L_P2+4096
def prep_issue(p):
    p(f"s_load_dwordx2 s[66:67], s[0:1], {KA_WO}")
    p(f"s_load_dwordx2 s[68:69], s[0:1], {KA_WOUT}")
    p(f"s_sub_u32 s51, s{SCB}, 12")
    p(f"s_cmp_lt_u32 s{SCB}, 2")
    p(f"s_cselect_b32 s51, s{SCB}, s51")
    p(f"s_lshl_b32 s52, s{SRB}, 2")
    p("s_add_u32 s51, s51, s52")
    p("s_lshl_b32 s51, s51, 2")
    p(f"s_add_u32 s70, s51, s{SW}")
    p(f"s_mul_i32 s71, s{SW}, {NPREP*1024}")
    p(f"s_add_u32 s71, s71, {L_PREP}")
    p(f"s_mov_b32 s81, {D*D*2}")
    p(f"s_mov_b32 s82, {FH*D*2}")
    p("v_lshrrev_b32 v26, 2, v0")
    p(f"v_mul_u32_u24 v27, {D*2}, v26")
    p("v_and_b32 v28, 3, v0")
    p("v_lshl_add_u32 v27, v28, 4, v27")
    p("v_cmp_le_u32 vcc, 12, v26")
    p("v_mov_b32 v28, 0")
    p("v_mov_b32 v29, 0x7ff00000")
    p("v_cndmask_b32 v28, v28, v29, vcc")
    p("s_waitcnt lgkmcnt(0)")
    for i in range(NPREP):
        p(f"s_add_u32 s80, s70, {256*i}")
        p(f"s_mul_i32 s51, s80, 745")
        p("s_lshr_b32 s51, s51, 16")
        p("s_mul_i32 s52, s51, 88")
        p(f"s_sub_u32 s52, s80, s52")
        p("s_lshl_b32 s51, s51, 6")
        p("s_lshr_b32 s53, s52, 1")
        p("s_mul_i32 s53, s53, 28")
        p("s_and_b32 s54, s52, 1")
        p("s_lshl_b32 s55, s54, 4")
        p("s_add_u32 s53, s53, s55")
        p("s_sub_u32 s55, s52, 32")
        p("s_lshl_b32 s55, s55, 4")
        p("s_cmp_lt_u32 s52, 32")
        p("s_cselect_b32 s53, s53, s55")
        p("s_cselect_b32 s72, s66, s68")
        p("s_cselect_b32 s73, s67, s69")
        p("s_cselect_b32 s74, s81, s82")
        p("s_mov_b32 s75, 0x00020000")
        p("s_cselect_b32 s54, s54, 0")
        p(f"s_mul_i32 s53, s53, {D*2}")
        p("s_add_u32 s53, s53, s51")
        p("s_cmp_lt_u32 s80, 1232")
        p("s_cselect_b32 s53, s53, 0x7ff00000")
        p("s_sub_u32 s54, 0, s54")
        p("v_and_b32 v29, s54, v28")
        p("v_add_u32 v29, v29, v27")
        p(f"s_add_u32 m0, s71, {i*1024}")
        p("s_nop 0")
        p("buffer_load_dwordx4 v29, s[72:75], s53 offen lds", tag='pd')

def prep_finish(p):
    p("v_lshrrev_b32 v26, 4, v0")
    p("v_and_b32 v27, 1, v26")
    p("v_lshrrev_b32 v26, 1, v26")
    p("v_lshrrev_b32 v28, 2, v0")
    p("v_and_b32 v28, 3, v28")
    p("v_lshl_add_u32 v26, v26, 2, v28")
    p("v_lshlrev_b32 v26, 6, v26")
    p("v_lshl_add_u32 v26, v27, 5, v26")
    p("v_and_b32 v27, 3, v0")
    p("v_lshl_add_u32 v26, v27, 3, v26")
    p("v_add_u32 v26, s71, v26")
    p("s_waitcnt vmcnt(0)")
    for i in range(NPREP):
        p(f"ds_read_b64_tr_b16 {v(96+4*i,2)}, v26 offset:{i*1024}")
        p(f"ds_read_b64_tr_b16 {v(96+4*i+2,2)}, v26 offset:{i*1024+512}")
    for i in range(NPREP):
        p(f"s_add_u32 s80, s70, {256*i}")
        p(f"s_lshl_b32 s51, s80, 10")
        p(f"s_add_u32 s51, s51, {WS_WC}")
        p("s_cmp_lt_u32 s80, 1232")
        p("s_cselect_b32 s51, s51, 0x7ff00000")
        p(f"buffer_store_dwordx4 {v(96+4*i,4)}, v1, s[{WS}:{WS+3}], s51 offen{SM()}")

def KNAME(): return (NAME+'_kernel') if layout.FUSE else 'k1_kernel'
def code_prefetch(p):
    p(f"s_cmp_lg_u32 s{SW8}, 7")
    p("s_cbranch_scc1 K1_CP1")
    p.begin_opt()
    p("s_getpc_b64 s[66:67]")
    p.label("K1_PC")
    p(f"s_sub_u32 s66, s66, K1_PC-{KNAME()}")
    p("s_subb_u32 s67, s67, 0")
    p("s_mul_i32 s51, s15, 10")
    p("v_add_u32 v26, s51, v0")
    p("s_lshl_b32 s52, s2, 1")
    p(f"s_add_u32 s52, s52, ({'K2_FUSED' if layout.FUSE else 'k2_kernel'}-{KNAME()})/128-10")
    p("v_add_u32 v27, s52, v0")
    p("v_cmp_gt_u32 vcc, 10, v0")
    p("v_cndmask_b32 v26, v27, v26, vcc")
    p("v_lshlrev_b32 v26, 7, v26")
    p(f"v_min_u32 v26, CODE_END-{KNAME()}-4, v26")
    p("v_cmp_gt_u32 vcc, 12, v0")
    p("s_and_saveexec_b64 s[68:69], vcc")
    p("global_load_dword v27, v26, s[66:67]")
    p("s_mov_b64 exec, s[68:69]")
    p.end_opt()
    p.label("K1_CP1")

def l2_prefetch(p, g):
    T=38; L="K1_PF%d"%g
    p("s_and_b32 s51, s15, 7")
    p("s_lshr_b32 s52, s15, 3")
    if g==0:
        p.begin_alt()
        p(f"s_cmp_ge_u32 s{SW}, 2")
        p(f"s_cbranch_scc1 {L}_2")
        p.alt_branch()
        p("s_lshl_b32 s53, s52, 7")
        p(f"s_lshl_b32 s54, s{SW}, 6")
        p("s_add_u32 s53, s53, s54")
        p("v_add_u32 v18, s53, v0")
        p("v_lshrrev_b32 v19, 2, v18")
        p(f"v_mul_u32_u24 v19, {D*2}, v19")
        p("v_and_b32 v18, 3, v18")
        p("v_lshl_add_u32 v19, v18, 7, v19")
        p(f"s_mul_i32 s53, s{SRB}, {128*D*2}")
        p(f"s_add_u32 s53, s53, {3*128}")
        p(f"buffer_load_dword v{T}, v19, s[{XS}:{XS+3}], s53 offen")
        p(f"s_branch {L}_D")
        p.alt_branch()
        p.label(f"{L}_2")
        p(f"s_lshl_b32 s53, s{SW}, 4")
        p(f"s_mul_i32 s53, s53, {F*2}")
        p(f"s_cmp_eq_u32 s{SW}, 2")
        p(f"s_cselect_b32 s54, s{SP1}, s{SP2}")
        p("s_sub_u32 s54, s54, s53")
        p(f"s_cmp_eq_u32 s{SW}, 2")
        p("s_cselect_b32 s55, 32, 56")
        p("s_cselect_b32 s53, 192, 0")
        p("s_mul_i32 s62, s51, s55")
        p("s_add_u32 s53, s53, s62")
        p("s_sub_u32 s55, s55, 1")
        p("v_min_u32 v18, s55, v0")
        p("v_add_u32 v18, s53, v18")
        p(f"v_mul_u32_u24 v19, {F*2}, v18")
        p(f"buffer_load_dword v{T}, v19, s[{WIN}:{WIN+3}], s54 offen")
        p.end_alt()
        p.label(f"{L}_D")
    else:
        p(f"s_min_u32 s53, s{SW}, 2")
        p("s_mul_i32 s53, s53, 94")
        p(f"s_mul_i32 s54, s{SCB}, 168")
        p("s_add_u32 s54, s54, s53")
        p("s_mul_i32 s53, s51, 56")
        p("v_min_u32 v18, 55, v0")
        p("v_add_u32 v18, s53, v18")
        p(f"v_mul_u32_u24 v19, {3*D*2}, v18")
        p(f"buffer_load_dword v{T}, v19, s[{WQ}:{WQ+3}], s54 offen")

def epoch_load(p):
    if layout.FUSE: p(f"s_mov_b32 s{SEP}, {WS_EP}")
    else:
        p(f"s_lshl_b32 s{SEP}, s{SRB}, 7")
        p(f"s_add_u32 s{SEP}, s{SEP}, {WS_EP}")
    p(f"buffer_load_dword v{EPV}, v{VH+8}, s[{WS}:{WS+3}], s{SEP} offen sc1")

def gen():
    p=Prog(); prologue(p)
    p("s_mov_b32 s56, 0xbdd2d3e8")
    p("s_mov_b32 s58, 0"); p("s_mov_b32 s59, -1")
    p("s_mov_b32 s60, 0xffff0000")
    p(f"v_mov_b32 v{VH+8}, 0")
    p(f"s_cmp_ge_u32 s{SW8}, 4")
    p("s_cbranch_scc1 K1_GROUPB")
    p.begin_alt(); p.alt_branch()
    n0=PR.n; names0=list(PR.names)
    if layout.FUSE: epoch_load(p)
    for kc in range(3): dma_init(p,kc)
    if PREFETCH&1: l2_prefetch(p,0)
    setup_reads(p)
    p("v_mov_b32 v47, 0xc0135761")
    if layout.FUSE:
        p(f"v_add_u32 v{EPV}, 1, v{EPV}")
        p(f"v_readfirstlane_b32 s{STAG}, v{EPV}")
    stamp(p,'setup')
    group_code(p, 0)
    namesA=list(PR.names); PR.n=n0; PR.names=list(names0)
    if not layout.FUSE: p("s_branch K1_END")
    p.alt_branch()
    p.label("K1_GROUPB")
    epoch_load(p)
    for kc in range(3): dma_init(p,kc)
    if PREFETCH&2: l2_prefetch(p,1)
    if CODEPF: code_prefetch(p)
    setup_reads(p)
    p("v_mov_b32 v47, 0xc0135761")
    p(f"v_add_u32 v{EPV}, 1, v{EPV}")
    p(f"v_readfirstlane_b32 s{STAG}, v{EPV}")
    stamp(p,'setup')
    group_code(p, 1)
    PR.namesA=namesA
    p.end_alt()
    p.label("K1_END")
    p("s_endpgm")
    return p

PREFETCH=False; MALLPF=False; CODEPF=True; KROT=False; K1PRIO=''; LASTSC1=True; LATEKA=True
def kernel(**opt):
    global PR, PREFETCH, MALLPF, CODEPF, KROT, K1PRIO, LASTSC1, LATEKA, LA
    LA=int(opt.get('la',5))
    LATEKA=bool(int(opt.get('lka',1)))
    LASTSC1=bool(int(opt.get('lsc1',1)))
    K1PRIO=opt.get('k1p','')
    KROT=bool(int(opt.get('krot',0)))
    MALLPF=bool(int(opt.get('mpf',0))); CODEPF=bool(int(opt.get('cpf',1)))
    PREFETCH=int(opt.get('pf',0))
    PR=Prof(bool(int(opt.get('prof',0))),WS,SW8,WS_EP+(1<<19))
    text=gen().finalize()
    if PR.on: open('k1_stamps.txt','w').write(" ".join(PR.namesA)+"\n"+" ".join(PR.names))
    return dict(name="k1_kernel", text=text, grid=256, block=512, lds=LDS_K1, vgpr=256, sgpr=102, accum=256)
```

```python
from asmlib import *
from layout import *
import layout
def SM(): return layout.STMOD
def LM(): return ' sc1' if (layout.FUSE and not ACQ) else ''
from k3 import srd

LDS_RING = 0
LDS_AC   = 98304
LDS_AM   = 147456
LDS_CNT  = 147456 + 4096
LDS_K2   = 147456 + 4096 + 64

SW=16; SHEAD=17; SQB=18; STB=19; SFB=20; SJ=21; SX=22
WS=24; WSP=28; AUX=32; AUX2=36; STAG=15; XS3=88; OUT3=92

from profutil import Prof
PR=Prof(False,WS,23,0)
PROF=False
PRION=0
SKIPDMA=0
PRIOPAT=''
STARTPRIO=0
ONLY=''
WPF=1
DELAYW=1
ROT=3
KINT=1
EARLYRING=1
FPF=0
CODEPF2=0
FROT=0
HMOD=' sc1'
EARLYPUB=1
LATEBAR=2
POLLW=7
OMOD=' sc1'
PRIOLATE=0
ACQ=0
EPOLL=0
FSH=4
def stamp(p,name): PR.stamp(p,str(name))
def dump_stamps(p,n): PR.dump(p)

def role_sync(p, idx, lab):
    p(f"v_mov_b32 v12, {LDS_CNT+4*idx}")
    p("v_mov_b32 v13, 1")
    p("s_mov_b64 exec, 1")
    p("ds_add_u32 v12, v13")
    p("s_mov_b64 exec, -1")
    p.label(lab)
    p("ds_read_b32 v13, v12")
    p("s_waitcnt lgkmcnt(0)")
    p("v_readfirstlane_b32 s61, v13")
    p("s_cmp_lt_u32 s61, 4")
    p(f"s_cbranch_scc1 {lab}")

def prologue(p):
    F=layout.FUSE
    if F:
        p.label("K2_FUSED")
        p("s_mov_b32 s23, s16")
        p(f"s_mov_b32 s{STAG}, s21")
    else:
        p("s_cmp_ge_u32 s2, 256")
        p("s_cbranch_scc1 K2_END")
        p(f"s_load_dwordx2 s[4:5], s[0:1], {KA_WS}")
    p(f"s_load_dwordx2 s[6:7], s[0:1], {KA_WSP}")
    p(f"s_load_dwordx2 s[8:9], s[0:1], {KA_BSP}")
    p(f"s_load_dwordx2 s[10:11], s[0:1], {KA_X}")
    p(f"s_load_dwordx2 s[12:13], s[0:1], {KA_OUT}")
    if CODEPF2 and not F:
        p("s_getpc_b64 s[66:67]")
        p.label("K2_PC")
        p("s_sub_u32 s66, s66, K2_PC-k2_kernel")
        p("s_subb_u32 s67, s67, 0")
        p("v_lshrrev_b32 v2, 6, v0")
        p("s_lshr_b32 s68, s2, 3")
        p("s_lshl_b32 s68, s68, 3")
        p("v_add_u32 v3, s68, v2")
        p("v_lshlrev_b32 v3, 7, v3")
        p("v_min_u32 v3, CODE_END-k2_kernel-4, v3")
        p("s_mov_b64 exec, 1")
        p(f"global_load_dword v15, v3, s[66:67]")
        if PROF: p("s_waitcnt vmcnt(0)")
        p("s_mov_b64 exec, -1")
    if not F:
        p("v_lshrrev_b32 v1, 6, v0")
        p("v_and_b32 v0, 63, v0")
        p("v_readfirstlane_b32 s23, v1")
    p(f"s_and_b32 s{SX}, s2, 7")
    p(f"s_lshr_b32 s{SJ}, s2, 3")
    p(f"s_and_b32 s{SW}, s23, 3")
    p("v_lshlrev_b32 v1, 4, v0")
    if F:
        p("s_cmp_lg_u32 s23, 0")
        p("s_cbranch_scc1 K2_NOF1")
        p.begin_opt()
        p("v_lshlrev_b32 v2, 10, v0")
        p(f"v_mov_b32 v3, s{STAG}")
        p("s_lshl_b32 s63, s2, 2")
        p(f"s_add_u32 s63, s63, {WS_F1}")
        p("s_mov_b64 exec, 0xff")
        p(f"buffer_store_dword v3, v2, s[{WS}:{WS+3}], s63 offen sc1")
        p("s_mov_b64 exec, -1")
        p.end_opt()
        p.label("K2_NOF1")
    if F:
        p("s_waitcnt lgkmcnt(0)")
        counters_init(p)
    elif LATEBAR==0:
        kernarg_ready(p, True)
        counters_init(p)
        p("s_barrier")
    PR.real(p,62)
    stamp(p,'start')
    p("s_cmp_ge_u32 s23, 4")
    p("s_cbranch_scc1 K2_ROLEB")

def kernarg_ready(p, now=False):
    if layout.FUSE: return
    if LATEBAR==0 and not now: return
    p("s_waitcnt lgkmcnt(0)")
    srd(p, WS, 4, WS_SIZE)
    p(f"s_mov_b32 s63, {WS_EP}")
    p("v_mov_b32 v14, 0")
    p(f"buffer_load_dword v14, v14, s[{WS}:{WS+3}], s63 offen sc1")
    if LATEBAR==2:
        counters_init(p)
        p("s_barrier")
def counters_init(p):
    p(f"v_mov_b32 v12, {LDS_CNT}")
    p("v_mov_b32 v13, 0")
    p("ds_write_b32 v12, v13")
    p("ds_write_b32 v12, v13 offset:4")
    p("ds_write_b32 v12, v13 offset:8")
    p("s_waitcnt lgkmcnt(0)")
def start_barrier(p, writer=False, lab=""):
    if layout.FUSE or LATEBAR!=1: return
    if writer:
        p("s_cmp_lg_u32 s23, 0")
        p(f"s_cbranch_scc1 {lab}")
        counters_init(p)
        p.label(lab)
    p("s_barrier")

def phase1_wait(p):
    p("s_cmp_lg_u32 s23, 0")
    p("s_cbranch_scc1 K2_P1GO")
    p.begin_opt()
    p(f"s_lshl_b32 s63, s{SX}, 10")
    p(f"s_add_u32 s63, s63, {WS_F1}")
    p("s_mov_b32 s62, 0")
    p.label("K2_P1POLL")
    p(f"buffer_load_dwordx4 v[4:7], v1, s[{WS}:{WS+3}], s63 offen sc1")
    p("s_waitcnt vmcnt(0)")
    p(f"v_cmp_ne_u32 s[64:65], s{STAG}, v4")
    p(f"v_cmp_ne_u32 s[66:67], s{STAG}, v5")
    p(f"v_cmp_ne_u32 s[68:69], s{STAG}, v6")
    p(f"v_cmp_ne_u32 s[70:71], s{STAG}, v7")
    p("s_or_b64 s[64:65], s[64:65], s[66:67]")
    p("s_or_b64 s[68:69], s[68:69], s[70:71]")
    p("s_or_b64 s[64:65], s[64:65], s[68:69]")
    p("s_cmp_eq_u64 s[64:65], 0")
    p("s_cbranch_scc1 K2_P1OK")
    p("s_add_u32 s62, s62, 1")
    p("s_cmp_lt_u32 s62, 0x40000")
    p("s_cbranch_scc1 K2_P1POLL")
    p.label("K2_P1OK")
    p("s_cmp_lg_u32 s2, 0")
    p("s_cbranch_scc1 K2_P1GO")
    p(f"s_mov_b32 s63, {WS_EP}")
    p(f"v_mov_b32 v3, s{STAG}")
    p("v_mov_b32 v2, 0")
    p("s_mov_b64 exec, 1")
    p(f"buffer_store_dword v3, v2, s[{WS}:{WS+3}], s63 offen sc1")
    p("s_mov_b64 exec, -1")
    p.end_opt()
    if ACQ==1:
        p("buffer_inv sc1")
        p("s_waitcnt vmcnt(0)")
    p.label("K2_P1GO")
    p("s_barrier")
    PR.real(p,61)
    stamp(p,'p1go')

Q0=16; O0=48; S_=[112,128]; P_=[144,152]; KV0=160; ME=224; T0=228
def kvb(b): return KV0+16*b

def attention(p, force_fallback=False):
    SKV=40; SQ=41; SNT=42; SOFF=43; SK=44; SCNT=45; SIT=46
    p(f"s_lshr_b32 s40, s{SJ}, 4")
    p(f"s_lshl_b32 s41, s{SX}, 1")
    p(f"s_add_u32 s{SHEAD}, s40, s41")
    p(f"s_and_b32 s{SQB}, s{SJ}, 15")
    p(f"s_lshl_b32 s40, s{SHEAD}, 17")
    p(f"s_lshl_b32 s41, s{SQB}, 13")
    p(f"s_add_u32 s47, s40, s41")
    if WS_Q: p(f"s_add_u32 s47, s47, {WS_Q}")
    for rho in range(4):
        p(f"s_add_u32 s{54+rho}, s{SW}, {rho}")
        p(f"s_and_b32 s{54+rho}, s{54+rho}, 3")
        p(f"s_lshl_b32 s{54+rho}, s{54+rho}, 11")
        p(f"s_add_u32 s{54+rho}, s{54+rho}, s47")
    p(f"s_lshl_b32 s40, s{SHEAD}, 18")
    p(f"s_lshl_b32 s41, s{SW}, 16")
    p(f"s_add_u32 s40, s40, s41")
    p(f"s_add_u32 s{SKV}, s40, {WS_KV}")
    kernarg_ready(p)
    for rho in range(4):
        p(f"buffer_load_dwordx4 {v(Q0+8*rho,4)}, v1, s[{WS}:{WS+3}], s{54+rho} offen{LM()}")
        p(f"buffer_load_dwordx4 {v(Q0+8*rho+4,4)}, v1, s[{WS}:{WS+3}], s{54+rho} offen offset:1024{LM()}")
    p("s_mov_b32 s58, 1")
    p(f"s_mov_b32 s{SNT}, {16 if force_fallback else 1}")
    p(f"s_mov_b32 s{SOFF}, {'0' if force_fallback else '0x42800000'}")
    p.label("A_RETRY")
    for j in range(4): p(f"v_mov_b32 v{ME+j}, 0xff7fffff")
    p(f"s_mov_b32 s{SCNT}, s{SNT}")
    def ld_tile(t_imm_base_sreg, b, part):
        for i in range(2):
            p(f"buffer_load_dwordx4 {v(kvb(b)+8*part+4*i,4)}, v1, s[{WS}:{WS+3}], s{t_imm_base_sreg} offen offset:{(2*part+i)*1024}{LM()}")
    ld_tile(SKV, 0, 0)
    if EARLYRING:
        ld_tile(SKV, 0, 1)
        p(f"s_add_u32 s{SK}, s{SKV}, 4096")
        for t in range(1,3):
            ld_tile(SK, t, 0); ld_tile(SK, t, 1)
            p(f"s_add_u32 s{SK}, s{SK}, 4096")
    p(f"s_mov_b32 s62, s{SKV}")
    for r in range(64): p(f"v_mov_b32 v{O0+r}, 0")
    for r in range(8): p(f"v_mov_b32 v{P_[1]+r}, 0")
    for r in range(8): p(f"v_mov_b32 v{kvb(3)+8+r}, 0")
    p("s_cmp_eq_u32 s58, 1")
    p("s_cbranch_scc0 A_MAXLOOP")
    p("s_mov_b32 s58, 0")
    start_barrier(p, True, "A_NOINIT")
    p.label("A_MAXLOOP")
    for j in range(4):
        Sx = S_[j&1]
        p(f"v_mfma_f32_32x32x16_bf16 {v(Sx,16)}, {v(kvb(0),4)}, {v(Q0+8*j,4)}, 0")
        p(f"v_mfma_f32_32x32x16_bf16 {v(Sx,16)}, {v(kvb(0)+4,4)}, {v(Q0+8*j+4,4)}, {v(Sx,16)}")
        if j>0:
            Sy=S_[(j-1)&1]
            maxtree(p,Sy,ME+j-1)
    maxtree(p,S_[1],ME+3)
    p(f"s_sub_u32 s{SCNT}, s{SCNT}, 1")
    p(f"s_cmp_eq_u32 s{SCNT}, 0")
    p("s_cbranch_scc1 A_MAXDONE")
    p.begin_opt()
    p("s_add_u32 s62, s62, 4096")
    ld_tile(62, 0, 0)
    p("s_waitcnt vmcnt(0)")
    p("s_branch A_MAXLOOP")
    p.end_opt()
    p.label("A_MAXDONE")
    stamp(p,'maxdone')
    p(f"s_cmp_eq_u32 s{SNT}, 1")
    p("s_cbranch_scc1 A_KEEPK")
    p.begin_opt()
    ld_tile(SKV, 0, 0)
    p.end_opt()
    p.label("A_KEEPK")
    for j in range(4):
        m=ME+j; t=T0
        p(f"v_mov_b32 v{t}, v{m}")
        p(f"v_permlane32_swap_b32 v{t}, v{m}")
        p(f"v_max_f32 v{m}, v{t}, v{m}")
        p(f"v_add_f32 v{m}, s{SOFF}, v{m}")
        p(f"v_sub_f32 v{t}, 0, v{m}")
        p(f"v_and_b32 v{t+1}, 0xffff0000, v{t}")
        p(f"v_sub_f32 v{t+2}, v{t}, v{t+1}")
        p(f"v_and_b32 v{t+2}, 0xffff0000, v{t+2}")
        p(f"v_add_f32 v{t+3}, v{t+1}, v{t+2}")
        p(f"v_sub_f32 v{m}, 0, v{t+3}")
        p(f"v_lshrrev_b32 v{t+1}, 16, v{t+1}")
        p(f"v_or_b32 v{t+1}, v{t+1}, v{t+2}")
        p(f"s_mov_b64 exec, s[48:49]")
        p(f"v_mov_b32 v{Q0+8*j+6}, v{t+1}")
        p(f"s_mov_b64 exec, -1")
    def QK(u):
        j=u&3; b=(u>>2)&3; Sx=S_[u&1]
        return [f"v_mfma_f32_32x32x16_bf16 {v(Sx,16)}, {v(kvb(b),4)}, {v(Q0+8*j,4)}, 0",
                f"v_mfma_f32_32x32x16_bf16 {v(Sx,16)}, {v(kvb(b)+4,4)}, {v(Q0+8*j+4,4)}, {v(Sx,16)}"]
    def PV(u):
        j=u&3; b=(u>>2)&3; Px=P_[u&1]; O=O0+16*j
        return [f"v_mfma_f32_32x32x16_bf16 {v(O,16)}, {v(kvb(b)+8,4)}, {v(Px,4)}, {v(O,16)}",
                f"v_mfma_f32_32x32x16_bf16 {v(O,16)}, {v(kvb(b)+12,4)}, {v(Px+4,4)}, {v(O,16)}"]
    for m_ in QK(0): p(m_)
    main=[]
    assert EARLYRING
    if not EARLYRING:
        def ringload(q, t, b, k):
            q(f"buffer_load_dwordx4 {v(kvb(b)+4*k,4)}, v1, s[{WS}:{WS+3}], s{SK} offen offset:{k*1024}{LM()}")
        sides=[]
        p(f"s_mov_b32 s{SK}, s{SKV}")
        sides.append(capture(lambda q: ringload(q,0,0,2))); sides.append(capture(lambda q: (ringload(q,0,0,3), q(f"s_add_u32 s{SK}, s{SK}, 4096"))))
        for t in (1,2):
            for k in range(4):
                sides.append(capture(lambda q,t=t,k=k: (ringload(q,t,t,k), q(f"s_add_u32 s{SK}, s{SK}, 4096") if k==3 else None)))
        p.extend(interleave(main, sides, 0, 70))
    def period(u, loads):
        Sx=S_[u&1]; Px=P_[u&1]
        qk=QK(u+1); pv=PV(u-1)
        ms=[qk[0],pv[0],qk[1],pv[1]]
        ex=[f"v_exp_f32 v{Sx+i}, v{Sx+i}" for i in range(16)]
        cv=[f"v_cvt_pk_bf16_f32 v{Px+i}, v{Sx+2*i}, v{Sx+2*i+1}" for i in range(8)]
        for g in range(4):
            p(ms[g])
            if g < len(loads) and loads[g]:
                for x in loads[g]: p(x)
            for k in range(2):
                i=2*g+k
                p(ex[2*i]); p(ex[2*i+1])
                if i>0: p(cv[i-1])
        p(cv[7])
    def iteration(last):
        for tl in range(4):
            for j in range(4):
                u=4*tl+j
                loads=[None]*4
                nb=(tl+3)&3
                doload = (not last) or tl==0
                if doload and j==0:
                    loads[2]=[f"buffer_load_dwordx4 {v(kvb(nb),4)}, v1, s[{WS}:{WS+3}], s{SK} offen offset:0{LM()}"]
                    loads[3]=[f"buffer_load_dwordx4 {v(kvb(nb)+4,4)}, v1, s[{WS}:{WS+3}], s{SK} offen offset:1024{LM()}"]
                if doload and j==1:
                    loads[0]=[f"buffer_load_dwordx4 {v(kvb(nb)+8,4)}, v1, s[{WS}:{WS+3}], s{SK} offen offset:2048{LM()}"]
                    loads[1]=[f"buffer_load_dwordx4 {v(kvb(nb)+12,4)}, v1, s[{WS}:{WS+3}], s{SK} offen offset:3072{LM()}",
                              f"s_add_u32 s{SK}, s{SK}, 4096"]
                period(u,loads)
    stamp(p,'loopstart')
    p(f"s_mov_b32 s{SIT}, 3")
    p.begin_loop(visits=3)
    p.label("A_LOOP")
    iteration(False)
    p(f"s_sub_u32 s{SIT}, s{SIT}, 1")
    p(f"s_cmp_lg_u32 s{SIT}, 0")
    p("s_cbranch_scc1 A_LOOP")
    p.end_loop()
    iteration(True)
    for m_ in PV(63): p(m_)
    stamp(p,'loopend')
    p("s_mov_b32 s50, 0x71800000")
    p("s_mov_b64 s[52:53], 0")
    for j in range(4):
        p(f"v_cmp_ngt_f32 vcc, s50, v{O0+16*j+12}")
        p("s_or_b64 s[52:53], s[52:53], vcc")
    p(f"s_cmp_eq_u32 s53, 0")
    p("s_cbranch_scc1 A_OK")
    p(f"s_cmp_eq_u32 s{SNT}, 16")
    p("s_cbranch_scc1 A_OK")
    p(f"s_mov_b32 s{SNT}, 16")
    p(f"s_mov_b32 s{SOFF}, 0")
    p(f"s_mov_b64 exec, s[48:49]")
    for j in range(4): p(f"v_mov_b32 v{Q0+8*j+6}, 0")
    p(f"s_mov_b64 exec, -1")
    p("s_branch A_RETRY")
    p.label("A_OK")

def maxtree(p, Sy, dst):
    t=T0
    for i in range(4):
        p(f"v_max3_f32 v{t+i}, v{Sy+4*i}, v{Sy+4*i+1}, v{Sy+4*i+2}")
    p(f"v_max3_f32 v{t}, v{t}, v{Sy+3}, v{Sy+7}")
    p(f"v_max3_f32 v{t+1}, v{t+1}, v{Sy+11}, v{Sy+15}")
    p(f"v_max3_f32 v{t}, v{t}, v{t+2}, v{t+3}")
    p(f"v_max3_f32 v{dst}, v{dst}, v{t}, v{t+1}")

def attention_publish(p):
    p(f"s_mul_i32 s40, s{SW}, 12288")
    p(f"s_add_u32 s40, s40, {LDS_AC}")
    p(f"v_add_u32 v2, s40, v1")
    for rho in range(1,4):
        for q in range(4):
            p(f"ds_write_b128 v2, {v(O0+16*rho+4*q,4)} offset:{(rho-1)*4096+q*1024}", tag='apub')
    p(f"v_and_b32 v3, 31, v0")
    p(f"v_lshlrev_b32 v3, 2, v3")
    p(f"s_lshl_b32 s40, s{SW}, 10")
    p(f"s_add_u32 s40, s40, {LDS_AM}")
    p(f"v_add_u32 v4, s40, v3")
    for rho in range(4):
        p(f"v_log_f32 v{T0+rho}, v{O0+16*rho+12}")
    for rho in range(4):
        p(f"v_add_f32 v{T0+rho}, v{T0+rho}, v{ME+rho}")
    p(f"s_mov_b64 exec, s[48:49]")
    for rho in range(4):
        p(f"ds_write_b32 v4, v{ME+rho} offset:{rho*256}", tag='apub')
        p(f"ds_write_b32 v4, v{T0+rho} offset:{rho*256+128}", tag='apub')
    p(f"s_mov_b64 exec, -1")
    p.wait('apub')

def attention_finish(p):
    R=112
    MM=160; LG=164
    for rho in range(4):
        p(f"s_sub_u32 s40, s{SW}, {rho}")
        p("s_and_b32 s40, s40, 3")
        p("s_lshl_b32 s41, s40, 10")
        p(f"s_add_u32 s41, s41, {LDS_AM+rho*256}")
        p(f"v_add_u32 v4, s41, v3")
        p(f"ds_read_b32 v{MM+rho}, v4")
        p(f"ds_read_b32 v{LG+rho}, v4 offset:128")
        if rho>0:
            p("s_mul_i32 s41, s40, 12288")
            p(f"s_add_u32 s41, s41, {LDS_AC+(rho-1)*4096}")
            p(f"v_add_u32 v2, s41, v1")
            for q in range(4):
                p(f"ds_read_b128 {v(R+16*(rho-1)+4*q,4)}, v2 offset:{q*1024}")
    t=T0
    p(f"v_max3_f32 v{t}, v{LG}, v{LG+1}, v{LG+2}")
    p(f"v_max_f32 v{t}, v{t}, v{LG+3}")
    for rho in range(4):
        p(f"v_sub_f32 v{LG+rho}, v{LG+rho}, v{t}")
        p(f"v_sub_f32 v{MM+rho}, v{MM+rho}, v{t}")
    for rho in range(4):
        p(f"v_exp_f32 v{LG+rho}, v{LG+rho}")
        p(f"v_exp_f32 v{MM+rho}, v{MM+rho}")
    p(f"v_add_f32 v{LG}, v{LG}, v{LG+1}")
    p(f"v_add_f32 v{LG+2}, v{LG+2}, v{LG+3}")
    p(f"v_add_f32 v{LG}, v{LG}, v{LG+2}")
    p(f"v_rcp_f32 v{LG}, v{LG}")
    for rho in range(4):
        p(f"v_mul_f32 v{MM+rho}, v{MM+rho}, v{LG}")
    for r in range(16):
        p(f"v_mul_f32 v{O0+r}, v{O0+r}, v{MM}")
    for rho in range(1,4):
        for r in range(16):
            p(f"v_fmac_f32 v{O0+r}, v{R+16*(rho-1)+r}, v{MM+rho}")
    p(f"s_mov_b64 exec, s[48:49]")
    for r in range(12,16): p(f"v_mov_b32 v{O0+r}, 0")
    p(f"s_mov_b64 exec, -1")
    for i in range(8):
        p(f"v_cvt_pk_bf16_f32 v{R+i}, v{O0+2*i}, v{O0+2*i+1}")
    p(f"s_lshl_b32 s40, s{SQB}, 2")
    p(f"s_add_u32 s40, s40, s{SW}")
    p(f"s_mul_i32 s40, s40, {88*1024}")
    p(f"s_lshl_b32 s41, s{SHEAD}, 11")
    p(f"s_add_u32 s40, s40, s41")
    p(f"s_add_u32 s40, s40, {WS_H}")
    p(f"buffer_store_dwordx4 {v(R,4)}, v1, s[{WS}:{WS+3}], s40 offen{SM()}")
    p(f"buffer_store_dwordx4 {v(R+4,4)}, v1, s[{WS}:{WS+3}], s40 offen offset:1024{SM()}")

GACC=128; GA=64; GB=48
def TH(c): return (1-(c&1)) if EARLYPUB else (c&1)
def gemm(p):
    SROW=[40,41,42,43]; SRING=44; SZ=45; ST=46
    VD=[2,3]; VR=[4,5,6,7]
    p(f"s_mul_i32 s46, s{SJ}, 37")
    p("s_lshr_b32 s46, s46, 8")
    p("s_mul_i32 s47, s46, 7")
    p(f"s_sub_u32 s47, s{SJ}, s47")
    p(f"s_lshr_b32 s48, s{SX}, 1")
    p("s_lshl_b32 s48, s48, 2")
    p(f"s_add_u32 s{STB}, s48, s46")
    p(f"s_and_b32 s48, s{SX}, 1")
    p("s_mul_i32 s48, s48, 7")
    p(f"s_add_u32 s{SFB}, s48, s47")
    for rho in range(4):
        p(f"s_add_u32 s46, s{SW}, {rho}")
        p("s_and_b32 s46, s46, 3")
        p("s_lshl_b32 s46, s46, 5")
        p(f"s_lshl_b32 s47, s{STB}, 7")
        p("s_add_u32 s46, s46, s47")
        p("s_lshl_b32 s46, s46, 12")
        p(f"s_lshl_b32 s47, s{SW}, {7 if KINT else 10}")
        p(f"s_add_u32 s{SROW[rho]}, s46, s47")
    p(f"s_mul_i32 s{SRING}, s{SW}, 24576")
    p(f"s_lshl_b32 s46, s{SFB}, 7")
    p(f"s_lshl_b32 s47, s{SW}, {2 if KINT else 5}")
    p("s_add_u32 s46, s46, s47")
    p("s_lshl_b32 s46, s46, 11")
    p(f"s_add_u32 s{SZ}, s46, {WS_Z2}")
    p("v_lshrrev_b32 v8, 3, v0")
    p("v_lshlrev_b32 v8, 12, v8")
    p("v_lshrrev_b32 v9, 4, v0")
    p("v_and_b32 v10, 7, v0")
    p("v_xor_b32 v11, v10, v9")
    p("v_lshl_add_u32 v2, v11, 4, v8")
    p("v_xor_b32 v11, 4, v11")
    p("v_lshl_add_u32 v3, v11, 4, v8")
    p("v_and_b32 v8, 31, v0")
    p("v_lshrrev_b32 v9, 5, v0")
    p("v_lshrrev_b32 v10, 1, v8")
    p("v_and_b32 v10, 7, v10")
    p("v_xor_b32 v10, v10, v9")
    p("v_lshlrev_b32 v8, 7, v8")
    p(f"v_add_u32 v8, s{SRING}, v8")
    for u in range(4):
        p(f"v_xor_b32 v11, {2*u}, v10")
        p(f"v_lshl_add_u32 v{VR[u]}, v11, 4, v8")
    SROT=52; SWO=[53,54]; SZO=[55,56]
    p(f"s_and_b32 s{SROT}, s{STB if ROT==1 else SFB}, { {3:1,4:3}.get(ROT,7) }")
    if ROT==3: p(f"s_lshl_b32 s{SROT}, s{SROT}, 2")
    if ROT==4: p(f"s_lshl_b32 s{SROT}, s{SROT}, 1")
    def chunk_offsets(sc):
        e=sc&1
        if ROT:
            p(f"s_add_u32 s57, s{SROT}, {sc}")
            p("s_and_b32 s57, s57, 7")
            p(f"s_lshl_b32 s{SWO[e]}, s57, {9 if KINT else 7}")
            p(f"s_lshl_b32 s57, s57, {15 if KINT else 13}")
            p(f"s_add_u32 s{SZO[e]}, s57, s{SZ}")
        else:
            p(f"s_mov_b32 s{SWO[e]}, {sc*(512 if KINT else 128)}")
            p(f"s_add_u32 s{SZO[e]}, s{SZ}, {sc*(32768 if KINT else 8192)}")
    done=set()
    def need(sc):
        if sc not in done: done.add(sc); chunk_offsets(sc)
    def dma(c, which=range(8)):
        sc=c>>1; th=TH(c); slot=c%3
        need(sc)
        for i in which:
            if SKIPDMA and (i&1) and c>1: continue
            rho=2*th+(i>>2)
            p(f"s_add_u32 m0, s{SRING}, {slot*8192+i*1024}")
            p(f"s_add_u32 s{ST}, s{SROW[rho]}, s{SWO[sc&1]}")
            if i&3: p(f"s_add_u32 s{ST}, s{ST}, {(8*(i&3))*4096}")
            p(f"buffer_load_dwordx4 v{VD[i&1]}, s[{WSP}:{WSP+3}], s{ST} offen lds", tag=f'dma{slot}')
    def aload(sc, lo, hi):
        e=sc&1
        need(sc)
        for k in range(lo,hi):
            if k%4==0 or k==lo: p(f"s_add_u32 s{ST+1}, s{SZO[e]}, {(k&~3)*1024}")
            p(f"buffer_load_dwordx4 {v(GA+e*32+4*k,4)}, v1, s[{WS}:{WS+3}], s{ST+1} offen offset:{(k%4)*1024}{LM()}")
    def bread(c,u):
        slot=c%3; st=(c*4+u)&1
        for tl in range(2):
            p(f"ds_read_b128 {v(GB+st*8+4*tl,4)}, v{VR[u]} offset:{slot*8192+tl*4096}")
    kernarg_ready(p)
    srd(p, WSP, 6, S*S*2)
    srd(p, AUX, 8, S*2)
    if STARTPRIO: p("s_setprio 1")
    if layout.FUSE and FPF==2:
        dma(0); dma(1)
        p("s_barrier")
        aload(0,0,8)
    elif layout.FUSE and FPF==1:
        dma(0)
        p("s_barrier")
        aload(0,0,4); dma(1); aload(0,4,8)
    elif layout.FUSE:
        p("s_barrier")
        dma(0); aload(0,0,4); dma(1); aload(0,4,8)
    else:
        dma(0); aload(0,0,4); dma(1); aload(0,4,8)
        start_barrier(p)
    stamp(p,'issued')
    p.wait('dma0')
    bread(0,0)
    stamp(p,'loopstart')
    for c in range(16):
        if c in (2,4,8,12): stamp(p,f'c{c}')
        if PRIOLATE and c==PRIOLATE: p("s_setprio 1")
        sc=c>>1; th=TH(c); e=sc&1
        for u in range(4):
            if PRIOPAT:
                on = PRIOPAT[(c*4+u) % len(PRIOPAT)]=='1'
                prev = PRIOPAT[(c*4+u-1) % len(PRIOPAT)]=='1' if (c or u) else False
                if on!=prev: p(f"s_setprio {1 if on else 0}")
            if u<3: nxt=(c,u+1)
            else: nxt=(c+1,0) if c<15 else None
            st=(c*4+u)&1
            k=0
            for tl in range(2):
                for fi in range(2):
                    acc=GACC+((2*th+tl)*2+fi)*16
                    cc = "0" if (sc==0 and u==0) else v(acc,16)
                    p(f"v_mfma_f32_32x32x16_bf16 {v(acc,16)}, {v(GA+e*32+4*(u*2+fi),4)}, {v(GB+st*8+4*tl,4)}, {cc}")
                    if k==0 and nxt:
                        if nxt[0]!=c: p.wait(f'dma{nxt[0]%3}')
                        bread(*nxt)
                    slot=u*4+k
                    if c==0:
                        if slot<8: dma(2,[slot])
                        if slot==8 and STARTPRIO: p("s_setprio 0")
                    else:
                        if c+2<16 and slot<8: dma(c+2,[slot])
                    if sc+1<8 and slot in (9,11,13,15) and c>=0:
                        kk=4*(c&1)+(slot-9)//2
                        aload(sc+1, kk, kk+1)
                    if EARLYPUB and c==15 and slot>=4:
                        for n in range((slot-4)*16//12, (slot-3)*16//12):
                            rho=2+n//8; fi_=(n//4)&1; q=n&3
                            if n==0: p(f"v_add_u32 v2, s44, v1")
                            p(f"ds_write_b128 v2, {v(GACC+(rho*2+fi_)*16+4*q,4)} offset:{(rho-1)*8192+fi_*4096+q*1024}", tag='gpub')
                    k+=1
    if PRIOPAT: p("s_setprio 0")

def gemm_publish(p):
    p(f"v_add_u32 v2, s44, v1")
    for rho in range(1,2 if EARLYPUB else 4):
        for fi in range(2):
            for q in range(4):
                p(f"ds_write_b128 v2, {v(GACC+(rho*2+fi)*16+4*q,4)} offset:{(rho-1)*8192+fi*4096+q*1024}", tag='gpub')
    p(f"s_lshl_b32 s46, s{STB}, 2")
    p(f"s_add_u32 s46, s46, s{SW}")
    p(f"s_mul_i32 s47, s46, {28*2048}")
    p(f"s_lshl_b32 s48, s{SFB}, 12")
    p("s_add_u32 s47, s47, s48")
    p(f"s_add_u32 s47, s47, {WS_Z1}")
    for k in range(4):
        p(f"buffer_load_dwordx4 {v(16+4*k,4)}, v1, s[{WS}:{WS+3}], s47 offen offset:{k*1024}{LM()}")
    p("v_and_b32 v8, 31, v0")
    p("v_lshlrev_b32 v8, 1, v8")
    p("s_lshl_b32 s48, s46, 6")
    p(f"buffer_load_ushort v9, v8, s[{AUX}:{AUX+3}], s48 offen")
    p.wait('gpub')

def gemm_finish(p):
    R=32
    for rho in range(1,4):
        p(f"s_sub_u32 s47, s{SW}, {rho}")
        p("s_and_b32 s47, s47, 3")
        p("s_mul_i32 s47, s47, 24576")
        p(f"s_add_u32 s47, s47, {(rho-1)*8192}")
        p(f"v_add_u32 v{2+rho}, s47, v1")
    for fi in range(2):
        for rho in range(1,4):
            for q in range(4):
                p(f"ds_read_b128 {v(R+32*(rho-1)+16*fi+4*q,4)}, v{2+rho} offset:{fi*4096+q*1024}")
    p(f"s_mul_i32 s47, s46, {88*1024}")
    p(f"s_lshl_b32 s48, s{SFB}, 12")
    p("s_add_u32 s47, s47, s48")
    p(f"s_add_u32 s47, s47, {WS_H+32*1024}")
    p("v_lshlrev_b32 v8, 16, v9")
    p("v_mov_b32 v9, v8")
    for fi in range(2):
        A=GACC+16*fi; P1=R+16*fi; P2=R+32+16*fi; P3=R+64+16*fi
        for r in range(0,16,2):
            p(f"v_pk_add_f32 {v(A+r,2)}, {v(A+r,2)}, {v(P1+r,2)}")
        for r in range(0,16,2):
            p(f"v_pk_add_f32 {v(P2+r,2)}, {v(P2+r,2)}, {v(P3+r,2)}")
        for r in range(0,16,2):
            p(f"v_pk_add_f32 {v(A+r,2)}, {v(A+r,2)}, v[8:9]")
        for r in range(0,16,2):
            p(f"v_pk_add_f32 {v(A+r,2)}, {v(A+r,2)}, {v(P2+r,2)}")
        for d in range(8):
            p(f"v_lshlrev_b32 v{P1+2*d}, 16, v{16+8*fi+d}")
            p(f"v_and_b32 v{P1+2*d+1}, 0xffff0000, v{16+8*fi+d}")
        for r in range(0,16,2):
            p(f"v_pk_mul_f32 {v(A+r,2)}, {v(A+r,2)}, {v(P1+r,2)}")
        for d in range(8):
            p(f"v_cvt_pk_bf16_f32 v{P3+d}, v{A+2*d}, v{A+2*d+1}")
        for u in range(2):
            p(f"buffer_store_dwordx4 {v(P3+4*u,4)}, v1, s[{WS}:{WS+3}], s47 offen offset:{(fi*2+u)*1024}{SM()}")

def signal(p, tblk_sreg, slot_expr_sreg):
    p("s_waitcnt vmcnt(0)")
    if not layout.FUSE: p(f"v_readfirstlane_b32 s{STAG}, v14")
    p(f"s_lshl_b32 s64, s{tblk_sreg}, {5+FSH}")
    p(f"s_lshl_b32 s65, s{slot_expr_sreg}, {FSH}")
    p("s_add_u32 s64, s64, s65")
    p(f"s_add_u32 s64, s64, {WS_FL}")
    p(f"v_mov_b32 v12, s{STAG}")
    p("v_mov_b32 v13, 0")
    p("s_mov_b64 exec, 1")
    p(f"buffer_store_dword v12, v13, s[{WS}:{WS+3}], s64 offen sc1")
    p("s_mov_b64 exec, -1")

WO0=16; WH0=80; H0=136; FACC=192; RS3=272
STB3=66; SNB3=67
def hreg(k): return H0+4*k if k<14 else 4+4*(k-14)
def final_ids(p):
    srd(p, XS3, 10, S*D*2); srd(p, OUT3, 12, S*D*2)
    p(f"s_mul_i32 s72, s{SJ}, 37")
    p("s_lshr_b32 s72, s72, 8")
    p("s_mul_i32 s73, s72, 7")
    p(f"s_sub_u32 s{SNB3}, s{SJ}, s73")
    p(f"s_lshl_b32 s73, s{SX}, 2")
    p(f"s_add_u32 s{STB3}, s73, s72")
    p("s_mul_i32 s80, s72, 3")
    p(f"s_add_u32 s80, s80, s{SNB3}")
    p("s_sub_u32 s81, s80, 11")
    p("s_cmp_ge_u32 s80, 11")
    p("s_cselect_b32 s80, s81, s80")
    p(f"s_mul_i32 s72, s{SNB3}, {2*88*1024}")
    p(f"s_add_u32 s68, s72, {WS_WC}")
    p(f"s_mul_i32 s72, s{STB3}, {2*88*1024}")
    p(f"s_add_u32 s69, s72, {WS_H}")
def frag_loads(p, base, ks0_sreg, nk, regf, mod):
    p(f"s_lshl_b32 s72, s{ks0_sreg}, 10")
    p(f"s_add_u32 s73, s{base}, s72")
    if not FROT:
        p(f"s_mov_b32 s70, s73")
        p(f"s_add_u32 s71, s70, {88*1024}")
        for k in range(nk):
            for i in range(2):
                p(f"buffer_load_dwordx4 {v(regf(2*k+i),4)}, v1, s[{WS}:{WS+3}], s{70+i} offen offset:{(k%4)*1024}{mod}")
            if k%4==3 and k+1<nk:
                p("s_add_u32 s70, s70, 4096"); p("s_add_u32 s71, s71, 4096")
        return
    p("s_mov_b32 s81, s80")
    for k in range(nk):
        p("s_lshl_b32 s72, s81, 10")
        p("s_add_u32 s70, s73, s72")
        p(f"s_add_u32 s71, s70, {88*1024}")
        if k+1<nk:
            p("s_add_u32 s81, s81, 1")
            p(f"s_cmp_eq_u32 s81, {nk}")
            p("s_cselect_b32 s81, 0, s81")
        for i in range(2):
            p(f"buffer_load_dwordx4 {v(regf(2*k+i),4)}, v1, s[{WS}:{WS+3}], s{70+i} offen{mod}")
def frag_mfma(p, nk, wf, hf, first_zero):
    for k in range(nk):
        for ti in range(2):
            for ni in range(2):
                acc = FACC + (ti*2+ni)*16
                c = "0" if (k==0 and first_zero) else v(acc,16)
                p(f"v_mfma_f32_32x32x16_bf16 {v(acc,16)}, {v(wf(2*k+ni),4)}, {v(hf(2*k+ti),4)}, {c}")
def lds_wait(p, idx, n, lab):
    p(f"v_mov_b32 v12, {LDS_CNT+4*idx}")
    p.label(lab)
    p("ds_read_b32 v13, v12")
    p("s_waitcnt lgkmcnt(0)")
    p("v_readfirstlane_b32 s61, v13")
    p(f"s_cmp_lt_u32 s61, {n}")
    p(f"s_cbranch_scc1 {lab}")
def poll_flags(p, mask_lo, lab):
    p(f"s_lshl_b32 s72, s{STB3}, {6+FSH}")
    p(f"s_add_u32 s72, s72, {WS_FL}")
    p(f"v_lshlrev_b32 v3, {FSH}, v0")
    p(f"s_mov_b32 s74, {mask_lo}"); p(f"s_mov_b32 s75, {mask_lo}")
    p("s_mov_b32 s76, 0")
    p.label(lab)
    p(f"buffer_load_dword v12, v3, s[{WS}:{WS+3}], s72 offen sc1")
    p("s_waitcnt vmcnt(0)")
    p(f"v_cmp_ne_u32 vcc, s{STAG}, v12")
    p("s_and_b64 s[78:79], vcc, s[74:75]")
    p("s_cmp_eq_u64 s[78:79], 0")
    p(f"s_cbranch_scc1 {lab}_OK")
    p("s_add_u32 s76, s76, 1")
    p("s_cmp_lt_u32 s76, 0x40000")
    p(f"s_cbranch_scc1 {lab}")
    p.label(lab+"_OK")

NK3=11; W30=16; H30=104
def final_attention(p):
    final_ids(p)
    lds_wait(p, 2, 4, "K2_AWAIT")
    p(f"s_mul_i32 s77, s23, {NK3}")
    frag_loads(p, 68, 77, NK3, lambda k: W30+4*k, LM())
    stamp(p,'wissued')
    if POLLW<4:
        p(f"s_cmp_lg_u32 s23, {POLLW}")
        p("s_cbranch_scc1 K2_FH")
        poll_flags(p, "0x3fffffff", "K2_APOLL")
    p("s_branch K2_FH")

def final_gemm(p):
    final_ids(p)
    if EPOLL:
        p(f"s_lshl_b32 s79, s{STB3}, {6+FSH}")
        p(f"s_add_u32 s79, s79, {WS_FL}")
        p(f"v_lshlrev_b32 v3, {FSH}, v0")
        p(f"s_cmp_lg_u32 s23, {POLLW}")
        p("s_cbranch_scc1 K2_NOEP")
        p.begin_opt()
        p(f"buffer_load_dword v13, v3, s[{WS}:{WS+3}], s79 offen sc1", tag='fp')
        p.end_opt()
        p.label("K2_NOEP")
    p(f"s_mul_i32 s77, s23, {NK3}")
    frag_loads(p, 68, 77, NK3, lambda k: W30+4*k, LM())
    stamp(p,'wissued')
    if POLLW>=4:
        p(f"s_cmp_lg_u32 s23, {POLLW}")
        p("s_cbranch_scc1 K2_FH")
        if EPOLL:
            p.wait('fp')
            p(f"v_cmp_ne_u32 vcc, s{STAG}, v13")
            p("s_mov_b32 s74, 0x3fffffff"); p("s_mov_b32 s75, 0x3fffffff")
            p("s_and_b64 s[78:79], vcc, s[74:75]")
            p("s_cmp_eq_u64 s[78:79], 0")
            p("s_cbranch_scc1 K2_FH")
        poll_flags(p, "0x3fffffff", "K2_GPOLL")
    p("s_branch K2_FH")

def final_common(p):
    p.label("K2_FH")
    p("s_barrier")
    stamp(p,'flags')
    p(f"s_mul_i32 s77, s23, {NK3}")
    frag_loads(p, 69, 77, NK3, lambda k: H30+4*k, HMOD)
    p("v_lshrrev_b32 v3, 3, v0")
    p(f"s_lshl_b32 s72, s{STB3}, 6")
    p(f"s_lshl_b32 s73, s23, 3")
    p("s_add_u32 s72, s72, s73")
    p("v_add_u32 v3, s72, v3")
    p(f"v_mul_u32_u24 v3, {D*2}, v3")
    p("v_and_b32 v2, 7, v0")
    p("v_lshlrev_b32 v2, 4, v2")
    p(f"s_lshl_b32 s73, s{SNB3}, 7")
    p("v_add3_u32 v2, v3, v2, s73")
    p(f"buffer_load_dwordx4 v[4:7], v2, s[{XS3}:{XS3+3}], 0 offen")
    frag_mfma(p, NK3, lambda k: W30+4*k, lambda k: H30+4*k, True)
    stamp(p,'fmfma')
    RS=RS3; ACC=FACC
    p("v_and_b32 v8, 31, v0")
    p(f"v_mul_u32_u24 v8, {RS}, v8")
    p("v_lshrrev_b32 v9, 5, v0")
    p("v_lshlrev_b32 v9, 4, v9")
    p(f"s_mul_i32 s72, s23, {64*RS}")
    p("v_add3_u32 v8, v8, v9, s72")
    for ti in range(2):
        for ni in range(2):
            acc = ACC + (ti*2+ni)*16
            for q in range(4):
                p(f"ds_write_b128 v8, {v(acc+4*q,4)} offset:{ti*32*RS+ni*128+q*32}", tag='pw')
    p.wait('pw')
    p("s_barrier")
    stamp(p,'fbar')
    p("v_lshrrev_b32 v8, 3, v0")
    p(f"s_lshl_b32 s72, s23, 3")
    p("v_add_u32 v8, s72, v8")
    p(f"v_mul_u32_u24 v8, {RS}, v8")
    p("v_and_b32 v9, 7, v0")
    p("v_lshlrev_b32 v9, 5, v9")
    p("v_add_u32 v8, v8, v9")
    p(f"v_add_u32 v9, {4*64*RS}, v8")
    R=16
    for w in range(8):
        for hh in range(2):
            a=8 if w<4 else 9
            p(f"ds_read_b128 {v(R+(w*2+hh)*4,4)}, v{a} offset:{(w%4)*64*RS+hh*16}")
    for st_ in (1,2,4):
        for w in range(0,8,2*st_):
            for e in range(0,8,2):
                p(f"v_pk_add_f32 {v(R+8*w+e,2)}, {v(R+8*w+e,2)}, {v(R+8*(w+st_)+e,2)}")
    for d in range(4):
        p(f"v_lshlrev_b32 v10, 16, v{4+d}")
        p(f"v_and_b32 v11, 0xffff0000, v{4+d}")
        p(f"v_add_f32 v{R+2*d}, v{R+2*d}, v10")
        p(f"v_add_f32 v{R+2*d+1}, v{R+2*d+1}, v11")
    for d in range(4):
        p(f"v_cvt_pk_bf16_f32 v{R+8+d}, v{R+2*d}, v{R+2*d+1}")
    p(f"buffer_store_dwordx4 {v(R+8,4)}, v2, s[{OUT3}:{OUT3+3}], 0 offen{OMOD}")
    stamp(p,'fend')

def prep(p):
    srd(p, AUX, 10, D*D*2)
    srd(p, AUX2, 12, FH*D*2)
    p(f"s_lshl_b32 s40, s{SX}, 2")
    p(f"s_add_u32 s40, s40, s{SJ}")
    p("s_sub_u32 s40, s40, 28")
    p("s_lshl_b32 s40, s40, 2")
    p(f"s_add_u32 s40, s40, s{SW}")
    p(f"s_mul_i32 s44, s{SW}, 24576")
    p("v_lshrrev_b32 v2, 2, v0")
    p(f"v_mul_u32_u24 v3, {D*2}, v2")
    p("v_and_b32 v4, 3, v0")
    p("v_lshl_add_u32 v3, v4, 4, v3")
    p("v_cmp_gt_u32 vcc, 12, v2")
    p("v_mov_b32 v5, 0x7ff00000")
    p("v_cndmask_b32 v4, v5, v3, vcc")
    p("v_lshrrev_b32 v5, 4, v0")
    p("v_and_b32 v6, 1, v5")
    p("v_lshrrev_b32 v5, 1, v5")
    p("v_lshrrev_b32 v7, 2, v0")
    p("v_and_b32 v7, 3, v7")
    p("v_lshl_add_u32 v5, v5, 2, v7")
    p("v_lshlrev_b32 v5, 6, v5")
    p("v_lshl_add_u32 v5, v6, 5, v5")
    p("v_and_b32 v6, 3, v0")
    p("v_lshl_add_u32 v5, v6, 3, v5")
    p("v_add_u32 v5, s44, v5")
    NI=10
    for i in range(NI):
        f=50+i
        p(f"s_add_u32 s{f}, s40, {128*i}")
        p(f"s_add_u32 m0, s44, {i*1024}")
        p(f"s_cmp_ge_u32 s{f}, 1232")
        p(f"s_cbranch_scc1 P_SKIP{i}")
        p(f"s_mul_i32 s41, s{f}, 745")
        p("s_lshr_b32 s41, s41, 16")
        p("s_mul_i32 s42, s41, 88")
        p(f"s_sub_u32 s42, s{f}, s42")
        p("s_lshl_b32 s41, s41, 6")
        p("s_cmp_ge_u32 s42, 32")
        p(f"s_cbranch_scc1 P_OUT{i}")
        p("s_lshr_b32 s43, s42, 1")
        p("s_mul_i32 s43, s43, 28")
        p("s_and_b32 s45, s42, 1")
        p("s_lshl_b32 s46, s45, 4")
        p("s_add_u32 s43, s43, s46")
        p(f"s_mul_i32 s43, s43, {D*2}")
        p("s_add_u32 s43, s43, s41")
        p("s_cmp_eq_u32 s45, 1")
        p(f"s_cbranch_scc1 P_PAD{i}")
        p(f"buffer_load_dwordx4 v3, s[{AUX}:{AUX+3}], s43 offen lds", tag='pd')
        p(f"s_branch P_SKIP{i}")
        p.label(f"P_PAD{i}")
        p(f"buffer_load_dwordx4 v4, s[{AUX}:{AUX+3}], s43 offen lds", tag='pd')
        p(f"s_branch P_SKIP{i}")
        p.label(f"P_OUT{i}")
        p("s_sub_u32 s43, s42, 32")
        p("s_lshl_b32 s43, s43, 4")
        p(f"s_mul_i32 s43, s43, {D*2}")
        p("s_add_u32 s43, s43, s41")
        p(f"buffer_load_dwordx4 v3, s[{AUX2}:{AUX2+3}], s43 offen lds", tag='pd')
        p.label(f"P_SKIP{i}")
    p("s_waitcnt vmcnt(0)")
    for i in range(NI):
        p(f"ds_read_b64_tr_b16 {v(16+4*i,2)}, v5 offset:{i*1024}")
        p(f"ds_read_b64_tr_b16 {v(16+4*i+2,2)}, v5 offset:{i*1024+512}")
    p("s_waitcnt lgkmcnt(0)")
    for i in range(NI):
        f=50+i
        p(f"s_cmp_ge_u32 s{f}, 1232")
        p(f"s_cbranch_scc1 P_SK2{i}")
        p(f"s_lshl_b32 s41, s{f}, 10")
        p(f"s_add_u32 s41, s41, {WS_WC}")
        p(f"buffer_store_dwordx4 {v(16+4*i,4)}, v1, s[{WS}:{WS+3}], s41 offen{SM()}")
        p.label(f"P_SK2{i}")

def gen(force_fallback=False):
    p=Prog(); prologue(p)
    n0=PR.n
    p.begin_alt()
    p.alt_branch()
    p("s_mov_b32 s48, 0"); p("s_mov_b32 s49, -1")
    if ONLY=='g': p("s_branch K2_END")
    if layout.FUSE: phase1_wait(p)
    attention(p, force_fallback); attention_publish(p)
    stamp(p,'published')
    role_sync(p,0,"A_SYNC")
    stamp(p,'barrier')
    attention_finish(p)
    stamp(p,'finished')
    p(f"s_lshl_b32 s62, s{SQB}, 2")
    p(f"s_add_u32 s62, s62, s{SW}")
    signal(p, 62, SHEAD)
    stamp(p,'end')
    p(f"s_cmp_ge_u32 s{SJ}, 28")
    p("s_cbranch_scc1 K2_AEXIT")
    final_attention(p)
    namesA=list(PR.names); PR.n=n0; PR.names=PR.names[:n0]
    p.alt_branch()
    p.label("K2_ROLEB")
    p(f"s_cmp_ge_u32 s{SJ}, 28")
    p("s_cbranch_scc1 K2_WPF" if WPF else "s_cbranch_scc1 K2_END")
    if ONLY=='a': p("s_branch K2_END")
    gemm(p); stamp(p,'loopend'); gemm_publish(p)
    stamp(p,'published')
    role_sync(p,1,"B_SYNC")
    stamp(p,'barrier')
    gemm_finish(p)
    p(f"v_mov_b32 v12, {LDS_CNT+8}")
    p("v_mov_b32 v13, 1")
    p("s_mov_b64 exec, 1")
    p("ds_add_u32 v12, v13")
    p("s_mov_b64 exec, -1")
    stamp(p,'finished')
    p(f"s_add_u32 s62, s{SFB}, 16")
    signal(p, 46, 62)
    stamp(p,'end')
    final_gemm(p)
    namesB=list(PR.names)
    p.end_alt()
    PR.n=24; PR.names=[]
    final_common(p)
    dump_stamps(p,8)
    p("s_branch K2_END")
    texts=[p.finalize()]
    p=Prog()
    p.label("K2_AEXIT")
    dump_stamps(p,8)
    p("s_branch K2_END")
    if WPF:
        p.label("K2_WPF")
        kernarg_ready(p)
        if layout.FUSE or LATEBAR==1: p("s_barrier")
        lds_wait(p, 0, 1, "K2_WPFW")
        p(f"s_sub_u32 s61, s{SJ}, 28")
        p("s_lshl_b32 s61, s61, 2")
        p(f"s_add_u32 s61, s61, s{SW}")
        p(f"s_mul_i32 s61, s61, {616*128}")
        p(f"s_add_u32 s61, s61, {WS_WC}")
        p("v_lshlrev_b32 v12, 7, v0")
        for i in range(10):
            p(f"buffer_load_dword v13, v12, s[{WS}:{WS+3}], s61 offen")
            if i<9: p("s_add_u32 s61, s61, 8192")
    p.label("K2_END")
    p("s_endpgm")
    if PR.on:
        pad=lambda L: L+['-']*(24-len(L))
        open('k2_stamps.txt','w').write(" ".join(pad(namesA)+PR.names)+"\n"+" ".join(pad(namesB)+PR.names))
    texts.append(p.finalize())
    return "".join(texts)

def kernel(**opt):
    global PROF, PR, PRION, SKIPDMA, PRIOPAT, STARTPRIO, ONLY, WPF
    WPF=int(opt.get('wpf',1))
    global DELAYW
    DELAYW=int(opt.get('dw',1))
    global ROT, KINT, EARLYRING, FPF, CODEPF2, FROT
    FROT=int(opt.get('frot',0))
    global HMOD, EARLYPUB, LATEBAR, POLLW, OMOD, PRIOLATE, ACQ, EPOLL
    EPOLL=int(opt.get('epoll',0))
    global FSH
    FSH=int(opt.get('fsh',4))
    ACQ=int(opt.get('acq',0))
    PRIOLATE=int(opt.get('plate',0))
    OMOD={'0':'','1':' sc1','2':' nt','3':' sc0 sc1'}[opt.get('omod','1')]
    POLLW=int(opt.get('pollw',7))
    LATEBAR=int(opt.get('lb',2))
    EARLYPUB=int(opt.get('epub',1))
    HMOD={'0':'','1':' sc1','2':' nt','3':' sc0 sc1'}[opt.get('hmod','1')]
    CODEPF2=int(opt.get('cpf2',0))
    FPF=int(opt.get('fpf',0))
    EARLYRING=int(opt.get('er',1))
    ROT=int(opt.get('rot',3)); KINT=int(opt.get('kint',1))
    ONLY=opt.get('only','')
    STARTPRIO=int(opt.get('sp',0))
    PRIOPAT=opt.get('pp','')
    SKIPDMA=int(opt.get('skipdma',0))
    PRION=int(opt.get('prion',0))
    PROF=bool(int(opt.get('prof',0)))
    PR=Prof(PROF,WS,23,WS_ST+(1<<19),vr=15)
    return dict(name="k2_kernel", text=gen(force_fallback=bool(int(opt.get('ff',0)))), grid=256, block=512, lds=LDS_K2, vgpr=256, sgpr=102, accum=256)
```

```python
from asmlib import *
from layout import *
import layout
def SM(): return layout.STMOD
def SML(): return layout.STMOD if (LASTSC1 or layout.FUSE) else ''
from k3 import srd

L_X   = 0
L_P1  = 112*1024
L_P2  = 16*1024
L_P3  = 72*1024
L_SM  = 156*1024
L_CS  = L_SM
L_XS  = L_SM + 1024
L_ZS  = L_SM + 3072
L_T   = 0
LDS_K1 = 160*1024
def p1_addr(kc): return L_P1 + kc*8192 if kc < 5 else (kc-5)*8192

SW8=16; SW=17; SG=18; SRB=19; SCB=20; STAG=21; SSB=22
WS=24; XS=28; WIN=32; WQ=36; DBG=40
SP1=44; SP2=45; SP3=46; SXB=47; ST=48; ST2=49; SEP=50
VL16=1; VXD=(2,3); VWD=4; VXR=(5,6,7,8); VWR=9; VCSR=10; VSR=11; VP3D=(12,13,14); VP3R=15
MU=16; RS_=17; VT=18
CS=48; WF=64; ZH=80; ACC=(96,112); XF=128
VH=240
ONES=244; CSW=249; CSR=247; CSD=124; NMF=42; EPV=39

from profutil import Prof
PR=Prof(False,WS,SW8,0)
def stamp(p,name): PR.stamp(p,str(name))

def kernargs_k1(p):
    p("s_waitcnt lgkmcnt(0)")
    srd(p, WS, 4, WS_SIZE); srd(p, XS, 6, S*D*2); srd(p, WIN, 8, D*F*2); srd(p, WQ, 10, D*3*D*2); srd(p, DBG, 12, 256)
    PR.real(p,62)
    stamp(p,'start')

def prologue(p):
    p("s_cmp_ge_u32 s2, 256")
    p("s_cbranch_scc1 K1_END")
    p(f"s_load_dwordx2 s[4:5], s[0:1], {KA_WS}")
    p(f"s_load_dwordx2 s[6:7], s[0:1], {KA_X}")
    p(f"s_load_dwordx2 s[8:9], s[0:1], {KA_WIN}")
    p(f"s_load_dwordx2 s[10:11], s[0:1], {KA_WQKV}")
    p(f"s_load_dwordx2 s[12:13], s[0:1], {KA_DBG}")
    p(f"s_load_dwordx2 s[92:93], s[0:1], {KA_WSP}")
    p("v_lshrrev_b32 v1, 6, v0")
    p("v_and_b32 v0, 63, v0")
    p(f"v_readfirstlane_b32 s{SW8}, v1")
    p("s_and_b32 s14, s2, 7")
    p("s_lshr_b32 s15, s2, 3")
    p("s_and_b32 s51, s14, 1")
    p("s_lshl_b32 s51, s51, 3")
    p("s_and_b32 s52, s15, 7")
    p(f"s_add_u32 s{SRB}, s51, s52")
    p("s_lshr_b32 s51, s14, 1")
    p("s_lshl_b32 s51, s51, 2")
    p("s_lshr_b32 s52, s15, 3")
    p(f"s_add_u32 s{SCB}, s51, s52")
    p("s_and_b32 s64, s15, 7")
    p("s_lshr_b32 s65, s15, 3")
    p("s_lshl_b32 s65, s65, 1")
    p("s_add_u32 s64, s64, s65")
    p("s_sub_u32 s65, s64, 7")
    p("s_cmp_ge_u32 s64, 7")
    p("s_cselect_b32 s64, s65, s64")
    if not KROT: p("s_mov_b32 s64, 0")
    p(f"s_and_b32 s{SW}, s{SW8}, 3")
    p(f"s_lshr_b32 s{SG}, s{SW8}, 2")
    p(f"s_lshl_b32 s{SSB}, s{SRB}, 2")
    p(f"s_add_u32 s{SSB}, s{SSB}, s{SW}")
    p(f"v_lshlrev_b32 v{VL16}, 4, v0")
    if not LATEKA: kernargs_k1(p)
    p("v_lshrrev_b32 v18, 3, v0")
    p(f"v_mul_u32_u24 v19, {D*2}, v18")
    p("v_lshrrev_b32 v20, 4, v0")
    p("v_and_b32 v21, 7, v0")
    p("v_xor_b32 v22, v21, v20")
    p(f"v_lshl_add_u32 v{VXD[0]}, v22, 4, v19")
    p("v_xor_b32 v22, 4, v22")
    p(f"v_lshl_add_u32 v{VXD[1]}, v22, 4, v19")
    p(f"v_mul_u32_u24 v19, {F*2}, v18")
    p("v_and_b32 v20, 1, v20")
    p("v_lshlrev_b32 v20, 2, v20")
    p("v_xor_b32 v22, v21, v20")
    p(f"v_lshl_add_u32 v{VWD}, v22, 4, v19")
    p(f"s_lshl_b32 s51, s{SRB}, 7")
    p(f"s_lshl_b32 s52, s{SW}, 5")
    p("s_add_u32 s51, s51, s52")
    p(f"s_mul_i32 s{SXB}, s51, {D*2}")
    p(f"s_lshl_b32 s51, s{SRB}, 7")
    p(f"s_lshl_b32 s52, s{SW8}, 4")
    p("s_add_u32 s51, s51, s52")
    p(f"s_mul_i32 s94, s51, {D*2}")
    p(f"s_lshl_b32 s51, s{SCB}, 7")
    p(f"s_add_u32 s52, s51, {FH*2}")
    p(f"s_sub_u32 s53, s51, 256")
    p(f"s_cmp_lt_u32 s{SCB}, 14")
    p(f"s_cselect_b32 s{SP1}, s52, s53")
    p(f"s_lshl_b32 s95, s{SW8}, 3")
    p(f"s_mul_i32 s95, s95, {F*2}")
    p(f"s_add_u32 s95, s95, s{SP1}")
    p(f"s_sub_u32 s54, s{SCB}, 2")
    p(f"s_cmp_lt_u32 s54, 12")
    p(f"s_cselect_b32 s{SP2}, s53, 0")
    p(f"s_lshl_b32 s51, s{SW}, 4")
    p(f"s_mul_i32 s51, s51, {F*2}")
    p(f"s_add_u32 s{SP1}, s{SP1}, s51")
    p(f"s_add_u32 s{SP2}, s{SP2}, s51")
    if LATEKA: kernargs_k1(p)

def kcd(p, i):
    p(f"s_add_u32 s65, s64, {i}")
    p("s_sub_u32 s83, s65, 7")
    p("s_cmp_ge_u32 s65, 7")
    p("s_cselect_b32 s65, s83, s65")
def dma_x(p, kc, which=range(4)):
    kcd(p, kc)
    p(f"s_lshl_b32 s{ST2}, s65, 7")
    p(f"s_add_u32 s{ST2}, s{ST2}, s{SXB}")
    for i in which:
        p(f"s_lshl_b32 m0, s{SW}, 12")
        p(f"s_add_u32 m0, m0, {L_X+kc*16384+i*1024}")
        p(f"s_add_u32 s{ST}, s{ST2}, {i*8*D*2}")
        p(f"buffer_load_dwordx4 v{VXD[i&1]}, s[{XS}:{XS+3}], s{ST} offen lds", tag=f'x{kc}')
def dma_pair(p, sbase, kc, ldsaddr, tag, which=range(2)):
    kcd(p, kc)
    p(f"s_mul_i32 s{ST2}, s65, {64*F*2}")
    p(f"s_add_u32 s{ST2}, s{ST2}, s{sbase}")
    for i in which:
        p(f"s_lshl_b32 m0, s{SW}, 11")
        p(f"s_add_u32 m0, m0, {ldsaddr+i*1024}")
        p(f"s_add_u32 s{ST}, s{ST2}, {i*8*F*2}")
        p(f"buffer_load_dwordx4 v{VWD}, s[{WIN}:{WIN+3}], s{ST} offen lds", tag=tag)

def dma_init(p, kc):
    kcd(p, kc)
    p(f"s_lshl_b32 s{ST2}, s65, 7")
    p(f"s_add_u32 s{ST2}, s{ST2}, s94")
    for i in range(2):
        p(f"s_lshl_b32 m0, s{SW8}, 11")
        p(f"s_add_u32 m0, m0, {L_X+kc*16384+i*1024}")
        p(f"s_add_u32 s{ST}, s{ST2}, {i*8*D*2}")
        p(f"buffer_load_dwordx4 v{VXD[i]}, s[{XS}:{XS+3}], s{ST} offen lds", tag=f'x{kc}')
    p(f"s_lshl_b32 m0, s{SW8}, 10")
    p(f"s_add_u32 m0, m0, {p1_addr(kc)}")
    p(f"s_mul_i32 s{ST}, s65, {64*F*2}")
    p(f"s_add_u32 s{ST}, s{ST}, s95")
    p(f"buffer_load_dwordx4 v{VWD}, s[{WIN}:{WIN+3}], s{ST} offen lds", tag=f'w{kc}')

def setup_reads(p):
    p("v_and_b32 v18, 31, v0")
    p("v_lshrrev_b32 v19, 5, v0")
    p("v_lshrrev_b32 v20, 1, v18")
    p("v_and_b32 v20, 7, v20")
    p("v_xor_b32 v20, v20, v19")
    p("v_lshlrev_b32 v18, 7, v18")
    p(f"s_lshl_b32 s51, s{SW}, 12")
    p(f"v_add_u32 v18, s51, v18")
    for u in range(4):
        p(f"v_xor_b32 v21, {2*u}, v20")
        p(f"v_lshl_add_u32 v{VXR[u]}, v21, 4, v18")
    p("v_lshrrev_b32 v18, 4, v0")
    p("v_and_b32 v19, 1, v18")
    p("v_lshrrev_b32 v18, 1, v18")
    p("v_lshrrev_b32 v20, 2, v0")
    p("v_and_b32 v20, 3, v20")
    p("v_and_b32 v21, 3, v0")
    p("v_lshl_add_u32 v22, v18, 3, v20")
    p("v_lshlrev_b32 v23, 7, v22")
    p("v_lshrrev_b32 v24, 1, v21")
    p("v_lshl_add_u32 v24, v19, 1, v24")
    p(f"s_lshl_b32 s51, s{SG}, 2")
    p("v_add_u32 v24, s51, v24")
    p("v_lshrrev_b32 v25, 1, v20")
    p("v_lshlrev_b32 v25, 2, v25")
    p("v_xor_b32 v24, v24, v25")
    p("v_lshl_add_u32 v23, v24, 4, v23")
    p("v_and_b32 v24, 1, v21")
    p(f"v_lshl_add_u32 v{VWR}, v24, 3, v23")
    p(f"s_lshl_b32 s51, s{SW}, 11")
    p(f"v_add_u32 v{VCSR}, s51, v{VWR}")
    p(f"v_add_u32 v{VH+12}, {L_P1}, v{VWR}")
    p(f"v_add_u32 v{VH+13}, {L_P1}, v{VCSR}")
    for r in range(3):
        p(f"v_add_u32 v23, {64*r}, v0")
        p(f"v_mul_u32_u24 v24, 43691, v23")
        p(f"v_lshrrev_b32 v24, 19, v24")
        p(f"v_mul_u32_u24 v25, 12, v24")
        p(f"v_sub_u32 v25, v23, v25")
        p(f"v_mul_u32_u24 v24, {3*D*2}, v24")
        p(f"v_lshl_add_u32 v{VP3D[r]}, v25, 4, v24")
    p("v_mul_u32_u24 v23, 192, v22")
    p("v_lshl_add_u32 v23, v19, 5, v23")
    p(f"v_lshl_add_u32 v{VP3R}, v21, 3, v23")
    p(f"v_add_u32 v{VP3R}, {L_P3}, v{VP3R}")
    p("v_and_b32 v23, 31, v0")
    p("v_mul_u32_u24 v23, 72, v23")
    p("v_lshrrev_b32 v24, 5, v0")
    p("v_lshl_add_u32 v23, v24, 3, v23")
    p(f"s_mul_i32 s51, s{SW8}, 2304")
    p(f"s_add_u32 s51, s51, {L_T}")
    p(f"v_add_u32 v{VH+1}, s51, v23")
    p("v_lshl_add_u32 v23, v18, 2, v20")
    p("v_mul_u32_u24 v23, 72, v23")
    p("v_lshl_add_u32 v23, v19, 5, v23")
    p("v_lshl_add_u32 v23, v21, 3, v23")
    p(f"v_add_u32 v{VH+2}, s51, v23")
    p("v_mul_u32_u24 v23, 72, v22")
    p("v_lshl_add_u32 v23, v19, 5, v23")
    p("v_lshl_add_u32 v23, v21, 3, v23")
    p(f"v_add_u32 v{VH+3}, s51, v23")
    p("v_and_b32 v23, 31, v0")
    p("v_lshlrev_b32 v23, 2, v23")
    p(f"s_lshl_b32 s51, s{SG}, 9")
    p(f"s_add_u32 s51, s51, {L_CS}")
    p(f"v_add_u32 v23, s51, v23")
    p(f"s_lshl_b32 s52, s{SW}, 7")
    p(f"v_add_u32 v{CSW}, s52, v23")
    p("v_lshrrev_b32 v24, 5, v0")
    p(f"v_lshl_add_u32 v{CSR}, v24, 8, v23")
    p(f"v_mov_b32 v{ONES}, 0x3f803f80")
    p(f"v_mov_b32 v{ONES+1}, 0x3f803f80")
    p("v_and_b32 v23, 31, v0")
    p(f"s_lshl_b32 s51, s{SW}, 5")
    p("v_add_u32 v23, s51, v23")
    p(f"v_lshlrev_b32 v{VH+6}, 3, v23")

def cs_zero(p):
    for r in range(4): p(f"v_mov_b32 v{CSD+r}, 0")
def cs_step(p, fr):
    p(f"v_mfma_f32_4x4x4_16b_bf16 {v(CSD,4)}, {v(ONES,2)}, {v(fr,2)}, {v(CSD,4)}")
    p(f"v_mfma_f32_4x4x4_16b_bf16 {v(CSD,4)}, {v(ONES,2)}, {v(fr+2,2)}, {v(CSD,4)}")
def cs_flush(p):
    p(f"v_mov_b32 v46, v{CSD}")
    p(f"v_mov_b32 v33, v{CSD}")
    p(f"v_permlane32_swap_b32 v46, v33")
    p(f"v_add_f32 v46, v46, v33")
    p(f"ds_write_b32 v{CSW}, v46", tag='cs')
def meanfix(p, acc):
    F=28
    p(f"ds_read_b32 v26, v{CSR}")
    p(f"ds_read_b32 v27, v{CSR} offset:128")
    for k in range(2):
        a=26+k; d=F+2*k
        p(f"v_and_b32 v32, 0xffff0000, v{a}")
        p(f"v_sub_f32 v33, v{a}, v32")
        p(f"v_lshrrev_b32 v{d+1}, 16, v32")
        p(f"v_and_or_b32 v{d}, v33, s60, v{d+1}")
    p(f"v_mfma_f32_32x32x16_bf16 {v(acc,16)}, {v(F,4)}, {v(NMF,4)}, {v(acc,16)}")

def x_reads(kc):
    L=[]
    if kc==4: L+=[f"v_add_u32 v{r}, 0x10000, v{r}" for r in list(VXR)]
    xo=(kc*16384)&0xffff
    for u in range(4): L.append(f"ds_read_b128 {v(XF+4*(4*kc+u),4)}, v{VXR[u]} offset:{xo}")
    return L

def p0_compute(p):
    for r in range(40,44): p(f"v_mov_b32 v{r}, 0")
    cs_zero(p)
    CF=(28,120)
    def wreads(kc):
        if kc<5: wa,ca,wb=VH+12,VH+13,kc*8192
        else: wa,ca,wb=VWR,VCSR,(kc-5)*8192
        W=48+16*(kc&1); L=[]
        for u in range(4):
            L.append([f"ds_read_b64_tr_b16 {v(W+4*u,2)}, v{wa} offset:{wb+u*2048}",
                      f"ds_read_b64_tr_b16 {v(W+4*u+2,2)}, v{wa} offset:{wb+u*2048+512}"])
        cf=CF[kc&1]
        L.append([f"ds_read_b64_tr_b16 {v(cf,2)}, v{ca} offset:{wb}", f"ds_read_b64_tr_b16 {v(cf+2,2)}, v{ca} offset:{wb+512}"])
        return L
    for kc in range(8):
        if kc<7:
            if kc<3: p.wait(f'x{kc}', f'w{kc}')
            p("s_barrier")
            if kc in (0,6): stamp(p,f'c{kc}bar')
        xr = x_reads(kc) if kc<7 else []
        wr = wreads(kc) if kc<7 else []
        if kc==0:
            for x in xr: p(x)
            for gr in wr:
                for x in gr: p(x)
        else:
            c=kc-1; W=48+16*(c&1)
            sf=XF+16*c
            for u in range(4):
                cc = "0" if (c==0 and u==0) else v(ACC[0],16)
                p(f"v_mfma_f32_32x32x16_bf16 {v(ACC[0],16)}, {v(W+4*u,4)}, {v(XF+4*(4*c+u),4)}, {cc}")
                if u==0:
                    for x in xr: p(x)
                elif kc<7:
                    for gr in wr[[0,0,2,4][u]:[0,2,4,5][u]]:
                        for x in gr: p(x)
            cs_step(p, CF[c&1])
            for d in range(16):
                p(f"v_dot2c_f32_bf16 v{40+(d&1)}, v{sf+d}, v{ONES}")
                p(f"v_dot2c_f32_bf16 v{42+(d&1)}, v{sf+d}, v{sf+d}")
        if kc<7: p("s_waitcnt lgkmcnt(0)")
    cs_flush(p)
    p("v_add_f32 v40, v40, v41")
    p("v_add_f32 v41, v42, v43")
    p("v_mov_b32 v42, v40"); p("v_mov_b32 v43, v41")
    p("v_permlane32_swap_b32 v42, v40")
    p("v_permlane32_swap_b32 v43, v41")
    p("v_add_f32 v40, v40, v42")
    p("v_add_f32 v41, v41, v43")
    p(f"v_mul_f32 v{MU}, 0x3b124925, v40")
    p(f"v_mul_f32 v41, 0x3b124925, v41")
    p(f"v_fma_f32 v41, -v{MU}, v{MU}, v41")
    p(f"v_add_f32 v41, 0x3727c5ac, v41")
    p(f"v_rsq_f32 v{RS_}, v41")
    p(f"v_add_u32 v18, {L_XS}, v{VH+6}")
    p(f"ds_write_b64 v18, {v(MU,2)}", tag='xs')
    nmf(p)
    p.wait('xs','cs')
    p("s_barrier")

def p0_load(p):
    def dmas(kc):
        G=[]
        n=kc+3
        if n<7:
            G.append(lambda q,n=n: dma_x(q,n))
            G.append(lambda q,n=n: dma_pair(q, SP1, n, p1_addr(n), f'w{n}'))
        if kc==4: G+= [lambda q,i=i: dma_pair(q, SP2, i, L_P2+i*8192, 'p2') for i in (0,1,2)]
        if kc==5: G+= [lambda q,i=i: dma_pair(q, SP2, i, L_P2+i*8192, 'p2') for i in (3,4,5)]
        if kc==6: G+= [lambda q: dma_pair(q, SP2, 6, L_P2+6*8192, 'p2')]
        return G
    for kc in range(7):
        p.wait(f'x{kc}', f'w{kc}')
        p("s_barrier")
        if kc in (0,6): stamp(p,f'c{kc}bar')
        for x in x_reads(kc): p(x)
        for f in dmas(kc): f(p)
        p("s_waitcnt lgkmcnt(0)")
    p("s_barrier")
    p(f"v_add_u32 v18, {L_XS}, v{VH+6}")
    p(f"ds_read_b64 {v(MU,2)}, v18")
    nmf(p)

def nmf(p):
    p(f"v_sub_f32 v20, 0, v{MU}")
    p(f"v_and_b32 v21, 0xffff0000, v20")
    p(f"v_sub_f32 v22, v20, v21")
    p(f"v_lshrrev_b32 v23, 16, v21")
    p(f"v_or_b32 v{NMF}, v21, v23")
    p(f"v_lshrrev_b32 v{NMF+1}, 16, v22")
    p(f"v_mov_b32 v{NMF+2}, v{NMF}")
    p(f"v_mov_b32 v{NMF+3}, v{NMF+1}")

def dma_p3_groups(firsts):
    G=[]
    for n0 in firsts:
        def setup(q,n0=n0):
            q(f"s_add_u32 s88, s{SW}, {n0}")
            q(f"s_mul_i32 s89, s88, 3072")
            q("s_lshr_b32 s87, s88, 2")
            q("s_add_u32 s87, s87, s64")
            q("s_sub_u32 s83, s87, 7")
            q("s_cmp_ge_u32 s87, 7")
            q("s_cselect_b32 s87, s83, s87")
            q("s_lshl_b32 s87, s87, 2")
            q("s_and_b32 s88, s88, 3")
            q("s_add_u32 s87, s87, s88")
            q(f"s_mul_i32 s87, s87, {16*3*D*2}")
            q(f"s_add_u32 s87, s87, s63")
        for r in range(3):
            def one(q,r=r,setup=setup):
                if r==0: setup(q)
                q(f"s_add_u32 m0, s89, {L_P3+r*1024}")
                q("s_nop 0")
                q(f"buffer_load_dwordx4 v{VP3D[r]}, s[{WQ}:{WQ+3}], s87 offen lds", tag='p3')
            G.append(one)
    return G

def center(p, acc, scale_v):
    if K1PRIO=='M': p("s_setprio 0")
    if K1PRIO=='E': p("s_setprio 1")
    meanfix(p, acc)
    for r in range(16):
        p(f"v_mul_f32 v{acc+r}, v{acc+r}, v{scale_v}")

def gelu(p, acc, dst):
    T=18
    for b in (0,8):
        R=range(b,b+8)
        for r in R: p(f"v_mul_f32 v{T+r-b}, v{acc+r}, v{acc+r}")
        for r in R: p(f"v_fma_f32 v{T+r-b}, v{T+r-b}, s56, v47")
        for r in R: p(f"v_mul_f32 v{T+r-b}, v{T+r-b}, v{acc+r}")
        for r in R: p(f"v_exp_f32 v{T+r-b}, v{T+r-b}")
        for r in R: p(f"v_add_f32 v{T+r-b}, 1.0, v{T+r-b}")
        for r in R: p(f"v_rcp_f32 v{T+r-b}, v{T+r-b}")
        for r in R: p(f"v_mul_f32 v{dst+r}, v{acc+r}, v{T+r-b}")

def pack(p, src, dst):
    for i in range(8): p(f"v_cvt_pk_bf16_f32 v{dst+i}, v{src+2*i}, v{src+2*i+1}")
def store2(p, src, sreg, off=0):
    p(f"buffer_store_dwordx4 {v(src,4)}, v{VL16}, s[{WS}:{WS+3}], s{sreg} offen offset:{off}{SM()}")
    p(f"buffer_store_dwordx4 {v(src+4,4)}, v{VL16}, s[{WS}:{WS+3}], s{sreg} offen offset:{off+1024}{SM()}")
def transpose(p, src, dst, traddr, order):
    for q in range(4):
        p(f"ds_write_b64 v{VH+1}, {v(src+2*q,2)} offset:{q*16}", tag='tw')
    p.wait('tw')
    for u in range(2):
        for ii in range(2):
            row = (16*u+8*ii) if order=='v' else (16*u+4*ii)
            p(f"ds_read_b64_tr_b16 {v(dst+4*u+2*ii,2)}, v{traddr} offset:{row*72}")

def epi_z1(p, acc, pairreg, g):
    center(p, acc, RS_)
    gelu(p, acc, acc)
    pack(p, acc, 34)
    p(f"s_mul_i32 s51, s{SSB}, {28*2048}")
    p(f"s_lshl_b32 s52, s{pairreg}, 12")
    p("s_add_u32 s51, s51, s52")
    p(f"s_add_u32 s51, s51, {WS_Z1+g*2048}")
    store2(p, 34, 51)

def epi_z2(p, acc):
    center(p, acc, RS_)
    gelu(p, acc, ZH)
    p(f"v_mov_b32 v34, v{ZH}")
    p(f"v_mul_f32 v35, v{ZH}, v{ZH}")
    for r in range(1,16):
        p(f"v_add_f32 v34, v34, v{ZH+r}")
        p(f"v_fmac_f32 v35, v{ZH+r}, v{ZH+r}")
    p("v_mov_b32 v36, v34"); p("v_mov_b32 v37, v35")
    p("v_permlane32_swap_b32 v36, v34")
    p("v_permlane32_swap_b32 v37, v35")
    p("v_add_f32 v34, v34, v36")
    p("v_add_f32 v35, v35, v37")

LA=5
def mtile(p, acc, addr, off_fn, cs_addr, cs_off_fn, addr2=None, cs_addr2=None, part='all', sides=(), split=43008):
    NB=8; WB=48
    def rd(ks):
        b=WB+4*(ks%NB)
        for ii in range(2):
            o=off_fn(ks,ii); r=addr
            if o>=split and addr2 is not None: r=addr2; o-=split
            p(f"ds_read_b64_tr_b16 {v(b+2*ii,2)}, v{r} offset:{o}")
    def csrd(kc):
        for ii in range(2):
            o=cs_off_fn(kc,ii); r=cs_addr
            if o>=split and cs_addr2 is not None: r=cs_addr2; o-=split
            p(f"ds_read_b64_tr_b16 {v(26+4*(kc&1)+2*ii,2)}, v{r} offset:{o}")
    if part in ('all','pre'):
        for ks in range(LA): rd(ks)
        csrd(0)
    if part=='pre': return
    if K1PRIO=='M': p("s_setprio 1")
    if K1PRIO=='E': p("s_setprio 0")
    cs_zero(p)
    sched_rd={3*kc-2:kc for kc in range(1,7)}
    sched_st={3*kc+1:kc for kc in range(7)}
    for ks in range(28):
        c = "0" if ks==0 else v(acc,16)
        p(f"v_mfma_f32_32x32x16_bf16 {v(acc,16)}, {v(WB+4*(ks%NB),4)}, {v(XF+4*ks,4)}, {c}")
        if ks+LA<28: rd(ks+LA)
        if ks in sched_st: cs_step(p, 26+4*(sched_st[ks]&1))
        if ks in sched_rd: csrd(sched_rd[ks])
        if ks==23: cs_flush(p)
        if ks%3==2 and ks//3<len(sides): sides[ks//3](p)

def epi_head(p, acc, treg, lab):
    p(f"s_lshr_b32 s52, s{treg}, 4")
    p(f"s_and_b32 s53, s{treg}, 15")
    p(f"v_mov_b32 v46, v{RS_}")
    p("s_cmp_lg_u32 s52, 0")
    p(f"s_cbranch_scc1 {lab}_NQ")
    p(f"v_mul_f32 v46, 0x3e8b97f6, v46")
    p.label(f"{lab}_NQ")
    center(p, acc, 46)
    p("s_cmp_eq_u32 s52, 0"); p("s_cselect_b32 s54, 0, 1.0")
    p("s_cmp_eq_u32 s52, 1"); p("s_cselect_b32 s55, 1.0, 0")
    p("s_mov_b64 exec, s[58:59]")
    p(f"v_mov_b32 v{acc+12}, s54"); p(f"v_mov_b32 v{acc+13}, s55"); p(f"v_mov_b32 v{acc+14}, 0"); p(f"v_mov_b32 v{acc+15}, 0")
    p("s_mov_b64 exec, -1")
    pack(p, acc, 34)
    p(f"s_lshl_b32 s54, s53, 6")
    p(f"s_add_u32 s54, s54, s{SSB}")
    p("s_cmp_eq_u32 s52, 2")
    p(f"s_cbranch_scc1 {lab}_V")
    p("s_lshl_b32 s55, s54, 11")
    p(f"s_add_u32 s55, s55, {WS_Q}")
    p("s_lshl_b32 s54, s54, 12")
    p(f"s_add_u32 s54, s54, {WS_KV}")
    p("s_cmp_eq_u32 s52, 0")
    p("s_cselect_b32 s54, s55, s54")
    p.begin_opt()
    store2(p, 34, 54)
    p(f"s_branch {lab}_D")
    p.end_opt()
    p.label(f"{lab}_V")
    p.begin_opt()
    transpose(p, 34, 20, VH+2, 'v')
    p("s_lshl_b32 s54, s54, 12")
    p(f"s_add_u32 s54, s54, {WS_KV+2048}")
    store2(p, 20, 54)
    p.end_opt()
    p.label(f"{lab}_D")

def publish_z2(p):
    p(f"v_add_u32 v18, {L_ZS}, v{VH+6}")
    p("ds_read_b64 v[36:37], v18")
    p("v_add_f32 v36, v36, v34")
    p("v_add_f32 v38, v37, v35")
    p(f"v_mov_b32 v37, s{STAG}")
    p(f"v_mov_b32 v39, s{STAG}")
    p(f"s_mul_i32 s51, s{SSB}, {14*512}")
    p(f"s_lshl_b32 s52, s{SCB}, 9")
    p("s_add_u32 s51, s51, s52")
    p(f"s_add_u32 s51, s51, {WS_ST}")
    p("s_mov_b32 exec_hi, 0")
    p(f"buffer_store_dwordx4 v[36:39], v{VL16}, s[{WS}:{WS+3}], s51 offen sc1")
    p("s_mov_b64 exec, -1")

GR=48
GRQ=[112,116,120,18,22,34,38]
def granule_loads(p):
    p(f"s_mul_i32 s90, s{SSB}, {14*512}")
    p(f"s_add_u32 s90, s90, {WS_ST}")
    for i in range(7):
        p(f"s_add_u32 s53, s90, {i*1024}")
        p(f"buffer_load_dwordx4 {v(GRQ[i],4)}, v{VL16}, s[{WS}:{WS+3}], s53 offen sc1", tag='gr')

def granule_groups():
    G=[]
    for i in range(7):
        def one(q,i=i):
            if i==0:
                q(f"s_mul_i32 s90, s{SSB}, {14*512}")
                q(f"s_add_u32 s90, s90, {WS_ST}")
            q(f"s_add_u32 s91, s90, {i*1024}")
            q(f"buffer_load_dwordx4 {v(GRQ[i],4)}, v{VL16}, s[{WS}:{WS+3}], s91 offen sc1", tag='gr')
        G.append(one)
    return G

def fin_stats(p, lab):
    Q=GRQ
    p(f"s_mov_b32 s52, 0")
    p.wait('gr')
    p.label(f"{lab}_CHECK")
    for i in range(7):
        p(f"v_xor_b32 v{26+(i&1)}, s{STAG}, v{Q[i]+1}")
        p(f"v_xor_b32 v{28+(i&1)}, s{STAG}, v{Q[i]+3}")
        if i<2: p(f"v_or_b32 v{30+i}, v{26+i}, v{28+i}")
        else: p(f"v_or3_b32 v{30+(i&1)}, v{30+(i&1)}, v{26+(i&1)}, v{28+(i&1)}")
    p("v_or_b32 v30, v30, v31")
    p("v_cmp_ne_u32 vcc, 0, v30")
    p("s_cmp_eq_u64 vcc, 0")
    p(f"s_cbranch_scc1 {lab}_POLLDONE")
    p("s_add_u32 s52, s52, 1")
    p("s_cmp_gt_u32 s52, 0x40000")
    p(f"s_cbranch_scc1 {lab}_POLLDONE")
    granule_loads(p)
    p("s_waitcnt vmcnt(0)")
    p(f"s_branch {lab}_CHECK")
    p.label(f"{lab}_POLLDONE")
    stamp(p,'polled')
    p(f"v_add_f32 v30, v{Q[0]}, v{Q[1]}")
    p(f"v_add_f32 v31, v{Q[0]+2}, v{Q[1]+2}")
    for i in range(2,7):
        p(f"v_add_f32 v30, v30, v{Q[i]}")
        p(f"v_add_f32 v31, v31, v{Q[i]+2}")
    p("v_mov_b32 v34, v30"); p("v_mov_b32 v35, v31")
    p("v_permlane32_swap_b32 v30, v34")
    p("v_permlane32_swap_b32 v31, v35")
    p("v_add_f32 v34, v34, v30")
    p("v_add_f32 v35, v35, v31")
    p("v_mul_f32 v34, 0x3a924925, v34")
    p("v_mul_f32 v35, 0x3a924925, v35")
    p("v_fma_f32 v35, -v34, v34, v35")
    p("v_add_f32 v35, 0x3727c5ac, v35")
    p("v_rsq_f32 v35, v35")
    p(f"v_add_u32 v18, {L_ZS}, v{VH+6}")
    p("v_mul_f32 v34, v34, v35")
    p("ds_write_b64 v18, v[34:35]", tag='zf')
    if layout.FUSE: return
    p(f"s_sub_u32 s53, s{SW8}, 4")
    p(f"s_or_b32 s53, s53, s{SCB}")
    p("s_cmp_lg_u32 s53, 0")
    p(f"s_cbranch_scc1 {lab}_NOBUMP")
    p.begin_opt()
    p(f"v_mov_b32 v18, s{STAG}")
    p("s_mov_b64 exec, 1")
    p(f"buffer_store_dword v18, v{VH+8}, s[{WS}:{WS+3}], s{SEP} offen sc1")
    p("s_mov_b64 exec, -1")
    p.end_opt()
    p.label(f"{lab}_NOBUMP")

def fin_tile(p):
    for r in range(16):
        p(f"v_fma_f32 v{ZH+r}, v{ZH+r}, v35, -v34")
    pack(p, ZH, 36)
    transpose(p, 36, 20, VH+3, 'z')
    p(f"s_lshl_b32 s51, s{SCB}, 7")
    p(f"s_lshl_b32 s52, s{SSB}, 1")
    p("s_add_u32 s51, s51, s52")
    p("s_lshl_b32 s51, s51, 11")
    p(f"s_lshl_b32 s52, s{SG}, 10")
    p("s_add_u32 s51, s51, s52")
    p(f"s_add_u32 s51, s51, {WS_Z2}")
    p(f"buffer_store_dwordx4 {v(20,4)}, v{VL16}, s[{WS}:{WS+3}], s51 offen{SML()}")
    p(f"buffer_store_dwordx4 {v(24,4)}, v{VL16}, s[{WS}:{WS+3}], s51 offen offset:2048{SML()}")

def touch_wsp(p):
    srd(p, 76, 92, S*S*2)
    p(f"s_lshl_b32 s51, s2, 2")
    p(f"s_add_u32 s51, s51, s{SW}")
    p(f"s_lshl_b32 s51, s51, 13")
    p(f"v_lshlrev_b32 v11, 7, v0")
    p(f"buffer_load_dword v{VH}, v11, s[76:79], s51 offen")

def first_epi(p, g, lab, firsts, after_z2=None):
    G=dma_p3_groups(firsts)
    p(f"s_cmp_ge_u32 s{SCB}, 14")
    p(f"s_cbranch_scc1 {lab}_Z1")
    p.begin_alt(); p.alt_branch()
    main=capture(lambda q: epi_z2(q, ACC[0]))
    p.extend(interleave(main, [capture(f) for f in G], 14, 150))
    if after_z2: after_z2(p)
    p(f"s_branch {lab}_D")
    p.alt_branch()
    p.label(f"{lab}_Z1")
    p(f"s_sub_u32 s57, s{SCB}, 2")
    main=capture(lambda q: epi_z1(q, ACC[0], 57, g))
    p.extend(interleave(main, [capture(f) for f in G], 14, 130))
    p.end_alt()
    p.label(f"{lab}_D")

def first_mtile(p, sides=()):
    mtile(p, ACC[0], VH+12, lambda ks,ii: ks*2048+ii*512, VH+13, lambda kc,ii: kc*8192+ii*512, VWR, VCSR, sides=sides, split=5*8192)
def pair_mtile(p, g, part='all', sides=()):
    if part!='post':
        p(f"v_add_u32 v{VH+10}, {L_P2}, v{VWR}")
        p(f"v_add_u32 v{VH+11}, {L_P2}, v{VCSR}")
    mtile(p, ACC[0], VH+10, lambda ks,ii: ks*2048+ii*512, VH+11, lambda kc,ii: kc*8192+ii*512, part=part, sides=sides)
def head_mtile(p, t, part='all', sides=()):
    if part!='post':
        p(f"v_add_u32 v{VH+10}, {56*t}, v{VP3R}")
        p(f"s_mul_i32 s51, s{SW}, {16*192}")
        p(f"v_add_u32 v{VH+11}, s51, v{VH+10}")
        p(f"v_add_u32 v{VH+12}, 43008, v{VH+10}")
        p(f"v_add_u32 v{VH+13}, 43008, v{VH+11}")
    mtile(p, ACC[0], VH+10, lambda ks,ii: ks*16*192+ii*4*192, VH+11, lambda kc,ii: kc*64*192+ii*4*192, VH+12, VH+13, part=part, sides=sides)
def head_epi(p, t, lab):
    p(f"s_mul_i32 s62, s{SCB}, 3")
    if t: p(f"s_add_u32 s62, s62, {t}")
    epi_head(p, ACC[0], 62, lab)
def bar(p, name, *tags):
    stamp(p,name+'w')
    if tags: p.wait(*tags)
    stamp(p,name+'a')
    p("s_barrier")
    stamp(p,name)

def group_code(p, g):
    A = (g==0); L = "KA" if A else "KB"
    p(f"s_mul_i32 s63, s{SCB}, 168")
    if A:
        p0_compute(p)
        stamp(p,'p0end')
        def zs_out(q):
            q(f"v_add_u32 v18, {L_ZS}, v{VH+6}")
            q("ds_write_b64 v18, v[34:35]", tag='zs')
        first_epi(p, 0, L+"F", [0,8], zs_out)
        bar(p,'s1end','zs')
        p(f"s_sub_u32 s57, s{SCB}, 2")
        p("s_cmp_ge_u32 s57, 12")
        p(f"s_cbranch_scc1 {L}_NOSECOND")
        p.begin_alt(); p.alt_branch()
        pair_mtile(p, 0, sides=dma_p3_groups([12,24][:P3D[0]])); bar(p,'s2end','cs')
        main=capture(lambda q: epi_z1(q, ACC[0], 57, 0))
        p.extend(interleave(main, [capture(f) for f in dma_p3_groups([12,24][P3D[0]:])], 14, 80))
        if MALLPF: touch_wsp(p)
        bar(p,'s3end','p3')
        head_mtile(p, 0); bar(p,'s4end','cs')
        p(f"s_branch {L}_JOIN")
        p.alt_branch()
        p.label(f"{L}_NOSECOND")
        for f in dma_p3_groups([12,24]): f(p)
        bar(p,'sx','p3')
        head_mtile(p, 0); bar(p,'s4x','cs')
        p.end_alt()
        p.label(f"{L}_JOIN")
        head_epi(p, 0, L+"H0")
        head_mtile(p, 2, 'pre')
        bar(p,'s5end')
        head_mtile(p, 2, 'post'); bar(p,'s6end','cs')
        head_epi(p, 2, L+"H2")
        stamp(p,'headsE')
        p(f"s_cmp_ge_u32 s{SCB}, 14")
        p(f"s_cbranch_scc1 {L}_NOFIN")
        p.begin_opt()
        p(f"v_add_u32 v18, {L_ZS}, v{VH+6}")
        p("ds_read_b64 v[34:35], v18")
        fin_tile(p)
        p.end_opt()
        p.label(f"{L}_NOFIN")
    else:
        p0_load(p)
        stamp(p,'p0end')
        first_mtile(p, sides=dma_p3_groups([4]))
        bar(p,'s1end','cs','p2')
        p(f"s_sub_u32 s57, s{SCB}, 2")
        p("s_cmp_ge_u32 s57, 12")
        p(f"s_cbranch_scc1 {L}_NOSECOND")
        p.begin_alt(); p.alt_branch()
        main=capture(lambda q: epi_z2(q, ACC[0]))
        p.extend(interleave(main, [capture(f) for f in dma_p3_groups([16,20][:P3D[1]])], 14, 150))
        publish_z2(p)
        pair_mtile(p, 1, 'pre')
        bar(p,'s2end')
        pair_mtile(p, 1, 'post', sides=dma_p3_groups([16,20][P3D[1]:])); bar(p,'s3end','cs','p3')
        epi_z1(p, ACC[0], 57, 1)
        if not GLSIDE: granule_loads(p)
        head_mtile(p, 1, 'pre')
        bar(p,'s4end')
        p(f"s_branch {L}_JOIN")
        p.alt_branch()
        p.label(f"{L}_NOSECOND")
        for f in dma_p3_groups([16,20]): f(p)
        bar(p,'sx','p3')
        first_epi(p, 1, L+"F", [], publish_z2)
        prep_issue(p)
        if not GLSIDE:
            p(f"s_cmp_ge_u32 s{SCB}, 14")
            p(f"s_cbranch_scc1 {L}_NOGL")
            p.begin_opt(); granule_loads(p); p.end_opt()
            p.label(f"{L}_NOGL")
        head_mtile(p, 1, 'pre')
        bar(p,'s4x')
        p.end_alt()
        p.label(f"{L}_JOIN")
        head_mtile(p, 1, 'post', sides=granule_groups() if GLSIDE else ()); bar(p,'s5end','cs')
        p(f"s_cmp_ge_u32 s{SCB}, 14")
        p(f"s_cbranch_scc1 {L}_NOST")
        p.begin_opt(); fin_stats(p, L); p.end_opt()
        p.label(f"{L}_NOST")
        head_epi(p, 1, L+"H1")
        bar(p,'s6end','zf')
        stamp(p,'headsE')
        p(f"s_cmp_ge_u32 s{SCB}, 14")
        p(f"s_cbranch_scc1 {L}_NOFIN")
        p.begin_opt()
        p(f"v_add_u32 v18, {L_ZS}, v{VH+6}")
        p("ds_read_b64 v[34:35], v18")
        fin_tile(p)
        p.end_opt()
        p.label(f"{L}_NOFIN")
        p(f"s_sub_u32 s57, s{SCB}, 2")
        p("s_cmp_lt_u32 s57, 12")
        p(f"s_cbranch_scc1 {L}_NOPREP")
        p.begin_opt(); prep_finish(p); p.end_opt()
        p.label(f"{L}_NOPREP")
    stamp(p,'end')
    PR.dump(p)
    if layout.FUSE:
        p("s_waitcnt vmcnt(0)")
        p("s_barrier")
        p("s_branch K2_FUSED")

def mall_prefetch(p, g):
    p(f"s_load_dwordx2 s[66:67], s[0:1], {KA_WSP if g else KA_WO}")
    if not g: p(f"s_load_dwordx2 s[70:71], s[0:1], {KA_WOUT}")
    p(f"s_sub_u32 s51, s{SCB}, 12")
    p(f"s_cmp_lt_u32 s{SCB}, 2")
    p(f"s_cselect_b32 s51, s{SCB}, s51")
    p(f"s_lshl_b32 s52, s{SRB}, 2")
    p("s_add_u32 s51, s51, s52")
    p("v_lshlrev_b32 v26, 7, v0")
    p("s_waitcnt lgkmcnt(0)")
    if g:
        srd(p, 72, 66, S*S*2)
        p("s_lshl_b32 s51, s51, 2")
        p(f"s_add_u32 s51, s51, s{SW}")
        p("s_lshl_b32 s51, s51, 15")
        for i in range(4):
            p(f"buffer_load_dword v27, v26, s[72:75], s51 offen")
            if i<3: p("s_add_u32 s51, s51, 8192")
    else:
        srd(p, 72, 66, D*D*2); srd(p, 76, 70, FH*D*2)
        p(f"s_mul_i32 s52, s51, {49*128}")
        p(f"s_mul_i32 s53, s51, {98*128}")
        p(f"s_sub_u32 s54, s{SW}, 1")
        p("s_min_u32 s54, s54, 1")
        p(f"s_mul_i32 s54, s54, {49*128}")
        p("s_add_u32 s53, s53, s54")
        p("v_min_u32 v28, 48, v0")
        p("v_lshlrev_b32 v28, 7, v28")
        p(f"s_cmp_lg_u32 s{SW}, 0")
        p.begin_alt()
        p("s_cbranch_scc1 K1_MPA")
        p.alt_branch()
        p(f"buffer_load_dword v27, v28, s[72:75], s52 offen")
        p("s_branch K1_MPB")
        p.alt_branch()
        p.label("K1_MPA")
        p(f"buffer_load_dword v27, v28, s[76:79], s53 offen")
        p.end_alt()
        p.label("K1_MPB")

NPREP=5
L_PREP=L_P2+4096
def prep_issue(p):
    p(f"s_load_dwordx2 s[66:67], s[0:1], {KA_WO}")
    p(f"s_load_dwordx2 s[68:69], s[0:1], {KA_WOUT}")
    p(f"s_sub_u32 s51, s{SCB}, 12")
    p(f"s_cmp_lt_u32 s{SCB}, 2")
    p(f"s_cselect_b32 s51, s{SCB}, s51")
    p(f"s_lshl_b32 s52, s{SRB}, 2")
    p("s_add_u32 s51, s51, s52")
    p("s_lshl_b32 s51, s51, 2")
    p(f"s_add_u32 s70, s51, s{SW}")
    p(f"s_mul_i32 s71, s{SW}, {NPREP*1024}")
    p(f"s_add_u32 s71, s71, {L_PREP}")
    p(f"s_mov_b32 s81, {D*D*2}")
    p(f"s_mov_b32 s82, {FH*D*2}")
    p("v_lshrrev_b32 v26, 2, v0")
    p(f"v_mul_u32_u24 v27, {D*2}, v26")
    p("v_and_b32 v28, 3, v0")
    p("v_lshl_add_u32 v27, v28, 4, v27")
    p("v_cmp_le_u32 vcc, 12, v26")
    p("v_mov_b32 v28, 0")
    p("v_mov_b32 v29, 0x7ff00000")
    p("v_cndmask_b32 v28, v28, v29, vcc")
    p("s_waitcnt lgkmcnt(0)")
    for i in range(NPREP):
        p(f"s_add_u32 s80, s70, {256*i}")
        p(f"s_mul_i32 s51, s80, 745")
        p("s_lshr_b32 s51, s51, 16")
        p("s_mul_i32 s52, s51, 88")
        p(f"s_sub_u32 s52, s80, s52")
        p("s_lshl_b32 s51, s51, 6")
        p("s_lshr_b32 s53, s52, 1")
        p("s_mul_i32 s53, s53, 28")
        p("s_and_b32 s54, s52, 1")
        p("s_lshl_b32 s55, s54, 4")
        p("s_add_u32 s53, s53, s55")
        p("s_sub_u32 s55, s52, 32")
        p("s_lshl_b32 s55, s55, 4")
        p("s_cmp_lt_u32 s52, 32")
        p("s_cselect_b32 s53, s53, s55")
        p("s_cselect_b32 s72, s66, s68")
        p("s_cselect_b32 s73, s67, s69")
        p("s_cselect_b32 s74, s81, s82")
        p("s_mov_b32 s75, 0x00020000")
        p("s_cselect_b32 s54, s54, 0")
        p(f"s_mul_i32 s53, s53, {D*2}")
        p("s_add_u32 s53, s53, s51")
        p("s_cmp_lt_u32 s80, 1232")
        p("s_cselect_b32 s53, s53, 0x7ff00000")
        p("s_sub_u32 s54, 0, s54")
        p("v_and_b32 v29, s54, v28")
        p("v_add_u32 v29, v29, v27")
        p(f"s_add_u32 m0, s71, {i*1024}")
        p("s_nop 0")
        p("buffer_load_dwordx4 v29, s[72:75], s53 offen lds", tag='pd')

def prep_finish(p):
    p("v_lshrrev_b32 v26, 4, v0")
    p("v_and_b32 v27, 1, v26")
    p("v_lshrrev_b32 v26, 1, v26")
    p("v_lshrrev_b32 v28, 2, v0")
    p("v_and_b32 v28, 3, v28")
    p("v_lshl_add_u32 v26, v26, 2, v28")
    p("v_lshlrev_b32 v26, 6, v26")
    p("v_lshl_add_u32 v26, v27, 5, v26")
    p("v_and_b32 v27, 3, v0")
    p("v_lshl_add_u32 v26, v27, 3, v26")
    p("v_add_u32 v26, s71, v26")
    p("s_waitcnt vmcnt(0)")
    for i in range(NPREP):
        p(f"ds_read_b64_tr_b16 {v(96+4*i,2)}, v26 offset:{i*1024}")
        p(f"ds_read_b64_tr_b16 {v(96+4*i+2,2)}, v26 offset:{i*1024+512}")
    for i in range(NPREP):
        p(f"s_add_u32 s80, s70, {256*i}")
        p(f"s_lshl_b32 s51, s80, 10")
        p(f"s_add_u32 s51, s51, {WS_WC}")
        p("s_cmp_lt_u32 s80, 1232")
        p("s_cselect_b32 s51, s51, 0x7ff00000")
        p(f"buffer_store_dwordx4 {v(96+4*i,4)}, v1, s[{WS}:{WS+3}], s51 offen{SM()}")

def KNAME(): return (NAME+'_kernel') if layout.FUSE else 'k1_kernel'
def code_prefetch(p):
    p(f"s_cmp_lg_u32 s{SW8}, 7")
    p("s_cbranch_scc1 K1_CP1")
    p.begin_opt()
    p("s_getpc_b64 s[66:67]")
    p.label("K1_PC")
    p(f"s_sub_u32 s66, s66, K1_PC-{KNAME()}")
    p("s_subb_u32 s67, s67, 0")
    p("s_mul_i32 s51, s15, 10")
    p("v_add_u32 v26, s51, v0")
    p("s_lshl_b32 s52, s2, 1")
    p(f"s_add_u32 s52, s52, ({'K2_FUSED' if layout.FUSE else 'k2_kernel'}-{KNAME()})/128-10")
    p("v_add_u32 v27, s52, v0")
    p("v_cmp_gt_u32 vcc, 10, v0")
    p("v_cndmask_b32 v26, v27, v26, vcc")
    p("v_lshlrev_b32 v26, 7, v26")
    p(f"v_min_u32 v26, CODE_END-{KNAME()}-4, v26")
    p("v_cmp_gt_u32 vcc, 12, v0")
    p("s_and_saveexec_b64 s[68:69], vcc")
    p("global_load_dword v27, v26, s[66:67]")
    p("s_mov_b64 exec, s[68:69]")
    p.end_opt()
    p.label("K1_CP1")

def l2_prefetch(p, g):
    T=38; L="K1_PF%d"%g
    p("s_and_b32 s51, s15, 7")
    p("s_lshr_b32 s52, s15, 3")
    if g==0:
        p.begin_alt()
        p(f"s_cmp_ge_u32 s{SW}, 2")
        p(f"s_cbranch_scc1 {L}_2")
        p.alt_branch()
        p("s_lshl_b32 s53, s52, 7")
        p(f"s_lshl_b32 s54, s{SW}, 6")
        p("s_add_u32 s53, s53, s54")
        p("v_add_u32 v18, s53, v0")
        p("v_lshrrev_b32 v19, 2, v18")
        p(f"v_mul_u32_u24 v19, {D*2}, v19")
        p("v_and_b32 v18, 3, v18")
        p("v_lshl_add_u32 v19, v18, 7, v19")
        p(f"s_mul_i32 s53, s{SRB}, {128*D*2}")
        p(f"s_add_u32 s53, s53, {3*128}")
        p(f"buffer_load_dword v{T}, v19, s[{XS}:{XS+3}], s53 offen")
        p(f"s_branch {L}_D")
        p.alt_branch()
        p.label(f"{L}_2")
        p(f"s_lshl_b32 s53, s{SW}, 4")
        p(f"s_mul_i32 s53, s53, {F*2}")
        p(f"s_cmp_eq_u32 s{SW}, 2")
        p(f"s_cselect_b32 s54, s{SP1}, s{SP2}")
        p("s_sub_u32 s54, s54, s53")
        p(f"s_cmp_eq_u32 s{SW}, 2")
        p("s_cselect_b32 s55, 32, 56")
        p("s_cselect_b32 s53, 192, 0")
        p("s_mul_i32 s62, s51, s55")
        p("s_add_u32 s53, s53, s62")
        p("s_sub_u32 s55, s55, 1")
        p("v_min_u32 v18, s55, v0")
        p("v_add_u32 v18, s53, v18")
        p(f"v_mul_u32_u24 v19, {F*2}, v18")
        p(f"buffer_load_dword v{T}, v19, s[{WIN}:{WIN+3}], s54 offen")
        p.end_alt()
        p.label(f"{L}_D")
    else:
        p(f"s_min_u32 s53, s{SW}, 2")
        p("s_mul_i32 s53, s53, 94")
        p(f"s_mul_i32 s54, s{SCB}, 168")
        p("s_add_u32 s54, s54, s53")
        p("s_mul_i32 s53, s51, 56")
        p("v_min_u32 v18, 55, v0")
        p("v_add_u32 v18, s53, v18")
        p(f"v_mul_u32_u24 v19, {3*D*2}, v18")
        p(f"buffer_load_dword v{T}, v19, s[{WQ}:{WQ+3}], s54 offen")

def epoch_load(p):
    if layout.FUSE: p(f"s_mov_b32 s{SEP}, {WS_EP}")
    else:
        p(f"s_lshl_b32 s{SEP}, s{SRB}, 7")
        p(f"s_add_u32 s{SEP}, s{SEP}, {WS_EP}")
    p(f"buffer_load_dword v{EPV}, v{VH+8}, s[{WS}:{WS+3}], s{SEP} offen sc1")

def gen():
    p=Prog(); prologue(p)
    p("s_mov_b32 s56, 0xbdd2d3e8")
    p("s_mov_b32 s58, 0"); p("s_mov_b32 s59, -1")
    p("s_mov_b32 s60, 0xffff0000")
    p(f"v_mov_b32 v{VH+8}, 0")
    p(f"s_cmp_ge_u32 s{SW8}, 4")
    p("s_cbranch_scc1 K1_GROUPB")
    p.begin_alt(); p.alt_branch()
    n0=PR.n; names0=list(PR.names)
    if layout.FUSE: epoch_load(p)
    for kc in range(3): dma_init(p,kc)
    if PREFETCH&1: l2_prefetch(p,0)
    setup_reads(p)
    p("v_mov_b32 v47, 0xc0135761")
    if layout.FUSE:
        p(f"v_add_u32 v{EPV}, 1, v{EPV}")
        p(f"v_readfirstlane_b32 s{STAG}, v{EPV}")
    stamp(p,'setup')
    group_code(p, 0)
    namesA=list(PR.names); PR.n=n0; PR.names=list(names0)
    if not layout.FUSE: p("s_branch K1_END")
    p.alt_branch()
    p.label("K1_GROUPB")
    epoch_load(p)
    for kc in range(3): dma_init(p,kc)
    if PREFETCH&2: l2_prefetch(p,1)
    if CODEPF: code_prefetch(p)
    setup_reads(p)
    p("v_mov_b32 v47, 0xc0135761")
    p(f"v_add_u32 v{EPV}, 1, v{EPV}")
    p(f"v_readfirstlane_b32 s{STAG}, v{EPV}")
    stamp(p,'setup')
    group_code(p, 1)
    PR.namesA=namesA
    p.end_alt()
    p.label("K1_END")
    p("s_endpgm")
    return p

PREFETCH=False; MALLPF=False; CODEPF=True; KROT=False; K1PRIO=''; LASTSC1=True; LATEKA=True; GLSIDE=True; P3D=(2,2)
def kernel(**opt):
    global PR, PREFETCH, MALLPF, CODEPF, KROT, K1PRIO, LASTSC1, LATEKA, LA, GLSIDE, P3D
    P3D=tuple(int(c) for c in opt.get('p3d','22'))
    GLSIDE=bool(int(opt.get('gls',1)))
    LA=int(opt.get('la',5))
    LATEKA=bool(int(opt.get('lka',1)))
    LASTSC1=bool(int(opt.get('lsc1',1)))
    K1PRIO=opt.get('k1p','')
    KROT=bool(int(opt.get('krot',0)))
    MALLPF=bool(int(opt.get('mpf',0))); CODEPF=bool(int(opt.get('cpf',1)))
    PREFETCH=int(opt.get('pf',0))
    PR=Prof(bool(int(opt.get('prof',0))),WS,SW8,WS_EP+(1<<19))
    text=gen().finalize()
    if PR.on: open('k1_stamps.txt','w').write(" ".join(PR.namesA)+"\n"+" ".join(PR.names))
    return dict(name="k1_kernel", text=text, grid=256, block=512, lds=LDS_K1, vgpr=256, sgpr=102, accum=256)
```

```python
from asmlib import *
from layout import *
import layout
def SM(): return layout.STMOD
def LM(): return ' sc1' if (layout.FUSE and not ACQ) else ''
from k3 import srd

LDS_RING = 0
LDS_AC   = 98304
LDS_AM   = 147456
LDS_CNT  = 147456 + 4096
LDS_K2   = 147456 + 4096 + 64

SW=16; SHEAD=17; SQB=18; STB=19; SFB=20; SJ=21; SX=22
WS=24; WSP=28; AUX=32; AUX2=36; STAG=15; XS3=88; OUT3=92

from profutil import Prof
PR=Prof(False,WS,23,0)
PROF=False
PRION=0
SKIPDMA=0
PRIOPAT=''
STARTPRIO=0
ONLY=''
WPF=1
DELAYW=1
ROT=3
KINT=1
EARLYRING=1
FPF=0
CODEPF2=0
FROT=0
HMOD=' sc1'
EARLYPUB=1
LATEBAR=2
POLLW=7
OMOD=' sc1'
PRIOLATE=0
ACQ=0
EPOLL=0
FSH=4
WFIRST=0
AWAIT=1
def stamp(p,name): PR.stamp(p,str(name))
def dump_stamps(p,n): PR.dump(p)

def role_sync(p, idx, lab):
    p(f"v_mov_b32 v12, {LDS_CNT+4*idx}")
    p("v_mov_b32 v13, 1")
    p("s_mov_b64 exec, 1")
    p("ds_add_u32 v12, v13")
    p("s_mov_b64 exec, -1")
    p.label(lab)
    p("ds_read_b32 v13, v12")
    p("s_waitcnt lgkmcnt(0)")
    p("v_readfirstlane_b32 s61, v13")
    p("s_cmp_lt_u32 s61, 4")
    p(f"s_cbranch_scc1 {lab}")

def prologue(p):
    F=layout.FUSE
    if F:
        p.label("K2_FUSED")
        p("s_mov_b32 s23, s16")
        p(f"s_mov_b32 s{STAG}, s21")
    else:
        p("s_cmp_ge_u32 s2, 256")
        p("s_cbranch_scc1 K2_END")
        p(f"s_load_dwordx2 s[4:5], s[0:1], {KA_WS}")
    p(f"s_load_dwordx2 s[6:7], s[0:1], {KA_WSP}")
    p(f"s_load_dwordx2 s[8:9], s[0:1], {KA_BSP}")
    p(f"s_load_dwordx2 s[10:11], s[0:1], {KA_X}")
    p(f"s_load_dwordx2 s[12:13], s[0:1], {KA_OUT}")
    if CODEPF2 and not F:
        p("s_getpc_b64 s[66:67]")
        p.label("K2_PC")
        p("s_sub_u32 s66, s66, K2_PC-k2_kernel")
        p("s_subb_u32 s67, s67, 0")
        p("v_lshrrev_b32 v2, 6, v0")
        p("s_lshr_b32 s68, s2, 3")
        p("s_lshl_b32 s68, s68, 3")
        p("v_add_u32 v3, s68, v2")
        p("v_lshlrev_b32 v3, 7, v3")
        p("v_min_u32 v3, CODE_END-k2_kernel-4, v3")
        p("s_mov_b64 exec, 1")
        p(f"global_load_dword v15, v3, s[66:67]")
        if PROF: p("s_waitcnt vmcnt(0)")
        p("s_mov_b64 exec, -1")
    if not F:
        p("v_lshrrev_b32 v1, 6, v0")
        p("v_and_b32 v0, 63, v0")
        p("v_readfirstlane_b32 s23, v1")
    p(f"s_and_b32 s{SX}, s2, 7")
    p(f"s_lshr_b32 s{SJ}, s2, 3")
    p(f"s_and_b32 s{SW}, s23, 3")
    p("v_lshlrev_b32 v1, 4, v0")
    if F:
        p("s_cmp_lg_u32 s23, 0")
        p("s_cbranch_scc1 K2_NOF1")
        p.begin_opt()
        p("v_lshlrev_b32 v2, 10, v0")
        p(f"v_mov_b32 v3, s{STAG}")
        p("s_lshl_b32 s63, s2, 2")
        p(f"s_add_u32 s63, s63, {WS_F1}")
        p("s_mov_b64 exec, 0xff")
        p(f"buffer_store_dword v3, v2, s[{WS}:{WS+3}], s63 offen sc1")
        p("s_mov_b64 exec, -1")
        p.end_opt()
        p.label("K2_NOF1")
    if F:
        p("s_waitcnt lgkmcnt(0)")
        counters_init(p)
    elif LATEBAR==0:
        kernarg_ready(p, True)
        counters_init(p)
        p("s_barrier")
    PR.real(p,62)
    stamp(p,'start')
    p("s_cmp_ge_u32 s23, 4")
    p("s_cbranch_scc1 K2_ROLEB")

def kernarg_ready(p, now=False):
    if layout.FUSE: return
    if LATEBAR==0 and not now: return
    p("s_waitcnt lgkmcnt(0)")
    srd(p, WS, 4, WS_SIZE)
    p(f"s_mov_b32 s63, {WS_EP}")
    p("v_mov_b32 v14, 0")
    p(f"buffer_load_dword v14, v14, s[{WS}:{WS+3}], s63 offen sc1")
    if LATEBAR==2:
        counters_init(p)
        p("s_barrier")
def counters_init(p):
    p(f"v_mov_b32 v12, {LDS_CNT}")
    p("v_mov_b32 v13, 0")
    p("ds_write_b32 v12, v13")
    p("ds_write_b32 v12, v13 offset:4")
    p("ds_write_b32 v12, v13 offset:8")
    p("s_waitcnt lgkmcnt(0)")
def start_barrier(p, writer=False, lab=""):
    if layout.FUSE or LATEBAR!=1: return
    if writer:
        p("s_cmp_lg_u32 s23, 0")
        p(f"s_cbranch_scc1 {lab}")
        counters_init(p)
        p.label(lab)
    p("s_barrier")

def phase1_wait(p):
    p("s_cmp_lg_u32 s23, 0")
    p("s_cbranch_scc1 K2_P1GO")
    p.begin_opt()
    p(f"s_lshl_b32 s63, s{SX}, 10")
    p(f"s_add_u32 s63, s63, {WS_F1}")
    p("s_mov_b32 s62, 0")
    p.label("K2_P1POLL")
    p(f"buffer_load_dwordx4 v[4:7], v1, s[{WS}:{WS+3}], s63 offen sc1")
    p("s_waitcnt vmcnt(0)")
    p(f"v_cmp_ne_u32 s[64:65], s{STAG}, v4")
    p(f"v_cmp_ne_u32 s[66:67], s{STAG}, v5")
    p(f"v_cmp_ne_u32 s[68:69], s{STAG}, v6")
    p(f"v_cmp_ne_u32 s[70:71], s{STAG}, v7")
    p("s_or_b64 s[64:65], s[64:65], s[66:67]")
    p("s_or_b64 s[68:69], s[68:69], s[70:71]")
    p("s_or_b64 s[64:65], s[64:65], s[68:69]")
    p("s_cmp_eq_u64 s[64:65], 0")
    p("s_cbranch_scc1 K2_P1OK")
    p("s_add_u32 s62, s62, 1")
    p("s_cmp_lt_u32 s62, 0x40000")
    p("s_cbranch_scc1 K2_P1POLL")
    p.label("K2_P1OK")
    p("s_cmp_lg_u32 s2, 0")
    p("s_cbranch_scc1 K2_P1GO")
    p(f"s_mov_b32 s63, {WS_EP}")
    p(f"v_mov_b32 v3, s{STAG}")
    p("v_mov_b32 v2, 0")
    p("s_mov_b64 exec, 1")
    p(f"buffer_store_dword v3, v2, s[{WS}:{WS+3}], s63 offen sc1")
    p("s_mov_b64 exec, -1")
    p.end_opt()
    if ACQ==1:
        p("buffer_inv sc1")
        p("s_waitcnt vmcnt(0)")
    p.label("K2_P1GO")
    p("s_barrier")
    PR.real(p,61)
    stamp(p,'p1go')

Q0=16; O0=48; S_=[112,128]; P_=[144,152]; KV0=160; ME=224; T0=228
def kvb(b): return KV0+16*b

def attention(p, force_fallback=False):
    SKV=40; SQ=41; SNT=42; SOFF=43; SK=44; SCNT=45; SIT=46
    p(f"s_lshr_b32 s40, s{SJ}, 4")
    p(f"s_lshl_b32 s41, s{SX}, 1")
    p(f"s_add_u32 s{SHEAD}, s40, s41")
    p(f"s_and_b32 s{SQB}, s{SJ}, 15")
    p(f"s_lshl_b32 s40, s{SHEAD}, 17")
    p(f"s_lshl_b32 s41, s{SQB}, 13")
    p(f"s_add_u32 s47, s40, s41")
    if WS_Q: p(f"s_add_u32 s47, s47, {WS_Q}")
    for rho in range(4):
        p(f"s_add_u32 s{54+rho}, s{SW}, {rho}")
        p(f"s_and_b32 s{54+rho}, s{54+rho}, 3")
        p(f"s_lshl_b32 s{54+rho}, s{54+rho}, 11")
        p(f"s_add_u32 s{54+rho}, s{54+rho}, s47")
    p(f"s_lshl_b32 s40, s{SHEAD}, 18")
    p(f"s_lshl_b32 s41, s{SW}, 16")
    p(f"s_add_u32 s40, s40, s41")
    p(f"s_add_u32 s{SKV}, s40, {WS_KV}")
    kernarg_ready(p)
    for rho in range(4):
        p(f"buffer_load_dwordx4 {v(Q0+8*rho,4)}, v1, s[{WS}:{WS+3}], s{54+rho} offen{LM()}")
        p(f"buffer_load_dwordx4 {v(Q0+8*rho+4,4)}, v1, s[{WS}:{WS+3}], s{54+rho} offen offset:1024{LM()}")
    p("s_mov_b32 s58, 1")
    p(f"s_mov_b32 s{SNT}, {16 if force_fallback else 1}")
    p(f"s_mov_b32 s{SOFF}, {'0' if force_fallback else '0x42800000'}")
    p.label("A_RETRY")
    for j in range(4): p(f"v_mov_b32 v{ME+j}, 0xff7fffff")
    p(f"s_mov_b32 s{SCNT}, s{SNT}")
    def ld_tile(t_imm_base_sreg, b, part):
        for i in range(2):
            p(f"buffer_load_dwordx4 {v(kvb(b)+8*part+4*i,4)}, v1, s[{WS}:{WS+3}], s{t_imm_base_sreg} offen offset:{(2*part+i)*1024}{LM()}")
    ld_tile(SKV, 0, 0)
    if EARLYRING:
        ld_tile(SKV, 0, 1)
        p(f"s_add_u32 s{SK}, s{SKV}, 4096")
        for t in range(1,3):
            ld_tile(SK, t, 0); ld_tile(SK, t, 1)
            p(f"s_add_u32 s{SK}, s{SK}, 4096")
    p(f"s_mov_b32 s62, s{SKV}")
    for r in range(64): p(f"v_mov_b32 v{O0+r}, 0")
    for r in range(8): p(f"v_mov_b32 v{P_[1]+r}, 0")
    for r in range(8): p(f"v_mov_b32 v{kvb(3)+8+r}, 0")
    p("s_cmp_eq_u32 s58, 1")
    p("s_cbranch_scc0 A_MAXLOOP")
    p("s_mov_b32 s58, 0")
    start_barrier(p, True, "A_NOINIT")
    p.label("A_MAXLOOP")
    for j in range(4):
        Sx = S_[j&1]
        p(f"v_mfma_f32_32x32x16_bf16 {v(Sx,16)}, {v(kvb(0),4)}, {v(Q0+8*j,4)}, 0")
        p(f"v_mfma_f32_32x32x16_bf16 {v(Sx,16)}, {v(kvb(0)+4,4)}, {v(Q0+8*j+4,4)}, {v(Sx,16)}")
        if j>0:
            Sy=S_[(j-1)&1]
            maxtree(p,Sy,ME+j-1)
    maxtree(p,S_[1],ME+3)
    p(f"s_sub_u32 s{SCNT}, s{SCNT}, 1")
    p(f"s_cmp_eq_u32 s{SCNT}, 0")
    p("s_cbranch_scc1 A_MAXDONE")
    p.begin_opt()
    p("s_add_u32 s62, s62, 4096")
    ld_tile(62, 0, 0)
    p("s_waitcnt vmcnt(0)")
    p("s_branch A_MAXLOOP")
    p.end_opt()
    p.label("A_MAXDONE")
    stamp(p,'maxdone')
    p(f"s_cmp_eq_u32 s{SNT}, 1")
    p("s_cbranch_scc1 A_KEEPK")
    p.begin_opt()
    ld_tile(SKV, 0, 0)
    p.end_opt()
    p.label("A_KEEPK")
    for j in range(4):
        m=ME+j; t=T0
        p(f"v_mov_b32 v{t}, v{m}")
        p(f"v_permlane32_swap_b32 v{t}, v{m}")
        p(f"v_max_f32 v{m}, v{t}, v{m}")
        p(f"v_add_f32 v{m}, s{SOFF}, v{m}")
        p(f"v_sub_f32 v{t}, 0, v{m}")
        p(f"v_and_b32 v{t+1}, 0xffff0000, v{t}")
        p(f"v_sub_f32 v{t+2}, v{t}, v{t+1}")
        p(f"v_and_b32 v{t+2}, 0xffff0000, v{t+2}")
        p(f"v_add_f32 v{t+3}, v{t+1}, v{t+2}")
        p(f"v_sub_f32 v{m}, 0, v{t+3}")
        p(f"v_lshrrev_b32 v{t+1}, 16, v{t+1}")
        p(f"v_or_b32 v{t+1}, v{t+1}, v{t+2}")
        p(f"s_mov_b64 exec, s[48:49]")
        p(f"v_mov_b32 v{Q0+8*j+6}, v{t+1}")
        p(f"s_mov_b64 exec, -1")
    def QK(u):
        j=u&3; b=(u>>2)&3; Sx=S_[u&1]
        return [f"v_mfma_f32_32x32x16_bf16 {v(Sx,16)}, {v(kvb(b),4)}, {v(Q0+8*j,4)}, 0",
                f"v_mfma_f32_32x32x16_bf16 {v(Sx,16)}, {v(kvb(b)+4,4)}, {v(Q0+8*j+4,4)}, {v(Sx,16)}"]
    def PV(u):
        j=u&3; b=(u>>2)&3; Px=P_[u&1]; O=O0+16*j
        return [f"v_mfma_f32_32x32x16_bf16 {v(O,16)}, {v(kvb(b)+8,4)}, {v(Px,4)}, {v(O,16)}",
                f"v_mfma_f32_32x32x16_bf16 {v(O,16)}, {v(kvb(b)+12,4)}, {v(Px+4,4)}, {v(O,16)}"]
    for m_ in QK(0): p(m_)
    main=[]
    assert EARLYRING
    if not EARLYRING:
        def ringload(q, t, b, k):
            q(f"buffer_load_dwordx4 {v(kvb(b)+4*k,4)}, v1, s[{WS}:{WS+3}], s{SK} offen offset:{k*1024}{LM()}")
        sides=[]
        p(f"s_mov_b32 s{SK}, s{SKV}")
        sides.append(capture(lambda q: ringload(q,0,0,2))); sides.append(capture(lambda q: (ringload(q,0,0,3), q(f"s_add_u32 s{SK}, s{SK}, 4096"))))
        for t in (1,2):
            for k in range(4):
                sides.append(capture(lambda q,t=t,k=k: (ringload(q,t,t,k), q(f"s_add_u32 s{SK}, s{SK}, 4096") if k==3 else None)))
        p.extend(interleave(main, sides, 0, 70))
    def period(u, loads):
        Sx=S_[u&1]; Px=P_[u&1]
        qk=QK(u+1); pv=PV(u-1)
        ms=[qk[0],pv[0],qk[1],pv[1]]
        ex=[f"v_exp_f32 v{Sx+i}, v{Sx+i}" for i in range(16)]
        cv=[f"v_cvt_pk_bf16_f32 v{Px+i}, v{Sx+2*i}, v{Sx+2*i+1}" for i in range(8)]
        for g in range(4):
            p(ms[g])
            if g < len(loads) and loads[g]:
                for x in loads[g]: p(x)
            for k in range(2):
                i=2*g+k
                p(ex[2*i]); p(ex[2*i+1])
                if i>0: p(cv[i-1])
        p(cv[7])
    def iteration(last):
        for tl in range(4):
            for j in range(4):
                u=4*tl+j
                loads=[None]*4
                nb=(tl+3)&3
                doload = (not last) or tl==0
                if doload and j==0:
                    loads[2]=[f"buffer_load_dwordx4 {v(kvb(nb),4)}, v1, s[{WS}:{WS+3}], s{SK} offen offset:0{LM()}"]
                    loads[3]=[f"buffer_load_dwordx4 {v(kvb(nb)+4,4)}, v1, s[{WS}:{WS+3}], s{SK} offen offset:1024{LM()}"]
                if doload and j==1:
                    loads[0]=[f"buffer_load_dwordx4 {v(kvb(nb)+8,4)}, v1, s[{WS}:{WS+3}], s{SK} offen offset:2048{LM()}"]
                    loads[1]=[f"buffer_load_dwordx4 {v(kvb(nb)+12,4)}, v1, s[{WS}:{WS+3}], s{SK} offen offset:3072{LM()}",
                              f"s_add_u32 s{SK}, s{SK}, 4096"]
                period(u,loads)
    stamp(p,'loopstart')
    p(f"s_mov_b32 s{SIT}, 3")
    p.begin_loop(visits=3)
    p.label("A_LOOP")
    iteration(False)
    p(f"s_sub_u32 s{SIT}, s{SIT}, 1")
    p(f"s_cmp_lg_u32 s{SIT}, 0")
    p("s_cbranch_scc1 A_LOOP")
    p.end_loop()
    iteration(True)
    for m_ in PV(63): p(m_)
    stamp(p,'loopend')
    p("s_mov_b32 s50, 0x71800000")
    p("s_mov_b64 s[52:53], 0")
    for j in range(4):
        p(f"v_cmp_ngt_f32 vcc, s50, v{O0+16*j+12}")
        p("s_or_b64 s[52:53], s[52:53], vcc")
    p(f"s_cmp_eq_u32 s53, 0")
    p("s_cbranch_scc1 A_OK")
    p(f"s_cmp_eq_u32 s{SNT}, 16")
    p("s_cbranch_scc1 A_OK")
    p(f"s_mov_b32 s{SNT}, 16")
    p(f"s_mov_b32 s{SOFF}, 0")
    p(f"s_mov_b64 exec, s[48:49]")
    for j in range(4): p(f"v_mov_b32 v{Q0+8*j+6}, 0")
    p(f"s_mov_b64 exec, -1")
    p("s_branch A_RETRY")
    p.label("A_OK")

def maxtree(p, Sy, dst):
    t=T0
    for i in range(4):
        p(f"v_max3_f32 v{t+i}, v{Sy+4*i}, v{Sy+4*i+1}, v{Sy+4*i+2}")
    p(f"v_max3_f32 v{t}, v{t}, v{Sy+3}, v{Sy+7}")
    p(f"v_max3_f32 v{t+1}, v{t+1}, v{Sy+11}, v{Sy+15}")
    p(f"v_max3_f32 v{t}, v{t}, v{t+2}, v{t+3}")
    p(f"v_max3_f32 v{dst}, v{dst}, v{t}, v{t+1}")

def attention_publish(p):
    p(f"s_mul_i32 s40, s{SW}, 12288")
    p(f"s_add_u32 s40, s40, {LDS_AC}")
    p(f"v_add_u32 v2, s40, v1")
    for rho in range(1,4):
        for q in range(4):
            p(f"ds_write_b128 v2, {v(O0+16*rho+4*q,4)} offset:{(rho-1)*4096+q*1024}", tag='apub')
    p(f"v_and_b32 v3, 31, v0")
    p(f"v_lshlrev_b32 v3, 2, v3")
    p(f"s_lshl_b32 s40, s{SW}, 10")
    p(f"s_add_u32 s40, s40, {LDS_AM}")
    p(f"v_add_u32 v4, s40, v3")
    for rho in range(4):
        p(f"v_log_f32 v{T0+rho}, v{O0+16*rho+12}")
    for rho in range(4):
        p(f"v_add_f32 v{T0+rho}, v{T0+rho}, v{ME+rho}")
    p(f"s_mov_b64 exec, s[48:49]")
    for rho in range(4):
        p(f"ds_write_b32 v4, v{ME+rho} offset:{rho*256}", tag='apub')
        p(f"ds_write_b32 v4, v{T0+rho} offset:{rho*256+128}", tag='apub')
    p(f"s_mov_b64 exec, -1")
    p.wait('apub')

def attention_finish(p):
    R=112
    MM=160; LG=164
    for rho in range(4):
        p(f"s_sub_u32 s40, s{SW}, {rho}")
        p("s_and_b32 s40, s40, 3")
        p("s_lshl_b32 s41, s40, 10")
        p(f"s_add_u32 s41, s41, {LDS_AM+rho*256}")
        p(f"v_add_u32 v4, s41, v3")
        p(f"ds_read_b32 v{MM+rho}, v4")
        p(f"ds_read_b32 v{LG+rho}, v4 offset:128")
        if rho>0:
            p("s_mul_i32 s41, s40, 12288")
            p(f"s_add_u32 s41, s41, {LDS_AC+(rho-1)*4096}")
            p(f"v_add_u32 v2, s41, v1")
            for q in range(4):
                p(f"ds_read_b128 {v(R+16*(rho-1)+4*q,4)}, v2 offset:{q*1024}")
    t=T0
    p(f"v_max3_f32 v{t}, v{LG}, v{LG+1}, v{LG+2}")
    p(f"v_max_f32 v{t}, v{t}, v{LG+3}")
    for rho in range(4):
        p(f"v_sub_f32 v{LG+rho}, v{LG+rho}, v{t}")
        p(f"v_sub_f32 v{MM+rho}, v{MM+rho}, v{t}")
    for rho in range(4):
        p(f"v_exp_f32 v{LG+rho}, v{LG+rho}")
        p(f"v_exp_f32 v{MM+rho}, v{MM+rho}")
    p(f"v_add_f32 v{LG}, v{LG}, v{LG+1}")
    p(f"v_add_f32 v{LG+2}, v{LG+2}, v{LG+3}")
    p(f"v_add_f32 v{LG}, v{LG}, v{LG+2}")
    p(f"v_rcp_f32 v{LG}, v{LG}")
    for rho in range(4):
        p(f"v_mul_f32 v{MM+rho}, v{MM+rho}, v{LG}")
    for r in range(16):
        p(f"v_mul_f32 v{O0+r}, v{O0+r}, v{MM}")
    for rho in range(1,4):
        for r in range(16):
            p(f"v_fmac_f32 v{O0+r}, v{R+16*(rho-1)+r}, v{MM+rho}")
    p(f"s_mov_b64 exec, s[48:49]")
    for r in range(12,16): p(f"v_mov_b32 v{O0+r}, 0")
    p(f"s_mov_b64 exec, -1")
    for i in range(8):
        p(f"v_cvt_pk_bf16_f32 v{R+i}, v{O0+2*i}, v{O0+2*i+1}")
    p(f"s_lshl_b32 s40, s{SQB}, 2")
    p(f"s_add_u32 s40, s40, s{SW}")
    p(f"s_mul_i32 s40, s40, {88*1024}")
    p(f"s_lshl_b32 s41, s{SHEAD}, 11")
    p(f"s_add_u32 s40, s40, s41")
    p(f"s_add_u32 s40, s40, {WS_H}")
    p(f"buffer_store_dwordx4 {v(R,4)}, v1, s[{WS}:{WS+3}], s40 offen{SM()}")
    p(f"buffer_store_dwordx4 {v(R+4,4)}, v1, s[{WS}:{WS+3}], s40 offen offset:1024{SM()}")

GACC=128; GA=64; GB=48
def TH(c): return (1-(c&1)) if EARLYPUB else (c&1)
def gemm(p):
    SROW=[40,41,42,43]; SRING=44; SZ=45; ST=46
    VD=[2,3]; VR=[4,5,6,7]
    p(f"s_mul_i32 s46, s{SJ}, 37")
    p("s_lshr_b32 s46, s46, 8")
    p("s_mul_i32 s47, s46, 7")
    p(f"s_sub_u32 s47, s{SJ}, s47")
    p(f"s_lshr_b32 s48, s{SX}, 1")
    p("s_lshl_b32 s48, s48, 2")
    p(f"s_add_u32 s{STB}, s48, s46")
    p(f"s_and_b32 s48, s{SX}, 1")
    p("s_mul_i32 s48, s48, 7")
    p(f"s_add_u32 s{SFB}, s48, s47")
    for rho in range(4):
        p(f"s_add_u32 s46, s{SW}, {rho}")
        p("s_and_b32 s46, s46, 3")
        p("s_lshl_b32 s46, s46, 5")
        p(f"s_lshl_b32 s47, s{STB}, 7")
        p("s_add_u32 s46, s46, s47")
        p("s_lshl_b32 s46, s46, 12")
        p(f"s_lshl_b32 s47, s{SW}, {7 if KINT else 10}")
        p(f"s_add_u32 s{SROW[rho]}, s46, s47")
    p(f"s_mul_i32 s{SRING}, s{SW}, 24576")
    p(f"s_lshl_b32 s46, s{SFB}, 7")
    p(f"s_lshl_b32 s47, s{SW}, {2 if KINT else 5}")
    p("s_add_u32 s46, s46, s47")
    p("s_lshl_b32 s46, s46, 11")
    p(f"s_add_u32 s{SZ}, s46, {WS_Z2}")
    p("v_lshrrev_b32 v8, 3, v0")
    p("v_lshlrev_b32 v8, 12, v8")
    p("v_lshrrev_b32 v9, 4, v0")
    p("v_and_b32 v10, 7, v0")
    p("v_xor_b32 v11, v10, v9")
    p("v_lshl_add_u32 v2, v11, 4, v8")
    p("v_xor_b32 v11, 4, v11")
    p("v_lshl_add_u32 v3, v11, 4, v8")
    p("v_and_b32 v8, 31, v0")
    p("v_lshrrev_b32 v9, 5, v0")
    p("v_lshrrev_b32 v10, 1, v8")
    p("v_and_b32 v10, 7, v10")
    p("v_xor_b32 v10, v10, v9")
    p("v_lshlrev_b32 v8, 7, v8")
    p(f"v_add_u32 v8, s{SRING}, v8")
    for u in range(4):
        p(f"v_xor_b32 v11, {2*u}, v10")
        p(f"v_lshl_add_u32 v{VR[u]}, v11, 4, v8")
    SROT=52; SWO=[53,54]; SZO=[55,56]
    p(f"s_and_b32 s{SROT}, s{STB if ROT==1 else SFB}, { {3:1,4:3}.get(ROT,7) }")
    if ROT==3: p(f"s_lshl_b32 s{SROT}, s{SROT}, 2")
    if ROT==4: p(f"s_lshl_b32 s{SROT}, s{SROT}, 1")
    def chunk_offsets(sc):
        e=sc&1
        if ROT:
            p(f"s_add_u32 s57, s{SROT}, {sc}")
            p("s_and_b32 s57, s57, 7")
            p(f"s_lshl_b32 s{SWO[e]}, s57, {9 if KINT else 7}")
            p(f"s_lshl_b32 s57, s57, {15 if KINT else 13}")
            p(f"s_add_u32 s{SZO[e]}, s57, s{SZ}")
        else:
            p(f"s_mov_b32 s{SWO[e]}, {sc*(512 if KINT else 128)}")
            p(f"s_add_u32 s{SZO[e]}, s{SZ}, {sc*(32768 if KINT else 8192)}")
    done=set()
    def need(sc):
        if sc not in done: done.add(sc); chunk_offsets(sc)
    def dma(c, which=range(8)):
        sc=c>>1; th=TH(c); slot=c%3
        need(sc)
        for i in which:
            if SKIPDMA and (i&1) and c>1: continue
            rho=2*th+(i>>2)
            p(f"s_add_u32 m0, s{SRING}, {slot*8192+i*1024}")
            p(f"s_add_u32 s{ST}, s{SROW[rho]}, s{SWO[sc&1]}")
            if i&3: p(f"s_add_u32 s{ST}, s{ST}, {(8*(i&3))*4096}")
            p(f"buffer_load_dwordx4 v{VD[i&1]}, s[{WSP}:{WSP+3}], s{ST} offen lds", tag=f'dma{slot}')
    def aload(sc, lo, hi):
        e=sc&1
        need(sc)
        for k in range(lo,hi):
            if k%4==0 or k==lo: p(f"s_add_u32 s{ST+1}, s{SZO[e]}, {(k&~3)*1024}")
            p(f"buffer_load_dwordx4 {v(GA+e*32+4*k,4)}, v1, s[{WS}:{WS+3}], s{ST+1} offen offset:{(k%4)*1024}{LM()}")
    def bread(c,u):
        slot=c%3; st=(c*4+u)&1
        for tl in range(2):
            p(f"ds_read_b128 {v(GB+st*8+4*tl,4)}, v{VR[u]} offset:{slot*8192+tl*4096}")
    kernarg_ready(p)
    srd(p, WSP, 6, S*S*2)
    srd(p, AUX, 8, S*2)
    if STARTPRIO: p("s_setprio 1")
    if layout.FUSE and FPF==2:
        dma(0); dma(1)
        p("s_barrier")
        aload(0,0,8)
    elif layout.FUSE and FPF==1:
        dma(0)
        p("s_barrier")
        aload(0,0,4); dma(1); aload(0,4,8)
    elif layout.FUSE:
        p("s_barrier")
        dma(0); aload(0,0,4); dma(1); aload(0,4,8)
    else:
        dma(0); aload(0,0,4); dma(1); aload(0,4,8)
        start_barrier(p)
    stamp(p,'issued')
    p.wait('dma0')
    bread(0,0)
    stamp(p,'loopstart')
    for c in range(16):
        if c in (2,4,8,12): stamp(p,f'c{c}')
        if PRIOLATE and c==PRIOLATE: p("s_setprio 1")
        sc=c>>1; th=TH(c); e=sc&1
        for u in range(4):
            if PRIOPAT:
                on = PRIOPAT[(c*4+u) % len(PRIOPAT)]=='1'
                prev = PRIOPAT[(c*4+u-1) % len(PRIOPAT)]=='1' if (c or u) else False
                if on!=prev: p(f"s_setprio {1 if on else 0}")
            if u<3: nxt=(c,u+1)
            else: nxt=(c+1,0) if c<15 else None
            st=(c*4+u)&1
            k=0
            for tl in range(2):
                for fi in range(2):
                    acc=GACC+((2*th+tl)*2+fi)*16
                    cc = "0" if (sc==0 and u==0) else v(acc,16)
                    p(f"v_mfma_f32_32x32x16_bf16 {v(acc,16)}, {v(GA+e*32+4*(u*2+fi),4)}, {v(GB+st*8+4*tl,4)}, {cc}")
                    if k==0 and nxt:
                        if nxt[0]!=c: p.wait(f'dma{nxt[0]%3}')
                        bread(*nxt)
                    slot=u*4+k
                    if c==0:
                        if slot<8: dma(2,[slot])
                        if slot==8 and STARTPRIO: p("s_setprio 0")
                    else:
                        if c+2<16 and slot<8: dma(c+2,[slot])
                    if sc+1<8 and slot in (9,11,13,15) and c>=0:
                        kk=4*(c&1)+(slot-9)//2
                        aload(sc+1, kk, kk+1)
                    if EARLYPUB and c==15 and slot>=4:
                        for n in range((slot-4)*16//12, (slot-3)*16//12):
                            rho=2+n//8; fi_=(n//4)&1; q=n&3
                            if n==0: p(f"v_add_u32 v2, s44, v1")
                            p(f"ds_write_b128 v2, {v(GACC+(rho*2+fi_)*16+4*q,4)} offset:{(rho-1)*8192+fi_*4096+q*1024}", tag='gpub')
                    k+=1
    if PRIOPAT: p("s_setprio 0")

def gemm_publish(p):
    p(f"v_add_u32 v2, s44, v1")
    for rho in range(1,2 if EARLYPUB else 4):
        for fi in range(2):
            for q in range(4):
                p(f"ds_write_b128 v2, {v(GACC+(rho*2+fi)*16+4*q,4)} offset:{(rho-1)*8192+fi*4096+q*1024}", tag='gpub')
    p(f"s_lshl_b32 s46, s{STB}, 2")
    p(f"s_add_u32 s46, s46, s{SW}")
    p(f"s_mul_i32 s47, s46, {28*2048}")
    p(f"s_lshl_b32 s48, s{SFB}, 12")
    p("s_add_u32 s47, s47, s48")
    p(f"s_add_u32 s47, s47, {WS_Z1}")
    for k in range(4):
        p(f"buffer_load_dwordx4 {v(16+4*k,4)}, v1, s[{WS}:{WS+3}], s47 offen offset:{k*1024}{LM()}")
    p("v_and_b32 v8, 31, v0")
    p("v_lshlrev_b32 v8, 1, v8")
    p("s_lshl_b32 s48, s46, 6")
    p(f"buffer_load_ushort v9, v8, s[{AUX}:{AUX+3}], s48 offen")
    p.wait('gpub')

def gemm_finish(p):
    R=32
    for rho in range(1,4):
        p(f"s_sub_u32 s47, s{SW}, {rho}")
        p("s_and_b32 s47, s47, 3")
        p("s_mul_i32 s47, s47, 24576")
        p(f"s_add_u32 s47, s47, {(rho-1)*8192}")
        p(f"v_add_u32 v{2+rho}, s47, v1")
    for fi in range(2):
        for rho in range(1,4):
            for q in range(4):
                p(f"ds_read_b128 {v(R+32*(rho-1)+16*fi+4*q,4)}, v{2+rho} offset:{fi*4096+q*1024}")
    p(f"s_mul_i32 s47, s46, {88*1024}")
    p(f"s_lshl_b32 s48, s{SFB}, 12")
    p("s_add_u32 s47, s47, s48")
    p(f"s_add_u32 s47, s47, {WS_H+32*1024}")
    p("v_lshlrev_b32 v8, 16, v9")
    p("v_mov_b32 v9, v8")
    for fi in range(2):
        A=GACC+16*fi; P1=R+16*fi; P2=R+32+16*fi; P3=R+64+16*fi
        for r in range(0,16,2):
            p(f"v_pk_add_f32 {v(A+r,2)}, {v(A+r,2)}, {v(P1+r,2)}")
        for r in range(0,16,2):
            p(f"v_pk_add_f32 {v(P2+r,2)}, {v(P2+r,2)}, {v(P3+r,2)}")
        for r in range(0,16,2):
            p(f"v_pk_add_f32 {v(A+r,2)}, {v(A+r,2)}, v[8:9]")
        for r in range(0,16,2):
            p(f"v_pk_add_f32 {v(A+r,2)}, {v(A+r,2)}, {v(P2+r,2)}")
        for d in range(8):
            p(f"v_lshlrev_b32 v{P1+2*d}, 16, v{16+8*fi+d}")
            p(f"v_and_b32 v{P1+2*d+1}, 0xffff0000, v{16+8*fi+d}")
        for r in range(0,16,2):
            p(f"v_pk_mul_f32 {v(A+r,2)}, {v(A+r,2)}, {v(P1+r,2)}")
        for d in range(8):
            p(f"v_cvt_pk_bf16_f32 v{P3+d}, v{A+2*d}, v{A+2*d+1}")
        for u in range(2):
            p(f"buffer_store_dwordx4 {v(P3+4*u,4)}, v1, s[{WS}:{WS+3}], s47 offen offset:{(fi*2+u)*1024}{SM()}", tag='hst')

def signal(p, tblk_sreg, slot_expr_sreg, tag=None):
    if tag: p.wait(tag)
    else: p("s_waitcnt vmcnt(0)")
    if not layout.FUSE: p(f"v_readfirstlane_b32 s{STAG}, v14")
    p(f"s_lshl_b32 s64, s{tblk_sreg}, {5+FSH}")
    p(f"s_lshl_b32 s65, s{slot_expr_sreg}, {FSH}")
    p("s_add_u32 s64, s64, s65")
    p(f"s_add_u32 s64, s64, {WS_FL}")
    p(f"v_mov_b32 v12, s{STAG}")
    p("v_mov_b32 v13, 0")
    p("s_mov_b64 exec, 1")
    p(f"buffer_store_dword v12, v13, s[{WS}:{WS+3}], s64 offen sc1")
    p("s_mov_b64 exec, -1")

WO0=16; WH0=80; H0=136; FACC=192; RS3=272
STB3=66; SNB3=67
def hreg(k): return H0+4*k if k<14 else 4+4*(k-14)
def final_ids(p):
    srd(p, XS3, 10, S*D*2); srd(p, OUT3, 12, S*D*2)
    p(f"s_mul_i32 s72, s{SJ}, 37")
    p("s_lshr_b32 s72, s72, 8")
    p("s_mul_i32 s73, s72, 7")
    p(f"s_sub_u32 s{SNB3}, s{SJ}, s73")
    p(f"s_lshl_b32 s73, s{SX}, 2")
    p(f"s_add_u32 s{STB3}, s73, s72")
    p("s_mul_i32 s80, s72, 3")
    p(f"s_add_u32 s80, s80, s{SNB3}")
    p("s_sub_u32 s81, s80, 11")
    p("s_cmp_ge_u32 s80, 11")
    p("s_cselect_b32 s80, s81, s80")
    p(f"s_mul_i32 s72, s{SNB3}, {2*88*1024}")
    p(f"s_add_u32 s68, s72, {WS_WC}")
    p(f"s_mul_i32 s72, s{STB3}, {2*88*1024}")
    p(f"s_add_u32 s69, s72, {WS_H}")
def frag_loads(p, base, ks0_sreg, nk, regf, mod):
    p(f"s_lshl_b32 s72, s{ks0_sreg}, 10")
    p(f"s_add_u32 s73, s{base}, s72")
    if not FROT:
        p(f"s_mov_b32 s70, s73")
        p(f"s_add_u32 s71, s70, {88*1024}")
        for k in range(nk):
            for i in range(2):
                p(f"buffer_load_dwordx4 {v(regf(2*k+i),4)}, v1, s[{WS}:{WS+3}], s{70+i} offen offset:{(k%4)*1024}{mod}")
            if k%4==3 and k+1<nk:
                p("s_add_u32 s70, s70, 4096"); p("s_add_u32 s71, s71, 4096")
        return
    p("s_mov_b32 s81, s80")
    for k in range(nk):
        p("s_lshl_b32 s72, s81, 10")
        p("s_add_u32 s70, s73, s72")
        p(f"s_add_u32 s71, s70, {88*1024}")
        if k+1<nk:
            p("s_add_u32 s81, s81, 1")
            p(f"s_cmp_eq_u32 s81, {nk}")
            p("s_cselect_b32 s81, 0, s81")
        for i in range(2):
            p(f"buffer_load_dwordx4 {v(regf(2*k+i),4)}, v1, s[{WS}:{WS+3}], s{70+i} offen{mod}")
def frag_mfma(p, nk, wf, hf, first_zero):
    for k in range(nk):
        for ti in range(2):
            for ni in range(2):
                acc = FACC + (ti*2+ni)*16
                c = "0" if (k==0 and first_zero) else v(acc,16)
                p(f"v_mfma_f32_32x32x16_bf16 {v(acc,16)}, {v(wf(2*k+ni),4)}, {v(hf(2*k+ti),4)}, {c}")
def lds_wait(p, idx, n, lab):
    p(f"v_mov_b32 v12, {LDS_CNT+4*idx}")
    p.label(lab)
    p("ds_read_b32 v13, v12")
    p("s_waitcnt lgkmcnt(0)")
    p("v_readfirstlane_b32 s61, v13")
    p(f"s_cmp_lt_u32 s61, {n}")
    p(f"s_cbranch_scc1 {lab}")
def poll_flags(p, mask_lo, lab):
    p(f"s_lshl_b32 s72, s{STB3}, {6+FSH}")
    p(f"s_add_u32 s72, s72, {WS_FL}")
    p(f"v_lshlrev_b32 v3, {FSH}, v0")
    p(f"s_mov_b32 s74, {mask_lo}"); p(f"s_mov_b32 s75, {mask_lo}")
    p("s_mov_b32 s76, 0")
    p.label(lab)
    p(f"buffer_load_dword v12, v3, s[{WS}:{WS+3}], s72 offen sc1")
    p("s_waitcnt vmcnt(0)")
    p(f"v_cmp_ne_u32 vcc, s{STAG}, v12")
    p("s_and_b64 s[78:79], vcc, s[74:75]")
    p("s_cmp_eq_u64 s[78:79], 0")
    p(f"s_cbranch_scc1 {lab}_OK")
    p("s_add_u32 s76, s76, 1")
    p("s_cmp_lt_u32 s76, 0x40000")
    p(f"s_cbranch_scc1 {lab}")
    p.label(lab+"_OK")

NK3=11; W30=16; H30=104
def final_attention(p):
    final_ids(p)
    if AWAIT: lds_wait(p, AWAIT, 4, "K2_AWAIT")
    p(f"s_mul_i32 s77, s23, {NK3}")
    frag_loads(p, 68, 77, NK3, lambda k: W30+4*k, LM())
    stamp(p,'wissued')
    if POLLW<4:
        p(f"s_cmp_lg_u32 s23, {POLLW}")
        p("s_cbranch_scc1 K2_FH")
        poll_flags(p, "0x3fffffff", "K2_APOLL")
    p("s_branch K2_FH")

def final_gemm(p):
    final_ids(p)
    if EPOLL:
        p(f"s_lshl_b32 s79, s{STB3}, {6+FSH}")
        p(f"s_add_u32 s79, s79, {WS_FL}")
        p(f"v_lshlrev_b32 v3, {FSH}, v0")
        p(f"s_cmp_lg_u32 s23, {POLLW}")
        p("s_cbranch_scc1 K2_NOEP")
        p.begin_opt()
        p(f"buffer_load_dword v13, v3, s[{WS}:{WS+3}], s79 offen sc1", tag='fp')
        p.end_opt()
        p.label("K2_NOEP")
    p(f"s_mul_i32 s77, s23, {NK3}")
    frag_loads(p, 68, 77, NK3, lambda k: W30+4*k, LM())
    stamp(p,'wissued')
    if POLLW>=4:
        p(f"s_cmp_lg_u32 s23, {POLLW}")
        p("s_cbranch_scc1 K2_FH")
        if EPOLL:
            p.wait('fp')
            p(f"v_cmp_ne_u32 vcc, s{STAG}, v13")
            p("s_mov_b32 s74, 0x3fffffff"); p("s_mov_b32 s75, 0x3fffffff")
            p("s_and_b64 s[78:79], vcc, s[74:75]")
            p("s_cmp_eq_u64 s[78:79], 0")
            p("s_cbranch_scc1 K2_FH")
        poll_flags(p, "0x3fffffff", "K2_GPOLL")
    p("s_branch K2_FH")

def final_common(p):
    p.label("K2_FH")
    p("s_barrier")
    stamp(p,'flags')
    p(f"s_mul_i32 s77, s23, {NK3}")
    frag_loads(p, 69, 77, NK3, lambda k: H30+4*k, HMOD)
    p("v_lshrrev_b32 v3, 3, v0")
    p(f"s_lshl_b32 s72, s{STB3}, 6")
    p(f"s_lshl_b32 s73, s23, 3")
    p("s_add_u32 s72, s72, s73")
    p("v_add_u32 v3, s72, v3")
    p(f"v_mul_u32_u24 v3, {D*2}, v3")
    p("v_and_b32 v2, 7, v0")
    p("v_lshlrev_b32 v2, 4, v2")
    p(f"s_lshl_b32 s73, s{SNB3}, 7")
    p("v_add3_u32 v2, v3, v2, s73")
    p(f"buffer_load_dwordx4 v[4:7], v2, s[{XS3}:{XS3+3}], 0 offen")
    frag_mfma(p, NK3, lambda k: W30+4*k, lambda k: H30+4*k, True)
    stamp(p,'fmfma')
    RS=RS3; ACC=FACC
    p("v_and_b32 v8, 31, v0")
    p(f"v_mul_u32_u24 v8, {RS}, v8")
    p("v_lshrrev_b32 v9, 5, v0")
    p("v_lshlrev_b32 v9, 4, v9")
    p(f"s_mul_i32 s72, s23, {64*RS}")
    p("v_add3_u32 v8, v8, v9, s72")
    for ti in range(2):
        for ni in range(2):
            acc = ACC + (ti*2+ni)*16
            for q in range(4):
                p(f"ds_write_b128 v8, {v(acc+4*q,4)} offset:{ti*32*RS+ni*128+q*32}", tag='pw')
    p.wait('pw')
    p("s_barrier")
    stamp(p,'fbar')
    p("v_lshrrev_b32 v8, 3, v0")
    p(f"s_lshl_b32 s72, s23, 3")
    p("v_add_u32 v8, s72, v8")
    p(f"v_mul_u32_u24 v8, {RS}, v8")
    p("v_and_b32 v9, 7, v0")
    p("v_lshlrev_b32 v9, 5, v9")
    p("v_add_u32 v8, v8, v9")
    p(f"v_add_u32 v9, {4*64*RS}, v8")
    R=16
    for w in range(8):
        for hh in range(2):
            a=8 if w<4 else 9
            p(f"ds_read_b128 {v(R+(w*2+hh)*4,4)}, v{a} offset:{(w%4)*64*RS+hh*16}")
    for st_ in (1,2,4):
        for w in range(0,8,2*st_):
            for e in range(0,8,2):
                p(f"v_pk_add_f32 {v(R+8*w+e,2)}, {v(R+8*w+e,2)}, {v(R+8*(w+st_)+e,2)}")
    for d in range(4):
        p(f"v_lshlrev_b32 v10, 16, v{4+d}")
        p(f"v_and_b32 v11, 0xffff0000, v{4+d}")
        p(f"v_add_f32 v{R+2*d}, v{R+2*d}, v10")
        p(f"v_add_f32 v{R+2*d+1}, v{R+2*d+1}, v11")
    for d in range(4):
        p(f"v_cvt_pk_bf16_f32 v{R+8+d}, v{R+2*d}, v{R+2*d+1}")
    p(f"buffer_store_dwordx4 {v(R+8,4)}, v2, s[{OUT3}:{OUT3+3}], 0 offen{OMOD}")
    stamp(p,'fend')

def prep(p):
    srd(p, AUX, 10, D*D*2)
    srd(p, AUX2, 12, FH*D*2)
    p(f"s_lshl_b32 s40, s{SX}, 2")
    p(f"s_add_u32 s40, s40, s{SJ}")
    p("s_sub_u32 s40, s40, 28")
    p("s_lshl_b32 s40, s40, 2")
    p(f"s_add_u32 s40, s40, s{SW}")
    p(f"s_mul_i32 s44, s{SW}, 24576")
    p("v_lshrrev_b32 v2, 2, v0")
    p(f"v_mul_u32_u24 v3, {D*2}, v2")
    p("v_and_b32 v4, 3, v0")
    p("v_lshl_add_u32 v3, v4, 4, v3")
    p("v_cmp_gt_u32 vcc, 12, v2")
    p("v_mov_b32 v5, 0x7ff00000")
    p("v_cndmask_b32 v4, v5, v3, vcc")
    p("v_lshrrev_b32 v5, 4, v0")
    p("v_and_b32 v6, 1, v5")
    p("v_lshrrev_b32 v5, 1, v5")
    p("v_lshrrev_b32 v7, 2, v0")
    p("v_and_b32 v7, 3, v7")
    p("v_lshl_add_u32 v5, v5, 2, v7")
    p("v_lshlrev_b32 v5, 6, v5")
    p("v_lshl_add_u32 v5, v6, 5, v5")
    p("v_and_b32 v6, 3, v0")
    p("v_lshl_add_u32 v5, v6, 3, v5")
    p("v_add_u32 v5, s44, v5")
    NI=10
    for i in range(NI):
        f=50+i
        p(f"s_add_u32 s{f}, s40, {128*i}")
        p(f"s_add_u32 m0, s44, {i*1024}")
        p(f"s_cmp_ge_u32 s{f}, 1232")
        p(f"s_cbranch_scc1 P_SKIP{i}")
        p(f"s_mul_i32 s41, s{f}, 745")
        p("s_lshr_b32 s41, s41, 16")
        p("s_mul_i32 s42, s41, 88")
        p(f"s_sub_u32 s42, s{f}, s42")
        p("s_lshl_b32 s41, s41, 6")
        p("s_cmp_ge_u32 s42, 32")
        p(f"s_cbranch_scc1 P_OUT{i}")
        p("s_lshr_b32 s43, s42, 1")
        p("s_mul_i32 s43, s43, 28")
        p("s_and_b32 s45, s42, 1")
        p("s_lshl_b32 s46, s45, 4")
        p("s_add_u32 s43, s43, s46")
        p(f"s_mul_i32 s43, s43, {D*2}")
        p("s_add_u32 s43, s43, s41")
        p("s_cmp_eq_u32 s45, 1")
        p(f"s_cbranch_scc1 P_PAD{i}")
        p(f"buffer_load_dwordx4 v3, s[{AUX}:{AUX+3}], s43 offen lds", tag='pd')
        p(f"s_branch P_SKIP{i}")
        p.label(f"P_PAD{i}")
        p(f"buffer_load_dwordx4 v4, s[{AUX}:{AUX+3}], s43 offen lds", tag='pd')
        p(f"s_branch P_SKIP{i}")
        p.label(f"P_OUT{i}")
        p("s_sub_u32 s43, s42, 32")
        p("s_lshl_b32 s43, s43, 4")
        p(f"s_mul_i32 s43, s43, {D*2}")
        p("s_add_u32 s43, s43, s41")
        p(f"buffer_load_dwordx4 v3, s[{AUX2}:{AUX2+3}], s43 offen lds", tag='pd')
        p.label(f"P_SKIP{i}")
    p("s_waitcnt vmcnt(0)")
    for i in range(NI):
        p(f"ds_read_b64_tr_b16 {v(16+4*i,2)}, v5 offset:{i*1024}")
        p(f"ds_read_b64_tr_b16 {v(16+4*i+2,2)}, v5 offset:{i*1024+512}")
    p("s_waitcnt lgkmcnt(0)")
    for i in range(NI):
        f=50+i
        p(f"s_cmp_ge_u32 s{f}, 1232")
        p(f"s_cbranch_scc1 P_SK2{i}")
        p(f"s_lshl_b32 s41, s{f}, 10")
        p(f"s_add_u32 s41, s41, {WS_WC}")
        p(f"buffer_store_dwordx4 {v(16+4*i,4)}, v1, s[{WS}:{WS+3}], s41 offen{SM()}")
        p.label(f"P_SK2{i}")

def gen(force_fallback=False):
    p=Prog(); prologue(p)
    n0=PR.n
    p.begin_alt()
    p.alt_branch()
    p("s_mov_b32 s48, 0"); p("s_mov_b32 s49, -1")
    if ONLY=='g': p("s_branch K2_END")
    if layout.FUSE: phase1_wait(p)
    attention(p, force_fallback); attention_publish(p)
    stamp(p,'published')
    role_sync(p,0,"A_SYNC")
    stamp(p,'barrier')
    attention_finish(p)
    stamp(p,'finished')
    p(f"s_lshl_b32 s62, s{SQB}, 2")
    p(f"s_add_u32 s62, s62, s{SW}")
    signal(p, 62, SHEAD)
    stamp(p,'end')
    p(f"s_cmp_ge_u32 s{SJ}, 28")
    p("s_cbranch_scc1 K2_AEXIT")
    final_attention(p)
    namesA=list(PR.names); PR.n=n0; PR.names=PR.names[:n0]
    p.alt_branch()
    p.label("K2_ROLEB")
    p(f"s_cmp_ge_u32 s{SJ}, 28")
    p("s_cbranch_scc1 K2_WPF" if WPF else "s_cbranch_scc1 K2_END")
    if ONLY=='a': p("s_branch K2_END")
    gemm(p); stamp(p,'loopend'); gemm_publish(p)
    stamp(p,'published')
    role_sync(p,1,"B_SYNC")
    stamp(p,'barrier')
    gemm_finish(p)
    p(f"v_mov_b32 v12, {LDS_CNT+8}")
    p("v_mov_b32 v13, 1")
    p("s_mov_b64 exec, 1")
    p("ds_add_u32 v12, v13")
    p("s_mov_b64 exec, -1")
    stamp(p,'finished')
    p(f"s_add_u32 s62, s{SFB}, 16")
    if WFIRST:
        final_ids(p)
        p(f"s_mul_i32 s77, s23, {NK3}")
        frag_loads(p, 68, 77, NK3, lambda k: W30+4*k, LM())
        stamp(p,'wissued')
        signal(p, 46, 62, 'hst')
        stamp(p,'end')
        p(f"s_cmp_lg_u32 s23, {POLLW}")
        p("s_cbranch_scc1 K2_FH")
        poll_flags(p, "0x3fffffff", "K2_GPOLL")
        p("s_branch K2_FH")
    else:
        signal(p, 46, 62)
        stamp(p,'end')
        final_gemm(p)
    namesB=list(PR.names)
    p.end_alt()
    PR.n=24; PR.names=[]
    final_common(p)
    dump_stamps(p,8)
    p("s_branch K2_END")
    texts=[p.finalize()]
    p=Prog()
    p.label("K2_AEXIT")
    dump_stamps(p,8)
    p("s_branch K2_END")
    if WPF:
        p.label("K2_WPF")
        kernarg_ready(p)
        if layout.FUSE or LATEBAR==1: p("s_barrier")
        lds_wait(p, 0, 1, "K2_WPFW")
        p(f"s_sub_u32 s61, s{SJ}, 28")
        p("s_lshl_b32 s61, s61, 2")
        p(f"s_add_u32 s61, s61, s{SW}")
        p(f"s_mul_i32 s61, s61, {616*128}")
        p(f"s_add_u32 s61, s61, {WS_WC}")
        p("v_lshlrev_b32 v12, 7, v0")
        for i in range(10):
            p(f"buffer_load_dword v13, v12, s[{WS}:{WS+3}], s61 offen")
            if i<9: p("s_add_u32 s61, s61, 8192")
    p.label("K2_END")
    p("s_endpgm")
    if PR.on:
        pad=lambda L: L+['-']*(24-len(L))
        open('k2_stamps.txt','w').write(" ".join(pad(namesA)+PR.names)+"\n"+" ".join(pad(namesB)+PR.names))
    texts.append(p.finalize())
    return "".join(texts)

def kernel(**opt):
    global PROF, PR, PRION, SKIPDMA, PRIOPAT, STARTPRIO, ONLY, WPF
    WPF=int(opt.get('wpf',1))
    global DELAYW
    DELAYW=int(opt.get('dw',1))
    global ROT, KINT, EARLYRING, FPF, CODEPF2, FROT
    FROT=int(opt.get('frot',0))
    global HMOD, EARLYPUB, LATEBAR, POLLW, OMOD, PRIOLATE, ACQ, EPOLL
    EPOLL=int(opt.get('epoll',0))
    global FSH, WFIRST, AWAIT
    WFIRST=int(opt.get('wfirst',0)); AWAIT=int(opt.get('await',1))
    FSH=int(opt.get('fsh',4))
    ACQ=int(opt.get('acq',0))
    PRIOLATE=int(opt.get('plate',0))
    OMOD={'0':'','1':' sc1','2':' nt','3':' sc0 sc1'}[opt.get('omod','1')]
    POLLW=int(opt.get('pollw',7))
    LATEBAR=int(opt.get('lb',2))
    EARLYPUB=int(opt.get('epub',1))
    HMOD={'0':'','1':' sc1','2':' nt','3':' sc0 sc1'}[opt.get('hmod','1')]
    CODEPF2=int(opt.get('cpf2',0))
    FPF=int(opt.get('fpf',0))
    EARLYRING=int(opt.get('er',1))
    ROT=int(opt.get('rot',3)); KINT=int(opt.get('kint',1))
    ONLY=opt.get('only','')
    STARTPRIO=int(opt.get('sp',0))
    PRIOPAT=opt.get('pp','')
    SKIPDMA=int(opt.get('skipdma',0))
    PRION=int(opt.get('prion',0))
    PROF=bool(int(opt.get('prof',0)))
    PR=Prof(PROF,WS,23,WS_ST+(1<<19),vr=15)
    return dict(name="k2_kernel", text=gen(force_fallback=bool(int(opt.get('ff',0)))), grid=256, block=512, lds=LDS_K2, vgpr=256, sgpr=102, accum=256)
```

```python
from asmlib import *
from layout import *
import layout
def SM(): return layout.STMOD
def LM(): return ' sc1' if (layout.FUSE and not ACQ) else ''
from k3 import srd

LDS_RING = 0
LDS_AC   = 98304
LDS_AM   = 147456
LDS_CNT  = 147456 + 4096
LDS_K2   = 147456 + 4096 + 64

SW=16; SHEAD=17; SQB=18; STB=19; SFB=20; SJ=21; SX=22
WS=24; WSP=28; AUX=32; AUX2=36; STAG=15; XS3=88; OUT3=92

from profutil import Prof
PR=Prof(False,WS,23,0)
PROF=False
PRION=0
SKIPDMA=0
PRIOPAT=''
STARTPRIO=0
ONLY=''
WPF=1
DELAYW=1
ROT=3
KINT=1
EARLYRING=1
FPF=0
CODEPF2=0
FROT=0
HMOD=' sc1'
EARLYPUB=1
LATEBAR=2
POLLW=7
OMOD=' sc1'
PRIOLATE=0
ACQ=0
EPOLL=0
FSH=4
WFIRST=0
AWAIT=1
EARLYZ=1
GTAG=0
TAILTM=0
def stamp(p,name): PR.stamp(p,str(name))
def dump_stamps(p,n): PR.dump(p)

def role_sync(p, idx, lab):
    p(f"v_mov_b32 v12, {LDS_CNT+4*idx}")
    p("v_mov_b32 v13, 1")
    p("s_mov_b64 exec, 1")
    p("ds_add_u32 v12, v13")
    p("s_mov_b64 exec, -1")
    p.label(lab)
    p("ds_read_b32 v13, v12")
    p("s_waitcnt lgkmcnt(0)")
    p("v_readfirstlane_b32 s61, v13")
    p("s_cmp_lt_u32 s61, 4")
    p(f"s_cbranch_scc1 {lab}")

def prologue(p):
    F=layout.FUSE
    if F:
        p.label("K2_FUSED")
        p("s_mov_b32 s23, s16")
        p(f"s_mov_b32 s{STAG}, s21")
    else:
        p("s_cmp_ge_u32 s2, 256")
        p("s_cbranch_scc1 K2_END")
        p(f"s_load_dwordx2 s[4:5], s[0:1], {KA_WS}")
    p(f"s_load_dwordx2 s[6:7], s[0:1], {KA_WSP}")
    p(f"s_load_dwordx2 s[8:9], s[0:1], {KA_BSP}")
    p(f"s_load_dwordx2 s[10:11], s[0:1], {KA_X}")
    p(f"s_load_dwordx2 s[12:13], s[0:1], {KA_OUT}")
    if CODEPF2 and not F:
        p("s_getpc_b64 s[66:67]")
        p.label("K2_PC")
        p("s_sub_u32 s66, s66, K2_PC-k2_kernel")
        p("s_subb_u32 s67, s67, 0")
        p("v_lshrrev_b32 v2, 6, v0")
        p("s_lshr_b32 s68, s2, 3")
        p("s_lshl_b32 s68, s68, 3")
        p("v_add_u32 v3, s68, v2")
        p("v_lshlrev_b32 v3, 7, v3")
        p("v_min_u32 v3, CODE_END-k2_kernel-4, v3")
        p("s_mov_b64 exec, 1")
        p(f"global_load_dword v15, v3, s[66:67]")
        if PROF: p("s_waitcnt vmcnt(0)")
        p("s_mov_b64 exec, -1")
    if not F:
        p("v_lshrrev_b32 v1, 6, v0")
        p("v_and_b32 v0, 63, v0")
        p("v_readfirstlane_b32 s23, v1")
    p(f"s_and_b32 s{SX}, s2, 7")
    p(f"s_lshr_b32 s{SJ}, s2, 3")
    p(f"s_and_b32 s{SW}, s23, 3")
    p("v_lshlrev_b32 v1, 4, v0")
    if F:
        p("s_cmp_lg_u32 s23, 0")
        p("s_cbranch_scc1 K2_NOF1")
        p.begin_opt()
        p("v_lshlrev_b32 v2, 10, v0")
        p(f"v_mov_b32 v3, s{STAG}")
        p("s_lshl_b32 s63, s2, 2")
        p(f"s_add_u32 s63, s63, {WS_F1}")
        p("s_mov_b64 exec, 0xff")
        p(f"buffer_store_dword v3, v2, s[{WS}:{WS+3}], s63 offen sc1")
        p("s_mov_b64 exec, -1")
        p.end_opt()
        p.label("K2_NOF1")
    if F:
        p("s_waitcnt lgkmcnt(0)")
        counters_init(p)
    elif LATEBAR==0:
        kernarg_ready(p, True)
        counters_init(p)
        p("s_barrier")
    PR.real(p,62)
    stamp(p,'start')
    p("s_cmp_ge_u32 s23, 4")
    p("s_cbranch_scc1 K2_ROLEB")

def kernarg_ready(p, now=False):
    if layout.FUSE: return
    if LATEBAR==0 and not now: return
    p("s_waitcnt lgkmcnt(0)")
    srd(p, WS, 4, WS_SIZE)
    p(f"s_mov_b32 s63, {WS_EP}")
    p("v_mov_b32 v14, 0")
    p(f"buffer_load_dword v14, v14, s[{WS}:{WS+3}], s63 offen sc1")
    if LATEBAR==2:
        counters_init(p)
        p("s_barrier")
def counters_init(p):
    p(f"v_mov_b32 v12, {LDS_CNT}")
    p("v_mov_b32 v13, 0")
    p("ds_write_b32 v12, v13")
    p("ds_write_b32 v12, v13 offset:4")
    p("ds_write_b32 v12, v13 offset:8")
    for o in (16,20,24,28): p(f"ds_write_b32 v12, v13 offset:{o}")
    p("s_waitcnt lgkmcnt(0)")
def start_barrier(p, writer=False, lab=""):
    if layout.FUSE or LATEBAR!=1: return
    if writer:
        p("s_cmp_lg_u32 s23, 0")
        p(f"s_cbranch_scc1 {lab}")
        counters_init(p)
        p.label(lab)
    p("s_barrier")

def phase1_wait(p):
    p("s_cmp_lg_u32 s23, 0")
    p("s_cbranch_scc1 K2_P1GO")
    p.begin_opt()
    p(f"s_lshl_b32 s63, s{SX}, 10")
    p(f"s_add_u32 s63, s63, {WS_F1}")
    p("s_mov_b32 s62, 0")
    p.label("K2_P1POLL")
    p(f"buffer_load_dwordx4 v[4:7], v1, s[{WS}:{WS+3}], s63 offen sc1")
    p("s_waitcnt vmcnt(0)")
    p(f"v_cmp_ne_u32 s[64:65], s{STAG}, v4")
    p(f"v_cmp_ne_u32 s[66:67], s{STAG}, v5")
    p(f"v_cmp_ne_u32 s[68:69], s{STAG}, v6")
    p(f"v_cmp_ne_u32 s[70:71], s{STAG}, v7")
    p("s_or_b64 s[64:65], s[64:65], s[66:67]")
    p("s_or_b64 s[68:69], s[68:69], s[70:71]")
    p("s_or_b64 s[64:65], s[64:65], s[68:69]")
    p("s_cmp_eq_u64 s[64:65], 0")
    p("s_cbranch_scc1 K2_P1OK")
    p("s_add_u32 s62, s62, 1")
    p("s_cmp_lt_u32 s62, 0x40000")
    p("s_cbranch_scc1 K2_P1POLL")
    p.label("K2_P1OK")
    p("s_cmp_lg_u32 s2, 0")
    p("s_cbranch_scc1 K2_P1GO")
    p(f"s_mov_b32 s63, {WS_EP}")
    p(f"v_mov_b32 v3, s{STAG}")
    p("v_mov_b32 v2, 0")
    p("s_mov_b64 exec, 1")
    p(f"buffer_store_dword v3, v2, s[{WS}:{WS+3}], s63 offen sc1")
    p("s_mov_b64 exec, -1")
    p.end_opt()
    if ACQ==1:
        p("buffer_inv sc1")
        p("s_waitcnt vmcnt(0)")
    p.label("K2_P1GO")
    p("s_barrier")
    PR.real(p,61)
    stamp(p,'p1go')

Q0=16; O0=48; S_=[112,128]; P_=[144,152]; KV0=160; ME=224; T0=228
def kvb(b): return KV0+16*b

def attention(p, force_fallback=False):
    SKV=40; SQ=41; SNT=42; SOFF=43; SK=44; SCNT=45; SIT=46
    p(f"s_lshr_b32 s40, s{SJ}, 4")
    p(f"s_lshl_b32 s41, s{SX}, 1")
    p(f"s_add_u32 s{SHEAD}, s40, s41")
    p(f"s_and_b32 s{SQB}, s{SJ}, 15")
    p(f"s_lshl_b32 s40, s{SHEAD}, 17")
    p(f"s_lshl_b32 s41, s{SQB}, 13")
    p(f"s_add_u32 s47, s40, s41")
    if WS_Q: p(f"s_add_u32 s47, s47, {WS_Q}")
    for rho in range(4):
        p(f"s_add_u32 s{54+rho}, s{SW}, {rho}")
        p(f"s_and_b32 s{54+rho}, s{54+rho}, 3")
        p(f"s_lshl_b32 s{54+rho}, s{54+rho}, 11")
        p(f"s_add_u32 s{54+rho}, s{54+rho}, s47")
    p(f"s_lshl_b32 s40, s{SHEAD}, 18")
    p(f"s_lshl_b32 s41, s{SW}, 16")
    p(f"s_add_u32 s40, s40, s41")
    p(f"s_add_u32 s{SKV}, s40, {WS_KV}")
    kernarg_ready(p)
    for rho in range(4):
        p(f"buffer_load_dwordx4 {v(Q0+8*rho,4)}, v1, s[{WS}:{WS+3}], s{54+rho} offen{LM()}")
        p(f"buffer_load_dwordx4 {v(Q0+8*rho+4,4)}, v1, s[{WS}:{WS+3}], s{54+rho} offen offset:1024{LM()}")
    p("s_mov_b32 s58, 1")
    p(f"s_mov_b32 s{SNT}, {16 if force_fallback else 1}")
    p(f"s_mov_b32 s{SOFF}, {'0' if force_fallback else '0x42800000'}")
    p.label("A_RETRY")
    for j in range(4): p(f"v_mov_b32 v{ME+j}, 0xff7fffff")
    p(f"s_mov_b32 s{SCNT}, s{SNT}")
    def ld_tile(t_imm_base_sreg, b, part):
        for i in range(2):
            p(f"buffer_load_dwordx4 {v(kvb(b)+8*part+4*i,4)}, v1, s[{WS}:{WS+3}], s{t_imm_base_sreg} offen offset:{(2*part+i)*1024}{LM()}")
    ld_tile(SKV, 0, 0)
    if EARLYRING:
        ld_tile(SKV, 0, 1)
        p(f"s_add_u32 s{SK}, s{SKV}, 4096")
        for t in range(1,3):
            ld_tile(SK, t, 0); ld_tile(SK, t, 1)
            p(f"s_add_u32 s{SK}, s{SK}, 4096")
    p(f"s_mov_b32 s62, s{SKV}")
    for r in range(64): p(f"v_mov_b32 v{O0+r}, 0")
    for r in range(8): p(f"v_mov_b32 v{P_[1]+r}, 0")
    for r in range(8): p(f"v_mov_b32 v{kvb(3)+8+r}, 0")
    p("s_cmp_eq_u32 s58, 1")
    p("s_cbranch_scc0 A_MAXLOOP")
    p("s_mov_b32 s58, 0")
    start_barrier(p, True, "A_NOINIT")
    p.label("A_MAXLOOP")
    for j in range(4):
        Sx = S_[j&1]
        p(f"v_mfma_f32_32x32x16_bf16 {v(Sx,16)}, {v(kvb(0),4)}, {v(Q0+8*j,4)}, 0")
        p(f"v_mfma_f32_32x32x16_bf16 {v(Sx,16)}, {v(kvb(0)+4,4)}, {v(Q0+8*j+4,4)}, {v(Sx,16)}")
        if j>0:
            Sy=S_[(j-1)&1]
            maxtree(p,Sy,ME+j-1)
    maxtree(p,S_[1],ME+3)
    p(f"s_sub_u32 s{SCNT}, s{SCNT}, 1")
    p(f"s_cmp_eq_u32 s{SCNT}, 0")
    p("s_cbranch_scc1 A_MAXDONE")
    p.begin_opt()
    p("s_add_u32 s62, s62, 4096")
    ld_tile(62, 0, 0)
    p("s_waitcnt vmcnt(0)")
    p("s_branch A_MAXLOOP")
    p.end_opt()
    p.label("A_MAXDONE")
    stamp(p,'maxdone')
    p(f"s_cmp_eq_u32 s{SNT}, 1")
    p("s_cbranch_scc1 A_KEEPK")
    p.begin_opt()
    ld_tile(SKV, 0, 0)
    p.end_opt()
    p.label("A_KEEPK")
    for j in range(4):
        m=ME+j; t=T0
        p(f"v_mov_b32 v{t}, v{m}")
        p(f"v_permlane32_swap_b32 v{t}, v{m}")
        p(f"v_max_f32 v{m}, v{t}, v{m}")
        p(f"v_add_f32 v{m}, s{SOFF}, v{m}")
        p(f"v_sub_f32 v{t}, 0, v{m}")
        p(f"v_and_b32 v{t+1}, 0xffff0000, v{t}")
        p(f"v_sub_f32 v{t+2}, v{t}, v{t+1}")
        p(f"v_and_b32 v{t+2}, 0xffff0000, v{t+2}")
        p(f"v_add_f32 v{t+3}, v{t+1}, v{t+2}")
        p(f"v_sub_f32 v{m}, 0, v{t+3}")
        p(f"v_lshrrev_b32 v{t+1}, 16, v{t+1}")
        p(f"v_or_b32 v{t+1}, v{t+1}, v{t+2}")
        p(f"s_mov_b64 exec, s[48:49]")
        p(f"v_mov_b32 v{Q0+8*j+6}, v{t+1}")
        p(f"s_mov_b64 exec, -1")
    def QK(u):
        j=u&3; b=(u>>2)&3; Sx=S_[u&1]
        return [f"v_mfma_f32_32x32x16_bf16 {v(Sx,16)}, {v(kvb(b),4)}, {v(Q0+8*j,4)}, 0",
                f"v_mfma_f32_32x32x16_bf16 {v(Sx,16)}, {v(kvb(b)+4,4)}, {v(Q0+8*j+4,4)}, {v(Sx,16)}"]
    def PV(u):
        j=u&3; b=(u>>2)&3; Px=P_[u&1]; O=O0+16*j
        return [f"v_mfma_f32_32x32x16_bf16 {v(O,16)}, {v(kvb(b)+8,4)}, {v(Px,4)}, {v(O,16)}",
                f"v_mfma_f32_32x32x16_bf16 {v(O,16)}, {v(kvb(b)+12,4)}, {v(Px+4,4)}, {v(O,16)}"]
    for m_ in QK(0): p(m_)
    main=[]
    assert EARLYRING
    if not EARLYRING:
        def ringload(q, t, b, k):
            q(f"buffer_load_dwordx4 {v(kvb(b)+4*k,4)}, v1, s[{WS}:{WS+3}], s{SK} offen offset:{k*1024}{LM()}")
        sides=[]
        p(f"s_mov_b32 s{SK}, s{SKV}")
        sides.append(capture(lambda q: ringload(q,0,0,2))); sides.append(capture(lambda q: (ringload(q,0,0,3), q(f"s_add_u32 s{SK}, s{SK}, 4096"))))
        for t in (1,2):
            for k in range(4):
                sides.append(capture(lambda q,t=t,k=k: (ringload(q,t,t,k), q(f"s_add_u32 s{SK}, s{SK}, 4096") if k==3 else None)))
        p.extend(interleave(main, sides, 0, 70))
    def period(u, loads):
        Sx=S_[u&1]; Px=P_[u&1]
        qk=QK(u+1); pv=PV(u-1)
        ms=[qk[0],pv[0],qk[1],pv[1]]
        ex=[f"v_exp_f32 v{Sx+i}, v{Sx+i}" for i in range(16)]
        cv=[f"v_cvt_pk_bf16_f32 v{Px+i}, v{Sx+2*i}, v{Sx+2*i+1}" for i in range(8)]
        for g in range(4):
            p(ms[g])
            if g < len(loads) and loads[g]:
                for x in loads[g]: p(x)
            for k in range(2):
                i=2*g+k
                p(ex[2*i]); p(ex[2*i+1])
                if i>0: p(cv[i-1])
        p(cv[7])
    def iteration(last):
        for tl in range(4):
            for j in range(4):
                u=4*tl+j
                loads=[None]*4
                nb=(tl+3)&3
                doload = (not last) or tl==0
                if doload and j==0:
                    loads[2]=[f"buffer_load_dwordx4 {v(kvb(nb),4)}, v1, s[{WS}:{WS+3}], s{SK} offen offset:0{LM()}"]
                    loads[3]=[f"buffer_load_dwordx4 {v(kvb(nb)+4,4)}, v1, s[{WS}:{WS+3}], s{SK} offen offset:1024{LM()}"]
                if doload and j==1:
                    loads[0]=[f"buffer_load_dwordx4 {v(kvb(nb)+8,4)}, v1, s[{WS}:{WS+3}], s{SK} offen offset:2048{LM()}"]
                    loads[1]=[f"buffer_load_dwordx4 {v(kvb(nb)+12,4)}, v1, s[{WS}:{WS+3}], s{SK} offen offset:3072{LM()}",
                              f"s_add_u32 s{SK}, s{SK}, 4096"]
                period(u,loads)
    stamp(p,'loopstart')
    p(f"s_mov_b32 s{SIT}, 3")
    p.begin_loop(visits=3)
    p.label("A_LOOP")
    iteration(False)
    p(f"s_sub_u32 s{SIT}, s{SIT}, 1")
    p(f"s_cmp_lg_u32 s{SIT}, 0")
    p("s_cbranch_scc1 A_LOOP")
    p.end_loop()
    iteration(True)
    for m_ in PV(63): p(m_)
    stamp(p,'loopend')
    p("s_mov_b32 s50, 0x71800000")
    p("s_mov_b64 s[52:53], 0")
    for j in range(4):
        p(f"v_cmp_ngt_f32 vcc, s50, v{O0+16*j+12}")
        p("s_or_b64 s[52:53], s[52:53], vcc")
    p(f"s_cmp_eq_u32 s53, 0")
    p("s_cbranch_scc1 A_OK")
    p(f"s_cmp_eq_u32 s{SNT}, 16")
    p("s_cbranch_scc1 A_OK")
    p(f"s_mov_b32 s{SNT}, 16")
    p(f"s_mov_b32 s{SOFF}, 0")
    p(f"s_mov_b64 exec, s[48:49]")
    for j in range(4): p(f"v_mov_b32 v{Q0+8*j+6}, 0")
    p(f"s_mov_b64 exec, -1")
    p("s_branch A_RETRY")
    p.label("A_OK")

def maxtree(p, Sy, dst):
    t=T0
    for i in range(4):
        p(f"v_max3_f32 v{t+i}, v{Sy+4*i}, v{Sy+4*i+1}, v{Sy+4*i+2}")
    p(f"v_max3_f32 v{t}, v{t}, v{Sy+3}, v{Sy+7}")
    p(f"v_max3_f32 v{t+1}, v{t+1}, v{Sy+11}, v{Sy+15}")
    p(f"v_max3_f32 v{t}, v{t}, v{t+2}, v{t+3}")
    p(f"v_max3_f32 v{dst}, v{dst}, v{t}, v{t+1}")

def attention_publish(p):
    p(f"s_mul_i32 s40, s{SW}, 12288")
    p(f"s_add_u32 s40, s40, {LDS_AC}")
    p(f"v_add_u32 v2, s40, v1")
    for rho in range(1,4):
        for q in range(4):
            p(f"ds_write_b128 v2, {v(O0+16*rho+4*q,4)} offset:{(rho-1)*4096+q*1024}", tag='apub')
    p(f"v_and_b32 v3, 31, v0")
    p(f"v_lshlrev_b32 v3, 2, v3")
    p(f"s_lshl_b32 s40, s{SW}, 10")
    p(f"s_add_u32 s40, s40, {LDS_AM}")
    p(f"v_add_u32 v4, s40, v3")
    for rho in range(4):
        p(f"v_log_f32 v{T0+rho}, v{O0+16*rho+12}")
    for rho in range(4):
        p(f"v_add_f32 v{T0+rho}, v{T0+rho}, v{ME+rho}")
    p(f"s_mov_b64 exec, s[48:49]")
    for rho in range(4):
        p(f"ds_write_b32 v4, v{ME+rho} offset:{rho*256}", tag='apub')
        p(f"ds_write_b32 v4, v{T0+rho} offset:{rho*256+128}", tag='apub')
    p(f"s_mov_b64 exec, -1")
    p.wait('apub')

def attention_finish(p):
    R=112
    MM=160; LG=164
    for rho in range(4):
        p(f"s_sub_u32 s40, s{SW}, {rho}")
        p("s_and_b32 s40, s40, 3")
        p("s_lshl_b32 s41, s40, 10")
        p(f"s_add_u32 s41, s41, {LDS_AM+rho*256}")
        p(f"v_add_u32 v4, s41, v3")
        p(f"ds_read_b32 v{MM+rho}, v4")
        p(f"ds_read_b32 v{LG+rho}, v4 offset:128")
        if rho>0:
            p("s_mul_i32 s41, s40, 12288")
            p(f"s_add_u32 s41, s41, {LDS_AC+(rho-1)*4096}")
            p(f"v_add_u32 v2, s41, v1")
            for q in range(4):
                p(f"ds_read_b128 {v(R+16*(rho-1)+4*q,4)}, v2 offset:{q*1024}")
    t=T0
    p(f"v_max3_f32 v{t}, v{LG}, v{LG+1}, v{LG+2}")
    p(f"v_max_f32 v{t}, v{t}, v{LG+3}")
    for rho in range(4):
        p(f"v_sub_f32 v{LG+rho}, v{LG+rho}, v{t}")
        p(f"v_sub_f32 v{MM+rho}, v{MM+rho}, v{t}")
    for rho in range(4):
        p(f"v_exp_f32 v{LG+rho}, v{LG+rho}")
        p(f"v_exp_f32 v{MM+rho}, v{MM+rho}")
    p(f"v_add_f32 v{LG}, v{LG}, v{LG+1}")
    p(f"v_add_f32 v{LG+2}, v{LG+2}, v{LG+3}")
    p(f"v_add_f32 v{LG}, v{LG}, v{LG+2}")
    p(f"v_rcp_f32 v{LG}, v{LG}")
    for rho in range(4):
        p(f"v_mul_f32 v{MM+rho}, v{MM+rho}, v{LG}")
    for r in range(16):
        p(f"v_mul_f32 v{O0+r}, v{O0+r}, v{MM}")
    for rho in range(1,4):
        for r in range(16):
            p(f"v_fmac_f32 v{O0+r}, v{R+16*(rho-1)+r}, v{MM+rho}")
    p(f"s_mov_b64 exec, s[48:49]")
    for r in range(12,16): p(f"v_mov_b32 v{O0+r}, 0")
    p(f"s_mov_b64 exec, -1")
    for i in range(8):
        p(f"v_cvt_pk_bf16_f32 v{R+i}, v{O0+2*i}, v{O0+2*i+1}")
    p(f"s_lshl_b32 s40, s{SQB}, 2")
    p(f"s_add_u32 s40, s40, s{SW}")
    p(f"s_mul_i32 s40, s40, {88*1024}")
    p(f"s_lshl_b32 s41, s{SHEAD}, 11")
    p(f"s_add_u32 s40, s40, s41")
    p(f"s_add_u32 s40, s40, {WS_H}")
    p(f"buffer_store_dwordx4 {v(R,4)}, v1, s[{WS}:{WS+3}], s40 offen{SM()}")
    p(f"buffer_store_dwordx4 {v(R+4,4)}, v1, s[{WS}:{WS+3}], s40 offen offset:1024{SM()}")

GACC=128; GA=64; GB=48
def TH(c): return (1-(c&1)) if EARLYPUB else (c&1)
def gemm(p):
    SROW=[40,41,42,43]; SRING=44; SZ=45; ST=46
    VD=[2,3]; VR=[4,5,6,7]
    p(f"s_mul_i32 s46, s{SJ}, 37")
    p("s_lshr_b32 s46, s46, 8")
    p("s_mul_i32 s47, s46, 7")
    p(f"s_sub_u32 s47, s{SJ}, s47")
    p(f"s_lshr_b32 s48, s{SX}, 1")
    p("s_lshl_b32 s48, s48, 2")
    p(f"s_add_u32 s{STB}, s48, s46")
    p(f"s_and_b32 s48, s{SX}, 1")
    p("s_mul_i32 s48, s48, 7")
    p(f"s_add_u32 s{SFB}, s48, s47")
    for rho in range(4):
        p(f"s_add_u32 s46, s{SW}, {rho}")
        p("s_and_b32 s46, s46, 3")
        p("s_lshl_b32 s46, s46, 5")
        p(f"s_lshl_b32 s47, s{STB}, 7")
        p("s_add_u32 s46, s46, s47")
        p("s_lshl_b32 s46, s46, 12")
        p(f"s_lshl_b32 s47, s{SW}, {7 if KINT else 10}")
        p(f"s_add_u32 s{SROW[rho]}, s46, s47")
    p(f"s_mul_i32 s{SRING}, s{SW}, 24576")
    p(f"s_lshl_b32 s46, s{SFB}, 7")
    p(f"s_lshl_b32 s47, s{SW}, {2 if KINT else 5}")
    p("s_add_u32 s46, s46, s47")
    p("s_lshl_b32 s46, s46, 11")
    p(f"s_add_u32 s{SZ}, s46, {WS_Z2}")
    p("v_lshrrev_b32 v8, 3, v0")
    p("v_lshlrev_b32 v8, 12, v8")
    p("v_lshrrev_b32 v9, 4, v0")
    p("v_and_b32 v10, 7, v0")
    p("v_xor_b32 v11, v10, v9")
    p("v_lshl_add_u32 v2, v11, 4, v8")
    p("v_xor_b32 v11, 4, v11")
    p("v_lshl_add_u32 v3, v11, 4, v8")
    p("v_and_b32 v8, 31, v0")
    p("v_lshrrev_b32 v9, 5, v0")
    p("v_lshrrev_b32 v10, 1, v8")
    p("v_and_b32 v10, 7, v10")
    p("v_xor_b32 v10, v10, v9")
    p("v_lshlrev_b32 v8, 7, v8")
    p(f"v_add_u32 v8, s{SRING}, v8")
    for u in range(4):
        p(f"v_xor_b32 v11, {2*u}, v10")
        p(f"v_lshl_add_u32 v{VR[u]}, v11, 4, v8")
    SROT=52; SWO=[53,54]; SZO=[55,56]
    p(f"s_and_b32 s{SROT}, s{STB if ROT==1 else SFB}, { {3:1,4:3}.get(ROT,7) }")
    if ROT==3: p(f"s_lshl_b32 s{SROT}, s{SROT}, 2")
    if ROT==4: p(f"s_lshl_b32 s{SROT}, s{SROT}, 1")
    def chunk_offsets(sc):
        e=sc&1
        if ROT:
            p(f"s_add_u32 s57, s{SROT}, {sc}")
            p("s_and_b32 s57, s57, 7")
            p(f"s_lshl_b32 s{SWO[e]}, s57, {9 if KINT else 7}")
            p(f"s_lshl_b32 s57, s57, {15 if KINT else 13}")
            p(f"s_add_u32 s{SZO[e]}, s57, s{SZ}")
        else:
            p(f"s_mov_b32 s{SWO[e]}, {sc*(512 if KINT else 128)}")
            p(f"s_add_u32 s{SZO[e]}, s{SZ}, {sc*(32768 if KINT else 8192)}")
    done=set()
    def need(sc):
        if sc not in done: done.add(sc); chunk_offsets(sc)
    def dma(c, which=range(8)):
        sc=c>>1; th=TH(c); slot=c%3
        need(sc)
        for i in which:
            if SKIPDMA and (i&1) and c>1: continue
            rho=2*th+(i>>2)
            p(f"s_add_u32 m0, s{SRING}, {slot*8192+i*1024}")
            p(f"s_add_u32 s{ST}, s{SROW[rho]}, s{SWO[sc&1]}")
            if i&3: p(f"s_add_u32 s{ST}, s{ST}, {(8*(i&3))*4096}")
            p(f"buffer_load_dwordx4 v{VD[i&1]}, s[{WSP}:{WSP+3}], s{ST} offen lds", tag=f'dma{slot}')
    def aload(sc, lo, hi):
        e=sc&1
        need(sc)
        for k in range(lo,hi):
            if k%4==0 or k==lo: p(f"s_add_u32 s{ST+1}, s{SZO[e]}, {(k&~3)*1024}")
            p(f"buffer_load_dwordx4 {v(GA+e*32+4*k,4)}, v1, s[{WS}:{WS+3}], s{ST+1} offen offset:{(k%4)*1024}{LM()}")
    def bread(c,u):
        slot=c%3; st=(c*4+u)&1
        for tl in range(2):
            p(f"ds_read_b128 {v(GB+st*8+4*tl,4)}, v{VR[u]} offset:{slot*8192+tl*4096}")
    kernarg_ready(p)
    srd(p, WSP, 6, S*S*2)
    srd(p, AUX, 8, S*2)
    if STARTPRIO: p("s_setprio 1")
    if layout.FUSE and FPF==2:
        dma(0); dma(1)
        p("s_barrier")
        aload(0,0,8)
    elif layout.FUSE and FPF==1:
        dma(0)
        p("s_barrier")
        aload(0,0,4); dma(1); aload(0,4,8)
    elif layout.FUSE:
        p("s_barrier")
        dma(0); aload(0,0,4); dma(1); aload(0,4,8)
    else:
        dma(0); aload(0,0,4); dma(1); aload(0,4,8)
        start_barrier(p)
    stamp(p,'issued')
    p.wait('dma0')
    bread(0,0)
    stamp(p,'loopstart')
    for c in range(16):
        if c in (2,4,8,12): stamp(p,f'c{c}')
        if PRIOLATE and c==PRIOLATE: p("s_setprio 1")
        sc=c>>1; th=TH(c); e=sc&1
        for u in range(4):
            if PRIOPAT:
                on = PRIOPAT[(c*4+u) % len(PRIOPAT)]=='1'
                prev = PRIOPAT[(c*4+u-1) % len(PRIOPAT)]=='1' if (c or u) else False
                if on!=prev: p(f"s_setprio {1 if on else 0}")
            if u<3: nxt=(c,u+1)
            else: nxt=(c+1,0) if c<15 else None
            st=(c*4+u)&1
            k=0
            for tl in range(2):
                for fi in range(2):
                    acc=GACC+((2*th+tl)*2+fi)*16
                    cc = "0" if (sc==0 and u==0) else v(acc,16)
                    p(f"v_mfma_f32_32x32x16_bf16 {v(acc,16)}, {v(GA+e*32+4*(u*2+fi),4)}, {v(GB+st*8+4*tl,4)}, {cc}")
                    if k==0 and nxt:
                        if nxt[0]!=c: p.wait(f'dma{nxt[0]%3}')
                        bread(*nxt)
                    slot=u*4+k
                    if c==0:
                        if slot<8: dma(2,[slot])
                        if slot==8 and STARTPRIO: p("s_setprio 0")
                    else:
                        if c+2<16 and slot<8: dma(c+2,[slot])
                    if sc+1<8 and slot in (9,11,13,15) and c>=0:
                        kk=4*(c&1)+(slot-9)//2
                        aload(sc+1, kk, kk+1)
                    if EARLYZ and c==14 and slot==2: epi_operands(p)
                    if EARLYPUB and c==15 and slot>=4:
                        for n in range((slot-4)*16//12, (slot-3)*16//12):
                            rho=2+n//8; fi_=(n//4)&1; q=n&3
                            if n==0: p(f"v_add_u32 v2, s44, v1")
                            p(f"ds_write_b128 v2, {v(GACC+(rho*2+fi_)*16+4*q,4)} offset:{(rho-1)*8192+fi_*4096+q*1024}", tag='gpub')
                    k+=1
    if PRIOPAT: p("s_setprio 0")

def epi_operands(p):
    p(f"s_lshl_b32 s46, s{STB}, 2")
    p(f"s_add_u32 s46, s46, s{SW}")
    p(f"s_mul_i32 s47, s46, {28*2048}")
    p(f"s_lshl_b32 s48, s{SFB}, 12")
    p("s_add_u32 s47, s47, s48")
    p(f"s_add_u32 s47, s47, {WS_Z1}")
    for k in range(4):
        p(f"buffer_load_dwordx4 {v(16+4*k,4)}, v1, s[{WS}:{WS+3}], s47 offen offset:{k*1024}{LM()}")
    p("v_and_b32 v8, 31, v0")
    p("v_lshlrev_b32 v8, 1, v8")
    p("s_lshl_b32 s48, s46, 6")
    p(f"buffer_load_ushort v9, v8, s[{AUX}:{AUX+3}], s48 offen")

def gemm_publish(p):
    p(f"v_add_u32 v2, s44, v1")
    for rho in range(1,2 if EARLYPUB else 4):
        for fi in range(2):
            for q in range(4):
                p(f"ds_write_b128 v2, {v(GACC+(rho*2+fi)*16+4*q,4)} offset:{(rho-1)*8192+fi*4096+q*1024}", tag='gpub')
    if not EARLYZ: epi_operands(p)
    if GTAG:
        p(f"s_lshl_b32 s47, s{SW}, 2")
        p(f"s_add_u32 s47, s47, {LDS_CNT+16}")
        p("v_mov_b32 v12, s47")
        p("v_mov_b32 v13, 1")
        p("ds_write_b32 v12, v13")
        p(f"v_mov_b32 v12, {LDS_CNT+4}")
        p("s_mov_b64 exec, 1")
        p("ds_add_u32 v12, v13")
        p("s_mov_b64 exec, -1")
    else: p.wait('gpub')

def gemm_finish(p):
    R=32
    for rho in range(1,4):
        p(f"s_sub_u32 s47, s{SW}, {rho}")
        p("s_and_b32 s47, s47, 3")
        p("s_mul_i32 s47, s47, 24576")
        p(f"s_add_u32 s47, s47, {(rho-1)*8192}")
        p(f"v_add_u32 v{2+rho}, s47, v1")
    def rd(fi):
        for rho in range(1,4):
            for q in range(4):
                p(f"ds_read_b128 {v(R+32*(rho-1)+16*fi+4*q,4)}, v{2+rho} offset:{fi*4096+q*1024}")
    if GTAG:
        p(f"v_mov_b32 v2, {LDS_CNT+16}")
        p.label("B_TAGW")
        p("ds_read_b128 v[48:51], v2")
        rd(0)
        p("s_waitcnt lgkmcnt(12)")
        t=48
        p(f"v_and_b32 v{t}, v{t}, v{t+1}")
        p(f"v_and_b32 v{t+2}, v{t+2}, v{t+3}")
        p(f"v_and_b32 v{t}, v{t}, v{t+2}")
        p(f"v_readfirstlane_b32 s61, v{t}")
        p("s_cmp_lg_u32 s61, 1")
        p("s_cbranch_scc1 B_TAGW")
        rd(1)
    else:
        rd(0); rd(1)
    p(f"s_mul_i32 s47, s46, {88*1024}")
    p(f"s_lshl_b32 s48, s{SFB}, 12")
    p("s_add_u32 s47, s47, s48")
    p(f"s_add_u32 s47, s47, {WS_H+32*1024}")
    p("v_lshlrev_b32 v8, 16, v9")
    p("v_mov_b32 v9, v8")
    for fi in range(2):
        A=GACC+16*fi; P1=R+16*fi; P2=R+32+16*fi; P3=R+64+16*fi
        for r in range(0,16,2):
            p(f"v_pk_add_f32 {v(A+r,2)}, {v(A+r,2)}, {v(P1+r,2)}")
        for r in range(0,16,2):
            p(f"v_pk_add_f32 {v(P2+r,2)}, {v(P2+r,2)}, {v(P3+r,2)}")
        for r in range(0,16,2):
            p(f"v_pk_add_f32 {v(A+r,2)}, {v(A+r,2)}, v[8:9]")
        for r in range(0,16,2):
            p(f"v_pk_add_f32 {v(A+r,2)}, {v(A+r,2)}, {v(P2+r,2)}")
        for d in range(8):
            p(f"v_lshlrev_b32 v{P1+2*d}, 16, v{16+8*fi+d}")
            p(f"v_and_b32 v{P1+2*d+1}, 0xffff0000, v{16+8*fi+d}")
        for r in range(0,16,2):
            p(f"v_pk_mul_f32 {v(A+r,2)}, {v(A+r,2)}, {v(P1+r,2)}")
        for d in range(8):
            p(f"v_cvt_pk_bf16_f32 v{P3+d}, v{A+2*d}, v{A+2*d+1}")
        for u in range(2):
            p(f"buffer_store_dwordx4 {v(P3+4*u,4)}, v1, s[{WS}:{WS+3}], s47 offen offset:{(fi*2+u)*1024}{SM()}", tag='hst')

def signal(p, tblk_sreg, slot_expr_sreg, tag=None):
    if tag: p.wait(tag)
    else: p("s_waitcnt vmcnt(0)")
    if not layout.FUSE: p(f"v_readfirstlane_b32 s{STAG}, v14")
    p(f"s_lshl_b32 s64, s{tblk_sreg}, {5+FSH}")
    p(f"s_lshl_b32 s65, s{slot_expr_sreg}, {FSH}")
    p("s_add_u32 s64, s64, s65")
    p(f"s_add_u32 s64, s64, {WS_FL}")
    p(f"v_mov_b32 v12, s{STAG}")
    p("v_mov_b32 v13, 0")
    p("s_mov_b64 exec, 1")
    p(f"buffer_store_dword v12, v13, s[{WS}:{WS+3}], s64 offen sc1")
    p("s_mov_b64 exec, -1")

WO0=16; WH0=80; H0=136; FACC=192; RS3=272
STB3=66; SNB3=67
def hreg(k): return H0+4*k if k<14 else 4+4*(k-14)
def final_ids(p):
    srd(p, XS3, 10, S*D*2); srd(p, OUT3, 12, S*D*2)
    p(f"s_mul_i32 s72, s{SJ}, 37")
    p("s_lshr_b32 s72, s72, 8")
    p("s_mul_i32 s73, s72, 7")
    p(f"s_sub_u32 s{SNB3}, s{SJ}, s73")
    p(f"s_lshl_b32 s73, s{SX}, 2")
    p(f"s_add_u32 s{STB3}, s73, s72")
    p("s_mul_i32 s80, s72, 3")
    p(f"s_add_u32 s80, s80, s{SNB3}")
    p("s_sub_u32 s81, s80, 11")
    p("s_cmp_ge_u32 s80, 11")
    p("s_cselect_b32 s80, s81, s80")
    p(f"s_mul_i32 s72, s{SNB3}, {2*88*1024}")
    p(f"s_add_u32 s68, s72, {WS_WC}")
    p(f"s_mul_i32 s72, s{STB3}, {2*88*1024}")
    p(f"s_add_u32 s69, s72, {WS_H}")
def frag_loads(p, base, ks0_sreg, nk, regf, mod):
    p(f"s_lshl_b32 s72, s{ks0_sreg}, 10")
    p(f"s_add_u32 s73, s{base}, s72")
    if not FROT:
        p(f"s_mov_b32 s70, s73")
        p(f"s_add_u32 s71, s70, {88*1024}")
        for k in range(nk):
            for i in range(2):
                p(f"buffer_load_dwordx4 {v(regf(2*k+i),4)}, v1, s[{WS}:{WS+3}], s{70+i} offen offset:{(k%4)*1024}{mod}")
            if k%4==3 and k+1<nk:
                p("s_add_u32 s70, s70, 4096"); p("s_add_u32 s71, s71, 4096")
        return
    p("s_mov_b32 s81, s80")
    for k in range(nk):
        p("s_lshl_b32 s72, s81, 10")
        p("s_add_u32 s70, s73, s72")
        p(f"s_add_u32 s71, s70, {88*1024}")
        if k+1<nk:
            p("s_add_u32 s81, s81, 1")
            p(f"s_cmp_eq_u32 s81, {nk}")
            p("s_cselect_b32 s81, 0, s81")
        for i in range(2):
            p(f"buffer_load_dwordx4 {v(regf(2*k+i),4)}, v1, s[{WS}:{WS+3}], s{70+i} offen{mod}")
def frag_mfma(p, nk, wf, hf, first_zero):
    for k in range(nk):
        for ti in range(2):
            for ni in range(2):
                acc = FACC + (ti*2+ni)*16
                c = "0" if (k==0 and first_zero) else v(acc,16)
                p(f"v_mfma_f32_32x32x16_bf16 {v(acc,16)}, {v(wf(2*k+ni),4)}, {v(hf(2*k+ti),4)}, {c}")
def lds_wait(p, idx, n, lab):
    p(f"v_mov_b32 v12, {LDS_CNT+4*idx}")
    p.label(lab)
    p("ds_read_b32 v13, v12")
    p("s_waitcnt lgkmcnt(0)")
    p("v_readfirstlane_b32 s61, v13")
    p(f"s_cmp_lt_u32 s61, {n}")
    p(f"s_cbranch_scc1 {lab}")
def poll_flags(p, mask_lo, lab):
    p(f"s_lshl_b32 s72, s{STB3}, {6+FSH}")
    p(f"s_add_u32 s72, s72, {WS_FL}")
    p(f"v_lshlrev_b32 v3, {FSH}, v0")
    p(f"s_mov_b32 s74, {mask_lo}"); p(f"s_mov_b32 s75, {mask_lo}")
    p("s_mov_b32 s76, 0")
    p.label(lab)
    p(f"buffer_load_dword v12, v3, s[{WS}:{WS+3}], s72 offen sc1")
    p("s_waitcnt vmcnt(0)")
    p(f"v_cmp_ne_u32 vcc, s{STAG}, v12")
    p("s_and_b64 s[78:79], vcc, s[74:75]")
    p("s_cmp_eq_u64 s[78:79], 0")
    p(f"s_cbranch_scc1 {lab}_OK")
    p("s_add_u32 s76, s76, 1")
    p("s_cmp_lt_u32 s76, 0x40000")
    p(f"s_cbranch_scc1 {lab}")
    p.label(lab+"_OK")

NK3=11; W30=16; H30=104
def final_attention(p):
    final_ids(p)
    if AWAIT: lds_wait(p, AWAIT, 4, "K2_AWAIT")
    p(f"s_mul_i32 s77, s23, {NK3}")
    frag_loads(p, 68, 77, NK3, lambda k: W30+4*k, LM())
    stamp(p,'wissued')
    if POLLW<4:
        p(f"s_cmp_lg_u32 s23, {POLLW}")
        p("s_cbranch_scc1 K2_FH")
        poll_flags(p, "0x3fffffff", "K2_APOLL")
    p("s_branch K2_FH")

def final_gemm(p):
    final_ids(p)
    if EPOLL:
        p(f"s_lshl_b32 s79, s{STB3}, {6+FSH}")
        p(f"s_add_u32 s79, s79, {WS_FL}")
        p(f"v_lshlrev_b32 v3, {FSH}, v0")
        p(f"s_cmp_lg_u32 s23, {POLLW}")
        p("s_cbranch_scc1 K2_NOEP")
        p.begin_opt()
        p(f"buffer_load_dword v13, v3, s[{WS}:{WS+3}], s79 offen sc1", tag='fp')
        p.end_opt()
        p.label("K2_NOEP")
    p(f"s_mul_i32 s77, s23, {NK3}")
    frag_loads(p, 68, 77, NK3, lambda k: W30+4*k, LM())
    stamp(p,'wissued')
    if POLLW>=4:
        p(f"s_cmp_lg_u32 s23, {POLLW}")
        p("s_cbranch_scc1 K2_FH")
        if EPOLL:
            p.wait('fp')
            p(f"v_cmp_ne_u32 vcc, s{STAG}, v13")
            p("s_mov_b32 s74, 0x3fffffff"); p("s_mov_b32 s75, 0x3fffffff")
            p("s_and_b64 s[78:79], vcc, s[74:75]")
            p("s_cmp_eq_u64 s[78:79], 0")
            p("s_cbranch_scc1 K2_FH")
        poll_flags(p, "0x3fffffff", "K2_GPOLL")
    p("s_branch K2_FH")

def final_common(p):
    p.label("K2_FH")
    p("s_barrier")
    stamp(p,'flags')
    p(f"s_mul_i32 s77, s23, {NK3}")
    frag_loads(p, 69, 77, NK3, lambda k: H30+4*k, HMOD)
    p("v_lshrrev_b32 v3, 3, v0")
    p(f"s_lshl_b32 s72, s{STB3}, 6")
    p(f"s_lshl_b32 s73, s23, 3")
    p("s_add_u32 s72, s72, s73")
    p("v_add_u32 v3, s72, v3")
    p(f"v_mul_u32_u24 v3, {D*2}, v3")
    p("v_and_b32 v2, 7, v0")
    p("v_lshlrev_b32 v2, 4, v2")
    p(f"s_lshl_b32 s73, s{SNB3}, 7")
    p("v_add3_u32 v2, v3, v2, s73")
    p(f"buffer_load_dwordx4 v[4:7], v2, s[{XS3}:{XS3+3}], 0 offen")
    RS=RS3; ACC=FACC
    p("v_and_b32 v8, 31, v0")
    p(f"v_mul_u32_u24 v8, {RS}, v8")
    p("v_lshrrev_b32 v9, 5, v0")
    p("v_lshlrev_b32 v9, 4, v9")
    p(f"s_mul_i32 s72, s23, {64*RS}")
    p("v_add3_u32 v8, v8, v9, s72")
    p("v_lshrrev_b32 v12, 3, v0")
    p(f"s_lshl_b32 s72, s23, 3")
    p("v_add_u32 v12, s72, v12")
    p(f"v_mul_u32_u24 v12, {RS}, v12")
    p("v_and_b32 v13, 7, v0")
    p("v_lshlrev_b32 v13, 5, v13")
    p("v_add_u32 v12, v12, v13")
    p(f"v_add_u32 v13, {4*64*RS}, v12")
    def wr(ti,ni):
        acc = ACC + (ti*2+ni)*16
        for q in range(4):
            p(f"ds_write_b128 v8, {v(acc+4*q,4)} offset:{ti*32*RS+ni*128+q*32}", tag='pw')
    if TAILTM:
        frag_mfma(p, NK3-3, lambda k: W30+4*k, lambda k: H30+4*k, True)
        tiles=[(0,0),(0,1),(1,0),(1,1)]
        for n,(ti,ni) in enumerate(tiles):
            acc = ACC + (ti*2+ni)*16
            for k in range(NK3-3,NK3):
                p(f"v_mfma_f32_32x32x16_bf16 {v(acc,16)}, {v(W30+4*(2*k+ni),4)}, {v(H30+4*(2*k+ti),4)}, {v(acc,16)}")
            if n>=2: wr(*tiles[n-2])
        stamp(p,'fmfma')
        wr(*tiles[2]); wr(*tiles[3])
    else:
        frag_mfma(p, NK3, lambda k: W30+4*k, lambda k: H30+4*k, True)
        stamp(p,'fmfma')
        for ti in range(2):
            for ni in range(2): wr(ti,ni)
    p.wait('pw')
    p("s_barrier")
    stamp(p,'fbar')
    R=16
    for w in range(8):
        for hh in range(2):
            a=12 if w<4 else 13
            p(f"ds_read_b128 {v(R+(w*2+hh)*4,4)}, v{a} offset:{(w%4)*64*RS+hh*16}")
    for st_ in (1,2,4):
        for w in range(0,8,2*st_):
            for e in range(0,8,2):
                p(f"v_pk_add_f32 {v(R+8*w+e,2)}, {v(R+8*w+e,2)}, {v(R+8*(w+st_)+e,2)}")
    for d in range(4):
        p(f"v_lshlrev_b32 v10, 16, v{4+d}")
        p(f"v_and_b32 v11, 0xffff0000, v{4+d}")
        p(f"v_add_f32 v{R+2*d}, v{R+2*d}, v10")
        p(f"v_add_f32 v{R+2*d+1}, v{R+2*d+1}, v11")
    for d in range(4):
        p(f"v_cvt_pk_bf16_f32 v{R+8+d}, v{R+2*d}, v{R+2*d+1}")
    p(f"buffer_store_dwordx4 {v(R+8,4)}, v2, s[{OUT3}:{OUT3+3}], 0 offen{OMOD}")
    stamp(p,'fend')

def prep(p):
    srd(p, AUX, 10, D*D*2)
    srd(p, AUX2, 12, FH*D*2)
    p(f"s_lshl_b32 s40, s{SX}, 2")
    p(f"s_add_u32 s40, s40, s{SJ}")
    p("s_sub_u32 s40, s40, 28")
    p("s_lshl_b32 s40, s40, 2")
    p(f"s_add_u32 s40, s40, s{SW}")
    p(f"s_mul_i32 s44, s{SW}, 24576")
    p("v_lshrrev_b32 v2, 2, v0")
    p(f"v_mul_u32_u24 v3, {D*2}, v2")
    p("v_and_b32 v4, 3, v0")
    p("v_lshl_add_u32 v3, v4, 4, v3")
    p("v_cmp_gt_u32 vcc, 12, v2")
    p("v_mov_b32 v5, 0x7ff00000")
    p("v_cndmask_b32 v4, v5, v3, vcc")
    p("v_lshrrev_b32 v5, 4, v0")
    p("v_and_b32 v6, 1, v5")
    p("v_lshrrev_b32 v5, 1, v5")
    p("v_lshrrev_b32 v7, 2, v0")
    p("v_and_b32 v7, 3, v7")
    p("v_lshl_add_u32 v5, v5, 2, v7")
    p("v_lshlrev_b32 v5, 6, v5")
    p("v_lshl_add_u32 v5, v6, 5, v5")
    p("v_and_b32 v6, 3, v0")
    p("v_lshl_add_u32 v5, v6, 3, v5")
    p("v_add_u32 v5, s44, v5")
    NI=10
    for i in range(NI):
        f=50+i
        p(f"s_add_u32 s{f}, s40, {128*i}")
        p(f"s_add_u32 m0, s44, {i*1024}")
        p(f"s_cmp_ge_u32 s{f}, 1232")
        p(f"s_cbranch_scc1 P_SKIP{i}")
        p(f"s_mul_i32 s41, s{f}, 745")
        p("s_lshr_b32 s41, s41, 16")
        p("s_mul_i32 s42, s41, 88")
        p(f"s_sub_u32 s42, s{f}, s42")
        p("s_lshl_b32 s41, s41, 6")
        p("s_cmp_ge_u32 s42, 32")
        p(f"s_cbranch_scc1 P_OUT{i}")
        p("s_lshr_b32 s43, s42, 1")
        p("s_mul_i32 s43, s43, 28")
        p("s_and_b32 s45, s42, 1")
        p("s_lshl_b32 s46, s45, 4")
        p("s_add_u32 s43, s43, s46")
        p(f"s_mul_i32 s43, s43, {D*2}")
        p("s_add_u32 s43, s43, s41")
        p("s_cmp_eq_u32 s45, 1")
        p(f"s_cbranch_scc1 P_PAD{i}")
        p(f"buffer_load_dwordx4 v3, s[{AUX}:{AUX+3}], s43 offen lds", tag='pd')
        p(f"s_branch P_SKIP{i}")
        p.label(f"P_PAD{i}")
        p(f"buffer_load_dwordx4 v4, s[{AUX}:{AUX+3}], s43 offen lds", tag='pd')
        p(f"s_branch P_SKIP{i}")
        p.label(f"P_OUT{i}")
        p("s_sub_u32 s43, s42, 32")
        p("s_lshl_b32 s43, s43, 4")
        p(f"s_mul_i32 s43, s43, {D*2}")
        p("s_add_u32 s43, s43, s41")
        p(f"buffer_load_dwordx4 v3, s[{AUX2}:{AUX2+3}], s43 offen lds", tag='pd')
        p.label(f"P_SKIP{i}")
    p("s_waitcnt vmcnt(0)")
    for i in range(NI):
        p(f"ds_read_b64_tr_b16 {v(16+4*i,2)}, v5 offset:{i*1024}")
        p(f"ds_read_b64_tr_b16 {v(16+4*i+2,2)}, v5 offset:{i*1024+512}")
    p("s_waitcnt lgkmcnt(0)")
    for i in range(NI):
        f=50+i
        p(f"s_cmp_ge_u32 s{f}, 1232")
        p(f"s_cbranch_scc1 P_SK2{i}")
        p(f"s_lshl_b32 s41, s{f}, 10")
        p(f"s_add_u32 s41, s41, {WS_WC}")
        p(f"buffer_store_dwordx4 {v(16+4*i,4)}, v1, s[{WS}:{WS+3}], s41 offen{SM()}")
        p.label(f"P_SK2{i}")

def gen(force_fallback=False):
    p=Prog(); prologue(p)
    n0=PR.n
    p.begin_alt()
    p.alt_branch()
    p("s_mov_b32 s48, 0"); p("s_mov_b32 s49, -1")
    if ONLY=='g': p("s_branch K2_END")
    if layout.FUSE: phase1_wait(p)
    attention(p, force_fallback); attention_publish(p)
    stamp(p,'published')
    role_sync(p,0,"A_SYNC")
    stamp(p,'barrier')
    attention_finish(p)
    stamp(p,'finished')
    p(f"s_lshl_b32 s62, s{SQB}, 2")
    p(f"s_add_u32 s62, s62, s{SW}")
    signal(p, 62, SHEAD)
    stamp(p,'end')
    p(f"s_cmp_ge_u32 s{SJ}, 28")
    p("s_cbranch_scc1 K2_AEXIT")
    final_attention(p)
    namesA=list(PR.names); PR.n=n0; PR.names=PR.names[:n0]
    p.alt_branch()
    p.label("K2_ROLEB")
    p(f"s_cmp_ge_u32 s{SJ}, 28")
    p("s_cbranch_scc1 K2_WPF" if WPF else "s_cbranch_scc1 K2_END")
    if ONLY=='a': p("s_branch K2_END")
    gemm(p); stamp(p,'loopend'); gemm_publish(p)
    stamp(p,'published')
    if not GTAG: role_sync(p,1,"B_SYNC")
    stamp(p,'barrier')
    gemm_finish(p)
    p(f"v_mov_b32 v12, {LDS_CNT+8}")
    p("v_mov_b32 v13, 1")
    p("s_mov_b64 exec, 1")
    p("ds_add_u32 v12, v13")
    p("s_mov_b64 exec, -1")
    stamp(p,'finished')
    p(f"s_add_u32 s62, s{SFB}, 16")
    if WFIRST:
        final_ids(p)
        p(f"s_mul_i32 s77, s23, {NK3}")
        frag_loads(p, 68, 77, NK3, lambda k: W30+4*k, LM())
        stamp(p,'wissued')
        signal(p, 46, 62, 'hst')
        stamp(p,'end')
        p(f"s_cmp_lg_u32 s23, {POLLW}")
        p("s_cbranch_scc1 K2_FH")
        poll_flags(p, "0x3fffffff", "K2_GPOLL")
        p("s_branch K2_FH")
    else:
        signal(p, 46, 62)
        stamp(p,'end')
        final_gemm(p)
    namesB=list(PR.names)
    p.end_alt()
    PR.n=24; PR.names=[]
    final_common(p)
    dump_stamps(p,8)
    p("s_branch K2_END")
    texts=[p.finalize()]
    p=Prog()
    p.label("K2_AEXIT")
    dump_stamps(p,8)
    p("s_branch K2_END")
    if WPF:
        p.label("K2_WPF")
        kernarg_ready(p)
        if layout.FUSE or LATEBAR==1: p("s_barrier")
        lds_wait(p, 0, 1, "K2_WPFW")
        p(f"s_sub_u32 s61, s{SJ}, 28")
        p("s_lshl_b32 s61, s61, 2")
        p(f"s_add_u32 s61, s61, s{SW}")
        p(f"s_mul_i32 s61, s61, {616*128}")
        p(f"s_add_u32 s61, s61, {WS_WC}")
        p("v_lshlrev_b32 v12, 7, v0")
        for i in range(10):
            p(f"buffer_load_dword v13, v12, s[{WS}:{WS+3}], s61 offen")
            if i<9: p("s_add_u32 s61, s61, 8192")
    p.label("K2_END")
    p("s_endpgm")
    if PR.on:
        pad=lambda L: L+['-']*(24-len(L))
        open('k2_stamps.txt','w').write(" ".join(pad(namesA)+PR.names)+"\n"+" ".join(pad(namesB)+PR.names))
    texts.append(p.finalize())
    return "".join(texts)

def kernel(**opt):
    global PROF, PR, PRION, SKIPDMA, PRIOPAT, STARTPRIO, ONLY, WPF
    WPF=int(opt.get('wpf',1))
    global DELAYW
    DELAYW=int(opt.get('dw',1))
    global ROT, KINT, EARLYRING, FPF, CODEPF2, FROT
    FROT=int(opt.get('frot',0))
    global HMOD, EARLYPUB, LATEBAR, POLLW, OMOD, PRIOLATE, ACQ, EPOLL
    EPOLL=int(opt.get('epoll',0))
    global FSH, WFIRST, AWAIT, EARLYZ, GTAG, TAILTM
    TAILTM=int(opt.get('ttm',0))
    EARLYZ=int(opt.get('ez',1)); GTAG=int(opt.get('gtag',0))
    WFIRST=int(opt.get('wfirst',0)); AWAIT=int(opt.get('await',1))
    FSH=int(opt.get('fsh',4))
    ACQ=int(opt.get('acq',0))
    PRIOLATE=int(opt.get('plate',0))
    OMOD={'0':'','1':' sc1','2':' nt','3':' sc0 sc1'}[opt.get('omod','1')]
    POLLW=int(opt.get('pollw',7))
    LATEBAR=int(opt.get('lb',2))
    EARLYPUB=int(opt.get('epub',1))
    HMOD={'0':'','1':' sc1','2':' nt','3':' sc0 sc1'}[opt.get('hmod','1')]
    CODEPF2=int(opt.get('cpf2',0))
    FPF=int(opt.get('fpf',0))
    EARLYRING=int(opt.get('er',1))
    ROT=int(opt.get('rot',3)); KINT=int(opt.get('kint',1))
    ONLY=opt.get('only','')
    STARTPRIO=int(opt.get('sp',0))
    PRIOPAT=opt.get('pp','')
    SKIPDMA=int(opt.get('skipdma',0))
    PRION=int(opt.get('prion',0))
    PROF=bool(int(opt.get('prof',0)))
    PR=Prof(PROF,WS,23,WS_ST+(1<<19),vr=15)
    return dict(name="k2_kernel", text=gen(force_fallback=bool(int(opt.get('ff',0)))), grid=256, block=512, lds=LDS_K2, vgpr=256, sgpr=102, accum=256)
```

```python
from asmlib import *
from layout import *
import layout
def SM(): return layout.STMOD
def SML(): return layout.STMOD if (LASTSC1 or layout.FUSE) else ''
from k3 import srd

L_X   = 0
L_P1  = 112*1024
L_P2  = 16*1024
L_P3  = 72*1024
L_SM  = 156*1024
L_CS  = L_SM
L_XS  = L_SM + 1024
L_ZS  = L_SM + 3072
L_T   = 0
LDS_K1 = 160*1024
def p1_addr(kc): return L_P1 + kc*8192 if kc < 5 else (kc-5)*8192

SW8=16; SW=17; SG=18; SRB=19; SCB=20; STAG=21; SSB=22
WS=24; XS=28; WIN=32; WQ=36; DBG=40
SP1=44; SP2=45; SP3=46; SXB=47; ST=48; ST2=49; SEP=50
VL16=1; VXD=(2,3); VWD=4; VXR=(5,6,7,8); VWR=9; VCSR=10; VSR=11; VP3D=(12,13,14); VP3R=15
MU=16; RS_=17; VT=18
CS=48; WF=64; ZH=80; ACC=(96,112); XF=128
VH=240
ONES=244; CSW=249; CSR=247; CSD=124; NMF=42; EPV=39

from profutil import Prof
PR=Prof(False,WS,SW8,0)
def stamp(p,name): PR.stamp(p,str(name))

def kernargs_k1(p):
    p("s_waitcnt lgkmcnt(0)")
    srd(p, WS, 4, WS_SIZE); srd(p, XS, 6, S*D*2); srd(p, WIN, 8, D*F*2); srd(p, WQ, 10, D*3*D*2); srd(p, DBG, 12, 256)
    PR.real(p,62)
    stamp(p,'start')

def prologue(p):
    p("s_cmp_ge_u32 s2, 256")
    p("s_cbranch_scc1 K1_END")
    p(f"s_load_dwordx2 s[4:5], s[0:1], {KA_WS}")
    p(f"s_load_dwordx2 s[6:7], s[0:1], {KA_X}")
    p(f"s_load_dwordx2 s[8:9], s[0:1], {KA_WIN}")
    p(f"s_load_dwordx2 s[10:11], s[0:1], {KA_WQKV}")
    p(f"s_load_dwordx2 s[12:13], s[0:1], {KA_DBG}")
    p(f"s_load_dwordx2 s[92:93], s[0:1], {KA_WSP}")
    p("v_lshrrev_b32 v1, 6, v0")
    p("v_and_b32 v0, 63, v0")
    p(f"v_readfirstlane_b32 s{SW8}, v1")
    p("s_and_b32 s14, s2, 7")
    p("s_lshr_b32 s15, s2, 3")
    lr={8:3,4:2,2:1,16:4}[RBX]
    p(f"s_and_b32 s51, s14, {16//RBX-1}")
    p(f"s_lshl_b32 s51, s51, {lr}")
    p(f"s_and_b32 s52, s15, {RBX-1}")
    p(f"s_add_u32 s{SRB}, s51, s52")
    p(f"s_lshr_b32 s51, s14, {4-lr}")
    p(f"s_lshl_b32 s51, s51, {5-lr}")
    p(f"s_lshr_b32 s52, s15, {lr}")
    p(f"s_add_u32 s{SCB}, s51, s52")
    p("s_and_b32 s64, s15, 7")
    p("s_lshr_b32 s65, s15, 3")
    p("s_lshl_b32 s65, s65, 1")
    p("s_add_u32 s64, s64, s65")
    p("s_sub_u32 s65, s64, 7")
    p("s_cmp_ge_u32 s64, 7")
    p("s_cselect_b32 s64, s65, s64")
    if not KROT: p("s_mov_b32 s64, 0")
    p(f"s_and_b32 s{SW}, s{SW8}, 3")
    p(f"s_lshr_b32 s{SG}, s{SW8}, 2")
    p(f"s_lshl_b32 s{SSB}, s{SRB}, 2")
    p(f"s_add_u32 s{SSB}, s{SSB}, s{SW}")
    p(f"v_lshlrev_b32 v{VL16}, 4, v0")
    if not LATEKA: kernargs_k1(p)
    p("v_lshrrev_b32 v18, 3, v0")
    p(f"v_mul_u32_u24 v19, {D*2}, v18")
    p("v_lshrrev_b32 v20, 4, v0")
    p("v_and_b32 v21, 7, v0")
    p("v_xor_b32 v22, v21, v20")
    p(f"v_lshl_add_u32 v{VXD[0]}, v22, 4, v19")
    p("v_xor_b32 v22, 4, v22")
    p(f"v_lshl_add_u32 v{VXD[1]}, v22, 4, v19")
    p(f"v_mul_u32_u24 v19, {F*2}, v18")
    p("v_and_b32 v20, 1, v20")
    p("v_lshlrev_b32 v20, 2, v20")
    p("v_xor_b32 v22, v21, v20")
    p(f"v_lshl_add_u32 v{VWD}, v22, 4, v19")
    p(f"s_lshl_b32 s51, s{SRB}, 7")
    p(f"s_lshl_b32 s52, s{SW}, 5")
    p("s_add_u32 s51, s51, s52")
    p(f"s_mul_i32 s{SXB}, s51, {D*2}")
    p(f"s_lshl_b32 s51, s{SRB}, 7")
    p(f"s_lshl_b32 s52, s{SW8}, 4")
    p("s_add_u32 s51, s51, s52")
    p(f"s_mul_i32 s94, s51, {D*2}")
    p(f"s_lshl_b32 s51, s{SCB}, 7")
    p(f"s_add_u32 s52, s51, {FH*2}")
    p(f"s_sub_u32 s53, s51, 256")
    p(f"s_cmp_lt_u32 s{SCB}, 14")
    p(f"s_cselect_b32 s{SP1}, s52, s53")
    p(f"s_lshl_b32 s95, s{SW8}, 3")
    p(f"s_mul_i32 s95, s95, {F*2}")
    p(f"s_add_u32 s95, s95, s{SP1}")
    p(f"s_sub_u32 s54, s{SCB}, 2")
    p(f"s_cmp_lt_u32 s54, 12")
    p(f"s_cselect_b32 s{SP2}, s53, 0")
    p(f"s_lshl_b32 s51, s{SW}, 4")
    p(f"s_mul_i32 s51, s51, {F*2}")
    p(f"s_add_u32 s{SP1}, s{SP1}, s51")
    p(f"s_add_u32 s{SP2}, s{SP2}, s51")
    if LATEKA: kernargs_k1(p)

def kcd(p, i):
    p(f"s_add_u32 s65, s64, {i}")
    p("s_sub_u32 s83, s65, 7")
    p("s_cmp_ge_u32 s65, 7")
    p("s_cselect_b32 s65, s83, s65")
def dma_x(p, kc, which=range(4)):
    kcd(p, kc)
    p(f"s_lshl_b32 s{ST2}, s65, 7")
    p(f"s_add_u32 s{ST2}, s{ST2}, s{SXB}")
    for i in which:
        p(f"s_lshl_b32 m0, s{SW}, 12")
        p(f"s_add_u32 m0, m0, {L_X+kc*16384+i*1024}")
        p(f"s_add_u32 s{ST}, s{ST2}, {i*8*D*2}")
        p(f"buffer_load_dwordx4 v{VXD[i&1]}, s[{XS}:{XS+3}], s{ST} offen lds", tag=f'x{kc}')
def dma_pair(p, sbase, kc, ldsaddr, tag, which=range(2)):
    kcd(p, kc)
    p(f"s_mul_i32 s{ST2}, s65, {64*F*2}")
    p(f"s_add_u32 s{ST2}, s{ST2}, s{sbase}")
    for i in which:
        p(f"s_lshl_b32 m0, s{SW}, 11")
        p(f"s_add_u32 m0, m0, {ldsaddr+i*1024}")
        p(f"s_add_u32 s{ST}, s{ST2}, {i*8*F*2}")
        p(f"buffer_load_dwordx4 v{VWD}, s[{WIN}:{WIN+3}], s{ST} offen lds", tag=tag)

def dma_init(p, kc):
    kcd(p, kc)
    p(f"s_lshl_b32 s{ST2}, s65, 7")
    p(f"s_add_u32 s{ST2}, s{ST2}, s94")
    for i in range(2):
        p(f"s_lshl_b32 m0, s{SW8}, 11")
        p(f"s_add_u32 m0, m0, {L_X+kc*16384+i*1024}")
        p(f"s_add_u32 s{ST}, s{ST2}, {i*8*D*2}")
        p(f"buffer_load_dwordx4 v{VXD[i]}, s[{XS}:{XS+3}], s{ST} offen lds", tag=f'x{kc}')
    p(f"s_lshl_b32 m0, s{SW8}, 10")
    p(f"s_add_u32 m0, m0, {p1_addr(kc)}")
    p(f"s_mul_i32 s{ST}, s65, {64*F*2}")
    p(f"s_add_u32 s{ST}, s{ST}, s95")
    p(f"buffer_load_dwordx4 v{VWD}, s[{WIN}:{WIN+3}], s{ST} offen lds", tag=f'w{kc}')

def setup_reads(p):
    p("v_and_b32 v18, 31, v0")
    p("v_lshrrev_b32 v19, 5, v0")
    p("v_lshrrev_b32 v20, 1, v18")
    p("v_and_b32 v20, 7, v20")
    p("v_xor_b32 v20, v20, v19")
    p("v_lshlrev_b32 v18, 7, v18")
    p(f"s_lshl_b32 s51, s{SW}, 12")
    p(f"v_add_u32 v18, s51, v18")
    for u in range(4):
        p(f"v_xor_b32 v21, {2*u}, v20")
        p(f"v_lshl_add_u32 v{VXR[u]}, v21, 4, v18")
    p("v_lshrrev_b32 v18, 4, v0")
    p("v_and_b32 v19, 1, v18")
    p("v_lshrrev_b32 v18, 1, v18")
    p("v_lshrrev_b32 v20, 2, v0")
    p("v_and_b32 v20, 3, v20")
    p("v_and_b32 v21, 3, v0")
    p("v_lshl_add_u32 v22, v18, 3, v20")
    p("v_lshlrev_b32 v23, 7, v22")
    p("v_lshrrev_b32 v24, 1, v21")
    p("v_lshl_add_u32 v24, v19, 1, v24")
    p(f"s_lshl_b32 s51, s{SG}, 2")
    p("v_add_u32 v24, s51, v24")
    p("v_lshrrev_b32 v25, 1, v20")
    p("v_lshlrev_b32 v25, 2, v25")
    p("v_xor_b32 v24, v24, v25")
    p("v_lshl_add_u32 v23, v24, 4, v23")
    p("v_and_b32 v24, 1, v21")
    p(f"v_lshl_add_u32 v{VWR}, v24, 3, v23")
    p(f"s_lshl_b32 s51, s{SW}, 11")
    p(f"v_add_u32 v{VCSR}, s51, v{VWR}")
    p(f"v_add_u32 v{VH+12}, {L_P1}, v{VWR}")
    p(f"v_add_u32 v{VH+13}, {L_P1}, v{VCSR}")
    for r in range(3):
        p(f"v_add_u32 v23, {64*r}, v0")
        p(f"v_mul_u32_u24 v24, 43691, v23")
        p(f"v_lshrrev_b32 v24, 19, v24")
        p(f"v_mul_u32_u24 v25, 12, v24")
        p(f"v_sub_u32 v25, v23, v25")
        p(f"v_mul_u32_u24 v24, {3*D*2}, v24")
        p(f"v_lshl_add_u32 v{VP3D[r]}, v25, 4, v24")
    p("v_mul_u32_u24 v23, 192, v22")
    p("v_lshl_add_u32 v23, v19, 5, v23")
    p(f"v_lshl_add_u32 v{VP3R}, v21, 3, v23")
    p(f"v_add_u32 v{VP3R}, {L_P3}, v{VP3R}")
    p("v_and_b32 v23, 31, v0")
    p("v_mul_u32_u24 v23, 72, v23")
    p("v_lshrrev_b32 v24, 5, v0")
    p("v_lshl_add_u32 v23, v24, 3, v23")
    p(f"s_mul_i32 s51, s{SW8}, 2304")
    p(f"s_add_u32 s51, s51, {L_T}")
    p(f"v_add_u32 v{VH+1}, s51, v23")
    p("v_lshl_add_u32 v23, v18, 2, v20")
    p("v_mul_u32_u24 v23, 72, v23")
    p("v_lshl_add_u32 v23, v19, 5, v23")
    p("v_lshl_add_u32 v23, v21, 3, v23")
    p(f"v_add_u32 v{VH+2}, s51, v23")
    p("v_mul_u32_u24 v23, 72, v22")
    p("v_lshl_add_u32 v23, v19, 5, v23")
    p("v_lshl_add_u32 v23, v21, 3, v23")
    p(f"v_add_u32 v{VH+3}, s51, v23")
    p("v_and_b32 v23, 31, v0")
    p("v_lshlrev_b32 v23, 2, v23")
    p(f"s_lshl_b32 s51, s{SG}, 9")
    p(f"s_add_u32 s51, s51, {L_CS}")
    p(f"v_add_u32 v23, s51, v23")
    p(f"s_lshl_b32 s52, s{SW}, 7")
    p(f"v_add_u32 v{CSW}, s52, v23")
    p("v_lshrrev_b32 v24, 5, v0")
    p(f"v_lshl_add_u32 v{CSR}, v24, 8, v23")
    p(f"v_mov_b32 v{ONES}, 0x3f803f80")
    p(f"v_mov_b32 v{ONES+1}, 0x3f803f80")
    p("v_and_b32 v23, 31, v0")
    p(f"s_lshl_b32 s51, s{SW}, 5")
    p("v_add_u32 v23, s51, v23")
    p(f"v_lshlrev_b32 v{VH+6}, 3, v23")

def cs_zero(p):
    for r in range(4): p(f"v_mov_b32 v{CSD+r}, 0")
def cs_step(p, fr):
    p(f"v_mfma_f32_4x4x4_16b_bf16 {v(CSD,4)}, {v(ONES,2)}, {v(fr,2)}, {v(CSD,4)}")
    p(f"v_mfma_f32_4x4x4_16b_bf16 {v(CSD,4)}, {v(ONES,2)}, {v(fr+2,2)}, {v(CSD,4)}")
def cs_flush(p):
    p(f"v_mov_b32 v46, v{CSD}")
    p(f"v_mov_b32 v33, v{CSD}")
    p(f"v_permlane32_swap_b32 v46, v33")
    p(f"v_add_f32 v46, v46, v33")
    p(f"ds_write_b32 v{CSW}, v46", tag='cs')
def meanfix(p, acc):
    F=28
    p(f"ds_read_b32 v26, v{CSR}")
    p(f"ds_read_b32 v27, v{CSR} offset:128")
    for k in range(2):
        a=26+k; d=F+2*k
        p(f"v_and_b32 v32, 0xffff0000, v{a}")
        p(f"v_sub_f32 v33, v{a}, v32")
        p(f"v_lshrrev_b32 v{d+1}, 16, v32")
        p(f"v_and_or_b32 v{d}, v33, s60, v{d+1}")
    p(f"v_mfma_f32_32x32x16_bf16 {v(acc,16)}, {v(F,4)}, {v(NMF,4)}, {v(acc,16)}")

def x_reads(kc):
    L=[]
    if kc==4: L+=[f"v_add_u32 v{r}, 0x10000, v{r}" for r in list(VXR)]
    xo=(kc*16384)&0xffff
    for u in range(4): L.append(f"ds_read_b128 {v(XF+4*(4*kc+u),4)}, v{VXR[u]} offset:{xo}")
    return L

def p0_compute(p):
    for r in range(40,44): p(f"v_mov_b32 v{r}, 0")
    cs_zero(p)
    CF=(28,120)
    def wreads(kc):
        if kc<5: wa,ca,wb=VH+12,VH+13,kc*8192
        else: wa,ca,wb=VWR,VCSR,(kc-5)*8192
        W=48+16*(kc&1); L=[]
        for u in range(4):
            L.append([f"ds_read_b64_tr_b16 {v(W+4*u,2)}, v{wa} offset:{wb+u*2048}",
                      f"ds_read_b64_tr_b16 {v(W+4*u+2,2)}, v{wa} offset:{wb+u*2048+512}"])
        cf=CF[kc&1]
        L.append([f"ds_read_b64_tr_b16 {v(cf,2)}, v{ca} offset:{wb}", f"ds_read_b64_tr_b16 {v(cf+2,2)}, v{ca} offset:{wb+512}"])
        return L
    for kc in range(8):
        if kc<7:
            if kc<3: p.wait(f'x{kc}', f'w{kc}')
            p("s_barrier")
            if kc in (0,6): stamp(p,f'c{kc}bar')
        xr = x_reads(kc) if kc<7 else []
        wr = wreads(kc) if kc<7 else []
        if kc==0:
            for x in xr: p(x)
            for gr in wr:
                for x in gr: p(x)
        else:
            c=kc-1; W=48+16*(c&1)
            sf=XF+16*c
            for u in range(4):
                cc = "0" if (c==0 and u==0) else v(ACC[0],16)
                p(f"v_mfma_f32_32x32x16_bf16 {v(ACC[0],16)}, {v(W+4*u,4)}, {v(XF+4*(4*c+u),4)}, {cc}")
                if u==0:
                    for x in xr: p(x)
                elif kc<7:
                    for gr in wr[[0,0,2,4][u]:[0,2,4,5][u]]:
                        for x in gr: p(x)
            cs_step(p, CF[c&1])
            for d in range(16):
                p(f"v_dot2c_f32_bf16 v{40+(d&1)}, v{sf+d}, v{ONES}")
                p(f"v_dot2c_f32_bf16 v{42+(d&1)}, v{sf+d}, v{sf+d}")
        if kc<7: p("s_waitcnt lgkmcnt(0)")
    cs_flush(p)
    p("v_add_f32 v40, v40, v41")
    p("v_add_f32 v41, v42, v43")
    p("v_mov_b32 v42, v40"); p("v_mov_b32 v43, v41")
    p("v_permlane32_swap_b32 v42, v40")
    p("v_permlane32_swap_b32 v43, v41")
    p("v_add_f32 v40, v40, v42")
    p("v_add_f32 v41, v41, v43")
    p(f"v_mul_f32 v{MU}, 0x3b124925, v40")
    p(f"v_mul_f32 v41, 0x3b124925, v41")
    p(f"v_fma_f32 v41, -v{MU}, v{MU}, v41")
    p(f"v_max_f32 v41, 0, v41")
    p(f"v_add_f32 v41, 0x3727c5ac, v41")
    p(f"v_rsq_f32 v{RS_}, v41")
    p(f"v_add_u32 v18, {L_XS}, v{VH+6}")
    p(f"ds_write_b64 v18, {v(MU,2)}", tag='xs')
    nmf(p)
    p.wait('xs','cs')
    p("s_barrier")

def p0_load(p):
    def dmas(kc):
        G=[]
        n=kc+3
        if n<7:
            G.append(lambda q,n=n: dma_x(q,n))
            G.append(lambda q,n=n: dma_pair(q, SP1, n, p1_addr(n), f'w{n}'))
        if kc==4: G+= [lambda q,i=i: dma_pair(q, SP2, i, L_P2+i*8192, 'p2') for i in (0,1,2)]
        if kc==5: G+= [lambda q,i=i: dma_pair(q, SP2, i, L_P2+i*8192, 'p2') for i in (3,4,5)]
        if kc==6: G+= [lambda q: dma_pair(q, SP2, 6, L_P2+6*8192, 'p2')]
        return G
    for kc in range(7):
        p.wait(f'x{kc}', f'w{kc}')
        p("s_barrier")
        if kc in (0,6): stamp(p,f'c{kc}bar')
        for x in x_reads(kc): p(x)
        for f in dmas(kc): f(p)
        p("s_waitcnt lgkmcnt(0)")
    p("s_barrier")
    p(f"v_add_u32 v18, {L_XS}, v{VH+6}")
    p(f"ds_read_b64 {v(MU,2)}, v18")
    nmf(p)

def nmf(p):
    p(f"v_sub_f32 v20, 0, v{MU}")
    p(f"v_and_b32 v21, 0xffff0000, v20")
    p(f"v_sub_f32 v22, v20, v21")
    p(f"v_lshrrev_b32 v23, 16, v21")
    p(f"v_or_b32 v{NMF}, v21, v23")
    p(f"v_lshrrev_b32 v{NMF+1}, 16, v22")
    p(f"v_mov_b32 v{NMF+2}, v{NMF}")
    p(f"v_mov_b32 v{NMF+3}, v{NMF+1}")

def dma_p3_groups(firsts):
    G=[]
    for n0 in firsts:
        def setup(q,n0=n0):
            q(f"s_add_u32 s88, s{SW}, {n0}")
            q(f"s_mul_i32 s89, s88, 3072")
            q("s_lshr_b32 s87, s88, 2")
            q("s_add_u32 s87, s87, s64")
            q("s_sub_u32 s83, s87, 7")
            q("s_cmp_ge_u32 s87, 7")
            q("s_cselect_b32 s87, s83, s87")
            q("s_lshl_b32 s87, s87, 2")
            q("s_and_b32 s88, s88, 3")
            q("s_add_u32 s87, s87, s88")
            q(f"s_mul_i32 s87, s87, {16*3*D*2}")
            q(f"s_add_u32 s87, s87, s63")
        for r in range(3):
            def one(q,r=r,setup=setup):
                if r==0: setup(q)
                q(f"s_add_u32 m0, s89, {L_P3+r*1024}")
                q("s_nop 0")
                q(f"buffer_load_dwordx4 v{VP3D[r]}, s[{WQ}:{WQ+3}], s87 offen lds", tag='p3')
            G.append(one)
    return G

def center(p, acc, scale_v):
    if K1PRIO=='M': p("s_setprio 0")
    if K1PRIO=='E': p("s_setprio 1")
    meanfix(p, acc)
    for r in range(16):
        p(f"v_mul_f32 v{acc+r}, v{acc+r}, v{scale_v}")

def gelu(p, acc, dst):
    T=18
    for b in (0,8):
        R=range(b,b+8)
        for r in R: p(f"v_mul_f32 v{T+r-b}, v{acc+r}, v{acc+r}")
        for r in R: p(f"v_fma_f32 v{T+r-b}, v{T+r-b}, s56, v47")
        for r in R: p(f"v_mul_f32 v{T+r-b}, v{T+r-b}, v{acc+r}")
        for r in R: p(f"v_exp_f32 v{T+r-b}, v{T+r-b}")
        for r in R: p(f"v_add_f32 v{T+r-b}, 1.0, v{T+r-b}")
        for r in R: p(f"v_rcp_f32 v{T+r-b}, v{T+r-b}")
        for r in R: p(f"v_mul_f32 v{dst+r}, v{acc+r}, v{T+r-b}")

def pack(p, src, dst):
    for i in range(8): p(f"v_cvt_pk_bf16_f32 v{dst+i}, v{src+2*i}, v{src+2*i+1}")
def store2(p, src, sreg, off=0):
    p(f"buffer_store_dwordx4 {v(src,4)}, v{VL16}, s[{WS}:{WS+3}], s{sreg} offen offset:{off}{SM()}")
    p(f"buffer_store_dwordx4 {v(src+4,4)}, v{VL16}, s[{WS}:{WS+3}], s{sreg} offen offset:{off+1024}{SM()}")
def transpose(p, src, dst, traddr, order):
    for q in range(4):
        p(f"ds_write_b64 v{VH+1}, {v(src+2*q,2)} offset:{q*16}", tag='tw')
    p.wait('tw')
    for u in range(2):
        for ii in range(2):
            row = (16*u+8*ii) if order=='v' else (16*u+4*ii)
            p(f"ds_read_b64_tr_b16 {v(dst+4*u+2*ii,2)}, v{traddr} offset:{row*72}")

def epi_z1(p, acc, pairreg, g):
    center(p, acc, RS_)
    gelu(p, acc, acc)
    pack(p, acc, 34)
    p(f"s_mul_i32 s51, s{SSB}, {28*2048}")
    p(f"s_lshl_b32 s52, s{pairreg}, 12")
    p("s_add_u32 s51, s51, s52")
    p(f"s_add_u32 s51, s51, {WS_Z1+g*2048}")
    store2(p, 34, 51)

def epi_z2(p, acc):
    center(p, acc, RS_)
    gelu(p, acc, ZH)
    p(f"v_mov_b32 v34, v{ZH}")
    p(f"v_mul_f32 v35, v{ZH}, v{ZH}")
    for r in range(1,16):
        p(f"v_add_f32 v34, v34, v{ZH+r}")
        p(f"v_fmac_f32 v35, v{ZH+r}, v{ZH+r}")
    p("v_mov_b32 v36, v34"); p("v_mov_b32 v37, v35")
    p("v_permlane32_swap_b32 v36, v34")
    p("v_permlane32_swap_b32 v37, v35")
    p("v_add_f32 v34, v34, v36")
    p("v_add_f32 v35, v35, v37")

LA=5
def mtile(p, acc, addr, off_fn, cs_addr, cs_off_fn, addr2=None, cs_addr2=None, part='all', sides=(), split=43008):
    NB=8; WB=48
    def rd(ks):
        b=WB+4*(ks%NB)
        for ii in range(2):
            o=off_fn(ks,ii); r=addr
            if o>=split and addr2 is not None: r=addr2; o-=split
            p(f"ds_read_b64_tr_b16 {v(b+2*ii,2)}, v{r} offset:{o}")
    def csrd(kc):
        for ii in range(2):
            o=cs_off_fn(kc,ii); r=cs_addr
            if o>=split and cs_addr2 is not None: r=cs_addr2; o-=split
            p(f"ds_read_b64_tr_b16 {v(26+4*(kc&1)+2*ii,2)}, v{r} offset:{o}")
    if part in ('all','pre'):
        for ks in range(LA): rd(ks)
        csrd(0)
    if part=='pre': return
    if K1PRIO=='M': p("s_setprio 1")
    if K1PRIO=='E': p("s_setprio 0")
    cs_zero(p)
    sched_rd={3*kc-2:kc for kc in range(1,7)}
    sched_st={3*kc+1:kc for kc in range(7)}
    for ks in range(28):
        c = "0" if ks==0 else v(acc,16)
        p(f"v_mfma_f32_32x32x16_bf16 {v(acc,16)}, {v(WB+4*(ks%NB),4)}, {v(XF+4*ks,4)}, {c}")
        if ks+LA<28: rd(ks+LA)
        if ks in sched_st: cs_step(p, 26+4*(sched_st[ks]&1))
        if ks in sched_rd: csrd(sched_rd[ks])
        if ks==23: cs_flush(p)
        if ks%3==2 and ks//3<len(sides): sides[ks//3](p)

def epi_head(p, acc, treg, lab):
    p(f"s_lshr_b32 s52, s{treg}, 4")
    p(f"s_and_b32 s53, s{treg}, 15")
    p(f"v_mov_b32 v46, v{RS_}")
    p("s_cmp_lg_u32 s52, 0")
    p(f"s_cbranch_scc1 {lab}_NQ")
    p(f"v_mul_f32 v46, 0x3e8b97f6, v46")
    p.label(f"{lab}_NQ")
    center(p, acc, 46)
    p("s_cmp_eq_u32 s52, 0"); p("s_cselect_b32 s54, 0, 1.0")
    p("s_cmp_eq_u32 s52, 1"); p("s_cselect_b32 s55, 1.0, 0")
    p("s_mov_b64 exec, s[58:59]")
    p(f"v_mov_b32 v{acc+12}, s54"); p(f"v_mov_b32 v{acc+13}, s55"); p(f"v_mov_b32 v{acc+14}, 0"); p(f"v_mov_b32 v{acc+15}, 0")
    p("s_mov_b64 exec, -1")
    pack(p, acc, 34)
    p(f"s_lshl_b32 s54, s53, 6")
    p(f"s_add_u32 s54, s54, s{SSB}")
    p("s_cmp_eq_u32 s52, 2")
    p(f"s_cbranch_scc1 {lab}_V")
    p("s_lshl_b32 s55, s54, 11")
    p(f"s_add_u32 s55, s55, {WS_Q}")
    p("s_lshl_b32 s54, s54, 12")
    p(f"s_add_u32 s54, s54, {WS_KV}")
    p("s_cmp_eq_u32 s52, 0")
    p("s_cselect_b32 s54, s55, s54")
    p.begin_opt()
    store2(p, 34, 54)
    p(f"s_branch {lab}_D")
    p.end_opt()
    p.label(f"{lab}_V")
    p.begin_opt()
    transpose(p, 34, 20, VH+2, 'v')
    p("s_lshl_b32 s54, s54, 12")
    p(f"s_add_u32 s54, s54, {WS_KV+2048}")
    store2(p, 20, 54)
    p.end_opt()
    p.label(f"{lab}_D")

def publish_z2(p):
    p(f"v_add_u32 v18, {L_ZS}, v{VH+6}")
    p("ds_read_b64 v[36:37], v18")
    p("v_add_f32 v36, v36, v34")
    p("v_add_f32 v38, v37, v35")
    p(f"v_mov_b32 v37, s{STAG}")
    p(f"v_mov_b32 v39, s{STAG}")
    p(f"s_mul_i32 s51, s{SSB}, {14*512}")
    p(f"s_lshl_b32 s52, s{SCB}, 9")
    p("s_add_u32 s51, s51, s52")
    p(f"s_add_u32 s51, s51, {WS_ST}")
    p("s_mov_b32 exec_hi, 0")
    p(f"buffer_store_dwordx4 v[36:39], v{VL16}, s[{WS}:{WS+3}], s51 offen sc1")
    p("s_mov_b64 exec, -1")

GR=48
GRQ=[112,116,120,18,22,34,38]
def granule_loads(p):
    p(f"s_mul_i32 s90, s{SSB}, {14*512}")
    p(f"s_add_u32 s90, s90, {WS_ST}")
    for i in range(7):
        p(f"s_add_u32 s53, s90, {i*1024}")
        p(f"buffer_load_dwordx4 {v(GRQ[i],4)}, v{VL16}, s[{WS}:{WS+3}], s53 offen sc1", tag='gr')

def granule_groups():
    G=[]
    for i in range(7):
        def one(q,i=i):
            if i==0:
                q(f"s_mul_i32 s90, s{SSB}, {14*512}")
                q(f"s_add_u32 s90, s90, {WS_ST}")
            q(f"s_add_u32 s91, s90, {i*1024}")
            q(f"buffer_load_dwordx4 {v(GRQ[i],4)}, v{VL16}, s[{WS}:{WS+3}], s91 offen sc1", tag='gr')
        G.append(one)
    return G

def fin_stats(p, lab):
    Q=GRQ
    p(f"s_mov_b32 s52, 0")
    p.wait('gr')
    p.label(f"{lab}_CHECK")
    for i in range(7):
        p(f"v_xor_b32 v{26+(i&1)}, s{STAG}, v{Q[i]+1}")
        p(f"v_xor_b32 v{28+(i&1)}, s{STAG}, v{Q[i]+3}")
        if i<2: p(f"v_or_b32 v{30+i}, v{26+i}, v{28+i}")
        else: p(f"v_or3_b32 v{30+(i&1)}, v{30+(i&1)}, v{26+(i&1)}, v{28+(i&1)}")
    p("v_or_b32 v30, v30, v31")
    p("v_cmp_ne_u32 vcc, 0, v30")
    p("s_cmp_eq_u64 vcc, 0")
    p(f"s_cbranch_scc1 {lab}_POLLDONE")
    p("s_add_u32 s52, s52, 1")
    p("s_cmp_gt_u32 s52, 0x40000")
    p(f"s_cbranch_scc1 {lab}_POLLDONE")
    granule_loads(p)
    p("s_waitcnt vmcnt(0)")
    p(f"s_branch {lab}_CHECK")
    p.label(f"{lab}_POLLDONE")
    stamp(p,'polled')
    p(f"v_add_f32 v30, v{Q[0]}, v{Q[1]}")
    p(f"v_add_f32 v31, v{Q[0]+2}, v{Q[1]+2}")
    for i in range(2,7):
        p(f"v_add_f32 v30, v30, v{Q[i]}")
        p(f"v_add_f32 v31, v31, v{Q[i]+2}")
    p("v_mov_b32 v34, v30"); p("v_mov_b32 v35, v31")
    p("v_permlane32_swap_b32 v30, v34")
    p("v_permlane32_swap_b32 v31, v35")
    p("v_add_f32 v34, v34, v30")
    p("v_add_f32 v35, v35, v31")
    p("v_mul_f32 v34, 0x3a924925, v34")
    p("v_mul_f32 v35, 0x3a924925, v35")
    p("v_fma_f32 v35, -v34, v34, v35")
    p("v_max_f32 v35, 0, v35")
    p("v_add_f32 v35, 0x3727c5ac, v35")
    p("v_rsq_f32 v35, v35")
    p(f"v_add_u32 v18, {L_ZS}, v{VH+6}")
    p("v_mul_f32 v34, v34, v35")
    p("ds_write_b64 v18, v[34:35]", tag='zf')
    if layout.FUSE: return
    p(f"s_sub_u32 s53, s{SW8}, 4")
    p(f"s_or_b32 s53, s53, s{SCB}")
    p("s_cmp_lg_u32 s53, 0")
    p(f"s_cbranch_scc1 {lab}_NOBUMP")
    p.begin_opt()
    p(f"v_mov_b32 v18, s{STAG}")
    p("s_mov_b64 exec, 1")
    p(f"buffer_store_dword v18, v{VH+8}, s[{WS}:{WS+3}], s{SEP} offen sc1")
    p("s_mov_b64 exec, -1")
    p.end_opt()
    p.label(f"{lab}_NOBUMP")

def fin_tile(p):
    for r in range(16):
        p(f"v_fma_f32 v{ZH+r}, v{ZH+r}, v35, -v34")
    pack(p, ZH, 36)
    transpose(p, 36, 20, VH+3, 'z')
    p(f"s_lshl_b32 s51, s{SCB}, 7")
    p(f"s_lshl_b32 s52, s{SSB}, 1")
    p("s_add_u32 s51, s51, s52")
    p("s_lshl_b32 s51, s51, 11")
    p(f"s_lshl_b32 s52, s{SG}, 10")
    p("s_add_u32 s51, s51, s52")
    p(f"s_add_u32 s51, s51, {WS_Z2}")
    p(f"buffer_store_dwordx4 {v(20,4)}, v{VL16}, s[{WS}:{WS+3}], s51 offen{SML()}")
    p(f"buffer_store_dwordx4 {v(24,4)}, v{VL16}, s[{WS}:{WS+3}], s51 offen offset:2048{SML()}")

def touch_wsp(p):
    srd(p, 76, 92, S*S*2)
    p(f"s_lshl_b32 s51, s2, 2")
    p(f"s_add_u32 s51, s51, s{SW}")
    p(f"s_lshl_b32 s51, s51, 13")
    p(f"v_lshlrev_b32 v11, 7, v0")
    p(f"buffer_load_dword v{VH}, v11, s[76:79], s51 offen")

def first_epi(p, g, lab, firsts, after_z2=None):
    G=dma_p3_groups(firsts)
    p(f"s_cmp_ge_u32 s{SCB}, 14")
    p(f"s_cbranch_scc1 {lab}_Z1")
    p.begin_alt(); p.alt_branch()
    main=capture(lambda q: epi_z2(q, ACC[0]))
    p.extend(interleave(main, [capture(f) for f in G], 14, 150))
    if after_z2: after_z2(p)
    p(f"s_branch {lab}_D")
    p.alt_branch()
    p.label(f"{lab}_Z1")
    p(f"s_sub_u32 s57, s{SCB}, 2")
    main=capture(lambda q: epi_z1(q, ACC[0], 57, g))
    p.extend(interleave(main, [capture(f) for f in G], 14, 130))
    p.end_alt()
    p.label(f"{lab}_D")

def first_mtile(p, sides=()):
    mtile(p, ACC[0], VH+12, lambda ks,ii: ks*2048+ii*512, VH+13, lambda kc,ii: kc*8192+ii*512, VWR, VCSR, sides=sides, split=5*8192)
def pair_mtile(p, g, part='all', sides=()):
    if part!='post':
        p(f"v_add_u32 v{VH+10}, {L_P2}, v{VWR}")
        p(f"v_add_u32 v{VH+11}, {L_P2}, v{VCSR}")
    mtile(p, ACC[0], VH+10, lambda ks,ii: ks*2048+ii*512, VH+11, lambda kc,ii: kc*8192+ii*512, part=part, sides=sides)
def head_mtile(p, t, part='all', sides=()):
    if part!='post':
        p(f"v_add_u32 v{VH+10}, {56*t}, v{VP3R}")
        p(f"s_mul_i32 s51, s{SW}, {16*192}")
        p(f"v_add_u32 v{VH+11}, s51, v{VH+10}")
        p(f"v_add_u32 v{VH+12}, 43008, v{VH+10}")
        p(f"v_add_u32 v{VH+13}, 43008, v{VH+11}")
    mtile(p, ACC[0], VH+10, lambda ks,ii: ks*16*192+ii*4*192, VH+11, lambda kc,ii: kc*64*192+ii*4*192, VH+12, VH+13, part=part, sides=sides)
def head_epi(p, t, lab):
    p(f"s_mul_i32 s62, s{SCB}, 3")
    if t: p(f"s_add_u32 s62, s62, {t}")
    epi_head(p, ACC[0], 62, lab)
def bar(p, name, *tags):
    stamp(p,name+'w')
    if tags: p.wait(*tags)
    stamp(p,name+'a')
    p("s_barrier")
    stamp(p,name)

def group_code(p, g):
    A = (g==0); L = "KA" if A else "KB"
    p(f"s_mul_i32 s63, s{SCB}, 168")
    if A:
        p0_compute(p)
        stamp(p,'p0end')
        def zs_out(q):
            q(f"v_add_u32 v18, {L_ZS}, v{VH+6}")
            q("ds_write_b64 v18, v[34:35]", tag='zs')
        first_epi(p, 0, L+"F", [0,8], zs_out)
        bar(p,'s1end','zs')
        p(f"s_sub_u32 s57, s{SCB}, 2")
        p("s_cmp_ge_u32 s57, 12")
        p(f"s_cbranch_scc1 {L}_NOSECOND")
        p.begin_alt(); p.alt_branch()
        pair_mtile(p, 0, sides=dma_p3_groups([12,24][:P3D[0]])); bar(p,'s2end','cs')
        main=capture(lambda q: epi_z1(q, ACC[0], 57, 0))
        p.extend(interleave(main, [capture(f) for f in dma_p3_groups([12,24][P3D[0]:])], 14, 80))
        if MALLPF: touch_wsp(p)
        bar(p,'s3end','p3')
        head_mtile(p, 0); bar(p,'s4end','cs')
        p(f"s_branch {L}_JOIN")
        p.alt_branch()
        p.label(f"{L}_NOSECOND")
        for f in dma_p3_groups([12,24]): f(p)
        bar(p,'sx','p3')
        head_mtile(p, 0); bar(p,'s4x','cs')
        p.end_alt()
        p.label(f"{L}_JOIN")
        head_epi(p, 0, L+"H0")
        head_mtile(p, 2, 'pre')
        bar(p,'s5end')
        head_mtile(p, 2, 'post'); bar(p,'s6end','cs')
        head_epi(p, 2, L+"H2")
        stamp(p,'headsE')
        p(f"s_cmp_ge_u32 s{SCB}, 14")
        p(f"s_cbranch_scc1 {L}_NOFIN")
        p.begin_opt()
        p(f"v_add_u32 v18, {L_ZS}, v{VH+6}")
        p("ds_read_b64 v[34:35], v18")
        fin_tile(p)
        p.end_opt()
        p.label(f"{L}_NOFIN")
    else:
        p0_load(p)
        stamp(p,'p0end')
        first_mtile(p, sides=dma_p3_groups([4]))
        bar(p,'s1end','cs','p2')
        p(f"s_sub_u32 s57, s{SCB}, 2")
        p("s_cmp_ge_u32 s57, 12")
        p(f"s_cbranch_scc1 {L}_NOSECOND")
        p.begin_alt(); p.alt_branch()
        main=capture(lambda q: epi_z2(q, ACC[0]))
        p.extend(interleave(main, [capture(f) for f in dma_p3_groups([16,20][:P3D[1]])], 14, 150))
        publish_z2(p)
        pair_mtile(p, 1, 'pre')
        bar(p,'s2end')
        pair_mtile(p, 1, 'post', sides=dma_p3_groups([16,20][P3D[1]:])); bar(p,'s3end','cs','p3')
        epi_z1(p, ACC[0], 57, 1)
        if not GLSIDE: granule_loads(p)
        head_mtile(p, 1, 'pre')
        bar(p,'s4end')
        p(f"s_branch {L}_JOIN")
        p.alt_branch()
        p.label(f"{L}_NOSECOND")
        for f in dma_p3_groups([16,20]): f(p)
        bar(p,'sx','p3')
        first_epi(p, 1, L+"F", [], publish_z2)
        prep_issue(p)
        if not GLSIDE:
            p(f"s_cmp_ge_u32 s{SCB}, 14")
            p(f"s_cbranch_scc1 {L}_NOGL")
            p.begin_opt(); granule_loads(p); p.end_opt()
            p.label(f"{L}_NOGL")
        head_mtile(p, 1, 'pre')
        bar(p,'s4x')
        p.end_alt()
        p.label(f"{L}_JOIN")
        head_mtile(p, 1, 'post', sides=granule_groups() if GLSIDE else ()); bar(p,'s5end','cs')
        p(f"s_cmp_ge_u32 s{SCB}, 14")
        p(f"s_cbranch_scc1 {L}_NOST")
        p.begin_opt(); fin_stats(p, L); p.end_opt()
        p.label(f"{L}_NOST")
        head_epi(p, 1, L+"H1")
        bar(p,'s6end','zf')
        stamp(p,'headsE')
        p(f"s_cmp_ge_u32 s{SCB}, 14")
        p(f"s_cbranch_scc1 {L}_NOFIN")
        p.begin_opt()
        p(f"v_add_u32 v18, {L_ZS}, v{VH+6}")
        p("ds_read_b64 v[34:35], v18")
        fin_tile(p)
        p.end_opt()
        p.label(f"{L}_NOFIN")
        p(f"s_sub_u32 s57, s{SCB}, 2")
        p("s_cmp_lt_u32 s57, 12")
        p(f"s_cbranch_scc1 {L}_NOPREP")
        p.begin_opt(); prep_finish(p); p.end_opt()
        p.label(f"{L}_NOPREP")
    stamp(p,'end')
    PR.dump(p)
    if layout.FUSE:
        p("s_waitcnt vmcnt(0)")
        p("s_barrier")
        p("s_branch K2_FUSED")

def mall_prefetch(p, g):
    p(f"s_load_dwordx2 s[66:67], s[0:1], {KA_WSP if g else KA_WO}")
    if not g: p(f"s_load_dwordx2 s[70:71], s[0:1], {KA_WOUT}")
    p(f"s_sub_u32 s51, s{SCB}, 12")
    p(f"s_cmp_lt_u32 s{SCB}, 2")
    p(f"s_cselect_b32 s51, s{SCB}, s51")
    p(f"s_lshl_b32 s52, s{SRB}, 2")
    p("s_add_u32 s51, s51, s52")
    p("v_lshlrev_b32 v26, 7, v0")
    p("s_waitcnt lgkmcnt(0)")
    if g:
        srd(p, 72, 66, S*S*2)
        p("s_lshl_b32 s51, s51, 2")
        p(f"s_add_u32 s51, s51, s{SW}")
        p("s_lshl_b32 s51, s51, 15")
        for i in range(4):
            p(f"buffer_load_dword v27, v26, s[72:75], s51 offen")
            if i<3: p("s_add_u32 s51, s51, 8192")
    else:
        srd(p, 72, 66, D*D*2); srd(p, 76, 70, FH*D*2)
        p(f"s_mul_i32 s52, s51, {49*128}")
        p(f"s_mul_i32 s53, s51, {98*128}")
        p(f"s_sub_u32 s54, s{SW}, 1")
        p("s_min_u32 s54, s54, 1")
        p(f"s_mul_i32 s54, s54, {49*128}")
        p("s_add_u32 s53, s53, s54")
        p("v_min_u32 v28, 48, v0")
        p("v_lshlrev_b32 v28, 7, v28")
        p(f"s_cmp_lg_u32 s{SW}, 0")
        p.begin_alt()
        p("s_cbranch_scc1 K1_MPA")
        p.alt_branch()
        p(f"buffer_load_dword v27, v28, s[72:75], s52 offen")
        p("s_branch K1_MPB")
        p.alt_branch()
        p.label("K1_MPA")
        p(f"buffer_load_dword v27, v28, s[76:79], s53 offen")
        p.end_alt()
        p.label("K1_MPB")

NPREP=5
L_PREP=L_P2+4096
def prep_issue(p):
    p(f"s_load_dwordx2 s[66:67], s[0:1], {KA_WO}")
    p(f"s_load_dwordx2 s[68:69], s[0:1], {KA_WOUT}")
    p(f"s_sub_u32 s51, s{SCB}, 12")
    p(f"s_cmp_lt_u32 s{SCB}, 2")
    p(f"s_cselect_b32 s51, s{SCB}, s51")
    p(f"s_lshl_b32 s52, s{SRB}, 2")
    p("s_add_u32 s51, s51, s52")
    p("s_lshl_b32 s51, s51, 2")
    p(f"s_add_u32 s70, s51, s{SW}")
    p(f"s_mul_i32 s71, s{SW}, {NPREP*1024}")
    p(f"s_add_u32 s71, s71, {L_PREP}")
    p(f"s_mov_b32 s81, {D*D*2}")
    p(f"s_mov_b32 s82, {FH*D*2}")
    p("v_lshrrev_b32 v26, 2, v0")
    p(f"v_mul_u32_u24 v27, {D*2}, v26")
    p("v_and_b32 v28, 3, v0")
    p("v_lshl_add_u32 v27, v28, 4, v27")
    p("v_cmp_le_u32 vcc, 12, v26")
    p("v_mov_b32 v28, 0")
    p("v_mov_b32 v29, 0x7ff00000")
    p("v_cndmask_b32 v28, v28, v29, vcc")
    p("s_waitcnt lgkmcnt(0)")
    for i in range(NPREP):
        p(f"s_add_u32 s80, s70, {256*i}")
        p(f"s_mul_i32 s51, s80, 745")
        p("s_lshr_b32 s51, s51, 16")
        p("s_mul_i32 s52, s51, 88")
        p(f"s_sub_u32 s52, s80, s52")
        p("s_lshl_b32 s51, s51, 6")
        p("s_lshr_b32 s53, s52, 1")
        p("s_mul_i32 s53, s53, 28")
        p("s_and_b32 s54, s52, 1")
        p("s_lshl_b32 s55, s54, 4")
        p("s_add_u32 s53, s53, s55")
        p("s_sub_u32 s55, s52, 32")
        p("s_lshl_b32 s55, s55, 4")
        p("s_cmp_lt_u32 s52, 32")
        p("s_cselect_b32 s53, s53, s55")
        p("s_cselect_b32 s72, s66, s68")
        p("s_cselect_b32 s73, s67, s69")
        p("s_cselect_b32 s74, s81, s82")
        p("s_mov_b32 s75, 0x00020000")
        p("s_cselect_b32 s54, s54, 0")
        p(f"s_mul_i32 s53, s53, {D*2}")
        p("s_add_u32 s53, s53, s51")
        p("s_cmp_lt_u32 s80, 1232")
        p("s_cselect_b32 s53, s53, 0x7ff00000")
        p("s_sub_u32 s54, 0, s54")
        p("v_and_b32 v29, s54, v28")
        p("v_add_u32 v29, v29, v27")
        p(f"s_add_u32 m0, s71, {i*1024}")
        p("s_nop 0")
        p("buffer_load_dwordx4 v29, s[72:75], s53 offen lds", tag='pd')

def prep_finish(p):
    p("v_lshrrev_b32 v26, 4, v0")
    p("v_and_b32 v27, 1, v26")
    p("v_lshrrev_b32 v26, 1, v26")
    p("v_lshrrev_b32 v28, 2, v0")
    p("v_and_b32 v28, 3, v28")
    p("v_lshl_add_u32 v26, v26, 2, v28")
    p("v_lshlrev_b32 v26, 6, v26")
    p("v_lshl_add_u32 v26, v27, 5, v26")
    p("v_and_b32 v27, 3, v0")
    p("v_lshl_add_u32 v26, v27, 3, v26")
    p("v_add_u32 v26, s71, v26")
    p("s_waitcnt vmcnt(0)")
    for i in range(NPREP):
        p(f"ds_read_b64_tr_b16 {v(96+4*i,2)}, v26 offset:{i*1024}")
        p(f"ds_read_b64_tr_b16 {v(96+4*i+2,2)}, v26 offset:{i*1024+512}")
    for i in range(NPREP):
        p(f"s_add_u32 s80, s70, {256*i}")
        p(f"s_lshl_b32 s51, s80, 10")
        p(f"s_add_u32 s51, s51, {WS_WC}")
        p("s_cmp_lt_u32 s80, 1232")
        p("s_cselect_b32 s51, s51, 0x7ff00000")
        p(f"buffer_store_dwordx4 {v(96+4*i,4)}, v1, s[{WS}:{WS+3}], s51 offen{SM()}")

def KNAME(): return (NAME+'_kernel') if layout.FUSE else 'k1_kernel'
def code_prefetch(p):
    p(f"s_cmp_lg_u32 s{SW8}, 7")
    p("s_cbranch_scc1 K1_CP1")
    p.begin_opt()
    p("s_getpc_b64 s[66:67]")
    p.label("K1_PC")
    p(f"s_sub_u32 s66, s66, K1_PC-{KNAME()}")
    p("s_subb_u32 s67, s67, 0")
    p("s_mul_i32 s51, s15, 10")
    p("v_add_u32 v26, s51, v0")
    p("s_lshl_b32 s52, s2, 1")
    p(f"s_add_u32 s52, s52, ({'K2_FUSED' if layout.FUSE else 'k2_kernel'}-{KNAME()})/128-10")
    p("v_add_u32 v27, s52, v0")
    p("v_cmp_gt_u32 vcc, 10, v0")
    p("v_cndmask_b32 v26, v27, v26, vcc")
    p("v_lshlrev_b32 v26, 7, v26")
    p(f"v_min_u32 v26, CODE_END-{KNAME()}-4, v26")
    p("v_cmp_gt_u32 vcc, 12, v0")
    p("s_and_saveexec_b64 s[68:69], vcc")
    p("global_load_dword v27, v26, s[66:67]")
    p("s_mov_b64 exec, s[68:69]")
    p.end_opt()
    p.label("K1_CP1")

def l2_prefetch(p, g):
    T=38; L="K1_PF%d"%g
    p("s_and_b32 s51, s15, 7")
    p("s_lshr_b32 s52, s15, 3")
    if g==0:
        p.begin_alt()
        p(f"s_cmp_ge_u32 s{SW}, 2")
        p(f"s_cbranch_scc1 {L}_2")
        p.alt_branch()
        p("s_lshl_b32 s53, s52, 7")
        p(f"s_lshl_b32 s54, s{SW}, 6")
        p("s_add_u32 s53, s53, s54")
        p("v_add_u32 v18, s53, v0")
        p("v_lshrrev_b32 v19, 2, v18")
        p(f"v_mul_u32_u24 v19, {D*2}, v19")
        p("v_and_b32 v18, 3, v18")
        p("v_lshl_add_u32 v19, v18, 7, v19")
        p(f"s_mul_i32 s53, s{SRB}, {128*D*2}")
        p(f"s_add_u32 s53, s53, {3*128}")
        p(f"buffer_load_dword v{T}, v19, s[{XS}:{XS+3}], s53 offen")
        p(f"s_branch {L}_D")
        p.alt_branch()
        p.label(f"{L}_2")
        p(f"s_lshl_b32 s53, s{SW}, 4")
        p(f"s_mul_i32 s53, s53, {F*2}")
        p(f"s_cmp_eq_u32 s{SW}, 2")
        p(f"s_cselect_b32 s54, s{SP1}, s{SP2}")
        p("s_sub_u32 s54, s54, s53")
        p(f"s_cmp_eq_u32 s{SW}, 2")
        p("s_cselect_b32 s55, 32, 56")
        p("s_cselect_b32 s53, 192, 0")
        p("s_mul_i32 s62, s51, s55")
        p("s_add_u32 s53, s53, s62")
        p("s_sub_u32 s55, s55, 1")
        p("v_min_u32 v18, s55, v0")
        p("v_add_u32 v18, s53, v18")
        p(f"v_mul_u32_u24 v19, {F*2}, v18")
        p(f"buffer_load_dword v{T}, v19, s[{WIN}:{WIN+3}], s54 offen")
        p.end_alt()
        p.label(f"{L}_D")
    else:
        p(f"s_min_u32 s53, s{SW}, 2")
        p("s_mul_i32 s53, s53, 94")
        p(f"s_mul_i32 s54, s{SCB}, 168")
        p("s_add_u32 s54, s54, s53")
        p("s_mul_i32 s53, s51, 56")
        p("v_min_u32 v18, 55, v0")
        p("v_add_u32 v18, s53, v18")
        p(f"v_mul_u32_u24 v19, {3*D*2}, v18")
        p(f"buffer_load_dword v{T}, v19, s[{WQ}:{WQ+3}], s54 offen")

def epoch_load(p):
    if layout.FUSE: p(f"s_mov_b32 s{SEP}, {WS_EP}")
    else:
        p(f"s_lshl_b32 s{SEP}, s{SRB}, 7")
        p(f"s_add_u32 s{SEP}, s{SEP}, {WS_EP}")
    p(f"buffer_load_dword v{EPV}, v{VH+8}, s[{WS}:{WS+3}], s{SEP} offen sc1")

def gen():
    p=Prog(); prologue(p)
    p("s_mov_b32 s56, 0xbdd2d3e8")
    p("s_mov_b32 s58, 0"); p("s_mov_b32 s59, -1")
    p("s_mov_b32 s60, 0xffff0000")
    p(f"v_mov_b32 v{VH+8}, 0")
    p(f"s_cmp_ge_u32 s{SW8}, 4")
    p("s_cbranch_scc1 K1_GROUPB")
    p.begin_alt(); p.alt_branch()
    n0=PR.n; names0=list(PR.names)
    if layout.FUSE: epoch_load(p)
    for kc in range(3): dma_init(p,kc)
    if PREFETCH&1: l2_prefetch(p,0)
    setup_reads(p)
    p("v_mov_b32 v47, 0xc0135761")
    if layout.FUSE:
        p(f"v_add_u32 v{EPV}, 1, v{EPV}")
        p(f"v_readfirstlane_b32 s{STAG}, v{EPV}")
    stamp(p,'setup')
    group_code(p, 0)
    namesA=list(PR.names); PR.n=n0; PR.names=list(names0)
    if not layout.FUSE: p("s_branch K1_END")
    p.alt_branch()
    p.label("K1_GROUPB")
    epoch_load(p)
    for kc in range(3): dma_init(p,kc)
    if PREFETCH&2: l2_prefetch(p,1)
    if CODEPF: code_prefetch(p)
    setup_reads(p)
    p("v_mov_b32 v47, 0xc0135761")
    p(f"v_add_u32 v{EPV}, 1, v{EPV}")
    p(f"v_readfirstlane_b32 s{STAG}, v{EPV}")
    stamp(p,'setup')
    group_code(p, 1)
    PR.namesA=namesA
    p.end_alt()
    p.label("K1_END")
    p("s_endpgm")
    return p

PREFETCH=False; MALLPF=False; CODEPF=True; KROT=False; K1PRIO=''; LASTSC1=True; LATEKA=True; GLSIDE=True; RBX=8; P3D=(2,2)
def kernel(**opt):
    global PR, PREFETCH, MALLPF, CODEPF, KROT, K1PRIO, LASTSC1, LATEKA, LA, GLSIDE, P3D, RBX
    RBX=int(opt.get('rbx',8))
    P3D=tuple(int(c) for c in opt.get('p3d','22'))
    GLSIDE=bool(int(opt.get('gls',1)))
    LA=int(opt.get('la',5))
    LATEKA=bool(int(opt.get('lka',1)))
    LASTSC1=bool(int(opt.get('lsc1',1)))
    K1PRIO=opt.get('k1p','')
    KROT=bool(int(opt.get('krot',0)))
    MALLPF=bool(int(opt.get('mpf',0))); CODEPF=bool(int(opt.get('cpf',1)))
    PREFETCH=int(opt.get('pf',0))
    PR=Prof(bool(int(opt.get('prof',0))),WS,SW8,WS_EP+(1<<19))
    text=gen().finalize()
    if PR.on: open('k1_stamps.txt','w').write(" ".join(PR.namesA)+"\n"+" ".join(PR.names))
    return dict(name="k1_kernel", text=text, grid=256, block=512, lds=LDS_K1, vgpr=256, sgpr=102, accum=256)
```

```python
from asmlib import *
from layout import *
import layout
def SM(): return layout.STMOD
def LM(): return ' sc1' if (layout.FUSE and not ACQ) else ''
from k3 import srd

LDS_RING = 0
LDS_AC   = 98304
LDS_AM   = 147456
LDS_CNT  = 147456 + 4096
LDS_K2   = 147456 + 4096 + 64

SW=16; SHEAD=17; SQB=18; STB=19; SFB=20; SJ=21; SX=22
WS=24; WSP=28; AUX=32; AUX2=36; STAG=15; XS3=88; OUT3=92

from profutil import Prof
PR=Prof(False,WS,23,0)
PROF=False
PRION=0
SKIPDMA=0
PRIOPAT=''
STARTPRIO=0
ONLY=''
WPF=1
DELAYW=1
ROT=3
KINT=1
EARLYRING=1
FPF=0
CODEPF2=0
FROT=0
HMOD=' sc1'
EARLYPUB=1
LATEBAR=2
POLLW=7
OMOD=' sc1'
PRIOLATE=0
ACQ=0
EPOLL=0
FSH=4
WFIRST=0
AWAIT=1
EARLYZ=1
GTAG=0
TAILTM=0
DSL=[0,1,2,3,4,5,6,7]
ASL=[9,11,13,15]
def stamp(p,name): PR.stamp(p,str(name))
def dump_stamps(p,n): PR.dump(p)

def role_sync(p, idx, lab):
    p(f"v_mov_b32 v12, {LDS_CNT+4*idx}")
    p("v_mov_b32 v13, 1")
    p("s_mov_b64 exec, 1")
    p("ds_add_u32 v12, v13")
    p("s_mov_b64 exec, -1")
    p.label(lab)
    p("ds_read_b32 v13, v12")
    p("s_waitcnt lgkmcnt(0)")
    p("v_readfirstlane_b32 s61, v13")
    p("s_cmp_lt_u32 s61, 4")
    p(f"s_cbranch_scc1 {lab}")

def prologue(p):
    F=layout.FUSE
    if F:
        p.label("K2_FUSED")
        p("s_mov_b32 s23, s16")
        p(f"s_mov_b32 s{STAG}, s21")
    else:
        p("s_cmp_ge_u32 s2, 256")
        p("s_cbranch_scc1 K2_END")
        p(f"s_load_dwordx2 s[4:5], s[0:1], {KA_WS}")
    p(f"s_load_dwordx2 s[6:7], s[0:1], {KA_WSP}")
    p(f"s_load_dwordx2 s[8:9], s[0:1], {KA_BSP}")
    p(f"s_load_dwordx2 s[10:11], s[0:1], {KA_X}")
    p(f"s_load_dwordx2 s[12:13], s[0:1], {KA_OUT}")
    if CODEPF2 and not F:
        p("s_getpc_b64 s[66:67]")
        p.label("K2_PC")
        p("s_sub_u32 s66, s66, K2_PC-k2_kernel")
        p("s_subb_u32 s67, s67, 0")
        p("v_lshrrev_b32 v2, 6, v0")
        p("s_lshr_b32 s68, s2, 3")
        p("s_lshl_b32 s68, s68, 3")
        p("v_add_u32 v3, s68, v2")
        p("v_lshlrev_b32 v3, 7, v3")
        p("v_min_u32 v3, CODE_END-k2_kernel-4, v3")
        p("s_mov_b64 exec, 1")
        p(f"global_load_dword v15, v3, s[66:67]")
        if PROF: p("s_waitcnt vmcnt(0)")
        p("s_mov_b64 exec, -1")
    if not F:
        p("v_lshrrev_b32 v1, 6, v0")
        p("v_and_b32 v0, 63, v0")
        p("v_readfirstlane_b32 s23, v1")
    p(f"s_and_b32 s{SX}, s2, 7")
    p(f"s_lshr_b32 s{SJ}, s2, 3")
    p(f"s_and_b32 s{SW}, s23, 3")
    p("v_lshlrev_b32 v1, 4, v0")
    if F:
        p("s_cmp_lg_u32 s23, 0")
        p("s_cbranch_scc1 K2_NOF1")
        p.begin_opt()
        p("v_lshlrev_b32 v2, 10, v0")
        p(f"v_mov_b32 v3, s{STAG}")
        p("s_lshl_b32 s63, s2, 2")
        p(f"s_add_u32 s63, s63, {WS_F1}")
        p("s_mov_b64 exec, 0xff")
        p(f"buffer_store_dword v3, v2, s[{WS}:{WS+3}], s63 offen sc1")
        p("s_mov_b64 exec, -1")
        p.end_opt()
        p.label("K2_NOF1")
    if F:
        p("s_waitcnt lgkmcnt(0)")
        counters_init(p)
    elif LATEBAR==0:
        kernarg_ready(p, True)
        counters_init(p)
        p("s_barrier")
    PR.real(p,62)
    stamp(p,'start')
    p("s_cmp_ge_u32 s23, 4")
    p("s_cbranch_scc1 K2_ROLEB")

def kernarg_ready(p, now=False):
    if layout.FUSE: return
    if LATEBAR==0 and not now: return
    p("s_waitcnt lgkmcnt(0)")
    srd(p, WS, 4, WS_SIZE)
    p(f"s_mov_b32 s63, {WS_EP}")
    p("v_mov_b32 v14, 0")
    p(f"buffer_load_dword v14, v14, s[{WS}:{WS+3}], s63 offen sc1")
    if LATEBAR==2:
        counters_init(p)
        p("s_barrier")
def counters_init(p):
    p(f"v_mov_b32 v12, {LDS_CNT}")
    p("v_mov_b32 v13, 0")
    p("ds_write_b32 v12, v13")
    p("ds_write_b32 v12, v13 offset:4")
    p("ds_write_b32 v12, v13 offset:8")
    for o in (16,20,24,28): p(f"ds_write_b32 v12, v13 offset:{o}")
    p("s_waitcnt lgkmcnt(0)")
def start_barrier(p, writer=False, lab=""):
    if layout.FUSE or LATEBAR!=1: return
    if writer:
        p("s_cmp_lg_u32 s23, 0")
        p(f"s_cbranch_scc1 {lab}")
        counters_init(p)
        p.label(lab)
    p("s_barrier")

def phase1_wait(p):
    p("s_cmp_lg_u32 s23, 0")
    p("s_cbranch_scc1 K2_P1GO")
    p.begin_opt()
    p(f"s_lshl_b32 s63, s{SX}, 10")
    p(f"s_add_u32 s63, s63, {WS_F1}")
    p("s_mov_b32 s62, 0")
    p.label("K2_P1POLL")
    p(f"buffer_load_dwordx4 v[4:7], v1, s[{WS}:{WS+3}], s63 offen sc1")
    p("s_waitcnt vmcnt(0)")
    p(f"v_cmp_ne_u32 s[64:65], s{STAG}, v4")
    p(f"v_cmp_ne_u32 s[66:67], s{STAG}, v5")
    p(f"v_cmp_ne_u32 s[68:69], s{STAG}, v6")
    p(f"v_cmp_ne_u32 s[70:71], s{STAG}, v7")
    p("s_or_b64 s[64:65], s[64:65], s[66:67]")
    p("s_or_b64 s[68:69], s[68:69], s[70:71]")
    p("s_or_b64 s[64:65], s[64:65], s[68:69]")
    p("s_cmp_eq_u64 s[64:65], 0")
    p("s_cbranch_scc1 K2_P1OK")
    p("s_add_u32 s62, s62, 1")
    p("s_cmp_lt_u32 s62, 0x40000")
    p("s_cbranch_scc1 K2_P1POLL")
    p.label("K2_P1OK")
    p("s_cmp_lg_u32 s2, 0")
    p("s_cbranch_scc1 K2_P1GO")
    p(f"s_mov_b32 s63, {WS_EP}")
    p(f"v_mov_b32 v3, s{STAG}")
    p("v_mov_b32 v2, 0")
    p("s_mov_b64 exec, 1")
    p(f"buffer_store_dword v3, v2, s[{WS}:{WS+3}], s63 offen sc1")
    p("s_mov_b64 exec, -1")
    p.end_opt()
    if ACQ==1:
        p("buffer_inv sc1")
        p("s_waitcnt vmcnt(0)")
    p.label("K2_P1GO")
    p("s_barrier")
    PR.real(p,61)
    stamp(p,'p1go')

Q0=16; O0=48; S_=[112,128]; P_=[144,152]; KV0=160; ME=224; T0=228
def kvb(b): return KV0+16*b

def attention(p, force_fallback=False):
    SKV=40; SQ=41; SNT=42; SOFF=43; SK=44; SCNT=45; SIT=46
    p(f"s_lshr_b32 s40, s{SJ}, 4")
    p(f"s_lshl_b32 s41, s{SX}, 1")
    p(f"s_add_u32 s{SHEAD}, s40, s41")
    p(f"s_and_b32 s{SQB}, s{SJ}, 15")
    p(f"s_lshl_b32 s40, s{SHEAD}, 17")
    p(f"s_lshl_b32 s41, s{SQB}, 13")
    p(f"s_add_u32 s47, s40, s41")
    if WS_Q: p(f"s_add_u32 s47, s47, {WS_Q}")
    for rho in range(4):
        p(f"s_add_u32 s{54+rho}, s{SW}, {rho}")
        p(f"s_and_b32 s{54+rho}, s{54+rho}, 3")
        p(f"s_lshl_b32 s{54+rho}, s{54+rho}, 11")
        p(f"s_add_u32 s{54+rho}, s{54+rho}, s47")
    p(f"s_lshl_b32 s40, s{SHEAD}, 18")
    p(f"s_lshl_b32 s41, s{SW}, 16")
    p(f"s_add_u32 s40, s40, s41")
    p(f"s_add_u32 s{SKV}, s40, {WS_KV}")
    kernarg_ready(p)
    for rho in range(4):
        p(f"buffer_load_dwordx4 {v(Q0+8*rho,4)}, v1, s[{WS}:{WS+3}], s{54+rho} offen{LM()}")
        p(f"buffer_load_dwordx4 {v(Q0+8*rho+4,4)}, v1, s[{WS}:{WS+3}], s{54+rho} offen offset:1024{LM()}")
    p("s_mov_b32 s58, 1")
    p(f"s_mov_b32 s{SNT}, {16 if force_fallback else 1}")
    p(f"s_mov_b32 s{SOFF}, {'0' if force_fallback else '0x42800000'}")
    p.label("A_RETRY")
    for j in range(4): p(f"v_mov_b32 v{ME+j}, 0xff7fffff")
    p(f"s_mov_b32 s{SCNT}, s{SNT}")
    def ld_tile(t_imm_base_sreg, b, part):
        for i in range(2):
            p(f"buffer_load_dwordx4 {v(kvb(b)+8*part+4*i,4)}, v1, s[{WS}:{WS+3}], s{t_imm_base_sreg} offen offset:{(2*part+i)*1024}{LM()}")
    ld_tile(SKV, 0, 0)
    if EARLYRING:
        ld_tile(SKV, 0, 1)
        p(f"s_add_u32 s{SK}, s{SKV}, 4096")
        for t in range(1,3):
            ld_tile(SK, t, 0); ld_tile(SK, t, 1)
            p(f"s_add_u32 s{SK}, s{SK}, 4096")
    p(f"s_mov_b32 s62, s{SKV}")
    for r in range(64): p(f"v_mov_b32 v{O0+r}, 0")
    for r in range(8): p(f"v_mov_b32 v{P_[1]+r}, 0")
    for r in range(8): p(f"v_mov_b32 v{kvb(3)+8+r}, 0")
    p("s_cmp_eq_u32 s58, 1")
    p("s_cbranch_scc0 A_MAXLOOP")
    p("s_mov_b32 s58, 0")
    start_barrier(p, True, "A_NOINIT")
    p.label("A_MAXLOOP")
    for j in range(4):
        Sx = S_[j&1]
        p(f"v_mfma_f32_32x32x16_bf16 {v(Sx,16)}, {v(kvb(0),4)}, {v(Q0+8*j,4)}, 0")
        p(f"v_mfma_f32_32x32x16_bf16 {v(Sx,16)}, {v(kvb(0)+4,4)}, {v(Q0+8*j+4,4)}, {v(Sx,16)}")
        if j>0:
            Sy=S_[(j-1)&1]
            maxtree(p,Sy,ME+j-1)
    maxtree(p,S_[1],ME+3)
    p(f"s_sub_u32 s{SCNT}, s{SCNT}, 1")
    p(f"s_cmp_eq_u32 s{SCNT}, 0")
    p("s_cbranch_scc1 A_MAXDONE")
    p.begin_opt()
    p("s_add_u32 s62, s62, 4096")
    ld_tile(62, 0, 0)
    p("s_waitcnt vmcnt(0)")
    p("s_branch A_MAXLOOP")
    p.end_opt()
    p.label("A_MAXDONE")
    stamp(p,'maxdone')
    p(f"s_cmp_eq_u32 s{SNT}, 1")
    p("s_cbranch_scc1 A_KEEPK")
    p.begin_opt()
    ld_tile(SKV, 0, 0)
    p.end_opt()
    p.label("A_KEEPK")
    for j in range(4):
        m=ME+j; t=T0
        p(f"v_mov_b32 v{t}, v{m}")
        p(f"v_permlane32_swap_b32 v{t}, v{m}")
        p(f"v_max_f32 v{m}, v{t}, v{m}")
        p(f"v_add_f32 v{m}, s{SOFF}, v{m}")
        p(f"v_sub_f32 v{t}, 0, v{m}")
        p(f"v_and_b32 v{t+1}, 0xffff0000, v{t}")
        p(f"v_sub_f32 v{t+2}, v{t}, v{t+1}")
        p(f"v_and_b32 v{t+2}, 0xffff0000, v{t+2}")
        p(f"v_add_f32 v{t+3}, v{t+1}, v{t+2}")
        p(f"v_sub_f32 v{m}, 0, v{t+3}")
        p(f"v_lshrrev_b32 v{t+1}, 16, v{t+1}")
        p(f"v_or_b32 v{t+1}, v{t+1}, v{t+2}")
        p(f"s_mov_b64 exec, s[48:49]")
        p(f"v_mov_b32 v{Q0+8*j+6}, v{t+1}")
        p(f"s_mov_b64 exec, -1")
    def QK(u):
        j=u&3; b=(u>>2)&3; Sx=S_[u&1]
        return [f"v_mfma_f32_32x32x16_bf16 {v(Sx,16)}, {v(kvb(b),4)}, {v(Q0+8*j,4)}, 0",
                f"v_mfma_f32_32x32x16_bf16 {v(Sx,16)}, {v(kvb(b)+4,4)}, {v(Q0+8*j+4,4)}, {v(Sx,16)}"]
    def PV(u):
        j=u&3; b=(u>>2)&3; Px=P_[u&1]; O=O0+16*j
        return [f"v_mfma_f32_32x32x16_bf16 {v(O,16)}, {v(kvb(b)+8,4)}, {v(Px,4)}, {v(O,16)}",
                f"v_mfma_f32_32x32x16_bf16 {v(O,16)}, {v(kvb(b)+12,4)}, {v(Px+4,4)}, {v(O,16)}"]
    for m_ in QK(0): p(m_)
    main=[]
    assert EARLYRING
    if not EARLYRING:
        def ringload(q, t, b, k):
            q(f"buffer_load_dwordx4 {v(kvb(b)+4*k,4)}, v1, s[{WS}:{WS+3}], s{SK} offen offset:{k*1024}{LM()}")
        sides=[]
        p(f"s_mov_b32 s{SK}, s{SKV}")
        sides.append(capture(lambda q: ringload(q,0,0,2))); sides.append(capture(lambda q: (ringload(q,0,0,3), q(f"s_add_u32 s{SK}, s{SK}, 4096"))))
        for t in (1,2):
            for k in range(4):
                sides.append(capture(lambda q,t=t,k=k: (ringload(q,t,t,k), q(f"s_add_u32 s{SK}, s{SK}, 4096") if k==3 else None)))
        p.extend(interleave(main, sides, 0, 70))
    def period(u, loads):
        Sx=S_[u&1]; Px=P_[u&1]
        qk=QK(u+1); pv=PV(u-1)
        ms=[qk[0],pv[0],qk[1],pv[1]]
        ex=[f"v_exp_f32 v{Sx+i}, v{Sx+i}" for i in range(16)]
        cv=[f"v_cvt_pk_bf16_f32 v{Px+i}, v{Sx+2*i}, v{Sx+2*i+1}" for i in range(8)]
        for g in range(4):
            p(ms[g])
            if g < len(loads) and loads[g]:
                for x in loads[g]: p(x)
            for k in range(2):
                i=2*g+k
                p(ex[2*i]); p(ex[2*i+1])
                if i>0: p(cv[i-1])
        p(cv[7])
    def iteration(last):
        for tl in range(4):
            for j in range(4):
                u=4*tl+j
                loads=[None]*4
                nb=(tl+3)&3
                doload = (not last) or tl==0
                if doload and j==0:
                    loads[2]=[f"buffer_load_dwordx4 {v(kvb(nb),4)}, v1, s[{WS}:{WS+3}], s{SK} offen offset:0{LM()}"]
                    loads[3]=[f"buffer_load_dwordx4 {v(kvb(nb)+4,4)}, v1, s[{WS}:{WS+3}], s{SK} offen offset:1024{LM()}"]
                if doload and j==1:
                    loads[0]=[f"buffer_load_dwordx4 {v(kvb(nb)+8,4)}, v1, s[{WS}:{WS+3}], s{SK} offen offset:2048{LM()}"]
                    loads[1]=[f"buffer_load_dwordx4 {v(kvb(nb)+12,4)}, v1, s[{WS}:{WS+3}], s{SK} offen offset:3072{LM()}",
                              f"s_add_u32 s{SK}, s{SK}, 4096"]
                period(u,loads)
    stamp(p,'loopstart')
    p(f"s_mov_b32 s{SIT}, 3")
    p.begin_loop(visits=3)
    p.label("A_LOOP")
    iteration(False)
    p(f"s_sub_u32 s{SIT}, s{SIT}, 1")
    p(f"s_cmp_lg_u32 s{SIT}, 0")
    p("s_cbranch_scc1 A_LOOP")
    p.end_loop()
    iteration(True)
    for m_ in PV(63): p(m_)
    stamp(p,'loopend')
    p("s_mov_b32 s50, 0x67800000")
    p("s_mov_b64 s[52:53], 0")
    for j in range(4):
        p(f"v_cmp_ngt_f32 vcc, s50, v{O0+16*j+12}")
        p("s_or_b64 s[52:53], s[52:53], vcc")
    p(f"s_cmp_eq_u32 s53, 0")
    p("s_cbranch_scc1 A_OK")
    p(f"s_cmp_eq_u32 s{SNT}, 16")
    p("s_cbranch_scc1 A_OK")
    p(f"s_mov_b32 s{SNT}, 16")
    p(f"s_mov_b32 s{SOFF}, 0")
    p(f"s_mov_b64 exec, s[48:49]")
    for j in range(4): p(f"v_mov_b32 v{Q0+8*j+6}, 0")
    p(f"s_mov_b64 exec, -1")
    p("s_branch A_RETRY")
    p.label("A_OK")

def maxtree(p, Sy, dst):
    t=T0
    for i in range(4):
        p(f"v_max3_f32 v{t+i}, v{Sy+4*i}, v{Sy+4*i+1}, v{Sy+4*i+2}")
    p(f"v_max3_f32 v{t}, v{t}, v{Sy+3}, v{Sy+7}")
    p(f"v_max3_f32 v{t+1}, v{t+1}, v{Sy+11}, v{Sy+15}")
    p(f"v_max3_f32 v{t}, v{t}, v{t+2}, v{t+3}")
    p(f"v_max3_f32 v{dst}, v{dst}, v{t}, v{t+1}")

def attention_publish(p):
    p(f"s_mul_i32 s40, s{SW}, 12288")
    p(f"s_add_u32 s40, s40, {LDS_AC}")
    p(f"v_add_u32 v2, s40, v1")
    for rho in range(1,4):
        for q in range(4):
            p(f"ds_write_b128 v2, {v(O0+16*rho+4*q,4)} offset:{(rho-1)*4096+q*1024}", tag='apub')
    p(f"v_and_b32 v3, 31, v0")
    p(f"v_lshlrev_b32 v3, 2, v3")
    p(f"s_lshl_b32 s40, s{SW}, 10")
    p(f"s_add_u32 s40, s40, {LDS_AM}")
    p(f"v_add_u32 v4, s40, v3")
    for rho in range(4):
        p(f"v_log_f32 v{T0+rho}, v{O0+16*rho+12}")
    for rho in range(4):
        p(f"v_add_f32 v{T0+rho}, v{T0+rho}, v{ME+rho}")
    p(f"s_mov_b64 exec, s[48:49]")
    for rho in range(4):
        p(f"ds_write_b32 v4, v{ME+rho} offset:{rho*256}", tag='apub')
        p(f"ds_write_b32 v4, v{T0+rho} offset:{rho*256+128}", tag='apub')
    p(f"s_mov_b64 exec, -1")
    p.wait('apub')

def attention_finish(p):
    R=112
    MM=160; LG=164
    for rho in range(4):
        p(f"s_sub_u32 s40, s{SW}, {rho}")
        p("s_and_b32 s40, s40, 3")
        p("s_lshl_b32 s41, s40, 10")
        p(f"s_add_u32 s41, s41, {LDS_AM+rho*256}")
        p(f"v_add_u32 v4, s41, v3")
        p(f"ds_read_b32 v{MM+rho}, v4")
        p(f"ds_read_b32 v{LG+rho}, v4 offset:128")
        if rho>0:
            p("s_mul_i32 s41, s40, 12288")
            p(f"s_add_u32 s41, s41, {LDS_AC+(rho-1)*4096}")
            p(f"v_add_u32 v2, s41, v1")
            for q in range(4):
                p(f"ds_read_b128 {v(R+16*(rho-1)+4*q,4)}, v2 offset:{q*1024}")
    t=T0
    p(f"v_max3_f32 v{t}, v{LG}, v{LG+1}, v{LG+2}")
    p(f"v_max_f32 v{t}, v{t}, v{LG+3}")
    for rho in range(4):
        p(f"v_sub_f32 v{LG+rho}, v{LG+rho}, v{t}")
        p(f"v_sub_f32 v{MM+rho}, v{MM+rho}, v{t}")
    for rho in range(4):
        p(f"v_exp_f32 v{LG+rho}, v{LG+rho}")
        p(f"v_exp_f32 v{MM+rho}, v{MM+rho}")
    p(f"v_add_f32 v{LG}, v{LG}, v{LG+1}")
    p(f"v_add_f32 v{LG+2}, v{LG+2}, v{LG+3}")
    p(f"v_add_f32 v{LG}, v{LG}, v{LG+2}")
    p(f"v_rcp_f32 v{LG}, v{LG}")
    for rho in range(4):
        p(f"v_mul_f32 v{MM+rho}, v{MM+rho}, v{LG}")
    for r in range(16):
        p(f"v_mul_f32 v{O0+r}, v{O0+r}, v{MM}")
    for rho in range(1,4):
        for r in range(16):
            p(f"v_fmac_f32 v{O0+r}, v{R+16*(rho-1)+r}, v{MM+rho}")
    p(f"s_mov_b64 exec, s[48:49]")
    for r in range(12,16): p(f"v_mov_b32 v{O0+r}, 0")
    p(f"s_mov_b64 exec, -1")
    for i in range(8):
        p(f"v_cvt_pk_bf16_f32 v{R+i}, v{O0+2*i}, v{O0+2*i+1}")
    p(f"s_lshl_b32 s40, s{SQB}, 2")
    p(f"s_add_u32 s40, s40, s{SW}")
    p(f"s_mul_i32 s40, s40, {88*1024}")
    p(f"s_lshl_b32 s41, s{SHEAD}, 11")
    p(f"s_add_u32 s40, s40, s41")
    p(f"s_add_u32 s40, s40, {WS_H}")
    p(f"buffer_store_dwordx4 {v(R,4)}, v1, s[{WS}:{WS+3}], s40 offen{SM()}")
    p(f"buffer_store_dwordx4 {v(R+4,4)}, v1, s[{WS}:{WS+3}], s40 offen offset:1024{SM()}")

GACC=128; GA=64; GB=48
def TH(c): return (1-(c&1)) if EARLYPUB else (c&1)
def gemm(p):
    SROW=[40,41,42,43]; SRING=44; SZ=45; ST=46
    VD=[2,3]; VR=[4,5,6,7]
    p(f"s_mul_i32 s46, s{SJ}, 37")
    p("s_lshr_b32 s46, s46, 8")
    p("s_mul_i32 s47, s46, 7")
    p(f"s_sub_u32 s47, s{SJ}, s47")
    p(f"s_lshr_b32 s48, s{SX}, 1")
    p("s_lshl_b32 s48, s48, 2")
    p(f"s_add_u32 s{STB}, s48, s46")
    p(f"s_and_b32 s48, s{SX}, 1")
    p("s_mul_i32 s48, s48, 7")
    p(f"s_add_u32 s{SFB}, s48, s47")
    for rho in range(4):
        p(f"s_add_u32 s46, s{SW}, {rho}")
        p("s_and_b32 s46, s46, 3")
        p("s_lshl_b32 s46, s46, 5")
        p(f"s_lshl_b32 s47, s{STB}, 7")
        p("s_add_u32 s46, s46, s47")
        p("s_lshl_b32 s46, s46, 12")
        p(f"s_lshl_b32 s47, s{SW}, {7 if KINT else 10}")
        p(f"s_add_u32 s{SROW[rho]}, s46, s47")
    p(f"s_mul_i32 s{SRING}, s{SW}, 24576")
    p(f"s_lshl_b32 s46, s{SFB}, 7")
    p(f"s_lshl_b32 s47, s{SW}, {2 if KINT else 5}")
    p("s_add_u32 s46, s46, s47")
    p("s_lshl_b32 s46, s46, 11")
    p(f"s_add_u32 s{SZ}, s46, {WS_Z2}")
    p("v_lshrrev_b32 v8, 3, v0")
    p("v_lshlrev_b32 v8, 12, v8")
    p("v_lshrrev_b32 v9, 4, v0")
    p("v_and_b32 v10, 7, v0")
    p("v_xor_b32 v11, v10, v9")
    p("v_lshl_add_u32 v2, v11, 4, v8")
    p("v_xor_b32 v11, 4, v11")
    p("v_lshl_add_u32 v3, v11, 4, v8")
    p("v_and_b32 v8, 31, v0")
    p("v_lshrrev_b32 v9, 5, v0")
    p("v_lshrrev_b32 v10, 1, v8")
    p("v_and_b32 v10, 7, v10")
    p("v_xor_b32 v10, v10, v9")
    p("v_lshlrev_b32 v8, 7, v8")
    p(f"v_add_u32 v8, s{SRING}, v8")
    for u in range(4):
        p(f"v_xor_b32 v11, {2*u}, v10")
        p(f"v_lshl_add_u32 v{VR[u]}, v11, 4, v8")
    SROT=52; SWO=[53,54]; SZO=[55,56]
    p(f"s_and_b32 s{SROT}, s{STB if ROT==1 else SFB}, { {3:1,4:3}.get(ROT,7) }")
    if ROT==3: p(f"s_lshl_b32 s{SROT}, s{SROT}, 2")
    if ROT==4: p(f"s_lshl_b32 s{SROT}, s{SROT}, 1")
    def chunk_offsets(sc):
        e=sc&1
        if ROT:
            p(f"s_add_u32 s57, s{SROT}, {sc}")
            p("s_and_b32 s57, s57, 7")
            p(f"s_lshl_b32 s{SWO[e]}, s57, {9 if KINT else 7}")
            p(f"s_lshl_b32 s57, s57, {15 if KINT else 13}")
            p(f"s_add_u32 s{SZO[e]}, s57, s{SZ}")
        else:
            p(f"s_mov_b32 s{SWO[e]}, {sc*(512 if KINT else 128)}")
            p(f"s_add_u32 s{SZO[e]}, s{SZ}, {sc*(32768 if KINT else 8192)}")
    done=set()
    def need(sc):
        if sc not in done: done.add(sc); chunk_offsets(sc)
    def dma(c, which=range(8)):
        sc=c>>1; th=TH(c); slot=c%3
        need(sc)
        for i in which:
            if SKIPDMA and (i&1) and c>1: continue
            rho=2*th+(i>>2)
            p(f"s_add_u32 m0, s{SRING}, {slot*8192+i*1024}")
            p(f"s_add_u32 s{ST}, s{SROW[rho]}, s{SWO[sc&1]}")
            if i&3: p(f"s_add_u32 s{ST}, s{ST}, {(8*(i&3))*4096}")
            p(f"buffer_load_dwordx4 v{VD[i&1]}, s[{WSP}:{WSP+3}], s{ST} offen lds", tag=f'dma{slot}')
    def aload(sc, lo, hi):
        e=sc&1
        need(sc)
        for k in range(lo,hi):
            if k%4==0 or k==lo: p(f"s_add_u32 s{ST+1}, s{SZO[e]}, {(k&~3)*1024}")
            p(f"buffer_load_dwordx4 {v(GA+e*32+4*k,4)}, v1, s[{WS}:{WS+3}], s{ST+1} offen offset:{(k%4)*1024}{LM()}")
    def bread(c,u):
        slot=c%3; st=(c*4+u)&1
        for tl in range(2):
            p(f"ds_read_b128 {v(GB+st*8+4*tl,4)}, v{VR[u]} offset:{slot*8192+tl*4096}")
    kernarg_ready(p)
    srd(p, WSP, 6, S*S*2)
    srd(p, AUX, 8, S*2)
    if STARTPRIO: p("s_setprio 1")
    if layout.FUSE and FPF==2:
        dma(0); dma(1)
        p("s_barrier")
        aload(0,0,8)
    elif layout.FUSE and FPF==1:
        dma(0)
        p("s_barrier")
        aload(0,0,4); dma(1); aload(0,4,8)
    elif layout.FUSE:
        p("s_barrier")
        dma(0); aload(0,0,4); dma(1); aload(0,4,8)
    else:
        dma(0); aload(0,0,4); dma(1); aload(0,4,8)
        start_barrier(p)
    stamp(p,'issued')
    p.wait('dma0')
    bread(0,0)
    stamp(p,'loopstart')
    for c in range(16):
        if c in (2,4,8,12): stamp(p,f'c{c}')
        if PRIOLATE and c==PRIOLATE: p("s_setprio 1")
        sc=c>>1; th=TH(c); e=sc&1
        for u in range(4):
            if PRIOPAT:
                on = PRIOPAT[(c*4+u) % len(PRIOPAT)]=='1'
                prev = PRIOPAT[(c*4+u-1) % len(PRIOPAT)]=='1' if (c or u) else False
                if on!=prev: p(f"s_setprio {1 if on else 0}")
            if u<3: nxt=(c,u+1)
            else: nxt=(c+1,0) if c<15 else None
            st=(c*4+u)&1
            k=0
            for tl in range(2):
                for fi in range(2):
                    acc=GACC+((2*th+tl)*2+fi)*16
                    cc = "0" if (sc==0 and u==0) else v(acc,16)
                    p(f"v_mfma_f32_32x32x16_bf16 {v(acc,16)}, {v(GA+e*32+4*(u*2+fi),4)}, {v(GB+st*8+4*tl,4)}, {cc}")
                    if k==0 and nxt:
                        if nxt[0]!=c: p.wait(f'dma{nxt[0]%3}')
                        bread(*nxt)
                    slot=u*4+k
                    if c==0:
                        if slot<8: dma(2,[slot])
                        if slot==8 and STARTPRIO: p("s_setprio 0")
                    else:
                        if c+2<16 and slot in DSL: dma(c+2,[DSL.index(slot)])
                    if sc+1<8 and slot in ASL:
                        kk=4*(c&1)+ASL.index(slot)
                        aload(sc+1, kk, kk+1)
                    if EARLYZ and c==14 and slot==2: epi_operands(p)
                    if EARLYPUB and c==15 and slot>=4:
                        for n in range((slot-4)*16//12, (slot-3)*16//12):
                            rho=2+n//8; fi_=(n//4)&1; q=n&3
                            if n==0: p(f"v_add_u32 v2, s44, v1")
                            p(f"ds_write_b128 v2, {v(GACC+(rho*2+fi_)*16+4*q,4)} offset:{(rho-1)*8192+fi_*4096+q*1024}", tag='gpub')
                    k+=1
    if PRIOPAT: p("s_setprio 0")

def epi_operands(p):
    p(f"s_lshl_b32 s46, s{STB}, 2")
    p(f"s_add_u32 s46, s46, s{SW}")
    p(f"s_mul_i32 s47, s46, {28*2048}")
    p(f"s_lshl_b32 s48, s{SFB}, 12")
    p("s_add_u32 s47, s47, s48")
    p(f"s_add_u32 s47, s47, {WS_Z1}")
    for k in range(4):
        p(f"buffer_load_dwordx4 {v(16+4*k,4)}, v1, s[{WS}:{WS+3}], s47 offen offset:{k*1024}{LM()}")
    p("v_and_b32 v8, 31, v0")
    p("v_lshlrev_b32 v8, 1, v8")
    p("s_lshl_b32 s48, s46, 6")
    p(f"buffer_load_ushort v9, v8, s[{AUX}:{AUX+3}], s48 offen")

def gemm_publish(p):
    p(f"v_add_u32 v2, s44, v1")
    for rho in range(1,2 if EARLYPUB else 4):
        for fi in range(2):
            for q in range(4):
                p(f"ds_write_b128 v2, {v(GACC+(rho*2+fi)*16+4*q,4)} offset:{(rho-1)*8192+fi*4096+q*1024}", tag='gpub')
    if not EARLYZ: epi_operands(p)
    if GTAG:
        p(f"s_lshl_b32 s47, s{SW}, 2")
        p(f"s_add_u32 s47, s47, {LDS_CNT+16}")
        p("v_mov_b32 v12, s47")
        p("v_mov_b32 v13, 1")
        p("ds_write_b32 v12, v13")
        p(f"v_mov_b32 v12, {LDS_CNT+4}")
        p("s_mov_b64 exec, 1")
        p("ds_add_u32 v12, v13")
        p("s_mov_b64 exec, -1")
    else: p.wait('gpub')

def gemm_finish(p):
    R=32
    for rho in range(1,4):
        p(f"s_sub_u32 s47, s{SW}, {rho}")
        p("s_and_b32 s47, s47, 3")
        p("s_mul_i32 s47, s47, 24576")
        p(f"s_add_u32 s47, s47, {(rho-1)*8192}")
        p(f"v_add_u32 v{2+rho}, s47, v1")
    def rd(fi):
        for rho in range(1,4):
            for q in range(4):
                p(f"ds_read_b128 {v(R+32*(rho-1)+16*fi+4*q,4)}, v{2+rho} offset:{fi*4096+q*1024}")
    if GTAG:
        p(f"v_mov_b32 v2, {LDS_CNT+16}")
        p.label("B_TAGW")
        p("ds_read_b128 v[48:51], v2")
        rd(0)
        p("s_waitcnt lgkmcnt(12)")
        t=48
        p(f"v_and_b32 v{t}, v{t}, v{t+1}")
        p(f"v_and_b32 v{t+2}, v{t+2}, v{t+3}")
        p(f"v_and_b32 v{t}, v{t}, v{t+2}")
        p(f"v_readfirstlane_b32 s61, v{t}")
        p("s_cmp_lg_u32 s61, 1")
        p("s_cbranch_scc1 B_TAGW")
        rd(1)
    else:
        rd(0); rd(1)
    p(f"s_mul_i32 s47, s46, {88*1024}")
    p(f"s_lshl_b32 s48, s{SFB}, 12")
    p("s_add_u32 s47, s47, s48")
    p(f"s_add_u32 s47, s47, {WS_H+32*1024}")
    p("v_lshlrev_b32 v8, 16, v9")
    p("v_mov_b32 v9, v8")
    for fi in range(2):
        A=GACC+16*fi; P1=R+16*fi; P2=R+32+16*fi; P3=R+64+16*fi
        for r in range(0,16,2):
            p(f"v_pk_add_f32 {v(A+r,2)}, {v(A+r,2)}, {v(P1+r,2)}")
        for r in range(0,16,2):
            p(f"v_pk_add_f32 {v(P2+r,2)}, {v(P2+r,2)}, {v(P3+r,2)}")
        for r in range(0,16,2):
            p(f"v_pk_add_f32 {v(A+r,2)}, {v(A+r,2)}, v[8:9]")
        for r in range(0,16,2):
            p(f"v_pk_add_f32 {v(A+r,2)}, {v(A+r,2)}, {v(P2+r,2)}")
        for d in range(8):
            p(f"v_lshlrev_b32 v{P1+2*d}, 16, v{16+8*fi+d}")
            p(f"v_and_b32 v{P1+2*d+1}, 0xffff0000, v{16+8*fi+d}")
        for r in range(0,16,2):
            p(f"v_pk_mul_f32 {v(A+r,2)}, {v(A+r,2)}, {v(P1+r,2)}")
        for d in range(8):
            p(f"v_cvt_pk_bf16_f32 v{P3+d}, v{A+2*d}, v{A+2*d+1}")
        for u in range(2):
            p(f"buffer_store_dwordx4 {v(P3+4*u,4)}, v1, s[{WS}:{WS+3}], s47 offen offset:{(fi*2+u)*1024}{SM()}", tag='hst')

def signal(p, tblk_sreg, slot_expr_sreg, tag=None):
    if tag: p.wait(tag)
    else: p("s_waitcnt vmcnt(0)")
    if not layout.FUSE: p(f"v_readfirstlane_b32 s{STAG}, v14")
    p(f"s_lshl_b32 s64, s{tblk_sreg}, {5+FSH}")
    p(f"s_lshl_b32 s65, s{slot_expr_sreg}, {FSH}")
    p("s_add_u32 s64, s64, s65")
    p(f"s_add_u32 s64, s64, {WS_FL}")
    p(f"v_mov_b32 v12, s{STAG}")
    p("v_mov_b32 v13, 0")
    p("s_mov_b64 exec, 1")
    p(f"buffer_store_dword v12, v13, s[{WS}:{WS+3}], s64 offen sc1")
    p("s_mov_b64 exec, -1")

WO0=16; WH0=80; H0=136; FACC=192; RS3=272
STB3=66; SNB3=67
def hreg(k): return H0+4*k if k<14 else 4+4*(k-14)
def final_ids(p):
    srd(p, XS3, 10, S*D*2); srd(p, OUT3, 12, S*D*2)
    p(f"s_mul_i32 s72, s{SJ}, 37")
    p("s_lshr_b32 s72, s72, 8")
    p("s_mul_i32 s73, s72, 7")
    p(f"s_sub_u32 s{SNB3}, s{SJ}, s73")
    p(f"s_lshl_b32 s73, s{SX}, 2")
    p(f"s_add_u32 s{STB3}, s73, s72")
    p("s_mul_i32 s80, s72, 3")
    p(f"s_add_u32 s80, s80, s{SNB3}")
    p("s_sub_u32 s81, s80, 11")
    p("s_cmp_ge_u32 s80, 11")
    p("s_cselect_b32 s80, s81, s80")
    p(f"s_mul_i32 s72, s{SNB3}, {2*88*1024}")
    p(f"s_add_u32 s68, s72, {WS_WC}")
    p(f"s_mul_i32 s72, s{STB3}, {2*88*1024}")
    p(f"s_add_u32 s69, s72, {WS_H}")
def frag_loads(p, base, ks0_sreg, nk, regf, mod):
    p(f"s_lshl_b32 s72, s{ks0_sreg}, 10")
    p(f"s_add_u32 s73, s{base}, s72")
    if not FROT:
        p(f"s_mov_b32 s70, s73")
        p(f"s_add_u32 s71, s70, {88*1024}")
        for k in range(nk):
            for i in range(2):
                p(f"buffer_load_dwordx4 {v(regf(2*k+i),4)}, v1, s[{WS}:{WS+3}], s{70+i} offen offset:{(k%4)*1024}{mod}")
            if k%4==3 and k+1<nk:
                p("s_add_u32 s70, s70, 4096"); p("s_add_u32 s71, s71, 4096")
        return
    p("s_mov_b32 s81, s80")
    for k in range(nk):
        p("s_lshl_b32 s72, s81, 10")
        p("s_add_u32 s70, s73, s72")
        p(f"s_add_u32 s71, s70, {88*1024}")
        if k+1<nk:
            p("s_add_u32 s81, s81, 1")
            p(f"s_cmp_eq_u32 s81, {nk}")
            p("s_cselect_b32 s81, 0, s81")
        for i in range(2):
            p(f"buffer_load_dwordx4 {v(regf(2*k+i),4)}, v1, s[{WS}:{WS+3}], s{70+i} offen{mod}")
def frag_mfma(p, nk, wf, hf, first_zero):
    for k in range(nk):
        for ti in range(2):
            for ni in range(2):
                acc = FACC + (ti*2+ni)*16
                c = "0" if (k==0 and first_zero) else v(acc,16)
                p(f"v_mfma_f32_32x32x16_bf16 {v(acc,16)}, {v(wf(2*k+ni),4)}, {v(hf(2*k+ti),4)}, {c}")
def lds_wait(p, idx, n, lab):
    p(f"v_mov_b32 v12, {LDS_CNT+4*idx}")
    p.label(lab)
    p("ds_read_b32 v13, v12")
    p("s_waitcnt lgkmcnt(0)")
    p("v_readfirstlane_b32 s61, v13")
    p(f"s_cmp_lt_u32 s61, {n}")
    p(f"s_cbranch_scc1 {lab}")
def poll_flags(p, mask_lo, lab):
    p(f"s_lshl_b32 s72, s{STB3}, {6+FSH}")
    p(f"s_add_u32 s72, s72, {WS_FL}")
    p(f"v_lshlrev_b32 v3, {FSH}, v0")
    p(f"s_mov_b32 s74, {mask_lo}"); p(f"s_mov_b32 s75, {mask_lo}")
    p("s_mov_b32 s76, 0")
    p.label(lab)
    p(f"buffer_load_dword v12, v3, s[{WS}:{WS+3}], s72 offen sc1")
    p("s_waitcnt vmcnt(0)")
    p(f"v_cmp_ne_u32 vcc, s{STAG}, v12")
    p("s_and_b64 s[78:79], vcc, s[74:75]")
    p("s_cmp_eq_u64 s[78:79], 0")
    p(f"s_cbranch_scc1 {lab}_OK")
    p("s_add_u32 s76, s76, 1")
    p("s_cmp_lt_u32 s76, 0x40000")
    p(f"s_cbranch_scc1 {lab}")
    p.label(lab+"_OK")

NK3=11; W30=16; H30=104
def final_attention(p):
    final_ids(p)
    if AWAIT: lds_wait(p, AWAIT, 4, "K2_AWAIT")
    p(f"s_mul_i32 s77, s23, {NK3}")
    frag_loads(p, 68, 77, NK3, lambda k: W30+4*k, LM())
    stamp(p,'wissued')
    if POLLW<4:
        p(f"s_cmp_lg_u32 s23, {POLLW}")
        p("s_cbranch_scc1 K2_FH")
        poll_flags(p, "0x3fffffff", "K2_APOLL")
    p("s_branch K2_FH")

def final_gemm(p):
    final_ids(p)
    if EPOLL:
        p(f"s_lshl_b32 s79, s{STB3}, {6+FSH}")
        p(f"s_add_u32 s79, s79, {WS_FL}")
        p(f"v_lshlrev_b32 v3, {FSH}, v0")
        p(f"s_cmp_lg_u32 s23, {POLLW}")
        p("s_cbranch_scc1 K2_NOEP")
        p.begin_opt()
        p(f"buffer_load_dword v13, v3, s[{WS}:{WS+3}], s79 offen sc1", tag='fp')
        p.end_opt()
        p.label("K2_NOEP")
    p(f"s_mul_i32 s77, s23, {NK3}")
    frag_loads(p, 68, 77, NK3, lambda k: W30+4*k, LM())
    stamp(p,'wissued')
    if POLLW>=4:
        p(f"s_cmp_lg_u32 s23, {POLLW}")
        p("s_cbranch_scc1 K2_FH")
        if EPOLL:
            p.wait('fp')
            p(f"v_cmp_ne_u32 vcc, s{STAG}, v13")
            p("s_mov_b32 s74, 0x3fffffff"); p("s_mov_b32 s75, 0x3fffffff")
            p("s_and_b64 s[78:79], vcc, s[74:75]")
            p("s_cmp_eq_u64 s[78:79], 0")
            p("s_cbranch_scc1 K2_FH")
        poll_flags(p, "0x3fffffff", "K2_GPOLL")
    p("s_branch K2_FH")

def final_common(p):
    p.label("K2_FH")
    p("s_barrier")
    stamp(p,'flags')
    p(f"s_mul_i32 s77, s23, {NK3}")
    frag_loads(p, 69, 77, NK3, lambda k: H30+4*k, HMOD)
    p("v_lshrrev_b32 v3, 3, v0")
    p(f"s_lshl_b32 s72, s{STB3}, 6")
    p(f"s_lshl_b32 s73, s23, 3")
    p("s_add_u32 s72, s72, s73")
    p("v_add_u32 v3, s72, v3")
    p(f"v_mul_u32_u24 v3, {D*2}, v3")
    p("v_and_b32 v2, 7, v0")
    p("v_lshlrev_b32 v2, 4, v2")
    p(f"s_lshl_b32 s73, s{SNB3}, 7")
    p("v_add3_u32 v2, v3, v2, s73")
    p(f"buffer_load_dwordx4 v[4:7], v2, s[{XS3}:{XS3+3}], 0 offen")
    RS=RS3; ACC=FACC
    p("v_and_b32 v8, 31, v0")
    p(f"v_mul_u32_u24 v8, {RS}, v8")
    p("v_lshrrev_b32 v9, 5, v0")
    p("v_lshlrev_b32 v9, 4, v9")
    p(f"s_mul_i32 s72, s23, {64*RS}")
    p("v_add3_u32 v8, v8, v9, s72")
    p("v_lshrrev_b32 v12, 3, v0")
    p(f"s_lshl_b32 s72, s23, 3")
    p("v_add_u32 v12, s72, v12")
    p(f"v_mul_u32_u24 v12, {RS}, v12")
    p("v_and_b32 v13, 7, v0")
    p("v_lshlrev_b32 v13, 5, v13")
    p("v_add_u32 v12, v12, v13")
    p(f"v_add_u32 v13, {4*64*RS}, v12")
    def wr(ti,ni):
        acc = ACC + (ti*2+ni)*16
        for q in range(4):
            p(f"ds_write_b128 v8, {v(acc+4*q,4)} offset:{ti*32*RS+ni*128+q*32}", tag='pw')
    if TAILTM:
        frag_mfma(p, NK3-3, lambda k: W30+4*k, lambda k: H30+4*k, True)
        tiles=[(0,0),(0,1),(1,0),(1,1)]
        for n,(ti,ni) in enumerate(tiles):
            acc = ACC + (ti*2+ni)*16
            for k in range(NK3-3,NK3):
                p(f"v_mfma_f32_32x32x16_bf16 {v(acc,16)}, {v(W30+4*(2*k+ni),4)}, {v(H30+4*(2*k+ti),4)}, {v(acc,16)}")
            if n>=2: wr(*tiles[n-2])
        stamp(p,'fmfma')
        wr(*tiles[2]); wr(*tiles[3])
    else:
        frag_mfma(p, NK3, lambda k: W30+4*k, lambda k: H30+4*k, True)
        stamp(p,'fmfma')
        for ti in range(2):
            for ni in range(2): wr(ti,ni)
    p.wait('pw')
    p("s_barrier")
    stamp(p,'fbar')
    R=16
    for w in range(8):
        for hh in range(2):
            a=12 if w<4 else 13
            p(f"ds_read_b128 {v(R+(w*2+hh)*4,4)}, v{a} offset:{(w%4)*64*RS+hh*16}")
    for st_ in (1,2,4):
        for w in range(0,8,2*st_):
            for e in range(0,8,2):
                p(f"v_pk_add_f32 {v(R+8*w+e,2)}, {v(R+8*w+e,2)}, {v(R+8*(w+st_)+e,2)}")
    for d in range(4):
        p(f"v_lshlrev_b32 v10, 16, v{4+d}")
        p(f"v_and_b32 v11, 0xffff0000, v{4+d}")
        p(f"v_add_f32 v{R+2*d}, v{R+2*d}, v10")
        p(f"v_add_f32 v{R+2*d+1}, v{R+2*d+1}, v11")
    for d in range(4):
        p(f"v_cvt_pk_bf16_f32 v{R+8+d}, v{R+2*d}, v{R+2*d+1}")
    p(f"buffer_store_dwordx4 {v(R+8,4)}, v2, s[{OUT3}:{OUT3+3}], 0 offen{OMOD}")
    stamp(p,'fend')

def prep(p):
    srd(p, AUX, 10, D*D*2)
    srd(p, AUX2, 12, FH*D*2)
    p(f"s_lshl_b32 s40, s{SX}, 2")
    p(f"s_add_u32 s40, s40, s{SJ}")
    p("s_sub_u32 s40, s40, 28")
    p("s_lshl_b32 s40, s40, 2")
    p(f"s_add_u32 s40, s40, s{SW}")
    p(f"s_mul_i32 s44, s{SW}, 24576")
    p("v_lshrrev_b32 v2, 2, v0")
    p(f"v_mul_u32_u24 v3, {D*2}, v2")
    p("v_and_b32 v4, 3, v0")
    p("v_lshl_add_u32 v3, v4, 4, v3")
    p("v_cmp_gt_u32 vcc, 12, v2")
    p("v_mov_b32 v5, 0x7ff00000")
    p("v_cndmask_b32 v4, v5, v3, vcc")
    p("v_lshrrev_b32 v5, 4, v0")
    p("v_and_b32 v6, 1, v5")
    p("v_lshrrev_b32 v5, 1, v5")
    p("v_lshrrev_b32 v7, 2, v0")
    p("v_and_b32 v7, 3, v7")
    p("v_lshl_add_u32 v5, v5, 2, v7")
    p("v_lshlrev_b32 v5, 6, v5")
    p("v_lshl_add_u32 v5, v6, 5, v5")
    p("v_and_b32 v6, 3, v0")
    p("v_lshl_add_u32 v5, v6, 3, v5")
    p("v_add_u32 v5, s44, v5")
    NI=10
    for i in range(NI):
        f=50+i
        p(f"s_add_u32 s{f}, s40, {128*i}")
        p(f"s_add_u32 m0, s44, {i*1024}")
        p(f"s_cmp_ge_u32 s{f}, 1232")
        p(f"s_cbranch_scc1 P_SKIP{i}")
        p(f"s_mul_i32 s41, s{f}, 745")
        p("s_lshr_b32 s41, s41, 16")
        p("s_mul_i32 s42, s41, 88")
        p(f"s_sub_u32 s42, s{f}, s42")
        p("s_lshl_b32 s41, s41, 6")
        p("s_cmp_ge_u32 s42, 32")
        p(f"s_cbranch_scc1 P_OUT{i}")
        p("s_lshr_b32 s43, s42, 1")
        p("s_mul_i32 s43, s43, 28")
        p("s_and_b32 s45, s42, 1")
        p("s_lshl_b32 s46, s45, 4")
        p("s_add_u32 s43, s43, s46")
        p(f"s_mul_i32 s43, s43, {D*2}")
        p("s_add_u32 s43, s43, s41")
        p("s_cmp_eq_u32 s45, 1")
        p(f"s_cbranch_scc1 P_PAD{i}")
        p(f"buffer_load_dwordx4 v3, s[{AUX}:{AUX+3}], s43 offen lds", tag='pd')
        p(f"s_branch P_SKIP{i}")
        p.label(f"P_PAD{i}")
        p(f"buffer_load_dwordx4 v4, s[{AUX}:{AUX+3}], s43 offen lds", tag='pd')
        p(f"s_branch P_SKIP{i}")
        p.label(f"P_OUT{i}")
        p("s_sub_u32 s43, s42, 32")
        p("s_lshl_b32 s43, s43, 4")
        p(f"s_mul_i32 s43, s43, {D*2}")
        p("s_add_u32 s43, s43, s41")
        p(f"buffer_load_dwordx4 v3, s[{AUX2}:{AUX2+3}], s43 offen lds", tag='pd')
        p.label(f"P_SKIP{i}")
    p("s_waitcnt vmcnt(0)")
    for i in range(NI):
        p(f"ds_read_b64_tr_b16 {v(16+4*i,2)}, v5 offset:{i*1024}")
        p(f"ds_read_b64_tr_b16 {v(16+4*i+2,2)}, v5 offset:{i*1024+512}")
    p("s_waitcnt lgkmcnt(0)")
    for i in range(NI):
        f=50+i
        p(f"s_cmp_ge_u32 s{f}, 1232")
        p(f"s_cbranch_scc1 P_SK2{i}")
        p(f"s_lshl_b32 s41, s{f}, 10")
        p(f"s_add_u32 s41, s41, {WS_WC}")
        p(f"buffer_store_dwordx4 {v(16+4*i,4)}, v1, s[{WS}:{WS+3}], s41 offen{SM()}")
        p.label(f"P_SK2{i}")

def gen(force_fallback=False):
    p=Prog(); prologue(p)
    n0=PR.n
    p.begin_alt()
    p.alt_branch()
    p("s_mov_b32 s48, 0"); p("s_mov_b32 s49, -1")
    if ONLY=='g': p("s_branch K2_END")
    if layout.FUSE: phase1_wait(p)
    attention(p, force_fallback); attention_publish(p)
    stamp(p,'published')
    role_sync(p,0,"A_SYNC")
    stamp(p,'barrier')
    attention_finish(p)
    stamp(p,'finished')
    p(f"s_lshl_b32 s62, s{SQB}, 2")
    p(f"s_add_u32 s62, s62, s{SW}")
    signal(p, 62, SHEAD)
    stamp(p,'end')
    p(f"s_cmp_ge_u32 s{SJ}, 28")
    p("s_cbranch_scc1 K2_AEXIT")
    final_attention(p)
    namesA=list(PR.names); PR.n=n0; PR.names=PR.names[:n0]
    p.alt_branch()
    p.label("K2_ROLEB")
    p(f"s_cmp_ge_u32 s{SJ}, 28")
    p("s_cbranch_scc1 K2_WPF" if WPF else "s_cbranch_scc1 K2_END")
    if ONLY=='a': p("s_branch K2_END")
    gemm(p); stamp(p,'loopend'); gemm_publish(p)
    stamp(p,'published')
    if not GTAG: role_sync(p,1,"B_SYNC")
    stamp(p,'barrier')
    gemm_finish(p)
    p(f"v_mov_b32 v12, {LDS_CNT+8}")
    p("v_mov_b32 v13, 1")
    p("s_mov_b64 exec, 1")
    p("ds_add_u32 v12, v13")
    p("s_mov_b64 exec, -1")
    stamp(p,'finished')
    p(f"s_add_u32 s62, s{SFB}, 16")
    if WFIRST:
        final_ids(p)
        p(f"s_mul_i32 s77, s23, {NK3}")
        frag_loads(p, 68, 77, NK3, lambda k: W30+4*k, LM())
        stamp(p,'wissued')
        signal(p, 46, 62, 'hst')
        stamp(p,'end')
        p(f"s_cmp_lg_u32 s23, {POLLW}")
        p("s_cbranch_scc1 K2_FH")
        poll_flags(p, "0x3fffffff", "K2_GPOLL")
        p("s_branch K2_FH")
    else:
        signal(p, 46, 62)
        stamp(p,'end')
        final_gemm(p)
    namesB=list(PR.names)
    p.end_alt()
    PR.n=24; PR.names=[]
    final_common(p)
    dump_stamps(p,8)
    p("s_branch K2_END")
    texts=[p.finalize()]
    p=Prog()
    p.label("K2_AEXIT")
    dump_stamps(p,8)
    p("s_branch K2_END")
    if WPF:
        p.label("K2_WPF")
        kernarg_ready(p)
        if layout.FUSE or LATEBAR==1: p("s_barrier")
        lds_wait(p, 0, 1, "K2_WPFW")
        p(f"s_sub_u32 s61, s{SJ}, 28")
        p("s_lshl_b32 s61, s61, 2")
        p(f"s_add_u32 s61, s61, s{SW}")
        p(f"s_mul_i32 s61, s61, {616*128}")
        p(f"s_add_u32 s61, s61, {WS_WC}")
        p("v_lshlrev_b32 v12, 7, v0")
        for i in range(10):
            p(f"buffer_load_dword v13, v12, s[{WS}:{WS+3}], s61 offen")
            if i<9: p("s_add_u32 s61, s61, 8192")
    p.label("K2_END")
    p("s_endpgm")
    if PR.on:
        pad=lambda L: L+['-']*(24-len(L))
        open('k2_stamps.txt','w').write(" ".join(pad(namesA)+PR.names)+"\n"+" ".join(pad(namesB)+PR.names))
    texts.append(p.finalize())
    return "".join(texts)

def kernel(**opt):
    global PROF, PR, PRION, SKIPDMA, PRIOPAT, STARTPRIO, ONLY, WPF
    WPF=int(opt.get('wpf',1))
    global DELAYW
    DELAYW=int(opt.get('dw',1))
    global ROT, KINT, EARLYRING, FPF, CODEPF2, FROT
    FROT=int(opt.get('frot',0))
    global HMOD, EARLYPUB, LATEBAR, POLLW, OMOD, PRIOLATE, ACQ, EPOLL
    EPOLL=int(opt.get('epoll',0))
    global FSH, WFIRST, AWAIT, EARLYZ, GTAG, TAILTM, DSL, ASL
    DSL,ASL={'0':([0,1,2,3,4,5,6,7],[9,11,13,15]),'1':([0,2,4,6,8,10,12,14],[1,5,9,13]),'2':([0,1,3,4,6,7,9,10],[12,13,14,15]),'3':([4,5,6,7,8,9,10,11],[0,1,2,3]),'4':([0,1,2,3,8,9,10,11],[5,7,13,15])}[opt.get('vs','0')]
    TAILTM=int(opt.get('ttm',0))
    EARLYZ=int(opt.get('ez',1)); GTAG=int(opt.get('gtag',0))
    WFIRST=int(opt.get('wfirst',0)); AWAIT=int(opt.get('await',1))
    FSH=int(opt.get('fsh',4))
    ACQ=int(opt.get('acq',0))
    PRIOLATE=int(opt.get('plate',0))
    OMOD={'0':'','1':' sc1','2':' nt','3':' sc0 sc1'}[opt.get('omod','1')]
    POLLW=int(opt.get('pollw',7))
    LATEBAR=int(opt.get('lb',2))
    EARLYPUB=int(opt.get('epub',1))
    HMOD={'0':'','1':' sc1','2':' nt','3':' sc0 sc1'}[opt.get('hmod','1')]
    CODEPF2=int(opt.get('cpf2',0))
    FPF=int(opt.get('fpf',0))
    EARLYRING=int(opt.get('er',1))
    ROT=int(opt.get('rot',3)); KINT=int(opt.get('kint',1))
    ONLY=opt.get('only','')
    STARTPRIO=int(opt.get('sp',0))
    PRIOPAT=opt.get('pp','')
    SKIPDMA=int(opt.get('skipdma',0))
    PRION=int(opt.get('prion',0))
    PROF=bool(int(opt.get('prof',0)))
    PR=Prof(PROF,WS,23,WS_ST+(1<<19),vr=15)
    return dict(name="k2_kernel", text=gen(force_fallback=bool(int(opt.get('ff',0)))), grid=256, block=512, lds=LDS_K2, vgpr=256, sgpr=102, accum=256)
```

```python
import sys
from layout import *
import importlib

HEADER = open("cdna_kernels/%s.s.ref" % NAME).read().split("; Override launch geometry")[0]

DESC = """;
"""

def desc(name, vgpr, sgpr, accum):
    return f""".amdhsa_kernel {name}
  .amdhsa_next_free_vgpr {vgpr}
  .amdhsa_next_free_sgpr {sgpr}
  .amdhsa_accum_offset {accum}
  .amdhsa_group_segment_fixed_size 0
  .amdhsa_kernarg_size 88
  .amdhsa_user_sgpr_count 2
  .amdhsa_user_sgpr_kernarg_segment_ptr 1
  .amdhsa_system_sgpr_workgroup_id_x 1
  .amdhsa_float_denorm_mode_32 3
.end_amdhsa_kernel
"""

def build(kernels):
    out = HEADER
    for k in kernels:
        if k.get('single'): out += f"; @launch grid=({k['grid']},1,1) block=({k['block']},1,1) lds={k['lds']}\n"
        else: out += f"; @launch kernel={k['name']} grid=({k['grid']},1,1) block=({k['block']},1,1) lds={k['lds']}\n"
    out += DESC
    out += '.amdgcn_target "amdgcn-amd-amdhsa--gfx950"\n.text\n'
    for k in kernels:
        out += f".globl {k['name']}\n.p2align 8\n.type {k['name']},@function\n{k['name']}:\n"
        out += k['text']
    out += 'CODE_END:\n    s_endpgm\n'
    out += '.section .rodata,"a"\n'
    for k in kernels:
        out += ".p2align 6\n" + desc(k['name'], k['vgpr'], k['sgpr'], k['accum'])
    return out

def all_kernels(which="123", **opt):
    import layout
    layout.STMOD={'0':'','1':' sc1','2':' sc0 sc1','3':' nt'}[opt.get('st','1')]
    ks = []
    layout.FUSE = (which == "F")
    if which == "F":
        import k1, k2; importlib.reload(k1); importlib.reload(k2)
        a = k1.kernel(**opt); c = k2.kernel(**opt)
        return [dict(name=NAME+"_kernel", text=a['text']+c['text'], grid=256, block=512, lds=163840, vgpr=256, sgpr=102, accum=256, single=True)]
    if "1" in which:
        import k1; importlib.reload(k1)
        ks.append(k1.kernel(**opt))
    if "2" in which:
        import k2; importlib.reload(k2)
        ks.append(k2.kernel(**opt))
    if "3" in which:
        import k3; importlib.reload(k3)
        ks.append(dict(name="k3_kernel", text=k3.gen_k3(prof=bool(int(opt.get('prof',0)))).finalize(), grid=224, block=256, lds=4*64*272, vgpr=256, sgpr=96, accum=256))
    return ks

if __name__ == "__main__":
    which = sys.argv[1] if len(sys.argv) > 1 else "123"
    path = sys.argv[2] if len(sys.argv) > 2 else "cdna_kernels/%s.s" % NAME
    opt = dict(a.split("=") for a in sys.argv[3:])
    text = build(all_kernels(which, **opt))
    open(path, "w").write(text)
    print("wrote", path, len(text), "bytes")
```
